```python
import torch

def _softmax(x, axis=-1):
    return torch.softmax(x, dim=axis)
def _gelu(x):
    return torch.nn.functional.gelu(x, approximate="tanh")
def _silu(x):
    return torch.nn.functional.silu(x)
def _sigmoid(x):
    return torch.sigmoid(x)
def _layernorm(x, axis=-1, eps=1e-5):
    m = x.mean(dim=axis, keepdim=True)
    v = x.var(dim=axis, keepdim=True, unbiased=False)
    return (x - m) / torch.sqrt(v + eps)
def _scatter_add(tgt, idx, src, axis=0):
    return tgt.clone().index_add_(axis, idx, src)
def _segment_sum(src, seg, n):
    out = torch.zeros((n,) + src.shape[1:], dtype=src.dtype)
    return out.index_add_(0, seg, src)
def _pad(x, pw):
    flat = tuple(v for pair in reversed(pw) for v in pair)
    return torch.nn.functional.pad(x, flat)

kernel_name = 'standalone__linear_kernel_rfa__prompt'

def setup_inputs():

    _w = (lambda a: (lambda t: t.to(torch.bfloat16) if t.is_floating_point() else t)(torch.as_tensor(a)))
    B, H, Sq, Sk, D, M = 1, 32, 2048, 2048, 192, 8
    return {
        "q": _w((lambda *s: torch.randn(*s, dtype=torch.bfloat16) * 0.05)(B, H, Sq, D)),
        "k": _w((lambda *s: torch.randn(*s, dtype=torch.bfloat16) * 0.4)(B, H, Sk, D)),
        "v": _w((lambda *s: torch.randn(*s, dtype=torch.bfloat16) * 0.4)(B, H, Sk, D)),
        "omega": _w((lambda *s: torch.randn(*s, dtype=torch.bfloat16) * 0.8)(M, D)),
    }

def reference(q, k, v, omega):
    d = q.shape[-1]
    m = omega.shape[0]
    scale = float(d) ** -0.25
    qs = q * scale
    ks = k * scale
    q_proj = torch.einsum("bhsd,md->bhsm", qs, omega)
    k_proj = torch.einsum("bhsd,md->bhsm", ks, omega)
    q_sq = 0.5 * torch.einsum("bhsd,bhsd->bhs", qs, qs)[..., None]
    k_sq = 0.5 * torch.einsum("bhsd,bhsd->bhs", ks, ks)[..., None]
    inv_sqrt_m = float(m) ** -0.5
    phi_q = torch.exp(q_proj - q_sq) * inv_sqrt_m + 1e-6
    phi_k = torch.exp(k_proj - k_sq) * inv_sqrt_m + 1e-6
    kv = torch.einsum("bhsm,bhsd->bhmd", phi_k, v)
    z  = torch.einsum("bhsm->bhm", phi_k)
    num = torch.einsum("bhqm,bhmd->bhqd", phi_q, kv)
    den = torch.einsum("bhqm,bhm->bhq", phi_q, z)[..., None] + 1e-6
    return num / den
```

```python
import re

TRANS = ("v_exp_f32", "v_log_f32", "v_rcp_f32", "v_rsq_f32", "v_sqrt_f32", "v_sin_f32", "v_cos_f32",
         "v_rcp_iflag_f32", "v_exp_f16", "v_log_f16", "v_rcp_f16", "v_rsq_f16", "v_sqrt_f16")

REG_RE = re.compile(r"^(-|abs\()?\|?([vsa])(\d+)\|?\)?$")
RNG_RE = re.compile(r"^(-|abs\()?\|?([vsa])\[(\d+):(\d+)\]\|?\)?$")


def regs_of(tok):
    tok = tok.strip()
    m = REG_RE.match(tok)
    if m:
        return {(m.group(2), int(m.group(3)))}
    m = RNG_RE.match(tok)
    if m:
        return {(m.group(2), i) for i in range(int(m.group(3)), int(m.group(4)) + 1)}
    if tok == "vcc":
        return {("s", "vcc_lo"), ("s", "vcc_hi")}
    if tok in ("vcc_lo", "vcc_hi"):
        return {("s", tok)}
    if tok == "exec":
        return {("s", "exec_lo"), ("s", "exec_hi")}
    if tok in ("exec_lo", "exec_hi", "m0"):
        return {("s", tok)}
    return set()


def mfma_info(mn):
    if mn.startswith("v_mfma_f32_16x16x4_f32"):
        return ("sgemm", 8)
    if mn.startswith("v_mfma_f32_32x32x2_f32"):
        return ("sgemm", 16)
    if mn.startswith("v_mfma_f32_4x4x1_16b_f32") or mn.startswith("v_mfma_f32_4x4x1f32"):
        return ("sgemm", 2)
    if "16x16x1_4b_f32" in mn:
        return ("sgemm", 8)
    if "32x32x1_2b_f32" in mn:
        return ("sgemm", 16)
    if re.match(r"v_mfma_(f32|i32)_16x16x(32|16|64)_", mn):
        return ("xdl", 4)
    if re.match(r"v_mfma_(f32|i32)_32x32x(16|8|32)_", mn):
        return ("xdl", 8)
    if re.match(r"v_mfma_f32_4x4x4_16b", mn):
        return ("xdl", 2)
    raise ValueError("unknown mfma " + mn)


class Ins:
    def accum_only(self, regs):
        ops = [o.strip() for o in self.text.split(None, 1)[1].split(",")]
        ab = set()
        for o in ops[1:]:
            ab |= regs_of(o.split()[0])
        return not (regs & ab)

    __slots__ = ("text", "mn", "kind", "dst", "src", "label", "target", "states", "srcA", "srcB", "srcC",
                 "mcls", "passes", "wide_store", "data", "is_trans", "lds_dma", "dpp", "raw")

    def __init__(self, text):
        self.raw = text
        t = text.split(";")[0].split("//")[0].strip()
        self.text = t
        self.label = None
        self.target = None
        self.kind = "none"
        self.dst, self.src = set(), set()
        self.srcA = self.srcB = self.srcC = set()
        self.mcls = None
        self.passes = 0
        self.wide_store = False
        self.data = set()
        self.is_trans = False
        self.lds_dma = False
        self.dpp = False
        self.states = 0
        self.mn = ""
        if not t:
            return
        if t.endswith(":"):
            self.label = t[:-1]
            self.kind = "label"
            return
        if t.startswith("."):
            self.kind = "dir"
            return
        parts = t.split(None, 1)
        mn = parts[0]
        for suf in ("_e32", "_e64", "_dpp", "_sdwa"):
            if mn.endswith(suf):
                if suf == "_dpp":
                    self.dpp = True
                mn = mn[: -len(suf)]
        self.mn = mn
        rest = parts[1] if len(parts) > 1 else ""
        rest = re.sub(r"\s(op_sel|op_sel_hi|neg_lo|neg_hi|quad_perm):\[[^\]]*\]", lambda m: " " + m.group(1), rest)
        ops = [o.strip() for o in rest.split(",")] if rest else []
        if ops:
            last = ops[-1].split()
            mods = last[1:]
            ops[-1] = last[0] if last else ""
        else:
            mods = []
        if any(m.startswith(("row_", "quad_perm", "wave_", "row_bcast")) for m in mods):
            self.dpp = True
        self.states = 1
        R = [regs_of(o) for o in ops]
        if mn == "s_nop":
            self.kind = "nop"
            self.states = int(ops[0], 0) + 1
            return
        if mn.startswith("v_mfma"):
            self.kind = "mfma"
            self.mcls, self.passes = mfma_info(mn)
            self.dst = R[0]
            self.srcA, self.srcB, self.srcC = R[1], R[2], R[3]
            self.src = R[1] | R[2] | R[3]
            return
        if mn.startswith("v_"):
            self.kind = "valu"
            self.is_trans = mn in TRANS
            if mn.startswith("v_cmpx"):
                self.dst = R[0] | regs_of("exec")
                self.src = set().union(*R[1:])
            elif mn in ("v_add_co_u32", "v_sub_co_u32", "v_subrev_co_u32"):
                self.dst = R[0] | R[1]
                self.src = set().union(*R[2:])
            elif mn in ("v_addc_co_u32", "v_subb_co_u32"):
                self.dst = R[0] | R[1]
                self.src = set().union(*R[2:])
            elif mn.startswith("v_permlane") and "swap" in mn:
                self.dst = R[0] | R[1]
                self.src = R[0] | R[1]
            elif mn in ("v_fmac_f32", "v_dot2c_f32_bf16", "v_pk_fmac_f16", "v_dot2c_f32_f16", "v_writelane_b32"):
                self.dst = R[0]
                self.src = set().union(*R)
            else:
                self.dst = R[0]
                self.src = set().union(*R[1:]) if len(R) > 1 else set()
                if mn == "v_cndmask_b32" and len(ops) == 3:
                    self.src |= regs_of("vcc")
            return
        if mn.startswith("buffer_") or mn.startswith("global_") or mn.startswith("flat_"):
            self.kind = "vmem"
            allmods = " ".join(mods)
            if mn in ("buffer_wbl2", "buffer_inv"):
                return
            lds = " lds" in " " + allmods or (ops and ops[-1] == "lds")
            if "load" in mn:
                if lds or "load_lds" in mn:
                    self.lds_dma = True
                    self.src = set().union(*R) | {("s", "m0")}
                else:
                    self.dst = R[0]
                    self.src = set().union(*R[1:])
            elif "store" in mn:
                if mn.startswith("buffer_"):
                    self.data = R[0]
                else:
                    self.data = R[1]
                self.src = set().union(*R)
                self.wide_store = mn.endswith("x3") or mn.endswith("x4")
            elif "atomic" in mn:
                self.src = set().union(*R)
                if "sc0" in allmods:
                    self.dst = R[0]
            return
        if mn.startswith("ds_"):
            self.kind = "ds"
            if mn.startswith("ds_read") or mn.startswith("ds_bpermute") or mn.startswith("ds_permute") or mn.startswith("ds_swizzle"):
                self.dst = R[0]
                self.src = set().union(*R[1:])
            else:
                self.src = set().union(*R)
            return
        if mn.startswith("s_"):
            self.kind = "salu"
            if mn in ("s_branch",) or mn.startswith("s_cbranch"):
                self.kind = "branch"
                self.target = ops[0]
                return
            if mn in ("s_endpgm", "s_barrier", "s_waitcnt", "s_sleep", "s_setprio", "s_sethalt"):
                return
            if mn.startswith("s_cmp") or mn.startswith("s_bitcmp"):
                self.src = set().union(*R)
                return
            if mn.startswith("s_load") or mn.startswith("s_buffer_load") or mn in ("s_memtime", "s_memrealtime"):
                self.kind = "smem"
                self.dst = R[0]
                self.src = set().union(*R[1:]) if len(R) > 1 else set()
                return
            self.dst = R[0] if R else set()
            self.src = set().union(*R[1:]) if len(R) > 1 else set()
            if "saveexec" in mn:
                self.dst |= regs_of("exec")
                self.src |= regs_of("exec")
            return
        raise ValueError("cannot parse: " + text)


def isv(rs):
    return {r for r in rs if r[0] in ("v", "a")}


def iss(rs):
    return {r for r in rs if r[0] == "s"}


def need(p, c):
    best, why = 0, ""

    def req(n, w):
        nonlocal best, why
        if n > best:
            best, why = n, w

    XDL_VALU = {2: 5, 4: 8, 8: 12, 16: 20}
    XDL_C_OVL = {2: 4, 4: 6, 8: 10, 16: 18}
    XDL_SG_C = {2: 3, 4: 6, 8: 10, 16: 18}
    SG_VALU = {2: 4, 4: 6, 8: 10, 16: 18}
    SG_C_OVL = {2: 2, 4: 4, 8: 8, 16: 16}
    XDL_CREAD_WAR = {2: 1, 4: 3, 8: 7, 16: 15}
    if p.kind == "valu":
        pv = isv(p.dst)
        ps = iss(p.dst)
        if p.mn.startswith("v_dot"):
            if pv & (c.src | c.dst):
                if c.mn == p.mn and c.mn.startswith("v_dot2c") and c.accum_only(pv):
                    pass
                else:
                    req(3, "dlop->other")
        if c.kind == "mfma" and pv & c.src:
            req(2, "valu->mfma")
        if c.kind == "mfma" and ("s", "exec_lo") in ps:
            req(4, "valu exec->mfma")
        if p.is_trans and c.kind == "valu" and not c.is_trans and pv & c.src:
            req(1, "trans->valu")
        if p.is_trans and c.kind == "valu" and c.is_trans and pv & c.src:
            req(1, "trans->trans (conservative)")
        if c.kind == "vmem" and ps & c.src:
            req(5, "valu sgpr->vmem")
        if c.kind == "valu" and ps & c.src:
            if c.mn in ("v_readlane_b32", "v_writelane_b32", "v_div_fmas_f32"):
                req(4, "valu sgpr->lane select")
            else:
                req(2, "valu sgpr->valu read")
        if c.kind == "valu" and c.mn in ("v_readlane_b32", "v_readfirstlane_b32") and pv & c.src:
            req(1, "valu->readlane")
        if c.kind == "valu" and c.mn.startswith("v_permlane") and pv & c.src:
            req(2, "valu->permlane")
        if c.kind == "valu" and c.dpp and pv & c.src:
            req(2, "valu->dpp")
        if ("s", "exec_lo") in ps and c.kind == "valu":
            if c.dpp:
                req(5, "exec->dpp")
            if c.mn in ("v_readlane_b32", "v_readfirstlane_b32", "v_writelane_b32") or c.mn.startswith("v_permlane"):
                req(4, "cmpx->lane")
        if ps and c.kind in ("salu", "smem") and ps & c.src:
            req(1, "valu sgpr->salu (padded)")
    if p.kind == "mfma":
        d = p.dst
        n = p.passes
        if p.mcls == "xdl":
            if c.kind == "mfma":
                if d & (c.srcA | c.srcB):
                    req(XDL_VALU[n], "xdl D->mfma A/B")
                if d & c.srcC:
                    if c.mcls == "xdl":
                        if d == c.srcC and c.passes == n:
                            req(2 if n == 2 else 0, "chain")
                        else:
                            req(XDL_C_OVL[n], "xdl D->xdl C overlap")
                    else:
                        req(XDL_SG_C[n], "xdl D->sgemm C")
                elif d & c.dst:
                    req(XDL_C_OVL[n], "xdl D->mfma D WAW (conservative)")
            elif c.kind in ("valu", "vmem", "ds"):
                if d & (c.src | c.dst):
                    req(XDL_VALU[n], "xdl D->valu/mem")
            if c.kind == "valu" and p.srcC & isv(c.dst):
                req(XDL_CREAD_WAR[n], "xdl C read->valu write")
        else:
            if c.kind == "mfma":
                if d & (c.srcA | c.srcB):
                    req(SG_VALU[n], "sgemm D->A/B")
                if d & c.srcC:
                    if c.mcls == "sgemm":
                        if d == c.srcC and c.passes == n:
                            req(2 if n == 2 else 0, "chain")
                        else:
                            req(SG_C_OVL[n], "sgemm D->sgemm C overlap")
                elif d & c.dst:
                    req(SG_VALU[n], "sgemm D->mfma WAW (conservative)")
            elif c.kind in ("valu", "vmem", "ds"):
                if d & (c.src | c.dst):
                    req(SG_VALU[n], "sgemm D->valu/mem")
    if p.kind == "vmem" and p.wide_store:
        if p.data & isv(c.dst):
            if c.kind == "valu":
                req(2, "wide store data WAR valu")
            else:
                req(1, "wide store data WAR")
    if p.kind in ("salu", "smem") and ("s", "m0") in p.dst and c.lds_dma:
        req(1, "m0->lds dma")
    return best, why


def parse(lines):
    return [Ins(l) for l in lines]


def deficits(ins):
    labels = {x.label: i for i, x in enumerate(ins) if x.label}
    preds = {i: [] for i in range(len(ins))}
    for i, x in enumerate(ins):
        if x.kind == "branch":
            if x.target in labels:
                preds[labels[x.target]].append(i)
            if x.mn != "s_branch" and i + 1 < len(ins):
                preds[i + 1].append(i)
        elif x.mn == "s_endpgm":
            pass
        elif i + 1 < len(ins):
            preds[i + 1].append(i)
    out = {}
    MAXD = 21
    for ci, c in enumerate(ins):
        if c.kind in ("none", "label", "dir", "nop"):
            continue
        worst = 0
        wwhy = ""
        stack = [(p, 0) for p in preds[ci]]
        seen = {}
        while stack:
            pi, dist = stack.pop()
            if seen.get(pi, 99) <= dist:
                continue
            seen[pi] = dist
            p = ins[pi]
            if p.states:
                n, why = need(p, c)
                if n - dist > worst:
                    worst, wwhy = n - dist, "%s: [%s] -> [%s]" % (why, p.text, c.text)
            nd = dist + p.states
            if nd < MAXD:
                for q in preds[pi]:
                    stack.append((q, nd))
        if worst:
            out[ci] = (worst, wwhy)
    return out


def fix(lines, verbose=False):
    lines = list(lines)
    total = 0
    for _ in range(50):
        ins = parse(lines)
        d = deficits(ins)
        if not d:
            return lines, total
        first = min(d)
        n, why = d[first]
        if verbose:
            print("hazard: insert %d states: %s" % (n, why))
        pad = []
        while n > 0:
            k = min(n, 16)
            pad.append("    s_nop %d" % (k - 1))
            n -= k
        lines[first:first] = pad
        total += 1
    while True:
        ins = parse(lines)
        d = deficits(ins)
        if not d:
            return lines, total
        first = min(d)
        n, why = d[first]
        if verbose:
            print("hazard: insert %d states: %s" % (n, why))
        pad = []
        while n > 0:
            k = min(n, 16)
            pad.append("    s_nop %d" % (k - 1))
            n -= k
        lines[first:first] = pad
        total += 1


if __name__ == "__main__":
    import sys
    L = open(sys.argv[1]).read().splitlines()
    ins = []
    for l in L:
        ins.append(l)
    try:
        d = deficits(parse(ins))
    except Exception as e:
        raise
    for k in sorted(d):
        print(k + 1, d[k])
    print("deficits:", len(d))
```

```python
import struct, sys, os, math
sys.path.insert(0, os.path.dirname(os.path.abspath(__file__)))
import hazard

NAME = "standalone__linear_kernel_rfa__prompt"


def f32(x):
    return struct.unpack("<I", struct.pack("<f", x))[0]


def hx(x):
    return "0x%08x" % (x & 0xFFFFFFFF)


D = 192
RB = 384
TENSOR_BYTES = 32 * 2048 * RB
PART_BYTES = 13 * 512
WS_BYTES = 268435456
SCALE = float(D) ** -0.25
LOG2E = 1.4426950408889634
C_EXP = SCALE * LOG2E
C_SQ = -0.5 * SCALE
C_BIAS = -1.5


def vr(a, n=1):
    return "v%d" % a if n == 1 else "v[%d:%d]" % (a, a + n - 1)


def sr(a, n=1):
    return "s%d" % a if n == 1 else "s[%d:%d]" % (a, a + n - 1)


S_Q, S_K, S_V, S_W = 4, 6, 8, 10
S_O, S_DBG, S_WS = 12, 14, 16
S_WAVE = 18
S_TMP = 19
SRD_K, SRD_V, SRD_W, SRD_WS, SRD_Q, SRD_O, SRD_DBG = 20, 24, 28, 32, 36, 40, 44
S_B0, S_B1 = 48, 49
S_SELLO, S_SELHI = 50, 51
S_CEXP = 52
S_H, S_C = 53, 54
S_PART = 55
S_HPART = 56
S_T0, S_T1, S_T2, S_T3 = 57, 58, 59, 60
S_EXEC = 62
S_STAMP = 64
S_PROF = 66
S_CNT = 67

V_TID = 0
V_LANE = 1
V_OK = 2
V_OVA = 3
V_OVB = 4
V_OW = 5
V_CSQ = 6
V_M15 = 7
V_W = 8
V_K = 32
V_VA = 80
V_VB = 112
V_Q = 128
V_ACC = 176
V_DP = 228
V_SS = 236
V_P = 240
V_B0 = 244
V_B1 = 248
V_ONE = 252
V_AT = 80
V_X = 106


class Gen:
    def __init__(self, opts):
        self.L = []
        self.o = opts
        self.uid = 0

    def __call__(self, s):
        for l in s.split("\n"):
            self.L.append("    " + l.strip() if l.strip() and not l.strip().endswith(":") else l.strip())

    def label(self, base):
        self.uid += 1
        return "%s_%d" % (base, self.uid)

    def stamp(self, idx):
        if not self.o.get("prof"):
            return
        e = self
        e("s_memrealtime %s" % sr(S_STAMP, 2))
        e("s_waitcnt lgkmcnt(0)")
        e("v_mov_b32 v254, %s" % sr(S_STAMP))
        e("v_mov_b32 v255, %s" % sr(S_STAMP + 1))
        e("v_mov_b32 v253, %s" % sr(S_PROF))
        e("s_mov_b64 %s, exec" % sr(S_EXEC + 6, 2))
        e("s_mov_b64 exec, 1")
        e("buffer_store_dwordx2 v[254:255], v253, %s, 0 offen offset:%d" % (sr(SRD_WS, 4), idx * 8))
        e("s_mov_b64 exec, %s" % sr(S_EXEC + 6, 2))

    def prologue(self, end_label):
        e = self
        e("s_cmp_ge_u32 s2, 256")
        e("s_cbranch_scc1 %s" % end_label)
        e("s_load_dwordx8 s[4:11], s[0:1], 0")
        e("s_load_dwordx4 s[12:15], s[0:1], 32")
        e("s_load_dwordx2 s[16:17], s[0:1], 48")
        e("v_and_b32 v%d, 63, v0" % V_LANE)
        e("v_lshrrev_b32 v8, 6, v0")
        e("v_and_b32 v9, 15, v0")
        e("v_bfe_u32 v10, v0, 4, 2")
        e("v_readfirstlane_b32 %s, v8" % sr(S_WAVE))
        e("v_mul_u32_u24 v11, %d, v9" % RB)
        e("v_lshlrev_b32 v12, 4, v10")
        e("v_add_u32 v%d, v11, v12" % V_OK)
        e("v_mul_u32_u24 v13, %d, v10" % (4 * RB))
        e("v_lshlrev_b32 v14, 4, v9")
        e("v_add_u32 v%d, v13, v14" % V_OVA)
        e("v_lshlrev_b32 v14, 3, v9")
        e("v_add_u32 v13, 256, v13")
        e("v_add_u32 v%d, v13, v14" % V_OVB)
        e("v_and_b32 v14, 7, v9")
        e("v_mul_u32_u24 v14, %d, v14" % RB)
        e("v_add_u32 v%d, v14, v12" % V_OW)
        e("v_mov_b32 v%d, %s" % (V_CSQ, hx(f32(C_SQ))))
        e("v_mov_b32 v%d, %s" % (V_M15, hx(f32(C_BIAS))))
        e("s_and_b32 %s, s2, 7" % sr(S_T0))
        e("s_lshr_b32 %s, s2, 6" % sr(S_T1))
        e("s_lshl_b32 %s, %s, 3" % (sr(S_T1), sr(S_T1)))
        e("s_or_b32 %s, %s, %s" % (sr(S_H), sr(S_T0), sr(S_T1)))
        e("s_lshr_b32 %s, s2, 3" % sr(S_C))
        e("s_and_b32 %s, %s, 7" % (sr(S_C), sr(S_C)))
        e("s_mul_i32 %s, %s, %d" % (sr(S_T0), sr(S_H), 2048 * RB))
        e("s_mul_i32 %s, %s, %d" % (sr(S_T1), sr(S_C), 256 * RB))
        e("s_add_u32 %s, %s, %s" % (sr(S_T0), sr(S_T0), sr(S_T1)))
        e("s_mul_i32 %s, %s, %d" % (sr(S_T1), sr(S_WAVE), 32 * RB))
        e("s_add_u32 %s, %s, %s" % (sr(S_B0), sr(S_T0), sr(S_T1)))
        e("s_add_u32 %s, %s, %d" % (sr(S_B1), sr(S_B0), 16 * RB))
        e("s_mul_i32 %s, %s, %d" % (sr(S_HPART), sr(S_H), 8 * PART_BYTES))
        e("s_mul_i32 %s, %s, %d" % (sr(S_T1), sr(S_C), PART_BYTES))
        e("s_add_u32 %s, %s, %s" % (sr(S_PART), sr(S_HPART), sr(S_T1)))
        e("s_mov_b32 %s, 0x05040100" % sr(S_SELLO))
        e("s_mov_b32 %s, 0x07060302" % sr(S_SELHI))
        e("s_mov_b32 %s, %s" % (sr(S_CEXP), hx(f32(C_EXP))))
        if self.o.get("prof"):
            e("s_lshl_b32 %s, s2, 3" % sr(S_PROF))
            e("s_add_u32 %s, %s, %s" % (sr(S_PROF), sr(S_PROF), sr(S_WAVE)))
            e("s_lshl_b32 %s, %s, 7" % (sr(S_PROF), sr(S_PROF)))
            e("s_add_u32 %s, %s, 0x%x" % (sr(S_PROF), sr(S_PROF), 128 << 20))
        e("s_waitcnt lgkmcnt(0)")
        for srd, ptr, nbytes in ((SRD_K, S_K, TENSOR_BYTES), (SRD_V, S_V, TENSOR_BYTES), (SRD_W, S_W, 8 * RB),
                                 (SRD_WS, S_WS, WS_BYTES), (SRD_Q, S_Q, TENSOR_BYTES), (SRD_O, S_O, TENSOR_BYTES),
                                 (SRD_DBG, S_DBG, 256)):
            e("s_mov_b32 %s, %s" % (sr(srd), sr(ptr)))
            e("s_and_b32 %s, %s, 0xffff" % (sr(srd + 1), sr(ptr + 1)))
            e("s_mov_b32 %s, 0x%x" % (sr(srd + 2), nbytes))
            e("s_mov_b32 %s, 0x20000" % sr(srd + 3))

    def load_w(self):
        for t in range(6):
            self("buffer_load_dwordx4 %s, v%d, %s, 0 offen offset:%d" % (vr(V_W + 4 * t, 4), V_OW, sr(SRD_W, 4), 64 * t))

    def load_rows(self, vbase, srd, mod=""):
        for T in range(2):
            for t in range(6):
                self("buffer_load_dwordx4 %s, v%d, %s, %s offen offset:%d%s" % (
                    vr(vbase + 24 * T + 4 * t, 4), V_OK, sr(srd, 4), sr(S_B0 + T), 64 * t, mod))

    def load_v(self, mod=""):
        for j in range(8):
            self("buffer_load_dwordx4 %s, v%d, %s, %s offen offset:%d%s" % (
                vr(V_VA + 4 * j, 4), V_OVA, sr(SRD_V, 4), sr(S_B0 + (j >> 2)), (j & 3) * RB, mod))
            self("buffer_load_dwordx2 %s, v%d, %s, %s offen offset:%d%s" % (
                vr(V_VB + 2 * j, 2), V_OVB, sr(SRD_V, 4), sr(S_B0 + (j >> 2)), (j & 3) * RB, mod))

    def proj(self, vbase, T, is_k):
        e = self
        dp = V_DP + 4 * T
        ss0, ss1 = V_SS + 2 * T, V_SS + 2 * T + 1
        e("v_mov_b32 v%d, 0" % ss0)
        e("v_mov_b32 v%d, 0" % ss1)
        for t in range(6):
            x = vbase + 24 * T + 4 * t
            c = "0" if t == 0 else vr(dp, 4)
            if is_k:
                e("v_mfma_f32_16x16x32_bf16 %s, %s, %s, %s" % (vr(dp, 4), vr(x, 4), vr(V_W + 4 * t, 4), c))
            else:
                e("v_mfma_f32_16x16x32_bf16 %s, %s, %s, %s" % (vr(dp, 4), vr(V_W + 4 * t, 4), vr(x, 4), c))
            for i in range(4):
                e("v_dot2c_f32_bf16 v%d, v%d, v%d" % ((ss0, ss1)[i & 1], x + i, x + i))
        e("v_add_f32 v%d, v%d, v%d" % (ss0, ss0, ss1))
        if is_k:
            e("v_mfma_f32_16x16x4_f32 %s, v%d, v%d, %s" % (vr(dp, 4), ss0, V_CSQ, vr(dp, 4)))
        else:
            e("v_mfma_f32_16x16x4_f32 %s, v%d, v%d, %s" % (vr(dp, 4), V_CSQ, ss0, vr(dp, 4)))

    def phi(self, T):
        e = self
        dp = V_DP + 4 * T
        for r in range(4):
            e("v_fma_f32 v%d, v%d, %s, v%d" % (dp + r, dp + r, sr(S_CEXP), V_M15))
        for r in range(4):
            e("v_exp_f32 v%d, v%d" % (dp + r, dp + r))
        for r in range(4):
            e("v_add_f32 v%d, %s, v%d" % (dp + r, hx(f32(1e-6)), dp + r))

    def kv_mfma(self):
        e = self
        e("v_cvt_pk_bf16_f32 v%d, v%d, v%d" % (V_P + 0, V_DP + 0, V_DP + 1))
        e("v_cvt_pk_bf16_f32 v%d, v%d, v%d" % (V_P + 1, V_DP + 2, V_DP + 3))
        e("v_cvt_pk_bf16_f32 v%d, v%d, v%d" % (V_P + 2, V_DP + 4, V_DP + 5))
        e("v_cvt_pk_bf16_f32 v%d, v%d, v%d" % (V_P + 3, V_DP + 6, V_DP + 7))

    def kv_tiles(self):
        e = self
        for i in range(4):
            e("v_mov_b32 v%d, 0x3f803f80" % (V_ONE + i))
        e("v_mfma_f32_16x16x32_bf16 %s, %s, %s, 0" % (vr(V_ACC + 48, 4), vr(V_P, 4), vr(V_ONE, 4)))
        for tau in range(12):
            b = (V_B0, V_B1)[tau & 1]
            if tau < 8:
                c, half = tau >> 1, tau & 1
                src = lambda j: V_VA + 4 * j + c
            else:
                c, half = (tau - 8) >> 1, (tau - 8) & 1
                src = lambda j: V_VB + 2 * j + c
            sel = (S_SELLO, S_SELHI)[half]
            for p in range(4):
                e("v_perm_b32 v%d, v%d, v%d, %s" % (b + p, src(2 * p + 1), src(2 * p), sr(sel)))
            e("v_mfma_f32_16x16x32_bf16 %s, %s, %s, 0" % (vr(V_ACC + 4 * tau, 4), vr(V_P, 4), vr(b, 4)))

    def wg_reduce_and_store(self, mod):
        e = self
        e("s_mul_i32 %s, %s, %d" % (sr(S_T0), sr(S_WAVE), PART_BYTES))
        e("v_lshlrev_b32 v%d, 4, v%d" % (V_B0, V_LANE))
        e("v_add_u32 v%d, %s, v%d" % (V_B0, sr(S_T0), V_B0))
        e("s_mov_b32 exec_lo, -1")
        e("s_mov_b32 exec_hi, 0")
        for tau in range(13):
            e("ds_write_b128 v%d, %s offset:%d" % (V_B0, vr(V_ACC + 4 * tau, 4), tau * 512))
        e("s_mov_b64 exec, -1")
        e("v_lshlrev_b32 v%d, 4, v0" % V_B1)
        e("s_waitcnt lgkmcnt(0)")
        e("s_barrier")
        skip = self.label("L_red_skip")
        e("v_cmp_gt_u32 vcc, 416, v0")
        e("s_and_saveexec_b64 %s, vcc" % sr(S_EXEC, 2))
        e("s_cbranch_execz %s" % skip)
        for w in range(8):
            e("ds_read_b128 %s, v%d offset:%d" % (vr(V_ACC + 4 * w, 4), V_B1, w * PART_BYTES))
        for w in range(1, 8):
            e("s_waitcnt lgkmcnt(%d)" % (7 - w))
            for r in range(4):
                e("v_add_f32 v%d, v%d, v%d" % (V_ACC + r, V_ACC + r, V_ACC + 4 * w + r))
        if self.o.get("sanitize"):
            for r in range(4):
                e("v_min_u32 v%d, -2, v%d" % (V_ACC + r, V_ACC + r))
        e("buffer_store_dwordx4 %s, v%d, %s, %s offen%s" % (vr(V_ACC, 4), V_B1, sr(SRD_WS, 4), sr(S_PART), mod))
        e("%s:" % skip)
        e("s_mov_b64 exec, %s" % sr(S_EXEC, 2))

    def table_addr(self):
        e = self
        x = V_X
        e("v_lshrrev_b32 v%d, 5, v0" % (x + 1))
        e("v_and_b32 v%d, 15, v0" % (x + 2))
        e("v_bfe_u32 v%d, v0, 4, 1" % (x + 3))
        e("v_lshl_add_u32 v%d, v%d, 3, v%d" % (x + 4, x + 2, x + 1))
        e("v_lshl_add_u32 v%d, v%d, 2, v%d" % (x + 5, x + 2, x + 1))
        e("v_add_u32 v%d, 120, v%d" % (x + 5, x + 5))
        e("v_cmp_gt_u32 vcc, 8, v%d" % (x + 1))
        e("v_cndmask_b32 v%d, v%d, v%d, vcc" % (x + 4, x + 5, x + 4))
        e("v_lshrrev_b32 v%d, 5, v%d" % (x + 5, x + 4))
        e("v_bfe_u32 v%d, v%d, 2, 1" % (x + 6, x + 4))
        e("v_lshl_add_u32 v%d, v%d, 1, v%d" % (x + 5, x + 5, x + 6))
        e("v_bfe_u32 v%d, v%d, 3, 2" % (x + 6, x + 4))
        e("v_and_b32 v%d, 3, v%d" % (x + 7, x + 4))
        e("v_lshl_add_u32 v%d, v%d, 2, v%d" % (x + 6, x + 6, x + 7))
        e("v_cmp_eq_u32 vcc, 12, v%d" % (x + 1))
        e("v_cndmask_b32 v%d, v%d, v%d, vcc" % (x + 5, x + 5, x + 1))
        e("v_cndmask_b32 v%d, v%d, v%d, vcc" % (x + 6, x + 6, x + 2))
        e("v_lshl_add_u32 v%d, v%d, 4, v%d" % (x + 6, x + 3, x + 6))
        e("v_lshlrev_b32 v%d, 3, v%d" % (x + 6, x + 6))
        e("v_lshl_add_u32 v%d, v%d, 9, v%d" % (x, x + 5, x + 6))

    def gather_partials(self, mod, lds_base):
        e = self
        skip = self.label("L_gat_skip")
        e("v_lshlrev_b32 v%d, 4, v0" % V_B1)
        e("v_cmp_gt_u32 vcc, 416, v0")
        e("s_and_saveexec_b64 %s, vcc" % sr(S_EXEC, 2))
        e("s_cbranch_execz %s" % skip)
        e("s_mov_b32 %s, %s" % (sr(S_T0), sr(S_HPART)))
        for c in range(8):
            e("buffer_load_dwordx4 %s, v%d, %s, %s offen%s" % (vr(V_ACC + 4 * c, 4), V_B1, sr(SRD_WS, 4), sr(S_T0), mod))
            if c < 7:
                e("s_add_u32 %s, %s, %d" % (sr(S_T0), sr(S_T0), PART_BYTES))
        self.table_addr()
        for c in range(1, 8):
            e("s_waitcnt vmcnt(%d)" % (7 - c))
            for r in range(4):
                e("v_add_f32 v%d, v%d, v%d" % (V_ACC + r, V_ACC + r, V_ACC + 4 * c + r))
        self.hilo_write(lds_base)
        e("%s:" % skip)
        e("s_mov_b64 exec, %s" % sr(S_EXEC, 2))

    def hilo_write(self, lds_base):
        e = self
        a = V_ACC
        hi = V_ACC + 8
        lo = V_ACC + 10
        t = V_ACC + 12
        e("v_cvt_pk_bf16_f32 v%d, v%d, v%d" % (hi, a, a + 1))
        e("v_cvt_pk_bf16_f32 v%d, v%d, v%d" % (hi + 1, a + 2, a + 3))
        e("v_lshlrev_b32 v%d, 16, v%d" % (t, hi))
        e("v_and_b32 v%d, 0xffff0000, v%d" % (t + 1, hi))
        e("v_lshlrev_b32 v%d, 16, v%d" % (t + 2, hi + 1))
        e("v_and_b32 v%d, 0xffff0000, v%d" % (t + 3, hi + 1))
        for r in range(4):
            e("v_sub_f32 v%d, v%d, v%d" % (t + r, a + r, t + r))
        e("v_cvt_pk_bf16_f32 v%d, v%d, v%d" % (lo, t, t + 1))
        e("v_cvt_pk_bf16_f32 v%d, v%d, v%d" % (lo + 1, t + 2, t + 3))
        e("ds_write_b64 v%d, %s offset:%d" % (V_X, vr(hi, 2), lds_base))
        e("ds_write_b64 v%d, %s offset:%d" % (V_X, vr(lo, 2), lds_base + 256))

    def read_table(self, lds_base):
        e = self
        e("v_lshlrev_b32 v%d, 3, v%d" % (V_B0, V_LANE))
        for t in range(13):
            e("ds_read_b64 %s, v%d offset:%d" % (vr(V_AT + 2 * t, 2), V_B0, lds_base + t * 512))

    def pack_phi_q(self, T):
        e = self
        dp = V_DP + 4 * T
        e("v_cvt_pk_bf16_f32 v%d, v%d, v%d" % (V_P + 2 * T, dp, dp + 1))
        e("v_cvt_pk_bf16_f32 v%d, v%d, v%d" % (V_P + 2 * T + 1, dp + 2, dp + 3))

    def out_tile(self, T, accbase, mod):
        e = self
        den = accbase + 48
        e("v_mfma_f32_16x16x16_bf16 %s, %s, %s, 0" % (vr(den, 4), vr(V_AT + 24, 2), vr(V_P + 2 * T, 2)))
        for t in range(12):
            e("v_mfma_f32_16x16x16_bf16 %s, %s, %s, 0" % (vr(accbase + 4 * t, 4), vr(V_AT + 2 * t, 2), vr(V_P + 2 * T, 2)))
        e("v_add_f32 v%d, %s, v%d" % (den, hx(f32(1e-6)), den))
        e("v_rcp_f32 v%d, v%d" % (den, den))
        for u in range(6):
            a = accbase + 8 * u
            for r in range(8):
                e("v_mul_f32 v%d, v%d, v%d" % (a + r, a + r, den))
            o = a
            e("v_cvt_pk_bf16_f32 v%d, v%d, v%d" % (o + 0, a + 0, a + 1))
            e("v_cvt_pk_bf16_f32 v%d, v%d, v%d" % (o + 1, a + 2, a + 3))
            e("v_cvt_pk_bf16_f32 v%d, v%d, v%d" % (o + 2, a + 4, a + 5))
            e("v_cvt_pk_bf16_f32 v%d, v%d, v%d" % (o + 3, a + 6, a + 7))
            e("buffer_store_dwordx4 %s, v%d, %s, %s offen offset:%d%s" % (
                vr(o, 4), V_OK, sr(SRD_O, 4), sr(S_B0 + T), 64 * u, mod))


def kd(name, vgpr=256, sgpr=96):
    return """.section .rodata,"a"
.p2align 6
.amdhsa_kernel %s
  .amdhsa_next_free_vgpr %d
  .amdhsa_next_free_sgpr %d
  .amdhsa_accum_offset %d
  .amdhsa_group_segment_fixed_size 0
  .amdhsa_kernarg_size 56
  .amdhsa_user_sgpr_count 2
  .amdhsa_user_sgpr_kernarg_segment_ptr 1
  .amdhsa_system_sgpr_workgroup_id_x 1
.end_amdhsa_kernel
""" % (name, vgpr, sgpr, (vgpr + 3) // 4 * 4)


HEADER = """; Kernarg layout (56 bytes): q, k, v, omega, out, debug, ws  (8-byte pointers)
"""


def kernel_text(name, g):
    lines, n = hazard.fix(g.L)
    return ".text\n.globl %s\n.p2align 8\n.type %s,@function\n%s:\n%s\n" % (name, name, name, "\n".join(lines))


def gen_split(opts):
    g = Gen(opts)
    g.prologue("L_end1")
    g.stamp(0)
    g.load_w()
    g.load_rows(V_K, SRD_K)
    g.load_v()
    g("s_waitcnt vmcnt(22)")
    g.proj(V_K, 0, True)
    g("s_waitcnt vmcnt(16)")
    g.proj(V_K, 1, True)
    g.phi(0)
    g.phi(1)
    g.kv_mfma()
    g.stamp(1)
    g("s_waitcnt vmcnt(0)")
    g.stamp(2)
    g.kv_tiles()
    g.wg_reduce_and_store("")
    g.stamp(3)
    g("L_end1:")
    g("s_endpgm")
    h = Gen(opts)
    h.uid = 1000
    h.prologue("L_end2")
    h.stamp(4)
    h.load_w()
    h.load_rows(V_Q, SRD_Q)
    h.gather_partials("", 0)
    h("s_waitcnt vmcnt(0) lgkmcnt(0)")
    h("s_barrier")
    h.read_table(0)
    for T in range(2):
        h.proj(V_Q, T, False)
        h.phi(T)
        h.pack_phi_q(T)
    h("s_waitcnt lgkmcnt(0)")
    h.stamp(5)
    h.out_tile(0, V_ACC, "")
    h.out_tile(1, V_K - 4, "")
    h.stamp(6)
    h("L_end2:")
    h("s_endpgm")
    lds1 = 8 * PART_BYTES
    lds2 = PART_BYTES
    txt = HEADER
    txt += "; @launch kernel=rfa_kv_kernel grid=(256,1,1) block=(512,1,1) lds=%d\n" % lds1
    txt += "; @launch kernel=rfa_out_kernel grid=(256,1,1) block=(512,1,1) lds=%d\n" % lds2
    txt += '.amdgcn_target "amdgcn-amd-amdhsa--gfx950"\n'
    txt += kernel_text("rfa_kv_kernel", g)
    txt += kernel_text("rfa_out_kernel", h)
    txt += kd("rfa_kv_kernel") + kd("rfa_out_kernel")
    return txt


if __name__ == "__main__":
    import argparse
    ap = argparse.ArgumentParser()
    ap.add_argument("variant")
    ap.add_argument("-o", default="cdna_kernels/%s.s" % NAME)
    ap.add_argument("--opt", action="append", default=[])
    a = ap.parse_args()
    opts = {}
    for kv in a.opt:
        k, _, v = kv.partition("=")
        opts[k] = (int(v, 0) if v else 1)
    txt = globals()["gen_" + a.variant](opts)
    open(a.o, "w").write(txt)
    print("wrote", a.o, len(txt))
```

```python
import struct, sys, os, math
sys.path.insert(0, os.path.dirname(os.path.abspath(__file__)))
import hazard

NAME = "standalone__linear_kernel_rfa__prompt"


def f32(x):
    return struct.unpack("<I", struct.pack("<f", x))[0]


def hx(x):
    return "0x%08x" % (x & 0xFFFFFFFF)


D = 192
RB = 384
TENSOR_BYTES = 32 * 2048 * RB
PART_BYTES = 13 * 512
WS_BYTES = 268435456
SCALE = float(D) ** -0.25
LOG2E = 1.4426950408889634
C_EXP = SCALE * LOG2E
C_SQ = -0.5 * SCALE
C_BIAS = -1.5


def vr(a, n=1):
    return "v%d" % a if n == 1 else "v[%d:%d]" % (a, a + n - 1)


def sr(a, n=1):
    return "s%d" % a if n == 1 else "s[%d:%d]" % (a, a + n - 1)


S_Q, S_K, S_V, S_W = 4, 6, 8, 10
S_O, S_DBG, S_WS = 12, 14, 16
S_WAVE = 18
S_TMP = 19
SRD_K, SRD_V, SRD_W, SRD_WS, SRD_Q, SRD_O, SRD_DBG = 20, 24, 28, 32, 36, 40, 44
S_B0, S_B1 = 48, 49
S_SELLO, S_SELHI = 50, 51
S_CEXP = 52
S_H, S_C = 53, 54
S_PART = 55
S_HPART = 56
S_T0, S_T1, S_T2, S_T3 = 57, 58, 59, 60
S_EXEC = 62
S_STAMP = 64
S_PROF = 66
S_CNT = 67

V_TID = 0
V_LANE = 1
V_OK = 2
V_OVA = 3
V_OVB = 4
V_OW = 5
V_CSQ = 6
V_M15 = 7
V_W = 8
V_K = 32
V_VA = 80
V_VB = 112
V_Q = 128
V_ACC = 176
V_DP = 228
V_SS = 236
V_P = 240
V_B0 = 244
V_B1 = 248
V_ONE = 252
V_AT = 80
V_X = 106


class Gen:
    def __init__(self, opts):
        self.L = []
        self.o = opts
        self.uid = 0

    def __call__(self, s):
        for l in s.split("\n"):
            self.L.append("    " + l.strip() if l.strip() and not l.strip().endswith(":") else l.strip())

    def label(self, base):
        self.uid += 1
        return "%s_%d" % (base, self.uid)

    def stamp(self, idx):
        if not self.o.get("prof"):
            return
        e = self
        e("s_memrealtime %s" % sr(S_STAMP, 2))
        e("s_waitcnt lgkmcnt(0)")
        e("v_mov_b32 v254, %s" % sr(S_STAMP))
        e("v_mov_b32 v255, %s" % sr(S_STAMP + 1))
        e("v_mov_b32 v253, %s" % sr(S_PROF))
        e("s_mov_b64 %s, exec" % sr(S_EXEC + 6, 2))
        e("s_mov_b64 exec, 1")
        e("buffer_store_dwordx2 v[254:255], v253, %s, 0 offen offset:%d" % (sr(SRD_WS, 4), idx * 8))
        e("s_mov_b64 exec, %s" % sr(S_EXEC + 6, 2))

    def prologue(self, end_label):
        e = self
        e("s_cmp_ge_u32 s2, 256")
        e("s_cbranch_scc1 %s" % end_label)
        e("s_load_dwordx8 s[4:11], s[0:1], 0")
        e("s_load_dwordx4 s[12:15], s[0:1], 32")
        e("s_load_dwordx2 s[16:17], s[0:1], 48")
        e("v_and_b32 v%d, 63, v0" % V_LANE)
        e("v_lshrrev_b32 v8, 6, v0")
        e("v_and_b32 v9, 15, v0")
        e("v_bfe_u32 v10, v0, 4, 2")
        e("v_readfirstlane_b32 %s, v8" % sr(S_WAVE))
        e("v_mul_u32_u24 v11, %d, v9" % RB)
        e("v_lshlrev_b32 v12, 4, v10")
        e("v_add_u32 v%d, v11, v12" % V_OK)
        e("v_mul_u32_u24 v13, %d, v10" % (4 * RB))
        e("v_lshlrev_b32 v14, 4, v9")
        e("v_add_u32 v%d, v13, v14" % V_OVA)
        e("v_lshlrev_b32 v14, 3, v9")
        e("v_add_u32 v13, 256, v13")
        e("v_add_u32 v%d, v13, v14" % V_OVB)
        e("v_and_b32 v14, 7, v9")
        e("v_mul_u32_u24 v14, %d, v14" % RB)
        e("v_add_u32 v%d, v14, v12" % V_OW)
        e("v_mov_b32 v%d, %s" % (V_CSQ, hx(f32(C_SQ))))
        e("v_mov_b32 v%d, %s" % (V_M15, hx(f32(C_BIAS))))
        e("s_and_b32 %s, s2, 7" % sr(S_T0))
        e("s_lshr_b32 %s, s2, 6" % sr(S_T1))
        e("s_lshl_b32 %s, %s, 3" % (sr(S_T1), sr(S_T1)))
        e("s_or_b32 %s, %s, %s" % (sr(S_H), sr(S_T0), sr(S_T1)))
        e("s_lshr_b32 %s, s2, 3" % sr(S_C))
        e("s_and_b32 %s, %s, 7" % (sr(S_C), sr(S_C)))
        e("s_mul_i32 %s, %s, %d" % (sr(S_T0), sr(S_H), 2048 * RB))
        e("s_mul_i32 %s, %s, %d" % (sr(S_T1), sr(S_C), 256 * RB))
        e("s_add_u32 %s, %s, %s" % (sr(S_T0), sr(S_T0), sr(S_T1)))
        e("s_mul_i32 %s, %s, %d" % (sr(S_T1), sr(S_WAVE), 32 * RB))
        e("s_add_u32 %s, %s, %s" % (sr(S_B0), sr(S_T0), sr(S_T1)))
        e("s_add_u32 %s, %s, %d" % (sr(S_B1), sr(S_B0), 16 * RB))
        e("s_mul_i32 %s, %s, %d" % (sr(S_HPART), sr(S_H), 8 * PART_BYTES))
        e("s_mul_i32 %s, %s, %d" % (sr(S_T1), sr(S_C), PART_BYTES))
        e("s_add_u32 %s, %s, %s" % (sr(S_PART), sr(S_HPART), sr(S_T1)))
        e("s_mov_b32 %s, 0x05040100" % sr(S_SELLO))
        e("s_mov_b32 %s, 0x07060302" % sr(S_SELHI))
        e("s_mov_b32 %s, %s" % (sr(S_CEXP), hx(f32(C_EXP))))
        if self.o.get("prof"):
            e("s_lshl_b32 %s, s2, 3" % sr(S_PROF))
            e("s_add_u32 %s, %s, %s" % (sr(S_PROF), sr(S_PROF), sr(S_WAVE)))
            e("s_lshl_b32 %s, %s, 7" % (sr(S_PROF), sr(S_PROF)))
            e("s_add_u32 %s, %s, 0x%x" % (sr(S_PROF), sr(S_PROF), 128 << 20))
        e("s_waitcnt lgkmcnt(0)")
        for srd, ptr, nbytes in ((SRD_K, S_K, TENSOR_BYTES), (SRD_V, S_V, TENSOR_BYTES), (SRD_W, S_W, 8 * RB),
                                 (SRD_WS, S_WS, WS_BYTES), (SRD_Q, S_Q, TENSOR_BYTES), (SRD_O, S_O, TENSOR_BYTES),
                                 (SRD_DBG, S_DBG, 256)):
            e("s_mov_b32 %s, %s" % (sr(srd), sr(ptr)))
            e("s_and_b32 %s, %s, 0xffff" % (sr(srd + 1), sr(ptr + 1)))
            e("s_mov_b32 %s, 0x%x" % (sr(srd + 2), nbytes))
            e("s_mov_b32 %s, 0x20000" % sr(srd + 3))

    def load_w(self):
        for t in range(6):
            self("buffer_load_dwordx4 %s, v%d, %s, 0 offen offset:%d" % (vr(V_W + 4 * t, 4), V_OW, sr(SRD_W, 4), 64 * t))

    def load_rows(self, vbase, srd, mod=""):
        for T in range(2):
            for t in range(6):
                self("buffer_load_dwordx4 %s, v%d, %s, %s offen offset:%d%s" % (
                    vr(vbase + 24 * T + 4 * t, 4), V_OK, sr(srd, 4), sr(S_B0 + T), 64 * t, mod))

    def load_v(self, mod=""):
        for j in range(8):
            self("buffer_load_dwordx4 %s, v%d, %s, %s offen offset:%d%s" % (
                vr(V_VA + 4 * j, 4), V_OVA, sr(SRD_V, 4), sr(S_B0 + (j >> 2)), (j & 3) * RB, mod))
            self("buffer_load_dwordx2 %s, v%d, %s, %s offen offset:%d%s" % (
                vr(V_VB + 2 * j, 2), V_OVB, sr(SRD_V, 4), sr(S_B0 + (j >> 2)), (j & 3) * RB, mod))

    def proj(self, vbase, T, is_k):
        e = self
        dp = V_DP + 4 * T
        ss0, ss1 = V_SS + 2 * T, V_SS + 2 * T + 1
        e("v_mov_b32 v%d, 0" % ss0)
        e("v_mov_b32 v%d, 0" % ss1)
        for t in range(6):
            x = vbase + 24 * T + 4 * t
            c = "0" if t == 0 else vr(dp, 4)
            if is_k:
                e("v_mfma_f32_16x16x32_bf16 %s, %s, %s, %s" % (vr(dp, 4), vr(x, 4), vr(V_W + 4 * t, 4), c))
            else:
                e("v_mfma_f32_16x16x32_bf16 %s, %s, %s, %s" % (vr(dp, 4), vr(V_W + 4 * t, 4), vr(x, 4), c))
            for i in range(4):
                e("v_dot2c_f32_bf16 v%d, v%d, v%d" % ((ss0, ss1)[i & 1], x + i, x + i))
        e("v_add_f32 v%d, v%d, v%d" % (ss0, ss0, ss1))
        if is_k:
            e("v_mfma_f32_16x16x4_f32 %s, v%d, v%d, %s" % (vr(dp, 4), ss0, V_CSQ, vr(dp, 4)))
        else:
            e("v_mfma_f32_16x16x4_f32 %s, v%d, v%d, %s" % (vr(dp, 4), V_CSQ, ss0, vr(dp, 4)))

    def phi(self, T):
        e = self
        dp = V_DP + 4 * T
        for r in range(4):
            e("v_fma_f32 v%d, v%d, %s, v%d" % (dp + r, dp + r, sr(S_CEXP), V_M15))
        for r in range(4):
            e("v_exp_f32 v%d, v%d" % (dp + r, dp + r))
        for r in range(4):
            e("v_add_f32 v%d, %s, v%d" % (dp + r, hx(f32(1e-6)), dp + r))

    def kv_mfma(self):
        e = self
        e("v_cvt_pk_bf16_f32 v%d, v%d, v%d" % (V_P + 0, V_DP + 0, V_DP + 1))
        e("v_cvt_pk_bf16_f32 v%d, v%d, v%d" % (V_P + 1, V_DP + 2, V_DP + 3))
        e("v_cvt_pk_bf16_f32 v%d, v%d, v%d" % (V_P + 2, V_DP + 4, V_DP + 5))
        e("v_cvt_pk_bf16_f32 v%d, v%d, v%d" % (V_P + 3, V_DP + 6, V_DP + 7))

    def kv_tiles(self):
        e = self
        for i in range(4):
            e("v_mov_b32 v%d, 0x3f803f80" % (V_ONE + i))
        e("v_mfma_f32_16x16x32_bf16 %s, %s, %s, 0" % (vr(V_ACC + 48, 4), vr(V_P, 4), vr(V_ONE, 4)))
        for tau in range(12):
            b = (V_B0, V_B1)[tau & 1]
            if tau < 8:
                c, half = tau >> 1, tau & 1
                src = lambda j: V_VA + 4 * j + c
            else:
                c, half = (tau - 8) >> 1, (tau - 8) & 1
                src = lambda j: V_VB + 2 * j + c
            sel = (S_SELLO, S_SELHI)[half]
            for p in range(4):
                e("v_perm_b32 v%d, v%d, v%d, %s" % (b + p, src(2 * p + 1), src(2 * p), sr(sel)))
            e("v_mfma_f32_16x16x32_bf16 %s, %s, %s, 0" % (vr(V_ACC + 4 * tau, 4), vr(V_P, 4), vr(b, 4)))

    def wg_reduce_and_store(self, mod):
        e = self
        e("s_mul_i32 %s, %s, %d" % (sr(S_T0), sr(S_WAVE), PART_BYTES))
        e("v_lshlrev_b32 v%d, 4, v%d" % (V_B0, V_LANE))
        e("v_add_u32 v%d, %s, v%d" % (V_B0, sr(S_T0), V_B0))
        e("s_mov_b32 exec_lo, -1")
        e("s_mov_b32 exec_hi, 0")
        for tau in range(13):
            e("ds_write_b128 v%d, %s offset:%d" % (V_B0, vr(V_ACC + 4 * tau, 4), tau * 512))
        e("s_mov_b64 exec, -1")
        e("v_lshlrev_b32 v%d, 4, v0" % V_B1)
        e("s_waitcnt lgkmcnt(0)")
        e("s_barrier")
        skip = self.label("L_red_skip")
        e("v_cmp_gt_u32 vcc, 416, v0")
        e("s_and_saveexec_b64 %s, vcc" % sr(S_EXEC, 2))
        e("s_cbranch_execz %s" % skip)
        for w in range(8):
            e("ds_read_b128 %s, v%d offset:%d" % (vr(V_ACC + 4 * w, 4), V_B1, w * PART_BYTES))
        for w in range(1, 8):
            e("s_waitcnt lgkmcnt(%d)" % (7 - w))
            for r in range(4):
                e("v_add_f32 v%d, v%d, v%d" % (V_ACC + r, V_ACC + r, V_ACC + 4 * w + r))
        if self.o.get("sanitize"):
            for r in range(4):
                e("v_min_u32 v%d, -2, v%d" % (V_ACC + r, V_ACC + r))
        e("buffer_store_dwordx4 %s, v%d, %s, %s offen%s" % (vr(V_ACC, 4), V_B1, sr(SRD_WS, 4), sr(S_PART), mod))
        e("%s:" % skip)
        e("s_mov_b64 exec, %s" % sr(S_EXEC, 2))

    def table_addr(self):
        e = self
        x = V_X
        e("v_lshrrev_b32 v%d, 5, v0" % (x + 1))
        e("v_and_b32 v%d, 15, v0" % (x + 2))
        e("v_bfe_u32 v%d, v0, 4, 1" % (x + 3))
        e("v_lshl_add_u32 v%d, v%d, 3, v%d" % (x + 4, x + 2, x + 1))
        e("v_lshl_add_u32 v%d, v%d, 2, v%d" % (x + 5, x + 2, x + 1))
        e("v_add_u32 v%d, 120, v%d" % (x + 5, x + 5))
        e("v_cmp_gt_u32 vcc, 8, v%d" % (x + 1))
        e("v_cndmask_b32 v%d, v%d, v%d, vcc" % (x + 4, x + 5, x + 4))
        e("v_lshrrev_b32 v%d, 5, v%d" % (x + 5, x + 4))
        e("v_bfe_u32 v%d, v%d, 2, 1" % (x + 6, x + 4))
        e("v_lshl_add_u32 v%d, v%d, 1, v%d" % (x + 5, x + 5, x + 6))
        e("v_bfe_u32 v%d, v%d, 3, 2" % (x + 6, x + 4))
        e("v_and_b32 v%d, 3, v%d" % (x + 7, x + 4))
        e("v_lshl_add_u32 v%d, v%d, 2, v%d" % (x + 6, x + 6, x + 7))
        e("v_cmp_eq_u32 vcc, 12, v%d" % (x + 1))
        e("v_cndmask_b32 v%d, v%d, v%d, vcc" % (x + 5, x + 5, x + 1))
        e("v_cndmask_b32 v%d, v%d, v%d, vcc" % (x + 6, x + 6, x + 2))
        e("v_lshl_add_u32 v%d, v%d, 4, v%d" % (x + 6, x + 3, x + 6))
        e("v_lshlrev_b32 v%d, 3, v%d" % (x + 6, x + 6))
        e("v_lshl_add_u32 v%d, v%d, 9, v%d" % (x, x + 5, x + 6))

    def gather_partials(self, mod, lds_base):
        e = self
        skip = self.label("L_gat_skip")
        e("v_lshlrev_b32 v%d, 4, v0" % V_B1)
        e("v_cmp_gt_u32 vcc, 416, v0")
        e("s_and_saveexec_b64 %s, vcc" % sr(S_EXEC, 2))
        e("s_cbranch_execz %s" % skip)
        e("s_mov_b32 %s, %s" % (sr(S_T0), sr(S_HPART)))
        for c in range(8):
            e("buffer_load_dwordx4 %s, v%d, %s, %s offen%s" % (vr(V_ACC + 4 * c, 4), V_B1, sr(SRD_WS, 4), sr(S_T0), mod))
            if c < 7:
                e("s_add_u32 %s, %s, %d" % (sr(S_T0), sr(S_T0), PART_BYTES))
        self.table_addr()
        for c in range(1, 8):
            e("s_waitcnt vmcnt(%d)" % (7 - c))
            for r in range(4):
                e("v_add_f32 v%d, v%d, v%d" % (V_ACC + r, V_ACC + r, V_ACC + 4 * c + r))
        self.hilo_write(lds_base)
        e("%s:" % skip)
        e("s_mov_b64 exec, %s" % sr(S_EXEC, 2))

    def hilo_write(self, lds_base):
        e = self
        a = V_ACC
        hi = V_ACC + 8
        lo = V_ACC + 10
        t = V_ACC + 12
        e("v_cvt_pk_bf16_f32 v%d, v%d, v%d" % (hi, a, a + 1))
        e("v_cvt_pk_bf16_f32 v%d, v%d, v%d" % (hi + 1, a + 2, a + 3))
        e("v_lshlrev_b32 v%d, 16, v%d" % (t, hi))
        e("v_and_b32 v%d, 0xffff0000, v%d" % (t + 1, hi))
        e("v_lshlrev_b32 v%d, 16, v%d" % (t + 2, hi + 1))
        e("v_and_b32 v%d, 0xffff0000, v%d" % (t + 3, hi + 1))
        for r in range(4):
            e("v_sub_f32 v%d, v%d, v%d" % (t + r, a + r, t + r))
        e("v_cvt_pk_bf16_f32 v%d, v%d, v%d" % (lo, t, t + 1))
        e("v_cvt_pk_bf16_f32 v%d, v%d, v%d" % (lo + 1, t + 2, t + 3))
        e("ds_write_b64 v%d, %s offset:%d" % (V_X, vr(hi, 2), lds_base))
        e("ds_write_b64 v%d, %s offset:%d" % (V_X, vr(lo, 2), lds_base + 256))

    def read_table(self, lds_base):
        e = self
        e("v_lshlrev_b32 v%d, 3, v%d" % (V_B0, V_LANE))
        for t in range(13):
            e("ds_read_b64 %s, v%d offset:%d" % (vr(V_AT + 2 * t, 2), V_B0, lds_base + t * 512))

    def pack_phi_q(self, T):
        e = self
        dp = V_DP + 4 * T
        e("v_cvt_pk_bf16_f32 v%d, v%d, v%d" % (V_P + 2 * T, dp, dp + 1))
        e("v_cvt_pk_bf16_f32 v%d, v%d, v%d" % (V_P + 2 * T + 1, dp + 2, dp + 3))

    def out_tile(self, T, accbase, mod):
        e = self
        den = accbase + 48
        e("v_mfma_f32_16x16x16_bf16 %s, %s, %s, 0" % (vr(den, 4), vr(V_AT + 24, 2), vr(V_P + 2 * T, 2)))
        for t in range(12):
            e("v_mfma_f32_16x16x16_bf16 %s, %s, %s, 0" % (vr(accbase + 4 * t, 4), vr(V_AT + 2 * t, 2), vr(V_P + 2 * T, 2)))
        e("v_add_f32 v%d, %s, v%d" % (den, hx(f32(1e-6)), den))
        e("v_rcp_f32 v%d, v%d" % (den, den))
        for u in range(6):
            a = accbase + 8 * u
            for r in range(8):
                e("v_mul_f32 v%d, v%d, v%d" % (a + r, a + r, den))
            o = a
            e("v_cvt_pk_bf16_f32 v%d, v%d, v%d" % (o + 0, a + 0, a + 1))
            e("v_cvt_pk_bf16_f32 v%d, v%d, v%d" % (o + 1, a + 2, a + 3))
            e("v_cvt_pk_bf16_f32 v%d, v%d, v%d" % (o + 2, a + 4, a + 5))
            e("v_cvt_pk_bf16_f32 v%d, v%d, v%d" % (o + 3, a + 6, a + 7))
            e("buffer_store_dwordx4 %s, v%d, %s, %s offen offset:%d%s" % (
                vr(o, 4), V_OK, sr(SRD_O, 4), sr(S_B0 + T), 64 * u, mod))


def kd(name, vgpr=256, sgpr=96):
    return """.section .rodata,"a"
.p2align 6
.amdhsa_kernel %s
  .amdhsa_next_free_vgpr %d
  .amdhsa_next_free_sgpr %d
  .amdhsa_accum_offset %d
  .amdhsa_group_segment_fixed_size 0
  .amdhsa_kernarg_size 56
  .amdhsa_user_sgpr_count 2
  .amdhsa_user_sgpr_kernarg_segment_ptr 1
  .amdhsa_system_sgpr_workgroup_id_x 1
.end_amdhsa_kernel
""" % (name, vgpr, sgpr, (vgpr + 3) // 4 * 4)


HEADER = """; Kernarg layout (56 bytes): q, k, v, omega, out, debug, ws  (8-byte pointers)
"""


def kernel_text(name, g):
    lines, n = hazard.fix(g.L)
    return ".text\n.globl %s\n.p2align 8\n.type %s,@function\n%s:\n%s\n" % (name, name, name, "\n".join(lines))


MODS = {0: "", 1: " nt", 2: " sc1", 3: " sc0 sc1", 4: " sc0 sc1 nt", 5: " sc1 nt", 6: " sc0", 7: " sc0 nt"}


def gen_split(opts):
    lm = MODS[opts.get("mod", 1)]
    sm = MODS[opts.get("smod", 0)]
    g = Gen(opts)
    g.prologue("L_end1")
    g.stamp(0)
    g.load_w()
    g.load_rows(V_K, SRD_K, lm)
    g.load_v(lm)
    g("s_waitcnt vmcnt(22)")
    g.proj(V_K, 0, True)
    g("s_waitcnt vmcnt(16)")
    g.proj(V_K, 1, True)
    g.phi(0)
    g.phi(1)
    g.kv_mfma()
    g.stamp(1)
    g("s_waitcnt vmcnt(0)")
    g.stamp(2)
    g.kv_tiles()
    g.wg_reduce_and_store("")
    g.stamp(3)
    g("L_end1:")
    g("s_endpgm")
    h = Gen(opts)
    h.uid = 1000
    h.prologue("L_end2")
    h.stamp(4)
    h.load_w()
    h.load_rows(V_Q, SRD_Q, lm)
    h.gather_partials("", 0)
    h("s_waitcnt vmcnt(0) lgkmcnt(0)")
    h("s_barrier")
    h.read_table(0)
    for T in range(2):
        h.proj(V_Q, T, False)
        h.phi(T)
        h.pack_phi_q(T)
    h("s_waitcnt lgkmcnt(0)")
    h.stamp(5)
    h.out_tile(0, V_ACC, sm)
    h.out_tile(1, V_K - 4, sm)
    h.stamp(6)
    h("L_end2:")
    h("s_endpgm")
    lds1 = 8 * PART_BYTES
    lds2 = PART_BYTES
    txt = HEADER
    txt += "; @launch kernel=rfa_kv_kernel grid=(256,1,1) block=(512,1,1) lds=%d\n" % lds1
    txt += "; @launch kernel=rfa_out_kernel grid=(256,1,1) block=(512,1,1) lds=%d\n" % lds2
    txt += '.amdgcn_target "amdgcn-amd-amdhsa--gfx950"\n'
    txt += kernel_text("rfa_kv_kernel", g)
    txt += kernel_text("rfa_out_kernel", h)
    txt += kd("rfa_kv_kernel") + kd("rfa_out_kernel")
    return txt


def gen_bench(opts):
    opts = dict(opts); opts["prof"] = 1
    g = Gen(opts)
    mod = {0: "", 1: " nt", 2: " sc1", 3: " sc0 sc1", 4: " sc0 sc1 nt", 5: " sc1 nt", 6: " sc0", 7: " sc0 nt"}[opts.get("mod", 0)]
    smod = {0: "", 1: " nt", 2: " sc1", 3: " sc0 sc1", 4: " sc0 sc1 nt", 5: " sc1 nt", 6: " sc0", 7: " sc0 nt"}[opts.get("smod", 0)]
    pat = opts.get("pat", 0)
    g.prologue("L_end")
    g.stamp(0)
    g("v_lshlrev_b32 v8, 4, v%d" % V_LANE)
    g("s_add_u32 s70, %s, 4096" % sr(S_B0))
    g("s_add_u32 s71, %s, 8192" % sr(S_B0))
    def coal(vbase, srd):
        for i in range(12):
            so = (sr(S_B0), "s70", "s71")[i // 4]
            g("buffer_load_dwordx4 %s, v8, %s, %s offen offset:%d%s" % (vr(vbase + 4 * i, 4), sr(srd, 4), so, (i % 4) * 1024, mod))
    def coal_store(vbase, srd):
        for i in range(12):
            so = (sr(S_B0), "s70", "s71")[i // 4]
            g("buffer_store_dwordx4 %s, v8, %s, %s offen offset:%d%s" % (vr(vbase + 4 * i, 4), sr(srd, 4), so, (i % 4) * 1024, smod))
    def row_store(vbase, srd):
        for T in range(2):
            for t in range(6):
                g("buffer_store_dwordx4 %s, v%d, %s, %s offen offset:%d%s" % (
                    vr(vbase + 24 * T + 4 * t, 4), V_OK, sr(srd, 4), sr(S_B0 + T), 64 * t, smod))
    what = opts.get("what", 3)
    if what & 1:
        if pat == 0: coal(V_K, SRD_K)
        else: g.load_rows(V_K, SRD_K, mod)
    if what & 2:
        if pat == 0: coal(V_VA, SRD_V)
        elif pat == 1: g.load_rows(V_VA, SRD_V, mod)
        else: g.load_v(mod)
    if what & 4:
        if pat == 0: coal(V_Q, SRD_Q)
        else: g.load_rows(V_Q, SRD_Q, mod)
    g("s_waitcnt vmcnt(0)")
    g.stamp(1)
    if what & 8:
        if opts.get("spat", 0) == 0: coal_store(V_Q, SRD_O)
        else: row_store(V_Q, SRD_O)
        g.stamp(2)
        g("s_waitcnt vmcnt(0)")
        g.stamp(3)
    g("L_end:")
    g("s_endpgm")
    txt = HEADER
    txt += "; @launch grid=(256,1,1) block=(512,1,1) lds=0\n"
    txt += '.amdgcn_target "amdgcn-amd-amdhsa--gfx950"\n'
    txt += kernel_text(NAME + "_kernel", g)
    txt += kd(NAME + "_kernel")
    return txt


if __name__ == "__main__":
    import argparse
    ap = argparse.ArgumentParser()
    ap.add_argument("variant")
    ap.add_argument("-o", default="cdna_kernels/%s.s" % NAME)
    ap.add_argument("--opt", action="append", default=[])
    a = ap.parse_args()
    opts = {}
    for kv in a.opt:
        k, _, v = kv.partition("=")
        opts[k] = (int(v, 0) if v else 1)
    txt = globals()["gen_" + a.variant](opts)
    open(a.o, "w").write(txt)
    print("wrote", a.o, len(txt))
```

```python
import struct, sys, os, math
sys.path.insert(0, os.path.dirname(os.path.abspath(__file__)))
import hazard

NAME = "standalone__linear_kernel_rfa__prompt"


def f32(x):
    return struct.unpack("<I", struct.pack("<f", x))[0]


def hx(x):
    return "0x%08x" % (x & 0xFFFFFFFF)


D = 192
RB = 384
TENSOR_BYTES = 32 * 2048 * RB
PART_BYTES = 13 * 512
WS_BYTES = 268435456
SCALE = float(D) ** -0.25
LOG2E = 1.4426950408889634
C_EXP = SCALE * LOG2E
C_SQ = -0.5 * SCALE
C_BIAS = -1.5


def vr(a, n=1):
    return "v%d" % a if n == 1 else "v[%d:%d]" % (a, a + n - 1)


def sr(a, n=1):
    return "s%d" % a if n == 1 else "s[%d:%d]" % (a, a + n - 1)


S_Q, S_K, S_V, S_W = 4, 6, 8, 10
S_O, S_DBG, S_WS = 12, 14, 16
S_WAVE = 18
S_TMP = 19
SRD_K, SRD_V, SRD_W, SRD_WS, SRD_Q, SRD_O, SRD_DBG = 20, 24, 28, 32, 36, 40, 44
S_B0, S_B1 = 48, 49
S_SELLO, S_SELHI = 50, 51
S_CEXP = 52
S_H, S_C = 53, 54
S_PART = 55
S_HPART = 56
S_T0, S_T1, S_T2, S_T3 = 57, 58, 59, 60
S_EXEC = 62
S_STAMP = 64
S_PROF = 66
S_CNT = 67
S_ST0 = 68

V_TID = 0
V_LANE = 1
V_OK = 2
V_OVA = 3
V_OVB = 4
V_OW = 5
V_CSQ = 6
V_M15 = 7
V_W = 8
V_K = 32
V_VA = 80
V_VB = 112
V_Q = 128
V_ACC = 176
V_DP = 228
V_SS = 236
V_P = 240
V_B0 = 244
V_B1 = 248
V_ONE = 252
V_AT = 80
V_X = 106


class Gen:
    def __init__(self, opts):
        self.L = []
        self.o = opts
        self.uid = 0

    def __call__(self, s):
        for l in s.split("\n"):
            self.L.append("    " + l.strip() if l.strip() and not l.strip().endswith(":") else l.strip())

    def label(self, base):
        self.uid += 1
        return "%s_%d" % (base, self.uid)

    def stamp(self, idx):
        if not self.o.get("prof"):
            return
        self.stamps = getattr(self, "stamps", [])
        self.stamps.append(idx)
        self("s_memrealtime %s" % sr(S_ST0 + 2 * (len(self.stamps) - 1), 2))

    def flush_stamps(self):
        if not self.o.get("prof"):
            return
        e = self
        e("s_waitcnt lgkmcnt(0)")
        e("v_mov_b32 v253, %s" % sr(S_PROF))
        e("s_mov_b64 exec, 1")
        for n, idx in enumerate(self.stamps):
            e("v_mov_b32 v254, %s" % sr(S_ST0 + 2 * n))
            e("v_mov_b32 v255, %s" % sr(S_ST0 + 2 * n + 1))
            e("buffer_store_dwordx2 v[254:255], v253, %s, 0 offen offset:%d" % (sr(SRD_WS, 4), idx * 8))
            e("s_nop 1")
        self.stamps = []

    def prologue(self, end_label):
        e = self
        e("s_cmp_ge_u32 s2, 256")
        e("s_cbranch_scc1 %s" % end_label)
        e("s_load_dwordx8 s[4:11], s[0:1], 0")
        e("s_load_dwordx4 s[12:15], s[0:1], 32")
        e("s_load_dwordx2 s[16:17], s[0:1], 48")
        e("v_and_b32 v%d, 63, v0" % V_LANE)
        e("v_lshrrev_b32 v8, 6, v0")
        e("v_and_b32 v9, 15, v0")
        e("v_bfe_u32 v10, v0, 4, 2")
        e("v_readfirstlane_b32 %s, v8" % sr(S_WAVE))
        e("v_mul_u32_u24 v11, %d, v9" % RB)
        e("v_lshlrev_b32 v12, 4, v10")
        e("v_add_u32 v%d, v11, v12" % V_OK)
        e("v_mul_u32_u24 v13, %d, v10" % (4 * RB))
        e("v_lshlrev_b32 v14, 4, v9")
        e("v_add_u32 v%d, v13, v14" % V_OVA)
        e("v_lshlrev_b32 v14, 3, v9")
        e("v_add_u32 v13, 256, v13")
        e("v_add_u32 v%d, v13, v14" % V_OVB)
        e("v_and_b32 v14, 7, v9")
        e("v_mul_u32_u24 v14, %d, v14" % RB)
        e("v_add_u32 v%d, v14, v12" % V_OW)
        e("v_mov_b32 v%d, %s" % (V_CSQ, hx(f32(C_SQ))))
        e("v_mov_b32 v%d, %s" % (V_M15, hx(f32(C_BIAS))))
        e("s_and_b32 %s, s2, 7" % sr(S_T0))
        e("s_lshr_b32 %s, s2, 6" % sr(S_T1))
        e("s_lshl_b32 %s, %s, 3" % (sr(S_T1), sr(S_T1)))
        e("s_or_b32 %s, %s, %s" % (sr(S_H), sr(S_T0), sr(S_T1)))
        e("s_lshr_b32 %s, s2, 3" % sr(S_C))
        e("s_and_b32 %s, %s, 7" % (sr(S_C), sr(S_C)))
        e("s_mul_i32 %s, %s, %d" % (sr(S_T0), sr(S_H), 2048 * RB))
        e("s_mul_i32 %s, %s, %d" % (sr(S_T1), sr(S_C), 256 * RB))
        e("s_add_u32 %s, %s, %s" % (sr(S_T0), sr(S_T0), sr(S_T1)))
        e("s_mul_i32 %s, %s, %d" % (sr(S_T1), sr(S_WAVE), 32 * RB))
        e("s_add_u32 %s, %s, %s" % (sr(S_B0), sr(S_T0), sr(S_T1)))
        e("s_add_u32 %s, %s, %d" % (sr(S_B1), sr(S_B0), 16 * RB))
        e("s_mul_i32 %s, %s, %d" % (sr(S_HPART), sr(S_H), 8 * PART_BYTES))
        e("s_mul_i32 %s, %s, %d" % (sr(S_T1), sr(S_C), PART_BYTES))
        e("s_add_u32 %s, %s, %s" % (sr(S_PART), sr(S_HPART), sr(S_T1)))
        e("s_mov_b32 %s, 0x05040100" % sr(S_SELLO))
        e("s_mov_b32 %s, 0x07060302" % sr(S_SELHI))
        e("s_mov_b32 %s, %s" % (sr(S_CEXP), hx(f32(C_EXP))))
        if self.o.get("prof"):
            e("s_lshl_b32 %s, s2, 3" % sr(S_PROF))
            e("s_add_u32 %s, %s, %s" % (sr(S_PROF), sr(S_PROF), sr(S_WAVE)))
            e("s_lshl_b32 %s, %s, 7" % (sr(S_PROF), sr(S_PROF)))
            e("s_add_u32 %s, %s, 0x%x" % (sr(S_PROF), sr(S_PROF), 128 << 20))
        e("s_waitcnt lgkmcnt(0)")
        for srd, ptr, nbytes in ((SRD_K, S_K, TENSOR_BYTES), (SRD_V, S_V, TENSOR_BYTES), (SRD_W, S_W, 8 * RB),
                                 (SRD_WS, S_WS, WS_BYTES), (SRD_Q, S_Q, TENSOR_BYTES), (SRD_O, S_O, TENSOR_BYTES),
                                 (SRD_DBG, S_DBG, 256)):
            e("s_mov_b32 %s, %s" % (sr(srd), sr(ptr)))
            e("s_and_b32 %s, %s, 0xffff" % (sr(srd + 1), sr(ptr + 1)))
            e("s_mov_b32 %s, 0x%x" % (sr(srd + 2), nbytes))
            e("s_mov_b32 %s, 0x20000" % sr(srd + 3))

    def load_w(self):
        for t in range(6):
            self("buffer_load_dwordx4 %s, v%d, %s, 0 offen offset:%d" % (vr(V_W + 4 * t, 4), V_OW, sr(SRD_W, 4), 64 * t))

    def load_rows(self, vbase, srd, mod=""):
        for T in range(2):
            for t in range(6):
                self("buffer_load_dwordx4 %s, v%d, %s, %s offen offset:%d%s" % (
                    vr(vbase + 24 * T + 4 * t, 4), V_OK, sr(srd, 4), sr(S_B0 + T), 64 * t, mod))

    def load_v(self, mod=""):
        for j in range(8):
            self("buffer_load_dwordx4 %s, v%d, %s, %s offen offset:%d%s" % (
                vr(V_VA + 4 * j, 4), V_OVA, sr(SRD_V, 4), sr(S_B0 + (j >> 2)), (j & 3) * RB, mod))
            self("buffer_load_dwordx2 %s, v%d, %s, %s offen offset:%d%s" % (
                vr(V_VB + 2 * j, 2), V_OVB, sr(SRD_V, 4), sr(S_B0 + (j >> 2)), (j & 3) * RB, mod))

    def proj(self, vbase, T, is_k):
        e = self
        dp = V_DP + 4 * T
        ss0, ss1 = V_SS + 2 * T, V_SS + 2 * T + 1
        e("v_mov_b32 v%d, 0" % ss0)
        e("v_mov_b32 v%d, 0" % ss1)
        for t in range(6):
            x = vbase + 24 * T + 4 * t
            c = "0" if t == 0 else vr(dp, 4)
            if is_k:
                e("v_mfma_f32_16x16x32_bf16 %s, %s, %s, %s" % (vr(dp, 4), vr(x, 4), vr(V_W + 4 * t, 4), c))
            else:
                e("v_mfma_f32_16x16x32_bf16 %s, %s, %s, %s" % (vr(dp, 4), vr(V_W + 4 * t, 4), vr(x, 4), c))
            for i in range(4):
                e("v_dot2c_f32_bf16 v%d, v%d, v%d" % ((ss0, ss1)[i & 1], x + i, x + i))
        e("v_add_f32 v%d, v%d, v%d" % (ss0, ss0, ss1))
        if is_k:
            e("v_mfma_f32_16x16x4_f32 %s, v%d, v%d, %s" % (vr(dp, 4), ss0, V_CSQ, vr(dp, 4)))
        else:
            e("v_mfma_f32_16x16x4_f32 %s, v%d, v%d, %s" % (vr(dp, 4), V_CSQ, ss0, vr(dp, 4)))

    def phi(self, T):
        e = self
        dp = V_DP + 4 * T
        for r in range(4):
            e("v_fma_f32 v%d, v%d, %s, v%d" % (dp + r, dp + r, sr(S_CEXP), V_M15))
        for r in range(4):
            e("v_exp_f32 v%d, v%d" % (dp + r, dp + r))
        for r in range(4):
            e("v_add_f32 v%d, %s, v%d" % (dp + r, hx(f32(1e-6)), dp + r))

    def kv_mfma(self):
        e = self
        e("v_cvt_pk_bf16_f32 v%d, v%d, v%d" % (V_P + 0, V_DP + 0, V_DP + 1))
        e("v_cvt_pk_bf16_f32 v%d, v%d, v%d" % (V_P + 1, V_DP + 2, V_DP + 3))
        e("v_cvt_pk_bf16_f32 v%d, v%d, v%d" % (V_P + 2, V_DP + 4, V_DP + 5))
        e("v_cvt_pk_bf16_f32 v%d, v%d, v%d" % (V_P + 3, V_DP + 6, V_DP + 7))

    def kv_tiles(self):
        e = self
        for i in range(4):
            e("v_mov_b32 v%d, 0x3f803f80" % (V_ONE + i))
        e("v_mfma_f32_16x16x32_bf16 %s, %s, %s, 0" % (vr(V_ACC + 48, 4), vr(V_P, 4), vr(V_ONE, 4)))
        for tau in range(12):
            b = (V_B0, V_B1)[tau & 1]
            if tau < 8:
                c, half = tau >> 1, tau & 1
                src = lambda j: V_VA + 4 * j + c
            else:
                c, half = (tau - 8) >> 1, (tau - 8) & 1
                src = lambda j: V_VB + 2 * j + c
            sel = (S_SELLO, S_SELHI)[half]
            for p in range(4):
                e("v_perm_b32 v%d, v%d, v%d, %s" % (b + p, src(2 * p + 1), src(2 * p), sr(sel)))
            e("v_mfma_f32_16x16x32_bf16 %s, %s, %s, 0" % (vr(V_ACC + 4 * tau, 4), vr(V_P, 4), vr(b, 4)))

    def wg_reduce_and_store(self, mod):
        e = self
        e("s_mul_i32 %s, %s, %d" % (sr(S_T0), sr(S_WAVE), PART_BYTES))
        e("v_lshlrev_b32 v%d, 4, v%d" % (V_B0, V_LANE))
        e("v_add_u32 v%d, %s, v%d" % (V_B0, sr(S_T0), V_B0))
        e("s_mov_b32 exec_lo, -1")
        e("s_mov_b32 exec_hi, 0")
        for tau in range(13):
            e("ds_write_b128 v%d, %s offset:%d" % (V_B0, vr(V_ACC + 4 * tau, 4), tau * 512))
        e("s_mov_b64 exec, -1")
        e("v_lshlrev_b32 v%d, 4, v0" % V_B1)
        e("s_waitcnt lgkmcnt(0)")
        e("s_barrier")
        skip = self.label("L_red_skip")
        e("v_cmp_gt_u32 vcc, 416, v0")
        e("s_and_saveexec_b64 %s, vcc" % sr(S_EXEC, 2))
        e("s_cbranch_execz %s" % skip)
        for w in range(8):
            e("ds_read_b128 %s, v%d offset:%d" % (vr(V_ACC + 4 * w, 4), V_B1, w * PART_BYTES))
        for w in range(1, 8):
            e("s_waitcnt lgkmcnt(%d)" % (7 - w))
            for r in range(4):
                e("v_add_f32 v%d, v%d, v%d" % (V_ACC + r, V_ACC + r, V_ACC + 4 * w + r))
        if self.o.get("sanitize"):
            for r in range(4):
                e("v_min_u32 v%d, -2, v%d" % (V_ACC + r, V_ACC + r))
        e("buffer_store_dwordx4 %s, v%d, %s, %s offen%s" % (vr(V_ACC, 4), V_B1, sr(SRD_WS, 4), sr(S_PART), mod))
        e("%s:" % skip)
        e("s_mov_b64 exec, %s" % sr(S_EXEC, 2))

    def table_addr(self, vt=0):
        e = self
        x = V_X
        e("v_lshrrev_b32 v%d, 5, v%d" % (x + 1, vt))
        e("v_and_b32 v%d, 15, v%d" % (x + 2, vt))
        e("v_bfe_u32 v%d, v%d, 4, 1" % (x + 3, vt))
        e("v_lshl_add_u32 v%d, v%d, 3, v%d" % (x + 4, x + 2, x + 1))
        e("v_lshl_add_u32 v%d, v%d, 2, v%d" % (x + 5, x + 2, x + 1))
        e("v_add_u32 v%d, 120, v%d" % (x + 5, x + 5))
        e("v_cmp_gt_u32 vcc, 8, v%d" % (x + 1))
        e("v_cndmask_b32 v%d, v%d, v%d, vcc" % (x + 4, x + 5, x + 4))
        e("v_lshrrev_b32 v%d, 5, v%d" % (x + 5, x + 4))
        e("v_bfe_u32 v%d, v%d, 2, 1" % (x + 6, x + 4))
        e("v_lshl_add_u32 v%d, v%d, 1, v%d" % (x + 5, x + 5, x + 6))
        e("v_bfe_u32 v%d, v%d, 3, 2" % (x + 6, x + 4))
        e("v_and_b32 v%d, 3, v%d" % (x + 7, x + 4))
        e("v_lshl_add_u32 v%d, v%d, 2, v%d" % (x + 6, x + 6, x + 7))
        e("v_cmp_eq_u32 vcc, 12, v%d" % (x + 1))
        e("v_cndmask_b32 v%d, v%d, v%d, vcc" % (x + 5, x + 5, x + 1))
        e("v_cndmask_b32 v%d, v%d, v%d, vcc" % (x + 6, x + 6, x + 2))
        e("v_lshl_add_u32 v%d, v%d, 4, v%d" % (x + 6, x + 3, x + 6))
        e("v_lshlrev_b32 v%d, 3, v%d" % (x + 6, x + 6))
        e("v_lshl_add_u32 v%d, v%d, 9, v%d" % (x, x + 5, x + 6))

    def gather_partials(self, mod, lds_base):
        e = self
        skip = self.label("L_gat_skip")
        e("v_lshlrev_b32 v%d, 4, v0" % V_B1)
        e("v_cmp_gt_u32 vcc, 416, v0")
        e("s_and_saveexec_b64 %s, vcc" % sr(S_EXEC, 2))
        e("s_cbranch_execz %s" % skip)
        e("s_mov_b32 %s, %s" % (sr(S_T0), sr(S_HPART)))
        for c in range(8):
            e("buffer_load_dwordx4 %s, v%d, %s, %s offen%s" % (vr(V_ACC + 4 * c, 4), V_B1, sr(SRD_WS, 4), sr(S_T0), mod))
            if c < 7:
                e("s_add_u32 %s, %s, %d" % (sr(S_T0), sr(S_T0), PART_BYTES))
        self.table_addr()
        for c in range(1, 8):
            e("s_waitcnt vmcnt(%d)" % (7 - c))
            for r in range(4):
                e("v_add_f32 v%d, v%d, v%d" % (V_ACC + r, V_ACC + r, V_ACC + 4 * c + r))
        self.hilo_write(lds_base)
        e("%s:" % skip)
        e("s_mov_b64 exec, %s" % sr(S_EXEC, 2))

    def hilo_write(self, lds_base):
        e = self
        a = V_ACC
        hi = V_ACC + 8
        lo = V_ACC + 10
        t = V_ACC + 12
        e("v_cvt_pk_bf16_f32 v%d, v%d, v%d" % (hi, a, a + 1))
        e("v_cvt_pk_bf16_f32 v%d, v%d, v%d" % (hi + 1, a + 2, a + 3))
        e("v_lshlrev_b32 v%d, 16, v%d" % (t, hi))
        e("v_and_b32 v%d, 0xffff0000, v%d" % (t + 1, hi))
        e("v_lshlrev_b32 v%d, 16, v%d" % (t + 2, hi + 1))
        e("v_and_b32 v%d, 0xffff0000, v%d" % (t + 3, hi + 1))
        for r in range(4):
            e("v_sub_f32 v%d, v%d, v%d" % (t + r, a + r, t + r))
        e("v_cvt_pk_bf16_f32 v%d, v%d, v%d" % (lo, t, t + 1))
        e("v_cvt_pk_bf16_f32 v%d, v%d, v%d" % (lo + 1, t + 2, t + 3))
        e("ds_write_b64 v%d, %s offset:%d" % (V_X, vr(hi, 2), lds_base))
        e("ds_write_b64 v%d, %s offset:%d" % (V_X, vr(lo, 2), lds_base + 256))

    def read_table(self, lds_base):
        e = self
        e("v_lshlrev_b32 v%d, 3, v%d" % (V_B0, V_LANE))
        for t in range(13):
            e("ds_read_b64 %s, v%d offset:%d" % (vr(V_AT + 2 * t, 2), V_B0, lds_base + t * 512))

    def pack_phi_q(self, T):
        e = self
        dp = V_DP + 4 * T
        e("v_cvt_pk_bf16_f32 v%d, v%d, v%d" % (V_P + 2 * T, dp, dp + 1))
        e("v_cvt_pk_bf16_f32 v%d, v%d, v%d" % (V_P + 2 * T + 1, dp + 2, dp + 3))

    def out_tile(self, T, accbase, mod):
        e = self
        den = accbase + 48
        e("v_mfma_f32_16x16x16_bf16 %s, %s, %s, 0" % (vr(den, 4), vr(V_AT + 24, 2), vr(V_P + 2 * T, 2)))
        for t in range(12):
            e("v_mfma_f32_16x16x16_bf16 %s, %s, %s, 0" % (vr(accbase + 4 * t, 4), vr(V_AT + 2 * t, 2), vr(V_P + 2 * T, 2)))
        e("v_add_f32 v%d, %s, v%d" % (den, hx(f32(1e-6)), den))
        e("v_rcp_f32 v%d, v%d" % (den, den))
        for u in range(6):
            a = accbase + 8 * u
            for r in range(8):
                e("v_mul_f32 v%d, v%d, v%d" % (a + r, a + r, den))
            o = a
            e("v_cvt_pk_bf16_f32 v%d, v%d, v%d" % (o + 0, a + 0, a + 1))
            e("v_cvt_pk_bf16_f32 v%d, v%d, v%d" % (o + 1, a + 2, a + 3))
            e("v_cvt_pk_bf16_f32 v%d, v%d, v%d" % (o + 2, a + 4, a + 5))
            e("v_cvt_pk_bf16_f32 v%d, v%d, v%d" % (o + 3, a + 6, a + 7))
            e("buffer_store_dwordx4 %s, v%d, %s, %s offen offset:%d%s" % (
                vr(o, 4), V_OK, sr(SRD_O, 4), sr(S_B0 + T), 64 * u, mod))


def kd(name, vgpr=256, sgpr=102):
    acc = min(256, (vgpr + 3) // 4 * 4)
    return """.section .rodata,"a"
.p2align 6
.amdhsa_kernel %s
  .amdhsa_next_free_vgpr %d
  .amdhsa_next_free_sgpr %d
  .amdhsa_accum_offset %d
  .amdhsa_group_segment_fixed_size 0
  .amdhsa_kernarg_size 56
  .amdhsa_user_sgpr_count 2
  .amdhsa_user_sgpr_kernarg_segment_ptr 1
  .amdhsa_system_sgpr_workgroup_id_x 1
.end_amdhsa_kernel
""" % (name, vgpr, sgpr, acc)


HEADER = """; Kernarg layout (56 bytes): q, k, v, omega, out, debug, ws  (8-byte pointers)
"""


def kernel_text(name, g):
    lines, n = hazard.fix(g.L)
    return ".text\n.globl %s\n.p2align 8\n.type %s,@function\n%s:\n%s\n" % (name, name, name, "\n".join(lines))


MODS = {0: "", 1: " nt", 2: " sc1", 3: " sc0 sc1", 4: " sc0 sc1 nt", 5: " sc1 nt", 6: " sc0", 7: " sc0 nt"}


def gen_split(opts):
    lm = MODS[opts.get("mod", 1)]
    sm = MODS[opts.get("smod", 0)]
    g = Gen(opts)
    g.prologue("L_end1")
    g.stamp(0)
    g.load_w()
    g.load_rows(V_K, SRD_K, lm)
    g.load_v(lm)
    g("s_waitcnt vmcnt(22)")
    g.proj(V_K, 0, True)
    g("s_waitcnt vmcnt(16)")
    g.proj(V_K, 1, True)
    g.phi(0)
    g.phi(1)
    g.kv_mfma()
    g.stamp(1)
    g("s_waitcnt vmcnt(0)")
    g.stamp(2)
    g.kv_tiles()
    g.wg_reduce_and_store("")
    g.stamp(3)
    g.flush_stamps()
    g("L_end1:")
    g("s_endpgm")
    h = Gen(opts)
    h.uid = 1000
    h.prologue("L_end2")
    h.stamp(4)
    h.load_w()
    h.load_rows(V_Q, SRD_Q, lm)
    h.gather_partials("", 0)
    h("s_waitcnt vmcnt(0) lgkmcnt(0)")
    h("s_barrier")
    h.read_table(0)
    for T in range(2):
        h.proj(V_Q, T, False)
        h.phi(T)
        h.pack_phi_q(T)
    h("s_waitcnt lgkmcnt(0)")
    h.stamp(5)
    h.out_tile(0, V_ACC, sm)
    h.out_tile(1, V_K - 4, sm)
    h.stamp(6)
    h.flush_stamps()
    h("L_end2:")
    h("s_endpgm")
    lds1 = 8 * PART_BYTES
    lds2 = PART_BYTES
    txt = HEADER
    txt += "; @launch kernel=rfa_kv_kernel grid=(256,1,1) block=(512,1,1) lds=%d\n" % lds1
    txt += "; @launch kernel=rfa_out_kernel grid=(256,1,1) block=(512,1,1) lds=%d\n" % lds2
    txt += '.amdgcn_target "amdgcn-amd-amdhsa--gfx950"\n'
    txt += kernel_text("rfa_kv_kernel", g)
    txt += kernel_text("rfa_out_kernel", h)
    txt += kd("rfa_kv_kernel") + kd("rfa_out_kernel")
    return txt


SLOT = 7168
LDS_TAB = 8 * PART_BYTES


def gen_fused(opts):
    lm = MODS[opts.get("mod", 1)]
    qm = MODS[opts.get("qmod", opts.get("mod", 1))]
    sm = MODS[opts.get("smod", 0)]
    xm = MODS[opts.get("xmod", 2)]
    qpos = opts.get("qpos", 2)
    g = Gen(opts)
    e = g
    g.prologue("L_end")
    e("s_mul_i32 %s, %s, %d" % (sr(S_HPART), sr(S_H), 8 * SLOT))
    e("s_mul_i32 %s, %s, %d" % (sr(S_T1), sr(S_C), SLOT))
    e("s_add_u32 %s, %s, %s" % (sr(S_PART), sr(S_HPART), sr(S_T1)))
    g.stamp(0)
    e("s_cmp_lg_u32 %s, 7" % sr(S_WAVE))
    e("s_cbranch_scc1 L_noclear")
    e("v_lshlrev_b32 v8, 4, v%d" % V_LANE)
    for i in range(4):
        e("v_mov_b32 v%d, -1" % (12 + i))
    e("s_add_u32 %s, %s, 4096" % (sr(S_T0), sr(S_PART)))
    for i in range(7):
        e("buffer_store_dwordx4 v[12:15], v8, %s, %s offen offset:%d%s" % (
            sr(SRD_WS, 4), sr(S_PART) if i < 4 else sr(S_T0), (i & 3) * 1024, xm))
    e("s_nop 1")
    e("L_noclear:")
    g.load_w()
    g.load_rows(V_K, SRD_K, lm)
    g.load_v(lm)
    nq = 0
    if qpos == 0:
        g.load_rows(V_Q, SRD_Q, qm); nq = 12
    if opts.get("bara", 1):
        e("s_barrier")
    if qpos == 1:
        g.load_rows(V_Q, SRD_Q, qm); nq = 12
    e("s_waitcnt vmcnt(%d)" % (22 + nq))
    g.proj(V_K, 0, True)
    e("s_waitcnt vmcnt(%d)" % (16 + nq))
    g.proj(V_K, 1, True)
    g.phi(0)
    g.phi(1)
    g.kv_mfma()
    g.stamp(1)
    e("s_lshl_b32 %s, %s, 2" % (sr(S_T0), sr(S_H)))
    e("v_mov_b32 v%d, %s" % (V_B0, sr(S_T0)))
    e("s_cmp_lg_u32 %s, 7" % sr(S_WAVE))
    e("s_cbranch_scc1 L_nosig")
    e("v_mov_b32 v%d, 1" % (V_B0 + 1))
    e("s_mov_b64 exec, 1")
    e("buffer_atomic_add v%d, v%d, %s, 0 offen" % (V_B0 + 1, V_B0, sr(SRD_DBG, 4)))
    e("s_mov_b64 exec, -1")
    e("L_nosig:")
    e("s_cmp_lg_u32 %s, 0" % sr(S_WAVE))
    e("s_cbranch_scc1 L_nocnt")
    e("buffer_load_dword v%d, v%d, %s, 0 offen sc1" % (V_B1 + 3, V_B0, sr(SRD_DBG, 4)))
    e("L_nocnt:")
    if qpos == 2:
        g.load_rows(V_Q, SRD_Q, qm)
        e("s_waitcnt vmcnt(12)")
    elif qpos in (0, 1):
        e("s_waitcnt vmcnt(%d)" % 13)
        e("s_cmp_eq_u32 %s, 7" % sr(S_WAVE))
        e("s_cbranch_scc1 L_vok")
        e("s_cmp_eq_u32 %s, 0" % sr(S_WAVE))
        e("s_cbranch_scc1 L_vok")
        e("s_waitcnt vmcnt(12)")
        e("L_vok:")
    else:
        e("s_waitcnt vmcnt(0)")
    g.stamp(2)
    if qpos in (0, 1):
        pass
    else:
        e("v_readfirstlane_b32 %s, v%d" % (sr(S_CNT), V_B1 + 3))
    g.kv_tiles()
    e("s_mul_i32 %s, %s, %d" % (sr(S_T0), sr(S_WAVE), PART_BYTES))
    e("v_lshlrev_b32 v%d, 4, v%d" % (V_B0, V_LANE))
    e("v_add_u32 v%d, %s, v%d" % (V_B0, sr(S_T0), V_B0))
    e("s_mov_b32 exec_lo, -1")
    e("s_mov_b32 exec_hi, 0")
    for tau in range(13):
        e("ds_write_b128 v%d, %s offset:%d" % (V_B0, vr(V_ACC + 4 * tau, 4), tau * 512))
    e("s_mov_b64 exec, -1")
    if qpos == 3:
        g.load_rows(V_Q, SRD_Q, qm)
    e("s_cmp_lg_u32 %s, 0" % sr(S_WAVE))
    e("s_cbranch_scc1 L_cntok")
    e("s_cmp_eq_u32 %s, 8" % sr(S_CNT))
    e("s_cbranch_scc1 L_cntok")
    e("s_lshl_b32 %s, %s, 2" % (sr(S_T0), sr(S_H)))
    e("v_mov_b32 v%d, %s" % (V_B1, sr(S_T0)))
    e("s_mov_b32 %s, 0x10000" % sr(S_T2))
    e("L_cntspin:")
    e("buffer_load_dword v%d, v%d, %s, 0 offen sc1" % (V_B1 + 3, V_B1, sr(SRD_DBG, 4)))
    e("s_waitcnt vmcnt(0)")
    e("v_readfirstlane_b32 %s, v%d" % (sr(S_CNT), V_B1 + 3))
    e("s_sub_u32 %s, %s, 1" % (sr(S_T2), sr(S_T2)))
    e("s_cmp_eq_u32 %s, 0" % sr(S_T2))
    e("s_cbranch_scc1 L_cntok")
    e("s_cmp_lg_u32 %s, 8" % sr(S_CNT))
    e("s_cbranch_scc1 L_cntspin")
    e("L_cntok:")
    e("v_min_u32 v%d, 415, v0" % (V_B1 + 1))
    e("v_lshlrev_b32 v%d, 4, v%d" % (V_B1, V_B1 + 1))
    e("s_waitcnt lgkmcnt(0)")
    e("s_barrier")
    g.stamp(3)
    for w in range(8):
        e("ds_read_b128 %s, v%d offset:%d" % (vr(V_ACC + 4 * w, 4), V_B1, w * PART_BYTES))
    for w in range(1, 8):
        e("s_waitcnt lgkmcnt(%d)" % (7 - w))
        for r in range(4):
            e("v_add_f32 v%d, v%d, v%d" % (V_ACC + r, V_ACC + r, V_ACC + 4 * w + r))
    for r in range(4):
        e("v_min_u32 v%d, -2, v%d" % (V_ACC + r, V_ACC + r))
    e("buffer_store_dwordx4 %s, v%d, %s, %s offen%s" % (vr(V_ACC, 4), V_B1, sr(SRD_WS, 4), sr(S_PART), xm))
    g.stamp(4)
    PL = V_ACC + 4

    def payload_loads():
        e("s_mov_b32 %s, %s" % (sr(S_T0), sr(S_HPART)))
        for c in range(8):
            e("buffer_load_dwordx4 %s, v%d, %s, %s offen%s" % (vr(PL + 4 * c, 4), V_B1, sr(SRD_WS, 4), sr(S_T0), xm))
            if c < 7:
                e("s_add_u32 %s, %s, %d" % (sr(S_T0), sr(S_T0), SLOT))
    payload_loads()
    g.table_addr(V_B1 + 1)
    e("s_waitcnt vmcnt(9)")
    g.stamp(5)
    for T in range(2):
        g.proj(V_Q, T, False)
        g.phi(T)
        g.pack_phi_q(T)
    e("s_mov_b32 %s, 0x10000" % sr(S_T2))
    e("s_waitcnt vmcnt(0)")
    e("s_branch L_chk")
    e("L_retry:")
    payload_loads()
    e("s_waitcnt vmcnt(0)")
    e("L_chk:")
    M = V_ACC + 36
    e("v_max3_u32 v%d, v%d, v%d, v%d" % (M, PL, PL + 1, PL + 2))
    i = 3
    while i < 32:
        if i + 1 < 32:
            e("v_max3_u32 v%d, v%d, v%d, v%d" % (M, M, PL + i, PL + i + 1)); i += 2
        else:
            e("v_max_u32 v%d, v%d, v%d" % (M, M, PL + i)); i += 1
    e("v_cmp_eq_u32 %s, -1, v%d" % (sr(S_EXEC, 2), M))
    e("s_sub_u32 %s, %s, 1" % (sr(S_T2), sr(S_T2)))
    e("s_cmp_eq_u32 %s, 0" % sr(S_T2))
    e("s_cbranch_scc1 L_got")
    e("s_cmp_lg_u64 %s, 0" % sr(S_EXEC, 2))
    e("s_cbranch_scc1 L_retry")
    e("L_got:")
    g.stamp(6)
    if opts.get("prof"):
        e("s_sub_u32 %s, 0x10000, %s" % (sr(S_T3), sr(S_T2)))
    a = V_ACC
    for r in range(4):
        e("v_add_f32 v%d, v%d, v%d" % (a + r, PL + r, PL + 4 + r))
    for c in range(2, 8):
        for r in range(4):
            e("v_add_f32 v%d, v%d, v%d" % (a + r, a + r, PL + 4 * c + r))
    g.hilo_write(LDS_TAB)
    e("s_waitcnt lgkmcnt(0)")
    e("s_barrier")
    g.stamp(7)
    g.read_table(LDS_TAB)
    e("s_waitcnt lgkmcnt(0)")
    g.out_tile(0, V_ACC, sm)
    g.out_tile(1, V_K - 4, sm)
    g.stamp(8)
    if opts.get("prof"):
        e("s_waitcnt vmcnt(0)")
        g.stamp(9)
        g.flush_stamps()
        e("v_mov_b32 v254, %s" % sr(S_T3))
        e("v_mov_b32 v255, 0")
        e("buffer_store_dwordx2 v[254:255], v253, %s, 0 offen offset:%d" % (sr(SRD_WS, 4), 15 * 8))
    e("L_end:")
    e("s_endpgm")
    txt = HEADER
    txt += "; @launch grid=(256,1,1) block=(512,1,1) lds=%d\n" % (LDS_TAB + PART_BYTES)
    txt += '.amdgcn_target "amdgcn-amd-amdhsa--gfx950"\n'
    txt += kernel_text(NAME + "_kernel", g)
    txt += kd(NAME + "_kernel")
    return txt


def gen_fused2(opts):
    lm = MODS[opts.get("mod", 1)]
    qm = MODS[opts.get("qmod", opts.get("mod", 1))]
    sm = MODS[opts.get("smod", 0)]
    xm = MODS[opts.get("xmod", 2)]
    nearly = opts.get("nearly", 4)
    prio = opts.get("prio", 1)
    bara = opts.get("bara", 0)
    V_CNT = V_SS + 3
    g = Gen(opts)
    e = g
    g.prologue("L_end")
    e("s_mul_i32 %s, %s, %d" % (sr(S_HPART), sr(S_H), 8 * SLOT))
    e("s_mul_i32 %s, %s, %d" % (sr(S_T1), sr(S_C), SLOT))
    e("s_add_u32 %s, %s, %s" % (sr(S_PART), sr(S_HPART), sr(S_T1)))
    g.stamp(0)
    if prio:
        e("s_setprio 3")
    e("s_cmp_lg_u32 %s, 0" % sr(S_C))
    e("s_cbranch_scc1 L_noclear")
    e("v_lshlrev_b32 v8, 4, v%d" % V_LANE)
    for i in range(4):
        e("v_mov_b32 v%d, -1" % (12 + i))
    e("s_mul_i32 %s, %s, %d" % (sr(S_T0), sr(S_WAVE), SLOT))
    e("s_add_u32 %s, %s, %s" % (sr(S_T0), sr(S_T0), sr(S_HPART)))
    e("s_add_u32 %s, %s, 4096" % (sr(S_T1), sr(S_T0)))
    for i in range(7):
        e("buffer_store_dwordx4 v[12:15], v8, %s, %s offen offset:%d%s" % (
            sr(SRD_WS, 4), sr(S_T0) if i < 4 else sr(S_T1), (i & 3) * 1024, xm))
    e("s_nop 1")
    g.load_w()
    g.load_rows(V_K, SRD_K, lm)
    e("s_waitcnt vmcnt(18)")
    e("s_barrier")
    e("s_cmp_lg_u32 %s, 7" % sr(S_WAVE))
    e("s_cbranch_scc1 L_noflag")
    e("s_lshl_b32 %s, %s, 2" % (sr(S_T0), sr(S_H)))
    e("v_mov_b32 v%d, %s" % (V_B0, sr(S_T0)))
    e("v_mov_b32 v%d, 1" % (V_B0 + 1))
    e("s_mov_b64 exec, 1")
    e("buffer_store_dword v%d, v%d, %s, 0 offen%s" % (V_B0 + 1, V_B0, sr(SRD_DBG, 4), xm))
    e("s_mov_b64 exec, -1")
    g.load_v(lm)
    if bara:
        e("s_barrier")
    e("s_waitcnt vmcnt(16)")
    e("s_branch L_kready")
    e("L_noflag:")
    g.load_v(lm)
    if bara:
        e("s_barrier")
    e("s_branch L_kready")
    e("L_noclear:")
    g.load_w()
    g.load_rows(V_K, SRD_K, lm)
    g.load_v(lm)
    if bara:
        e("s_barrier")
    e("L_kready:")
    if prio:
        e("s_setprio 0")
    e("s_waitcnt vmcnt(22)")
    g.proj(V_K, 0, True)
    e("s_waitcnt vmcnt(16)")
    g.proj(V_K, 1, True)
    g.phi(0)
    g.phi(1)
    g.kv_mfma()
    g.stamp(1)
    e("s_cmp_lg_u32 %s, 0" % sr(S_WAVE))
    e("s_cbranch_scc1 L_nocnt")
    e("s_lshl_b32 %s, %s, 2" % (sr(S_T0), sr(S_H)))
    e("v_mov_b32 v%d, %s" % (V_B0, sr(S_T0)))
    e("buffer_load_dword v%d, v%d, %s, 0 offen sc1" % (V_CNT, V_B0, sr(SRD_DBG, 4)))
    e("s_waitcnt vmcnt(1)")
    e("s_branch L_vready")
    e("L_nocnt:")
    e("s_waitcnt vmcnt(0)")
    e("L_vready:")
    g.stamp(2)
    g.kv_tiles()
    e("s_mul_i32 %s, %s, %d" % (sr(S_T0), sr(S_WAVE), PART_BYTES))
    e("v_lshlrev_b32 v%d, 4, v%d" % (V_B0, V_LANE))
    e("v_add_u32 v%d, %s, v%d" % (V_B0, sr(S_T0), V_B0))
    e("s_mov_b32 exec_lo, -1")
    e("s_mov_b32 exec_hi, 0")
    for tau in range(13):
        e("ds_write_b128 v%d, %s offset:%d" % (V_B0, vr(V_ACC + 4 * tau, 4), tau * 512))
    e("s_mov_b64 exec, -1")
    if nearly > 0:
        e("s_cmp_ge_u32 %s, %d" % (sr(S_WAVE), nearly))
        e("s_cbranch_scc1 L_noq1")
        g.load_rows(V_Q, SRD_Q, qm)
        e("L_noq1:")
    g.stamp(10)
    if prio:
        e("s_setprio 3")
    e("s_cmp_lg_u32 %s, 0" % sr(S_WAVE))
    e("s_cbranch_scc1 L_cntok")
    e("s_waitcnt vmcnt(%d)" % (12 if nearly > 0 else 0))
    e("v_readfirstlane_b32 %s, v%d" % (sr(S_CNT), V_CNT))
    e("s_cmp_eq_u32 %s, 1" % sr(S_CNT))
    e("s_cbranch_scc1 L_cntok")
    e("s_lshl_b32 %s, %s, 2" % (sr(S_T0), sr(S_H)))
    e("v_mov_b32 v%d, %s" % (V_B1, sr(S_T0)))
    e("s_mov_b32 %s, 0x10000" % sr(S_T2))
    e("L_cntspin:")
    e("buffer_load_dword v%d, v%d, %s, 0 offen sc1" % (V_CNT, V_B1, sr(SRD_DBG, 4)))
    e("s_waitcnt vmcnt(0)")
    e("v_readfirstlane_b32 %s, v%d" % (sr(S_CNT), V_CNT))
    e("s_sub_u32 %s, %s, 1" % (sr(S_T2), sr(S_T2)))
    e("s_cmp_eq_u32 %s, 0" % sr(S_T2))
    e("s_cbranch_scc1 L_cntok")
    e("s_cmp_lg_u32 %s, 1" % sr(S_CNT))
    e("s_cbranch_scc1 L_cntspin")
    e("L_cntok:")
    e("v_min_u32 v%d, 415, v0" % (V_B1 + 1))
    e("v_lshlrev_b32 v%d, 4, v%d" % (V_B1, V_B1 + 1))
    e("s_waitcnt lgkmcnt(0)")
    e("s_barrier")
    g.stamp(3)
    for w in range(8):
        e("ds_read_b128 %s, v%d offset:%d" % (vr(V_ACC + 4 * w, 4), V_B1, w * PART_BYTES))
    for w in range(1, 8):
        e("s_waitcnt lgkmcnt(%d)" % (7 - w))
        for r in range(4):
            e("v_add_f32 v%d, v%d, v%d" % (V_ACC + r, V_ACC + r, V_ACC + 4 * w + r))
    for r in range(4):
        e("v_min_u32 v%d, -2, v%d" % (V_ACC + r, V_ACC + r))
    e("buffer_store_dwordx4 %s, v%d, %s, %s offen%s" % (vr(V_ACC, 4), V_B1, sr(SRD_WS, 4), sr(S_PART), xm))
    g.stamp(4)
    if nearly < 8:
        if prio:
            e("s_setprio 0")
        if nearly > 0:
            e("s_cmp_lt_u32 %s, %d" % (sr(S_WAVE), nearly))
            e("s_cbranch_scc1 L_noq2")
        g.load_rows(V_Q, SRD_Q, qm)
        if nearly > 0:
            e("L_noq2:")
    PL = V_ACC + 4

    def payload_loads():
        e("s_mov_b32 %s, %s" % (sr(S_T0), sr(S_HPART)))
        for c in range(8):
            e("buffer_load_dwordx4 %s, v%d, %s, %s offen%s" % (vr(PL + 4 * c, 4), V_B1, sr(SRD_WS, 4), sr(S_T0), xm))
            if c < 7:
                e("s_add_u32 %s, %s, %d" % (sr(S_T0), sr(S_T0), SLOT))
    if opts.get("pbar"):
        e("s_barrier")
    payload_loads()
    g.stamp(11)
    g.table_addr(V_B1 + 1)
    e("s_waitcnt vmcnt(8)")
    g.stamp(5)
    for T in range(2):
        g.proj(V_Q, T, False)
        g.phi(T)
        g.pack_phi_q(T)
    e("s_mov_b32 %s, 0x10000" % sr(S_T2))
    e("s_waitcnt vmcnt(0)")
    e("s_branch L_chk")
    e("L_retry:")
    payload_loads()
    e("s_waitcnt vmcnt(0)")
    e("L_chk:")
    M = V_ACC + 36
    e("v_max3_u32 v%d, v%d, v%d, v%d" % (M, PL, PL + 1, PL + 2))
    i = 3
    while i < 32:
        if i + 1 < 32:
            e("v_max3_u32 v%d, v%d, v%d, v%d" % (M, M, PL + i, PL + i + 1)); i += 2
        else:
            e("v_max_u32 v%d, v%d, v%d" % (M, M, PL + i)); i += 1
    e("v_cmp_eq_u32 %s, -1, v%d" % (sr(S_EXEC, 2), M))
    e("s_sub_u32 %s, %s, 1" % (sr(S_T2), sr(S_T2)))
    e("s_cmp_eq_u32 %s, 0" % sr(S_T2))
    e("s_cbranch_scc1 L_got")
    e("s_cmp_lg_u64 %s, 0" % sr(S_EXEC, 2))
    e("s_cbranch_scc1 L_retry")
    e("L_got:")
    g.stamp(6)
    if opts.get("prof"):
        e("s_sub_u32 %s, 0x10000, %s" % (sr(S_T3), sr(S_T2)))
    a = V_ACC
    for r in range(4):
        e("v_add_f32 v%d, v%d, v%d" % (a + r, PL + r, PL + 4 + r))
    for c in range(2, 8):
        for r in range(4):
            e("v_add_f32 v%d, v%d, v%d" % (a + r, a + r, PL + 4 * c + r))
    g.hilo_write(LDS_TAB)
    e("s_waitcnt lgkmcnt(0)")
    e("s_barrier")
    g.stamp(7)
    g.read_table(LDS_TAB)
    e("s_waitcnt lgkmcnt(0)")
    g.out_tile(0, V_ACC, sm)
    g.out_tile(1, V_K - 4, sm)
    g.stamp(8)
    if opts.get("prof"):
        e("s_waitcnt vmcnt(0)")
        g.stamp(9)
        g.flush_stamps()
        e("v_mov_b32 v254, %s" % sr(S_T3))
        e("v_mov_b32 v255, 0")
        e("buffer_store_dwordx2 v[254:255], v253, %s, 0 offen offset:%d" % (sr(SRD_WS, 4), 15 * 8))
    e("L_end:")
    e("s_endpgm")
    txt = HEADER
    txt += "; @launch grid=(256,1,1) block=(512,1,1) lds=%d\n" % (LDS_TAB + PART_BYTES)
    txt += '.amdgcn_target "amdgcn-amd-amdhsa--gfx950"\n'
    txt += kernel_text(NAME + "_kernel", g)
    txt += kd(NAME + "_kernel")
    return txt


LDS_N = LDS_TAB + PART_BYTES
TAGMASK = 0xFFF


def gen_fused3(opts):
    lm = MODS[opts.get("mod", 1)]
    qm = MODS[opts.get("qmod", opts.get("mod", 1))]
    sm = MODS[opts.get("smod", 0)]
    xm = MODS[opts.get("xmod", 2)]
    nearly = opts.get("nearly", 3)
    prio = opts.get("prio", 1)
    nw = opts.get("nwave", 4)
    SL = PART_BYTES
    V_CNT = V_SS + 3
    S_N = S_CNT
    S_MASK = 61
    g = Gen(opts)
    e = g
    g.prologue("L_end")
    g.stamp(0)
    if prio:
        e("s_setprio 3")
    e("s_mov_b32 %s, 0x%x" % (sr(S_MASK), 0xFFFFFFFF ^ TAGMASK))
    e("s_or_b32 %s, %s, %s" % (sr(S_T0), sr(S_H), sr(S_C)))
    e("s_or_b32 %s, %s, %s" % (sr(S_T0), sr(S_T0), sr(S_WAVE)))
    e("s_cmp_lg_u32 %s, 0" % sr(S_T0))
    e("s_cbranch_scc1 L_nochoose")
    e("v_mul_u32_u24 v%d, %d, v%d" % (V_B0, 4 * SL, V_LANE))
    for i in range(4):
        e("s_mov_b32 %s, %d" % (sr(S_T1), i * SL))
        e("buffer_load_dword v%d, v%d, %s, %s offen%s" % (V_B1 + i, V_B0, sr(SRD_WS, 4), sr(S_T1), xm))
    g.load_w()
    g.load_rows(V_K, SRD_K, lm)
    g.load_v(lm)
    e("s_waitcnt vmcnt(34)")
    for i in range(4):
        e("v_and_b32 v%d, 0x%x, v%d" % (V_B1 + i, TAGMASK, V_B1 + i))
    e("v_readfirstlane_b32 %s, v%d" % (sr(S_N), V_B1))
    e("L_cand:")
    e("s_add_u32 %s, %s, 1" % (sr(S_N), sr(S_N)))
    e("s_and_b32 %s, %s, 0x%x" % (sr(S_N), sr(S_N), TAGMASK))
    e("v_cmp_eq_u32 vcc, %s, v%d" % (sr(S_N), V_B1))
    e("v_cmp_eq_u32 %s, %s, v%d" % (sr(S_EXEC, 2), sr(S_N), V_B1 + 1))
    e("s_or_b64 vcc, vcc, %s" % sr(S_EXEC, 2))
    e("v_cmp_eq_u32 %s, %s, v%d" % (sr(S_EXEC, 2), sr(S_N), V_B1 + 2))
    e("s_or_b64 vcc, vcc, %s" % sr(S_EXEC, 2))
    e("v_cmp_eq_u32 %s, %s, v%d" % (sr(S_EXEC, 2), sr(S_N), V_B1 + 3))
    e("s_or_b64 vcc, vcc, %s" % sr(S_EXEC, 2))
    e("s_cmp_lg_u64 vcc, 0")
    e("s_cbranch_scc1 L_cand")
    e("s_or_b32 %s, %s, 0x80000000" % (sr(S_T1), sr(S_N)))
    e("v_mov_b32 v%d, %s" % (V_B0 + 1, sr(S_T1)))
    e("v_mov_b32 v%d, 0" % V_B0)
    e("s_mov_b64 exec, 1")
    e("buffer_store_dword v%d, v%d, %s, 0 offen%s" % (V_B0 + 1, V_B0, sr(SRD_DBG, 4), xm))
    e("s_mov_b64 exec, -1")
    if prio:
        e("s_setprio 0")
    e("s_waitcnt vmcnt(17)")
    e("s_branch L_kready")
    e("L_nochoose:")
    g.load_w()
    g.load_rows(V_K, SRD_K, lm)
    g.load_v(lm)
    e("s_cmp_lg_u32 %s, %d" % (sr(S_WAVE), nw))
    e("s_cbranch_scc1 L_notagld")
    e("v_mov_b32 v%d, 0" % V_B0)
    e("buffer_load_dword v%d, v%d, %s, 0 offen sc1" % (V_B0 + 1, V_B0, sr(SRD_DBG, 4)))
    if prio:
        e("s_setprio 0")
    e("s_waitcnt vmcnt(17)")
    e("s_branch L_kready")
    e("L_notagld:")
    if prio:
        e("s_setprio 0")
    e("L_kready:")
    e("s_waitcnt vmcnt(22)")
    g.proj(V_K, 0, True)
    e("s_waitcnt vmcnt(16)")
    g.proj(V_K, 1, True)
    g.phi(0)
    g.phi(1)
    g.kv_mfma()
    g.stamp(1)
    e("s_waitcnt vmcnt(0)")
    g.stamp(2)
    e("s_cmp_lg_u32 %s, %d" % (sr(S_WAVE), nw))
    e("s_cbranch_scc1 L_tagok")
    e("v_readfirstlane_b32 %s, v%d" % (sr(S_N), V_B0 + 1))
    e("s_cmp_lt_i32 %s, 0" % sr(S_N))
    e("s_cbranch_scc1 L_tagput")
    e("s_mov_b32 %s, 0x10000" % sr(S_T2))
    e("v_mov_b32 v%d, 0" % V_B0)
    e("L_tagspin:")
    e("buffer_load_dword v%d, v%d, %s, 0 offen sc1" % (V_B0 + 1, V_B0, sr(SRD_DBG, 4)))
    e("s_waitcnt vmcnt(0)")
    e("v_readfirstlane_b32 %s, v%d" % (sr(S_N), V_B0 + 1))
    e("s_sub_u32 %s, %s, 1" % (sr(S_T2), sr(S_T2)))
    e("s_cmp_eq_u32 %s, 0" % sr(S_T2))
    e("s_cbranch_scc1 L_tagput")
    e("s_cmp_ge_i32 %s, 0" % sr(S_N))
    e("s_cbranch_scc1 L_tagspin")
    e("L_tagput:")
    e("v_and_b32 v%d, 0x%x, v%d" % (V_B0 + 1, TAGMASK, V_B0 + 1))
    e("v_mov_b32 v%d, %d" % (V_B0, LDS_N))
    e("ds_write_b32 v%d, v%d" % (V_B0, V_B0 + 1))
    e("L_tagok:")
    g.kv_tiles()
    e("s_mul_i32 %s, %s, %d" % (sr(S_T0), sr(S_WAVE), PART_BYTES))
    e("v_lshlrev_b32 v%d, 4, v%d" % (V_B0, V_LANE))
    e("v_add_u32 v%d, %s, v%d" % (V_B0, sr(S_T0), V_B0))
    e("s_mov_b32 exec_lo, -1")
    e("s_mov_b32 exec_hi, 0")
    for tau in range(13):
        e("ds_write_b128 v%d, %s offset:%d" % (V_B0, vr(V_ACC + 4 * tau, 4), tau * 512))
    e("s_mov_b64 exec, -1")
    if nearly > 0:
        e("s_cmp_ge_u32 %s, %d" % (sr(S_WAVE), nearly))
        e("s_cbranch_scc1 L_noq1")
        g.load_rows(V_Q, SRD_Q, qm)
        e("L_noq1:")
    g.stamp(10)
    if prio:
        e("s_setprio 3")
    e("v_min_u32 v%d, 415, v0" % (V_B1 + 1))
    e("v_lshlrev_b32 v%d, 4, v%d" % (V_B1, V_B1 + 1))
    e("v_mov_b32 v%d, %d" % (V_B0, LDS_N))
    e("s_waitcnt lgkmcnt(0)")
    e("s_barrier")
    g.stamp(3)
    e("ds_read_b32 v%d, v%d" % (V_CNT, V_B0))
    for w in range(8):
        e("ds_read_b128 %s, v%d offset:%d" % (vr(V_ACC + 4 * w, 4), V_B1, w * PART_BYTES))
    for w in range(1, 8):
        e("s_waitcnt lgkmcnt(%d)" % (7 - w))
        for r in range(4):
            e("v_add_f32 v%d, v%d, v%d" % (V_ACC + r, V_ACC + r, V_ACC + 4 * w + r))
    for r in range(4):
        e("v_bfi_b32 v%d, %s, v%d, v%d" % (V_ACC + r, sr(S_MASK), V_ACC + r, V_CNT))
    e("buffer_store_dwordx4 %s, v%d, %s, %s offen%s" % (vr(V_ACC, 4), V_B1, sr(SRD_WS, 4), sr(S_PART), xm))
    g.stamp(4)
    V_N = V_B0 + 2
    e("v_mov_b32 v%d, v%d" % (V_N, V_CNT))
    if nearly < 8:
        if prio:
            e("s_setprio 0")
        if nearly > 0:
            e("s_cmp_lt_u32 %s, %d" % (sr(S_WAVE), nearly))
            e("s_cbranch_scc1 L_noq2")
        g.load_rows(V_Q, SRD_Q, qm)
        if nearly > 0:
            e("L_noq2:")
    PL = V_ACC + 4

    def payload_loads():
        e("s_mov_b32 %s, %s" % (sr(S_T0), sr(S_HPART)))
        for c in range(8):
            e("buffer_load_dwordx4 %s, v%d, %s, %s offen%s" % (vr(PL + 4 * c, 4), V_B1, sr(SRD_WS, 4), sr(S_T0), xm))
            if c < 7:
                e("s_add_u32 %s, %s, %d" % (sr(S_T0), sr(S_T0), SL))
    if opts.get("pbar", 1):
        e("s_barrier")
    payload_loads()
    g.stamp(11)
    g.table_addr(V_B1 + 1)
    e("s_waitcnt vmcnt(8)")
    g.stamp(5)
    for T in range(2):
        g.proj(V_Q, T, False)
        g.phi(T)
        g.pack_phi_q(T)
    e("s_mov_b32 %s, 0x10000" % sr(S_T2))
    e("s_waitcnt vmcnt(0)")
    e("s_branch L_chk")
    e("L_retry:")
    payload_loads()
    e("s_waitcnt vmcnt(0)")
    e("L_chk:")
    M = V_ACC + 36
    for i in range(32):
        e("v_xor_b32 v%d, v%d, v%d" % (PL + i, PL + i, V_N))
    e("v_or3_b32 v%d, v%d, v%d, v%d" % (M, PL, PL + 1, PL + 2))
    i = 3
    while i < 32:
        if i + 1 < 32:
            e("v_or3_b32 v%d, v%d, v%d, v%d" % (M, M, PL + i, PL + i + 1)); i += 2
        else:
            e("v_or_b32 v%d, v%d, v%d" % (M, M, PL + i)); i += 1
    e("v_and_b32 v%d, 0x%x, v%d" % (M, TAGMASK, M))
    e("v_cmp_ne_u32 %s, 0, v%d" % (sr(S_EXEC, 2), M))
    e("s_sub_u32 %s, %s, 1" % (sr(S_T2), sr(S_T2)))
    e("s_cmp_eq_u32 %s, 0" % sr(S_T2))
    e("s_cbranch_scc1 L_got")
    e("s_cmp_lg_u64 %s, 0" % sr(S_EXEC, 2))
    e("s_cbranch_scc1 L_retry")
    e("L_got:")
    g.stamp(6)
    if opts.get("prof"):
        e("s_sub_u32 %s, 0x10000, %s" % (sr(S_T3), sr(S_T2)))
    a = V_ACC
    for r in range(4):
        e("v_add_f32 v%d, v%d, v%d" % (a + r, PL + r, PL + 4 + r))
    for c in range(2, 8):
        for r in range(4):
            e("v_add_f32 v%d, v%d, v%d" % (a + r, a + r, PL + 4 * c + r))
    g.hilo_write(LDS_TAB)
    e("s_waitcnt lgkmcnt(0)")
    e("s_barrier")
    g.stamp(7)
    g.read_table(LDS_TAB)
    e("s_waitcnt lgkmcnt(0)")
    g.out_tile(0, V_ACC, sm)
    g.out_tile(1, V_K - 4, sm)
    g.stamp(8)
    if opts.get("prof"):
        e("s_waitcnt vmcnt(0)")
        g.stamp(9)
        g.flush_stamps()
        e("v_mov_b32 v254, %s" % sr(S_T3))
        e("v_mov_b32 v255, 0")
        e("buffer_store_dwordx2 v[254:255], v253, %s, 0 offen offset:%d" % (sr(SRD_WS, 4), 15 * 8))
    e("L_end:")
    e("s_endpgm")
    txt = HEADER
    txt += "; @launch grid=(256,1,1) block=(512,1,1) lds=%d\n" % (LDS_N + 64)
    txt += '.amdgcn_target "amdgcn-amd-amdhsa--gfx950"\n'
    txt += kernel_text(NAME + "_kernel", g)
    txt += kd(NAME + "_kernel")
    return txt


def gen_bench(opts):
    opts = dict(opts); opts["prof"] = 1
    g = Gen(opts)
    mod = {0: "", 1: " nt", 2: " sc1", 3: " sc0 sc1", 4: " sc0 sc1 nt", 5: " sc1 nt", 6: " sc0", 7: " sc0 nt"}[opts.get("mod", 0)]
    smod = {0: "", 1: " nt", 2: " sc1", 3: " sc0 sc1", 4: " sc0 sc1 nt", 5: " sc1 nt", 6: " sc0", 7: " sc0 nt"}[opts.get("smod", 0)]
    pat = opts.get("pat", 0)
    g.prologue("L_end")
    g.stamp(0)
    g("v_lshlrev_b32 v8, 4, v%d" % V_LANE)
    g("s_add_u32 s70, %s, 4096" % sr(S_B0))
    g("s_add_u32 s71, %s, 8192" % sr(S_B0))
    def coal(vbase, srd):
        for i in range(12):
            so = (sr(S_B0), "s70", "s71")[i // 4]
            g("buffer_load_dwordx4 %s, v8, %s, %s offen offset:%d%s" % (vr(vbase + 4 * i, 4), sr(srd, 4), so, (i % 4) * 1024, mod))
    def coal_store(vbase, srd):
        for i in range(12):
            so = (sr(S_B0), "s70", "s71")[i // 4]
            g("buffer_store_dwordx4 %s, v8, %s, %s offen offset:%d%s" % (vr(vbase + 4 * i, 4), sr(srd, 4), so, (i % 4) * 1024, smod))
    def row_store(vbase, srd):
        for T in range(2):
            for t in range(6):
                g("buffer_store_dwordx4 %s, v%d, %s, %s offen offset:%d%s" % (
                    vr(vbase + 24 * T + 4 * t, 4), V_OK, sr(srd, 4), sr(S_B0 + T), 64 * t, smod))
    def dma(srd, ldsbase):
        g("s_mul_i32 s72, %s, 12288" % sr(S_WAVE))
        g("s_add_u32 s72, s72, %d" % ldsbase)
        for i in range(12):
            so = (sr(S_B0), "s70", "s71")[i // 4]
            g("s_add_u32 m0, s72, %d" % ((i // 4) * 4096))
            g("s_nop 0")
            g("buffer_load_dwordx4 v8, %s, %s offen offset:%d%s lds" % (sr(srd, 4), so, (i % 4) * 1024, mod))
    what = opts.get("what", 3)
    if pat == 3:
        if what & 1: dma(SRD_K, 0)
        what &= ~1
        pat = 0
    if what & 1:
        if pat == 0: coal(V_K, SRD_K)
        else: g.load_rows(V_K, SRD_K, mod)
    if what & 2:
        if pat == 0: coal(V_VA, SRD_V)
        elif pat == 1: g.load_rows(V_VA, SRD_V, mod)
        else: g.load_v(mod)
    if what & 4:
        if pat == 0: coal(V_Q, SRD_Q)
        else: g.load_rows(V_Q, SRD_Q, mod)
    g("s_waitcnt vmcnt(0)")
    g.stamp(1)
    if what & 8:
        if opts.get("spat", 0) == 0: coal_store(V_Q, SRD_O)
        else: row_store(V_Q, SRD_O)
        g.stamp(2)
        g("s_waitcnt vmcnt(0)")
        g.stamp(3)
    g.flush_stamps()
    g("L_end:")
    g("s_endpgm")
    txt = HEADER
    txt += "; @launch grid=(%d,1,1) block=(%d,1,1) lds=%d\n" % (opts.get("grid", 256), opts.get("block", 512), opts.get("lds", 0))
    txt += '.amdgcn_target "amdgcn-amd-amdhsa--gfx950"\n'
    txt += kernel_text(NAME + "_kernel", g)
    txt += kd(NAME + "_kernel", opts.get("vgpr", 256))
    return txt


if __name__ == "__main__":
    import argparse
    ap = argparse.ArgumentParser()
    ap.add_argument("variant")
    ap.add_argument("-o", default="cdna_kernels/%s.s" % NAME)
    ap.add_argument("--opt", action="append", default=[])
    a = ap.parse_args()
    opts = {}
    for kv in a.opt:
        k, _, v = kv.partition("=")
        opts[k] = (int(v, 0) if v else 1)
    txt = globals()["gen_" + a.variant](opts)
    open(a.o, "w").write(txt)
    print("wrote", a.o, len(txt))
```

```python
import struct, sys, os, math
sys.path.insert(0, os.path.dirname(os.path.abspath(__file__)))
import hazard

NAME = "standalone__linear_kernel_rfa__prompt"


def f32(x):
    return struct.unpack("<I", struct.pack("<f", x))[0]


def hx(x):
    return "0x%08x" % (x & 0xFFFFFFFF)


D = 192
RB = 384
TENSOR_BYTES = 32 * 2048 * RB
PART_BYTES = 13 * 512
WS_BYTES = 268435456
SCALE = float(D) ** -0.25
LOG2E = 1.4426950408889634
C_EXP = SCALE * LOG2E
C_SQ = -0.5 * SCALE
C_BIAS = -1.5


def vr(a, n=1):
    return "v%d" % a if n == 1 else "v[%d:%d]" % (a, a + n - 1)


def sr(a, n=1):
    return "s%d" % a if n == 1 else "s[%d:%d]" % (a, a + n - 1)


S_Q, S_K, S_V, S_W = 4, 6, 8, 10
S_O, S_DBG, S_WS = 12, 14, 16
S_WAVE = 18
S_TMP = 19
SRD_K, SRD_V, SRD_W, SRD_WS, SRD_Q, SRD_O, SRD_DBG = 20, 24, 28, 32, 36, 40, 44
S_B0, S_B1 = 48, 49
S_SELLO, S_SELHI = 50, 51
S_CEXP = 52
S_H, S_C = 53, 54
S_PART = 55
S_HPART = 56
S_T0, S_T1, S_T2, S_T3 = 57, 58, 59, 60
S_EXEC = 62
S_STAMP = 64
S_PROF = 66
S_CNT = 67
S_ST0 = 68

V_TID = 0
V_LANE = 1
V_OK = 2
V_OVA = 3
V_OVB = 4
V_OW = 5
V_CSQ = 6
V_M15 = 7
V_W = 8
V_K = 32
V_VA = 80
V_VB = 112
V_Q = 128
V_ACC = 176
V_DP = 228
V_SS = 236
V_P = 240
V_B0 = 244
V_B1 = 248
V_ONE = 252
V_AT = 80
V_X = 106


class Gen:
    def __init__(self, opts):
        self.L = []
        self.o = opts
        self.uid = 0

    def __call__(self, s):
        for l in s.split("\n"):
            self.L.append("    " + l.strip() if l.strip() and not l.strip().endswith(":") else l.strip())

    def label(self, base):
        self.uid += 1
        return "%s_%d" % (base, self.uid)

    def stamp(self, idx):
        if not self.o.get("prof"):
            return
        self.stamps = getattr(self, "stamps", set())
        if not isinstance(self.stamps, set):
            self.stamps = set(self.stamps)
        self.stamps.add(idx)
        self("s_memrealtime %s" % sr(S_ST0 + 2 * idx, 2))

    def zero_stamps(self):
        if not self.o.get("prof"):
            return
        for i in range(15):
            self("s_mov_b64 %s, 0" % sr(S_ST0 + 2 * i, 2))

    def flush_stamps(self):
        if not self.o.get("prof"):
            return
        e = self
        e("s_waitcnt lgkmcnt(0)")
        e("v_mov_b32 v253, %s" % sr(S_PROF))
        e("s_mov_b64 exec, 1")
        for idx in sorted(self.stamps):
            e("v_mov_b32 v254, %s" % sr(S_ST0 + 2 * idx))
            e("v_mov_b32 v255, %s" % sr(S_ST0 + 2 * idx + 1))
            e("buffer_store_dwordx2 v[254:255], v253, %s, 0 offen offset:%d" % (sr(SRD_WS, 4), idx * 8))
            e("s_nop 1")

    def prologue(self, end_label):
        e = self
        e("s_cmp_ge_u32 s2, 256")
        e("s_cbranch_scc1 %s" % end_label)
        e("s_load_dwordx8 s[4:11], s[0:1], 0")
        e("s_load_dwordx4 s[12:15], s[0:1], 32")
        e("s_load_dwordx2 s[16:17], s[0:1], 48")
        e("v_and_b32 v%d, 63, v0" % V_LANE)
        e("v_lshrrev_b32 v8, 6, v0")
        e("v_and_b32 v9, 15, v0")
        e("v_bfe_u32 v10, v0, 4, 2")
        e("v_readfirstlane_b32 %s, v8" % sr(S_WAVE))
        e("v_mul_u32_u24 v11, %d, v9" % RB)
        e("v_lshlrev_b32 v12, 4, v10")
        e("v_add_u32 v%d, v11, v12" % V_OK)
        e("v_mul_u32_u24 v13, %d, v10" % (4 * RB))
        e("v_lshlrev_b32 v14, 4, v9")
        e("v_add_u32 v%d, v13, v14" % V_OVA)
        e("v_lshlrev_b32 v14, 3, v9")
        e("v_add_u32 v13, 256, v13")
        e("v_add_u32 v%d, v13, v14" % V_OVB)
        e("v_and_b32 v14, 7, v9")
        e("v_mul_u32_u24 v14, %d, v14" % RB)
        e("v_add_u32 v%d, v14, v12" % V_OW)
        e("v_mov_b32 v%d, %s" % (V_CSQ, hx(f32(C_SQ))))
        e("v_mov_b32 v%d, %s" % (V_M15, hx(f32(C_BIAS))))
        e("s_and_b32 %s, s2, 7" % sr(S_T0))
        e("s_lshr_b32 %s, s2, 6" % sr(S_T1))
        e("s_lshl_b32 %s, %s, 3" % (sr(S_T1), sr(S_T1)))
        e("s_or_b32 %s, %s, %s" % (sr(S_H), sr(S_T0), sr(S_T1)))
        e("s_lshr_b32 %s, s2, 3" % sr(S_C))
        e("s_and_b32 %s, %s, 7" % (sr(S_C), sr(S_C)))
        e("s_mul_i32 %s, %s, %d" % (sr(S_T0), sr(S_H), 2048 * RB))
        e("s_mul_i32 %s, %s, %d" % (sr(S_T1), sr(S_C), 256 * RB))
        e("s_add_u32 %s, %s, %s" % (sr(S_T0), sr(S_T0), sr(S_T1)))
        e("s_mul_i32 %s, %s, %d" % (sr(S_T1), sr(S_WAVE), 32 * RB))
        e("s_add_u32 %s, %s, %s" % (sr(S_B0), sr(S_T0), sr(S_T1)))
        e("s_add_u32 %s, %s, %d" % (sr(S_B1), sr(S_B0), 16 * RB))
        e("s_mul_i32 %s, %s, %d" % (sr(S_HPART), sr(S_H), 8 * PART_BYTES))
        e("s_mul_i32 %s, %s, %d" % (sr(S_T1), sr(S_C), PART_BYTES))
        e("s_add_u32 %s, %s, %s" % (sr(S_PART), sr(S_HPART), sr(S_T1)))
        e("s_mov_b32 %s, 0x05040100" % sr(S_SELLO))
        e("s_mov_b32 %s, 0x07060302" % sr(S_SELHI))
        e("s_mov_b32 %s, %s" % (sr(S_CEXP), hx(f32(C_EXP))))
        if self.o.get("prof"):
            e("s_lshl_b32 %s, s2, 3" % sr(S_PROF))
            e("s_add_u32 %s, %s, %s" % (sr(S_PROF), sr(S_PROF), sr(S_WAVE)))
            e("s_lshl_b32 %s, %s, 7" % (sr(S_PROF), sr(S_PROF)))
            e("s_add_u32 %s, %s, 0x%x" % (sr(S_PROF), sr(S_PROF), 128 << 20))
        e("s_waitcnt lgkmcnt(0)")
        for srd, ptr, nbytes in ((SRD_K, S_K, TENSOR_BYTES), (SRD_V, S_V, TENSOR_BYTES), (SRD_W, S_W, 8 * RB),
                                 (SRD_WS, S_WS, WS_BYTES), (SRD_Q, S_Q, TENSOR_BYTES), (SRD_O, S_O, TENSOR_BYTES),
                                 (SRD_DBG, S_DBG, 256)):
            e("s_mov_b32 %s, %s" % (sr(srd), sr(ptr)))
            e("s_and_b32 %s, %s, 0xffff" % (sr(srd + 1), sr(ptr + 1)))
            e("s_mov_b32 %s, 0x%x" % (sr(srd + 2), nbytes))
            e("s_mov_b32 %s, 0x20000" % sr(srd + 3))

    def load_w(self):
        for t in range(6):
            self("buffer_load_dwordx4 %s, v%d, %s, 0 offen offset:%d" % (vr(V_W + 4 * t, 4), V_OW, sr(SRD_W, 4), 64 * t))

    def load_rows(self, vbase, srd, mod=""):
        for T in range(2):
            for t in range(6):
                self("buffer_load_dwordx4 %s, v%d, %s, %s offen offset:%d%s" % (
                    vr(vbase + 24 * T + 4 * t, 4), V_OK, sr(srd, 4), sr(S_B0 + T), 64 * t, mod))

    def load_v(self, mod=""):
        for j in range(8):
            self("buffer_load_dwordx4 %s, v%d, %s, %s offen offset:%d%s" % (
                vr(V_VA + 4 * j, 4), V_OVA, sr(SRD_V, 4), sr(S_B0 + (j >> 2)), (j & 3) * RB, mod))
            self("buffer_load_dwordx2 %s, v%d, %s, %s offen offset:%d%s" % (
                vr(V_VB + 2 * j, 2), V_OVB, sr(SRD_V, 4), sr(S_B0 + (j >> 2)), (j & 3) * RB, mod))

    def proj(self, vbase, T, is_k):
        e = self
        dp = V_DP + 4 * T
        ss0, ss1 = V_SS + 2 * T, V_SS + 2 * T + 1
        e("v_mov_b32 v%d, 0" % ss0)
        e("v_mov_b32 v%d, 0" % ss1)
        for t in range(6):
            x = vbase + 24 * T + 4 * t
            c = "0" if t == 0 else vr(dp, 4)
            if is_k:
                e("v_mfma_f32_16x16x32_bf16 %s, %s, %s, %s" % (vr(dp, 4), vr(x, 4), vr(V_W + 4 * t, 4), c))
            else:
                e("v_mfma_f32_16x16x32_bf16 %s, %s, %s, %s" % (vr(dp, 4), vr(V_W + 4 * t, 4), vr(x, 4), c))
            for i in range(4):
                e("v_dot2c_f32_bf16 v%d, v%d, v%d" % ((ss0, ss1)[i & 1], x + i, x + i))
        e("v_add_f32 v%d, v%d, v%d" % (ss0, ss0, ss1))
        if is_k:
            e("v_mfma_f32_16x16x4_f32 %s, v%d, v%d, %s" % (vr(dp, 4), ss0, V_CSQ, vr(dp, 4)))
        else:
            e("v_mfma_f32_16x16x4_f32 %s, v%d, v%d, %s" % (vr(dp, 4), V_CSQ, ss0, vr(dp, 4)))

    def phi(self, T):
        e = self
        dp = V_DP + 4 * T
        for r in range(4):
            e("v_fma_f32 v%d, v%d, %s, v%d" % (dp + r, dp + r, sr(S_CEXP), V_M15))
        for r in range(4):
            e("v_exp_f32 v%d, v%d" % (dp + r, dp + r))
        for r in range(4):
            e("v_add_f32 v%d, %s, v%d" % (dp + r, hx(f32(1e-6)), dp + r))

    def kv_mfma(self):
        e = self
        e("v_cvt_pk_bf16_f32 v%d, v%d, v%d" % (V_P + 0, V_DP + 0, V_DP + 1))
        e("v_cvt_pk_bf16_f32 v%d, v%d, v%d" % (V_P + 1, V_DP + 2, V_DP + 3))
        e("v_cvt_pk_bf16_f32 v%d, v%d, v%d" % (V_P + 2, V_DP + 4, V_DP + 5))
        e("v_cvt_pk_bf16_f32 v%d, v%d, v%d" % (V_P + 3, V_DP + 6, V_DP + 7))

    def kv_tiles(self):
        e = self
        for i in range(4):
            e("v_mov_b32 v%d, 0x3f803f80" % (V_ONE + i))
        e("v_mfma_f32_16x16x32_bf16 %s, %s, %s, 0" % (vr(V_ACC + 48, 4), vr(V_P, 4), vr(V_ONE, 4)))
        for tau in range(12):
            b = (V_B0, V_B1)[tau & 1]
            if tau < 8:
                c, half = tau >> 1, tau & 1
                src = lambda j: V_VA + 4 * j + c
            else:
                c, half = (tau - 8) >> 1, (tau - 8) & 1
                src = lambda j: V_VB + 2 * j + c
            sel = (S_SELLO, S_SELHI)[half]
            for p in range(4):
                e("v_perm_b32 v%d, v%d, v%d, %s" % (b + p, src(2 * p + 1), src(2 * p), sr(sel)))
            e("v_mfma_f32_16x16x32_bf16 %s, %s, %s, 0" % (vr(V_ACC + 4 * tau, 4), vr(V_P, 4), vr(b, 4)))

    def wg_reduce_and_store(self, mod):
        e = self
        e("s_mul_i32 %s, %s, %d" % (sr(S_T0), sr(S_WAVE), PART_BYTES))
        e("v_lshlrev_b32 v%d, 4, v%d" % (V_B0, V_LANE))
        e("v_add_u32 v%d, %s, v%d" % (V_B0, sr(S_T0), V_B0))
        e("s_mov_b32 exec_lo, -1")
        e("s_mov_b32 exec_hi, 0")
        for tau in range(13):
            e("ds_write_b128 v%d, %s offset:%d" % (V_B0, vr(V_ACC + 4 * tau, 4), tau * 512))
        e("s_mov_b64 exec, -1")
        e("v_lshlrev_b32 v%d, 4, v0" % V_B1)
        e("s_waitcnt lgkmcnt(0)")
        e("s_barrier")
        skip = self.label("L_red_skip")
        e("v_cmp_gt_u32 vcc, 416, v0")
        e("s_and_saveexec_b64 %s, vcc" % sr(S_EXEC, 2))
        e("s_cbranch_execz %s" % skip)
        for w in range(8):
            e("ds_read_b128 %s, v%d offset:%d" % (vr(V_ACC + 4 * w, 4), V_B1, w * PART_BYTES))
        for w in range(1, 8):
            e("s_waitcnt lgkmcnt(%d)" % (7 - w))
            for r in range(4):
                e("v_add_f32 v%d, v%d, v%d" % (V_ACC + r, V_ACC + r, V_ACC + 4 * w + r))
        if self.o.get("sanitize"):
            for r in range(4):
                e("v_min_u32 v%d, -2, v%d" % (V_ACC + r, V_ACC + r))
        e("buffer_store_dwordx4 %s, v%d, %s, %s offen%s" % (vr(V_ACC, 4), V_B1, sr(SRD_WS, 4), sr(S_PART), mod))
        e("%s:" % skip)
        e("s_mov_b64 exec, %s" % sr(S_EXEC, 2))

    def table_addr(self, vt=0, x=V_X, dst=None):
        e = self
        if dst is None:
            dst = x
        e("v_lshrrev_b32 v%d, 5, v%d" % (x + 1, vt))
        e("v_and_b32 v%d, 15, v%d" % (x + 2, vt))
        e("v_bfe_u32 v%d, v%d, 4, 1" % (x + 3, vt))
        e("v_lshl_add_u32 v%d, v%d, 3, v%d" % (x + 4, x + 2, x + 1))
        e("v_lshl_add_u32 v%d, v%d, 2, v%d" % (x + 5, x + 2, x + 1))
        e("v_add_u32 v%d, 120, v%d" % (x + 5, x + 5))
        e("v_cmp_gt_u32 vcc, 8, v%d" % (x + 1))
        e("v_cndmask_b32 v%d, v%d, v%d, vcc" % (x + 4, x + 5, x + 4))
        e("v_lshrrev_b32 v%d, 5, v%d" % (x + 5, x + 4))
        e("v_bfe_u32 v%d, v%d, 2, 1" % (x + 6, x + 4))
        e("v_lshl_add_u32 v%d, v%d, 1, v%d" % (x + 5, x + 5, x + 6))
        e("v_bfe_u32 v%d, v%d, 3, 2" % (x + 6, x + 4))
        e("v_and_b32 v%d, 3, v%d" % (x + 7, x + 4))
        e("v_lshl_add_u32 v%d, v%d, 2, v%d" % (x + 6, x + 6, x + 7))
        e("v_cmp_eq_u32 vcc, 12, v%d" % (x + 1))
        e("v_cndmask_b32 v%d, v%d, v%d, vcc" % (x + 5, x + 5, x + 1))
        e("v_cndmask_b32 v%d, v%d, v%d, vcc" % (x + 6, x + 6, x + 2))
        e("v_lshl_add_u32 v%d, v%d, 4, v%d" % (x + 6, x + 3, x + 6))
        e("v_lshlrev_b32 v%d, 3, v%d" % (x + 6, x + 6))
        e("v_lshl_add_u32 v%d, v%d, 9, v%d" % (dst, x + 5, x + 6))

    def gather_partials(self, mod, lds_base):
        e = self
        skip = self.label("L_gat_skip")
        e("v_lshlrev_b32 v%d, 4, v0" % V_B1)
        e("v_cmp_gt_u32 vcc, 416, v0")
        e("s_and_saveexec_b64 %s, vcc" % sr(S_EXEC, 2))
        e("s_cbranch_execz %s" % skip)
        e("s_mov_b32 %s, %s" % (sr(S_T0), sr(S_HPART)))
        for c in range(8):
            e("buffer_load_dwordx4 %s, v%d, %s, %s offen%s" % (vr(V_ACC + 4 * c, 4), V_B1, sr(SRD_WS, 4), sr(S_T0), mod))
            if c < 7:
                e("s_add_u32 %s, %s, %d" % (sr(S_T0), sr(S_T0), PART_BYTES))
        self.table_addr()
        for c in range(1, 8):
            e("s_waitcnt vmcnt(%d)" % (7 - c))
            for r in range(4):
                e("v_add_f32 v%d, v%d, v%d" % (V_ACC + r, V_ACC + r, V_ACC + 4 * c + r))
        self.hilo_write(lds_base)
        e("%s:" % skip)
        e("s_mov_b64 exec, %s" % sr(S_EXEC, 2))

    def hilo_write(self, lds_base, a=V_ACC, tmp=V_ACC + 8, vaddr=V_X):
        e = self
        hi = tmp
        lo = tmp + 2
        t = tmp + 4
        e("v_cvt_pk_bf16_f32 v%d, v%d, v%d" % (hi, a, a + 1))
        e("v_cvt_pk_bf16_f32 v%d, v%d, v%d" % (hi + 1, a + 2, a + 3))
        e("v_lshlrev_b32 v%d, 16, v%d" % (t, hi))
        e("v_and_b32 v%d, 0xffff0000, v%d" % (t + 1, hi))
        e("v_lshlrev_b32 v%d, 16, v%d" % (t + 2, hi + 1))
        e("v_and_b32 v%d, 0xffff0000, v%d" % (t + 3, hi + 1))
        for r in range(4):
            e("v_sub_f32 v%d, v%d, v%d" % (t + r, a + r, t + r))
        e("v_cvt_pk_bf16_f32 v%d, v%d, v%d" % (lo, t, t + 1))
        e("v_cvt_pk_bf16_f32 v%d, v%d, v%d" % (lo + 1, t + 2, t + 3))
        e("ds_write_b64 v%d, %s offset:%d" % (vaddr, vr(hi, 2), lds_base))
        e("ds_write_b64 v%d, %s offset:%d" % (vaddr, vr(lo, 2), lds_base + 256))

    def read_table(self, lds_base):
        e = self
        e("v_lshlrev_b32 v%d, 3, v%d" % (V_B0, V_LANE))
        for t in range(13):
            e("ds_read_b64 %s, v%d offset:%d" % (vr(V_AT + 2 * t, 2), V_B0, lds_base + t * 512))

    def pack_phi_q(self, T):
        e = self
        dp = V_DP + 4 * T
        e("v_cvt_pk_bf16_f32 v%d, v%d, v%d" % (V_P + 2 * T, dp, dp + 1))
        e("v_cvt_pk_bf16_f32 v%d, v%d, v%d" % (V_P + 2 * T + 1, dp + 2, dp + 3))

    def out_tile(self, T, accbase, mod):
        e = self
        den = accbase + 48
        e("v_mfma_f32_16x16x16_bf16 %s, %s, %s, 0" % (vr(den, 4), vr(V_AT + 24, 2), vr(V_P + 2 * T, 2)))
        for t in range(12):
            e("v_mfma_f32_16x16x16_bf16 %s, %s, %s, 0" % (vr(accbase + 4 * t, 4), vr(V_AT + 2 * t, 2), vr(V_P + 2 * T, 2)))
        e("v_add_f32 v%d, %s, v%d" % (den, hx(f32(1e-6)), den))
        e("v_rcp_f32 v%d, v%d" % (den, den))
        for u in range(6):
            a = accbase + 8 * u
            for r in range(8):
                e("v_mul_f32 v%d, v%d, v%d" % (a + r, a + r, den))
            o = a
            e("v_cvt_pk_bf16_f32 v%d, v%d, v%d" % (o + 0, a + 0, a + 1))
            e("v_cvt_pk_bf16_f32 v%d, v%d, v%d" % (o + 1, a + 2, a + 3))
            e("v_cvt_pk_bf16_f32 v%d, v%d, v%d" % (o + 2, a + 4, a + 5))
            e("v_cvt_pk_bf16_f32 v%d, v%d, v%d" % (o + 3, a + 6, a + 7))
            e("buffer_store_dwordx4 %s, v%d, %s, %s offen offset:%d%s" % (
                vr(o, 4), V_OK, sr(SRD_O, 4), sr(S_B0 + T), 64 * u, mod))


def kd(name, vgpr=256, sgpr=102):
    acc = min(256, (vgpr + 3) // 4 * 4)
    return """.section .rodata,"a"
.p2align 6
.amdhsa_kernel %s
  .amdhsa_next_free_vgpr %d
  .amdhsa_next_free_sgpr %d
  .amdhsa_accum_offset %d
  .amdhsa_group_segment_fixed_size 0
  .amdhsa_kernarg_size 56
  .amdhsa_user_sgpr_count 2
  .amdhsa_user_sgpr_kernarg_segment_ptr 1
  .amdhsa_system_sgpr_workgroup_id_x 1
.end_amdhsa_kernel
""" % (name, vgpr, sgpr, acc)


HEADER = """; Kernarg layout (56 bytes): q, k, v, omega, out, debug, ws  (8-byte pointers)
"""


def kernel_text(name, g):
    lines, n = hazard.fix(g.L)
    return ".text\n.globl %s\n.p2align 8\n.type %s,@function\n%s:\n%s\n" % (name, name, name, "\n".join(lines))


MODS = {0: "", 1: " nt", 2: " sc1", 3: " sc0 sc1", 4: " sc0 sc1 nt", 5: " sc1 nt", 6: " sc0", 7: " sc0 nt"}


def gen_split(opts):
    lm = MODS[opts.get("mod", 1)]
    sm = MODS[opts.get("smod", 0)]
    g = Gen(opts)
    g.prologue("L_end1")
    g.stamp(0)
    g.load_w()
    g.load_rows(V_K, SRD_K, lm)
    g.load_v(lm)
    g("s_waitcnt vmcnt(22)")
    g.proj(V_K, 0, True)
    g("s_waitcnt vmcnt(16)")
    g.proj(V_K, 1, True)
    g.phi(0)
    g.phi(1)
    g.kv_mfma()
    g.stamp(1)
    g("s_waitcnt vmcnt(0)")
    g.stamp(2)
    g.kv_tiles()
    g.wg_reduce_and_store("")
    g.stamp(3)
    g.flush_stamps()
    g("L_end1:")
    g("s_endpgm")
    h = Gen(opts)
    h.uid = 1000
    h.prologue("L_end2")
    h.stamp(4)
    h.load_w()
    h.load_rows(V_Q, SRD_Q, lm)
    h.gather_partials("", 0)
    h("s_waitcnt vmcnt(0) lgkmcnt(0)")
    h("s_barrier")
    h.read_table(0)
    for T in range(2):
        h.proj(V_Q, T, False)
        h.phi(T)
        h.pack_phi_q(T)
    h("s_waitcnt lgkmcnt(0)")
    h.stamp(5)
    h.out_tile(0, V_ACC, sm)
    h.out_tile(1, V_K - 4, sm)
    h.stamp(6)
    h.flush_stamps()
    h("L_end2:")
    h("s_endpgm")
    lds1 = 8 * PART_BYTES
    lds2 = PART_BYTES
    txt = HEADER
    txt += "; @launch kernel=rfa_kv_kernel grid=(256,1,1) block=(512,1,1) lds=%d\n" % lds1
    txt += "; @launch kernel=rfa_out_kernel grid=(256,1,1) block=(512,1,1) lds=%d\n" % lds2
    txt += '.amdgcn_target "amdgcn-amd-amdhsa--gfx950"\n'
    txt += kernel_text("rfa_kv_kernel", g)
    txt += kernel_text("rfa_out_kernel", h)
    txt += kd("rfa_kv_kernel") + kd("rfa_out_kernel")
    return txt


SLOT = 7168
LDS_TAB = 8 * PART_BYTES


def gen_fused(opts):
    lm = MODS[opts.get("mod", 1)]
    qm = MODS[opts.get("qmod", opts.get("mod", 1))]
    sm = MODS[opts.get("smod", 0)]
    xm = MODS[opts.get("xmod", 2)]
    qpos = opts.get("qpos", 2)
    g = Gen(opts)
    e = g
    g.prologue("L_end")
    e("s_mul_i32 %s, %s, %d" % (sr(S_HPART), sr(S_H), 8 * SLOT))
    e("s_mul_i32 %s, %s, %d" % (sr(S_T1), sr(S_C), SLOT))
    e("s_add_u32 %s, %s, %s" % (sr(S_PART), sr(S_HPART), sr(S_T1)))
    g.stamp(0)
    e("s_cmp_lg_u32 %s, 7" % sr(S_WAVE))
    e("s_cbranch_scc1 L_noclear")
    e("v_lshlrev_b32 v8, 4, v%d" % V_LANE)
    for i in range(4):
        e("v_mov_b32 v%d, -1" % (12 + i))
    e("s_add_u32 %s, %s, 4096" % (sr(S_T0), sr(S_PART)))
    for i in range(7):
        e("buffer_store_dwordx4 v[12:15], v8, %s, %s offen offset:%d%s" % (
            sr(SRD_WS, 4), sr(S_PART) if i < 4 else sr(S_T0), (i & 3) * 1024, xm))
    e("s_nop 1")
    e("L_noclear:")
    g.load_w()
    g.load_rows(V_K, SRD_K, lm)
    g.load_v(lm)
    nq = 0
    if qpos == 0:
        g.load_rows(V_Q, SRD_Q, qm); nq = 12
    if opts.get("bara", 1):
        e("s_barrier")
    if qpos == 1:
        g.load_rows(V_Q, SRD_Q, qm); nq = 12
    e("s_waitcnt vmcnt(%d)" % (22 + nq))
    g.proj(V_K, 0, True)
    e("s_waitcnt vmcnt(%d)" % (16 + nq))
    g.proj(V_K, 1, True)
    g.phi(0)
    g.phi(1)
    g.kv_mfma()
    g.stamp(1)
    e("s_lshl_b32 %s, %s, 2" % (sr(S_T0), sr(S_H)))
    e("v_mov_b32 v%d, %s" % (V_B0, sr(S_T0)))
    e("s_cmp_lg_u32 %s, 7" % sr(S_WAVE))
    e("s_cbranch_scc1 L_nosig")
    e("v_mov_b32 v%d, 1" % (V_B0 + 1))
    e("s_mov_b64 exec, 1")
    e("buffer_atomic_add v%d, v%d, %s, 0 offen" % (V_B0 + 1, V_B0, sr(SRD_DBG, 4)))
    e("s_mov_b64 exec, -1")
    e("L_nosig:")
    e("s_cmp_lg_u32 %s, 0" % sr(S_WAVE))
    e("s_cbranch_scc1 L_nocnt")
    e("buffer_load_dword v%d, v%d, %s, 0 offen sc1" % (V_B1 + 3, V_B0, sr(SRD_DBG, 4)))
    e("L_nocnt:")
    if qpos == 2:
        g.load_rows(V_Q, SRD_Q, qm)
        e("s_waitcnt vmcnt(12)")
    elif qpos in (0, 1):
        e("s_waitcnt vmcnt(%d)" % 13)
        e("s_cmp_eq_u32 %s, 7" % sr(S_WAVE))
        e("s_cbranch_scc1 L_vok")
        e("s_cmp_eq_u32 %s, 0" % sr(S_WAVE))
        e("s_cbranch_scc1 L_vok")
        e("s_waitcnt vmcnt(12)")
        e("L_vok:")
    else:
        e("s_waitcnt vmcnt(0)")
    g.stamp(2)
    if qpos in (0, 1):
        pass
    else:
        e("v_readfirstlane_b32 %s, v%d" % (sr(S_CNT), V_B1 + 3))
    g.kv_tiles()
    e("s_mul_i32 %s, %s, %d" % (sr(S_T0), sr(S_WAVE), PART_BYTES))
    e("v_lshlrev_b32 v%d, 4, v%d" % (V_B0, V_LANE))
    e("v_add_u32 v%d, %s, v%d" % (V_B0, sr(S_T0), V_B0))
    e("s_mov_b32 exec_lo, -1")
    e("s_mov_b32 exec_hi, 0")
    for tau in range(13):
        e("ds_write_b128 v%d, %s offset:%d" % (V_B0, vr(V_ACC + 4 * tau, 4), tau * 512))
    e("s_mov_b64 exec, -1")
    if qpos == 3:
        g.load_rows(V_Q, SRD_Q, qm)
    e("s_cmp_lg_u32 %s, 0" % sr(S_WAVE))
    e("s_cbranch_scc1 L_cntok")
    e("s_cmp_eq_u32 %s, 8" % sr(S_CNT))
    e("s_cbranch_scc1 L_cntok")
    e("s_lshl_b32 %s, %s, 2" % (sr(S_T0), sr(S_H)))
    e("v_mov_b32 v%d, %s" % (V_B1, sr(S_T0)))
    e("s_mov_b32 %s, 0x10000" % sr(S_T2))
    e("L_cntspin:")
    e("buffer_load_dword v%d, v%d, %s, 0 offen sc1" % (V_B1 + 3, V_B1, sr(SRD_DBG, 4)))
    e("s_waitcnt vmcnt(0)")
    e("v_readfirstlane_b32 %s, v%d" % (sr(S_CNT), V_B1 + 3))
    e("s_sub_u32 %s, %s, 1" % (sr(S_T2), sr(S_T2)))
    e("s_cmp_eq_u32 %s, 0" % sr(S_T2))
    e("s_cbranch_scc1 L_cntok")
    e("s_cmp_lg_u32 %s, 8" % sr(S_CNT))
    e("s_cbranch_scc1 L_cntspin")
    e("L_cntok:")
    e("v_min_u32 v%d, 415, v0" % (V_B1 + 1))
    e("v_lshlrev_b32 v%d, 4, v%d" % (V_B1, V_B1 + 1))
    e("s_waitcnt lgkmcnt(0)")
    e("s_barrier")
    g.stamp(3)
    for w in range(8):
        e("ds_read_b128 %s, v%d offset:%d" % (vr(V_ACC + 4 * w, 4), V_B1, w * PART_BYTES))
    for w in range(1, 8):
        e("s_waitcnt lgkmcnt(%d)" % (7 - w))
        for r in range(4):
            e("v_add_f32 v%d, v%d, v%d" % (V_ACC + r, V_ACC + r, V_ACC + 4 * w + r))
    for r in range(4):
        e("v_min_u32 v%d, -2, v%d" % (V_ACC + r, V_ACC + r))
    e("buffer_store_dwordx4 %s, v%d, %s, %s offen%s" % (vr(V_ACC, 4), V_B1, sr(SRD_WS, 4), sr(S_PART), xm))
    g.stamp(4)
    PL = V_ACC + 4

    def payload_loads():
        e("s_mov_b32 %s, %s" % (sr(S_T0), sr(S_HPART)))
        for c in range(8):
            e("buffer_load_dwordx4 %s, v%d, %s, %s offen%s" % (vr(PL + 4 * c, 4), V_B1, sr(SRD_WS, 4), sr(S_T0), xm))
            if c < 7:
                e("s_add_u32 %s, %s, %d" % (sr(S_T0), sr(S_T0), SLOT))
    payload_loads()
    g.table_addr(V_B1 + 1)
    e("s_waitcnt vmcnt(9)")
    g.stamp(5)
    for T in range(2):
        g.proj(V_Q, T, False)
        g.phi(T)
        g.pack_phi_q(T)
    e("s_mov_b32 %s, 0x10000" % sr(S_T2))
    e("s_waitcnt vmcnt(0)")
    e("s_branch L_chk")
    e("L_retry:")
    payload_loads()
    e("s_waitcnt vmcnt(0)")
    e("L_chk:")
    M = V_ACC + 36
    e("v_max3_u32 v%d, v%d, v%d, v%d" % (M, PL, PL + 1, PL + 2))
    i = 3
    while i < 32:
        if i + 1 < 32:
            e("v_max3_u32 v%d, v%d, v%d, v%d" % (M, M, PL + i, PL + i + 1)); i += 2
        else:
            e("v_max_u32 v%d, v%d, v%d" % (M, M, PL + i)); i += 1
    e("v_cmp_eq_u32 %s, -1, v%d" % (sr(S_EXEC, 2), M))
    e("s_sub_u32 %s, %s, 1" % (sr(S_T2), sr(S_T2)))
    e("s_cmp_eq_u32 %s, 0" % sr(S_T2))
    e("s_cbranch_scc1 L_got")
    e("s_cmp_lg_u64 %s, 0" % sr(S_EXEC, 2))
    e("s_cbranch_scc1 L_retry")
    e("L_got:")
    g.stamp(6)
    if opts.get("prof"):
        e("s_sub_u32 %s, 0x10000, %s" % (sr(S_T3), sr(S_T2)))
    a = V_ACC
    for r in range(4):
        e("v_add_f32 v%d, v%d, v%d" % (a + r, PL + r, PL + 4 + r))
    for c in range(2, 8):
        for r in range(4):
            e("v_add_f32 v%d, v%d, v%d" % (a + r, a + r, PL + 4 * c + r))
    g.hilo_write(LDS_TAB)
    e("s_waitcnt lgkmcnt(0)")
    e("s_barrier")
    g.stamp(7)
    g.read_table(LDS_TAB)
    e("s_waitcnt lgkmcnt(0)")
    g.out_tile(0, V_ACC, sm)
    g.out_tile(1, V_K - 4, sm)
    g.stamp(8)
    if opts.get("prof"):
        e("s_waitcnt vmcnt(0)")
        g.stamp(9)
        g.flush_stamps()
        e("v_mov_b32 v254, %s" % sr(S_T3))
        e("v_mov_b32 v255, 0")
        e("buffer_store_dwordx2 v[254:255], v253, %s, 0 offen offset:%d" % (sr(SRD_WS, 4), 15 * 8))
    e("L_end:")
    e("s_endpgm")
    txt = HEADER
    txt += "; @launch grid=(256,1,1) block=(512,1,1) lds=%d\n" % (LDS_TAB + PART_BYTES)
    txt += '.amdgcn_target "amdgcn-amd-amdhsa--gfx950"\n'
    txt += kernel_text(NAME + "_kernel", g)
    txt += kd(NAME + "_kernel")
    return txt


def gen_fused2(opts):
    lm = MODS[opts.get("mod", 1)]
    qm = MODS[opts.get("qmod", opts.get("mod", 1))]
    sm = MODS[opts.get("smod", 0)]
    xm = MODS[opts.get("xmod", 2)]
    nearly = opts.get("nearly", 4)
    prio = opts.get("prio", 1)
    bara = opts.get("bara", 0)
    V_CNT = V_SS + 3
    g = Gen(opts)
    e = g
    g.prologue("L_end")
    e("s_mul_i32 %s, %s, %d" % (sr(S_HPART), sr(S_H), 8 * SLOT))
    e("s_mul_i32 %s, %s, %d" % (sr(S_T1), sr(S_C), SLOT))
    e("s_add_u32 %s, %s, %s" % (sr(S_PART), sr(S_HPART), sr(S_T1)))
    g.stamp(0)
    if prio:
        e("s_setprio 3")
    e("s_cmp_lg_u32 %s, 0" % sr(S_C))
    e("s_cbranch_scc1 L_noclear")
    e("v_lshlrev_b32 v8, 4, v%d" % V_LANE)
    for i in range(4):
        e("v_mov_b32 v%d, -1" % (12 + i))
    e("s_mul_i32 %s, %s, %d" % (sr(S_T0), sr(S_WAVE), SLOT))
    e("s_add_u32 %s, %s, %s" % (sr(S_T0), sr(S_T0), sr(S_HPART)))
    e("s_add_u32 %s, %s, 4096" % (sr(S_T1), sr(S_T0)))
    for i in range(7):
        e("buffer_store_dwordx4 v[12:15], v8, %s, %s offen offset:%d%s" % (
            sr(SRD_WS, 4), sr(S_T0) if i < 4 else sr(S_T1), (i & 3) * 1024, xm))
    e("s_nop 1")
    g.load_w()
    g.load_rows(V_K, SRD_K, lm)
    e("s_waitcnt vmcnt(18)")
    e("s_barrier")
    e("s_cmp_lg_u32 %s, 7" % sr(S_WAVE))
    e("s_cbranch_scc1 L_noflag")
    e("s_lshl_b32 %s, %s, 2" % (sr(S_T0), sr(S_H)))
    e("v_mov_b32 v%d, %s" % (V_B0, sr(S_T0)))
    e("v_mov_b32 v%d, 1" % (V_B0 + 1))
    e("s_mov_b64 exec, 1")
    e("buffer_store_dword v%d, v%d, %s, 0 offen%s" % (V_B0 + 1, V_B0, sr(SRD_DBG, 4), xm))
    e("s_mov_b64 exec, -1")
    g.load_v(lm)
    if bara:
        e("s_barrier")
    e("s_waitcnt vmcnt(16)")
    e("s_branch L_kready")
    e("L_noflag:")
    g.load_v(lm)
    if bara:
        e("s_barrier")
    e("s_branch L_kready")
    e("L_noclear:")
    g.load_w()
    g.load_rows(V_K, SRD_K, lm)
    g.load_v(lm)
    if bara:
        e("s_barrier")
    e("L_kready:")
    if prio:
        e("s_setprio 0")
    e("s_waitcnt vmcnt(22)")
    g.proj(V_K, 0, True)
    e("s_waitcnt vmcnt(16)")
    g.proj(V_K, 1, True)
    g.phi(0)
    g.phi(1)
    g.kv_mfma()
    g.stamp(1)
    e("s_cmp_lg_u32 %s, 0" % sr(S_WAVE))
    e("s_cbranch_scc1 L_nocnt")
    e("s_lshl_b32 %s, %s, 2" % (sr(S_T0), sr(S_H)))
    e("v_mov_b32 v%d, %s" % (V_B0, sr(S_T0)))
    e("buffer_load_dword v%d, v%d, %s, 0 offen sc1" % (V_CNT, V_B0, sr(SRD_DBG, 4)))
    e("s_waitcnt vmcnt(1)")
    e("s_branch L_vready")
    e("L_nocnt:")
    e("s_waitcnt vmcnt(0)")
    e("L_vready:")
    g.stamp(2)
    g.kv_tiles()
    e("s_mul_i32 %s, %s, %d" % (sr(S_T0), sr(S_WAVE), PART_BYTES))
    e("v_lshlrev_b32 v%d, 4, v%d" % (V_B0, V_LANE))
    e("v_add_u32 v%d, %s, v%d" % (V_B0, sr(S_T0), V_B0))
    e("s_mov_b32 exec_lo, -1")
    e("s_mov_b32 exec_hi, 0")
    for tau in range(13):
        e("ds_write_b128 v%d, %s offset:%d" % (V_B0, vr(V_ACC + 4 * tau, 4), tau * 512))
    e("s_mov_b64 exec, -1")
    if nearly > 0:
        e("s_cmp_ge_u32 %s, %d" % (sr(S_WAVE), nearly))
        e("s_cbranch_scc1 L_noq1")
        g.load_rows(V_Q, SRD_Q, qm)
        e("L_noq1:")
    g.stamp(10)
    if prio:
        e("s_setprio 3")
    e("s_cmp_lg_u32 %s, 0" % sr(S_WAVE))
    e("s_cbranch_scc1 L_cntok")
    e("s_waitcnt vmcnt(%d)" % (12 if nearly > 0 else 0))
    e("v_readfirstlane_b32 %s, v%d" % (sr(S_CNT), V_CNT))
    e("s_cmp_eq_u32 %s, 1" % sr(S_CNT))
    e("s_cbranch_scc1 L_cntok")
    e("s_lshl_b32 %s, %s, 2" % (sr(S_T0), sr(S_H)))
    e("v_mov_b32 v%d, %s" % (V_B1, sr(S_T0)))
    e("s_mov_b32 %s, 0x10000" % sr(S_T2))
    e("L_cntspin:")
    e("buffer_load_dword v%d, v%d, %s, 0 offen sc1" % (V_CNT, V_B1, sr(SRD_DBG, 4)))
    e("s_waitcnt vmcnt(0)")
    e("v_readfirstlane_b32 %s, v%d" % (sr(S_CNT), V_CNT))
    e("s_sub_u32 %s, %s, 1" % (sr(S_T2), sr(S_T2)))
    e("s_cmp_eq_u32 %s, 0" % sr(S_T2))
    e("s_cbranch_scc1 L_cntok")
    e("s_cmp_lg_u32 %s, 1" % sr(S_CNT))
    e("s_cbranch_scc1 L_cntspin")
    e("L_cntok:")
    e("v_min_u32 v%d, 415, v0" % (V_B1 + 1))
    e("v_lshlrev_b32 v%d, 4, v%d" % (V_B1, V_B1 + 1))
    e("s_waitcnt lgkmcnt(0)")
    e("s_barrier")
    g.stamp(3)
    for w in range(8):
        e("ds_read_b128 %s, v%d offset:%d" % (vr(V_ACC + 4 * w, 4), V_B1, w * PART_BYTES))
    for w in range(1, 8):
        e("s_waitcnt lgkmcnt(%d)" % (7 - w))
        for r in range(4):
            e("v_add_f32 v%d, v%d, v%d" % (V_ACC + r, V_ACC + r, V_ACC + 4 * w + r))
    for r in range(4):
        e("v_min_u32 v%d, -2, v%d" % (V_ACC + r, V_ACC + r))
    e("buffer_store_dwordx4 %s, v%d, %s, %s offen%s" % (vr(V_ACC, 4), V_B1, sr(SRD_WS, 4), sr(S_PART), xm))
    g.stamp(4)
    if nearly < 8:
        if prio:
            e("s_setprio 0")
        if nearly > 0:
            e("s_cmp_lt_u32 %s, %d" % (sr(S_WAVE), nearly))
            e("s_cbranch_scc1 L_noq2")
        g.load_rows(V_Q, SRD_Q, qm)
        if nearly > 0:
            e("L_noq2:")
    PL = V_ACC + 4

    def payload_loads():
        e("s_mov_b32 %s, %s" % (sr(S_T0), sr(S_HPART)))
        for c in range(8):
            e("buffer_load_dwordx4 %s, v%d, %s, %s offen%s" % (vr(PL + 4 * c, 4), V_B1, sr(SRD_WS, 4), sr(S_T0), xm))
            if c < 7:
                e("s_add_u32 %s, %s, %d" % (sr(S_T0), sr(S_T0), SLOT))
    if opts.get("pbar"):
        e("s_barrier")
    payload_loads()
    g.stamp(11)
    g.table_addr(V_B1 + 1)
    e("s_waitcnt vmcnt(8)")
    g.stamp(5)
    for T in range(2):
        g.proj(V_Q, T, False)
        g.phi(T)
        g.pack_phi_q(T)
    e("s_mov_b32 %s, 0x10000" % sr(S_T2))
    e("s_waitcnt vmcnt(0)")
    e("s_branch L_chk")
    e("L_retry:")
    payload_loads()
    e("s_waitcnt vmcnt(0)")
    e("L_chk:")
    M = V_ACC + 36
    e("v_max3_u32 v%d, v%d, v%d, v%d" % (M, PL, PL + 1, PL + 2))
    i = 3
    while i < 32:
        if i + 1 < 32:
            e("v_max3_u32 v%d, v%d, v%d, v%d" % (M, M, PL + i, PL + i + 1)); i += 2
        else:
            e("v_max_u32 v%d, v%d, v%d" % (M, M, PL + i)); i += 1
    e("v_cmp_eq_u32 %s, -1, v%d" % (sr(S_EXEC, 2), M))
    e("s_sub_u32 %s, %s, 1" % (sr(S_T2), sr(S_T2)))
    e("s_cmp_eq_u32 %s, 0" % sr(S_T2))
    e("s_cbranch_scc1 L_got")
    e("s_cmp_lg_u64 %s, 0" % sr(S_EXEC, 2))
    e("s_cbranch_scc1 L_retry")
    e("L_got:")
    g.stamp(6)
    if opts.get("prof"):
        e("s_sub_u32 %s, 0x10000, %s" % (sr(S_T3), sr(S_T2)))
    a = V_ACC
    for r in range(4):
        e("v_add_f32 v%d, v%d, v%d" % (a + r, PL + r, PL + 4 + r))
    for c in range(2, 8):
        for r in range(4):
            e("v_add_f32 v%d, v%d, v%d" % (a + r, a + r, PL + 4 * c + r))
    g.hilo_write(LDS_TAB)
    e("s_waitcnt lgkmcnt(0)")
    e("s_barrier")
    g.stamp(7)
    g.read_table(LDS_TAB)
    e("s_waitcnt lgkmcnt(0)")
    g.out_tile(0, V_ACC, sm)
    g.out_tile(1, V_K - 4, sm)
    g.stamp(8)
    if opts.get("prof"):
        e("s_waitcnt vmcnt(0)")
        g.stamp(9)
        g.flush_stamps()
        e("v_mov_b32 v254, %s" % sr(S_T3))
        e("v_mov_b32 v255, 0")
        e("buffer_store_dwordx2 v[254:255], v253, %s, 0 offen offset:%d" % (sr(SRD_WS, 4), 15 * 8))
    e("L_end:")
    e("s_endpgm")
    txt = HEADER
    txt += "; @launch grid=(256,1,1) block=(512,1,1) lds=%d\n" % (LDS_TAB + PART_BYTES)
    txt += '.amdgcn_target "amdgcn-amd-amdhsa--gfx950"\n'
    txt += kernel_text(NAME + "_kernel", g)
    txt += kd(NAME + "_kernel")
    return txt


LDS_N = LDS_TAB + PART_BYTES
TAGMASK = 0xFFF


def gen_fused3(opts):
    lm = MODS[opts.get("mod", 1)]
    qm = MODS[opts.get("qmod", opts.get("mod", 1))]
    sm = MODS[opts.get("smod", 0)]
    xm = MODS[opts.get("xmod", 2)]
    nearly = opts.get("nearly", 3)
    prio = opts.get("prio", 1)
    nw = opts.get("nwave", 4)
    SL = PART_BYTES
    V_CNT = V_SS + 3
    S_N = S_CNT
    S_MASK = 61
    g = Gen(opts)
    e = g
    if opts.get("fixdur"):
        e("s_memrealtime s[96:97]")
    g.prologue("L_end")
    g.stamp(0)
    if prio:
        e("s_setprio 3")
    e("s_mov_b32 %s, 0x%x" % (sr(S_MASK), 0xFFFFFFFF ^ TAGMASK))
    e("s_or_b32 %s, %s, %s" % (sr(S_T0), sr(S_H), sr(S_C)))
    e("s_or_b32 %s, %s, %s" % (sr(S_T0), sr(S_T0), sr(S_WAVE)))
    e("s_cmp_lg_u32 %s, 0" % sr(S_T0))
    e("s_cbranch_scc1 L_nochoose")
    e("v_mul_u32_u24 v%d, %d, v%d" % (V_B0, 4 * SL, V_LANE))
    for i in range(4):
        e("s_mov_b32 %s, %d" % (sr(S_T1), i * SL))
        e("buffer_load_dword v%d, v%d, %s, %s offen%s" % (V_B1 + i, V_B0, sr(SRD_WS, 4), sr(S_T1), xm))
    g.load_w()
    g.load_rows(V_K, SRD_K, lm)
    g.load_v(lm)
    e("s_waitcnt vmcnt(34)")
    for i in range(4):
        e("v_and_b32 v%d, 0x%x, v%d" % (V_B1 + i, TAGMASK, V_B1 + i))
    e("v_readfirstlane_b32 %s, v%d" % (sr(S_N), V_B1))
    e("L_cand:")
    e("s_add_u32 %s, %s, 1" % (sr(S_N), sr(S_N)))
    e("s_and_b32 %s, %s, 0x%x" % (sr(S_N), sr(S_N), TAGMASK))
    e("v_cmp_eq_u32 vcc, %s, v%d" % (sr(S_N), V_B1))
    e("v_cmp_eq_u32 %s, %s, v%d" % (sr(S_EXEC, 2), sr(S_N), V_B1 + 1))
    e("s_or_b64 vcc, vcc, %s" % sr(S_EXEC, 2))
    e("v_cmp_eq_u32 %s, %s, v%d" % (sr(S_EXEC, 2), sr(S_N), V_B1 + 2))
    e("s_or_b64 vcc, vcc, %s" % sr(S_EXEC, 2))
    e("v_cmp_eq_u32 %s, %s, v%d" % (sr(S_EXEC, 2), sr(S_N), V_B1 + 3))
    e("s_or_b64 vcc, vcc, %s" % sr(S_EXEC, 2))
    e("s_cmp_lg_u64 vcc, 0")
    e("s_cbranch_scc1 L_cand")
    e("s_or_b32 %s, %s, 0x80000000" % (sr(S_T1), sr(S_N)))
    e("v_mov_b32 v%d, %s" % (V_B0 + 1, sr(S_T1)))
    e("v_mov_b32 v%d, 0" % V_B0)
    e("s_mov_b64 exec, 1")
    e("buffer_store_dword v%d, v%d, %s, 0 offen%s" % (V_B0 + 1, V_B0, sr(SRD_DBG, 4), xm))
    e("s_mov_b64 exec, -1")
    if prio:
        e("s_setprio 0")
    e("s_waitcnt vmcnt(17)")
    e("s_branch L_kready")
    e("L_nochoose:")
    g.load_w()
    g.load_rows(V_K, SRD_K, lm)
    g.load_v(lm)
    e("s_cmp_lg_u32 %s, %d" % (sr(S_WAVE), nw))
    e("s_cbranch_scc1 L_notagld")
    e("v_mov_b32 v%d, 0" % V_B0)
    e("buffer_load_dword v%d, v%d, %s, 0 offen sc1" % (V_B0 + 1, V_B0, sr(SRD_DBG, 4)))
    if prio:
        e("s_setprio 0")
    e("s_waitcnt vmcnt(17)")
    e("s_branch L_kready")
    e("L_notagld:")
    if prio:
        e("s_setprio 0")
    e("L_kready:")
    e("s_waitcnt vmcnt(22)")
    g.proj(V_K, 0, True)
    e("s_waitcnt vmcnt(16)")
    g.proj(V_K, 1, True)
    g.phi(0)
    g.phi(1)
    g.kv_mfma()
    g.stamp(1)
    e("s_waitcnt vmcnt(0)")
    g.stamp(2)
    e("s_cmp_lg_u32 %s, %d" % (sr(S_WAVE), nw))
    e("s_cbranch_scc1 L_tagok")
    e("v_readfirstlane_b32 %s, v%d" % (sr(S_N), V_B0 + 1))
    e("s_cmp_lt_i32 %s, 0" % sr(S_N))
    e("s_cbranch_scc1 L_tagput")
    e("s_mov_b32 %s, 0x10000" % sr(S_T2))
    e("v_mov_b32 v%d, 0" % V_B0)
    e("L_tagspin:")
    e("buffer_load_dword v%d, v%d, %s, 0 offen sc1" % (V_B0 + 1, V_B0, sr(SRD_DBG, 4)))
    e("s_waitcnt vmcnt(0)")
    e("v_readfirstlane_b32 %s, v%d" % (sr(S_N), V_B0 + 1))
    e("s_sub_u32 %s, %s, 1" % (sr(S_T2), sr(S_T2)))
    e("s_cmp_eq_u32 %s, 0" % sr(S_T2))
    e("s_cbranch_scc1 L_tagput")
    e("s_cmp_ge_i32 %s, 0" % sr(S_N))
    e("s_cbranch_scc1 L_tagspin")
    e("L_tagput:")
    e("v_and_b32 v%d, 0x%x, v%d" % (V_B0 + 1, TAGMASK, V_B0 + 1))
    e("v_mov_b32 v%d, %d" % (V_B0, LDS_N))
    e("ds_write_b32 v%d, v%d" % (V_B0, V_B0 + 1))
    e("L_tagok:")
    g.kv_tiles()
    e("s_mul_i32 %s, %s, %d" % (sr(S_T0), sr(S_WAVE), PART_BYTES))
    e("v_lshlrev_b32 v%d, 4, v%d" % (V_B0, V_LANE))
    e("v_add_u32 v%d, %s, v%d" % (V_B0, sr(S_T0), V_B0))
    e("s_mov_b32 exec_lo, -1")
    e("s_mov_b32 exec_hi, 0")
    for tau in range(13):
        e("ds_write_b128 v%d, %s offset:%d" % (V_B0, vr(V_ACC + 4 * tau, 4), tau * 512))
    e("s_mov_b64 exec, -1")
    if nearly > 0:
        e("s_cmp_ge_u32 %s, %d" % (sr(S_WAVE), nearly))
        e("s_cbranch_scc1 L_noq1")
        g.load_rows(V_Q, SRD_Q, qm)
        e("L_noq1:")
    g.stamp(10)
    if prio:
        e("s_setprio 3")
    e("v_min_u32 v%d, 415, v0" % (V_B1 + 1))
    e("v_lshlrev_b32 v%d, 4, v%d" % (V_B1, V_B1 + 1))
    e("v_mov_b32 v%d, %d" % (V_B0, LDS_N))
    e("s_waitcnt lgkmcnt(0)")
    e("s_barrier")
    g.stamp(3)
    e("ds_read_b32 v%d, v%d" % (V_CNT, V_B0))
    for w in range(8):
        e("ds_read_b128 %s, v%d offset:%d" % (vr(V_ACC + 4 * w, 4), V_B1, w * PART_BYTES))
    for w in range(1, 8):
        e("s_waitcnt lgkmcnt(%d)" % (7 - w))
        for r in range(4):
            e("v_add_f32 v%d, v%d, v%d" % (V_ACC + r, V_ACC + r, V_ACC + 4 * w + r))
    for r in range(4):
        e("v_bfi_b32 v%d, %s, v%d, v%d" % (V_ACC + r, sr(S_MASK), V_ACC + r, V_CNT))
    e("buffer_store_dwordx4 %s, v%d, %s, %s offen%s" % (vr(V_ACC, 4), V_B1, sr(SRD_WS, 4), sr(S_PART), xm))
    g.stamp(4)
    V_N = V_B0 + 2
    e("v_mov_b32 v%d, v%d" % (V_N, V_CNT))
    if nearly < 8:
        if prio:
            e("s_setprio 0")
        if nearly > 0:
            e("s_cmp_lt_u32 %s, %d" % (sr(S_WAVE), nearly))
            e("s_cbranch_scc1 L_noq2")
        g.load_rows(V_Q, SRD_Q, qm)
        if nearly > 0:
            e("L_noq2:")
    PL = V_ACC + 4

    def payload_loads():
        e("s_mov_b32 %s, %s" % (sr(S_T0), sr(S_HPART)))
        for c in range(8):
            e("buffer_load_dwordx4 %s, v%d, %s, %s offen%s" % (vr(PL + 4 * c, 4), V_B1, sr(SRD_WS, 4), sr(S_T0), xm))
            if c < 7:
                e("s_add_u32 %s, %s, %d" % (sr(S_T0), sr(S_T0), SL))
    if opts.get("pbar", 1):
        e("s_barrier")
    payload_loads()
    g.stamp(11)
    g.table_addr(V_B1 + 1)
    e("s_waitcnt vmcnt(8)")
    g.stamp(5)
    for T in range(2):
        g.proj(V_Q, T, False)
        g.phi(T)
        g.pack_phi_q(T)
    e("s_mov_b32 %s, 0x10000" % sr(S_T2))
    e("s_waitcnt vmcnt(0)")
    e("s_branch L_chk")
    e("L_retry:")
    payload_loads()
    e("s_waitcnt vmcnt(0)")
    e("L_chk:")
    M = V_ACC + 36
    for i in range(32):
        e("v_xor_b32 v%d, v%d, v%d" % (PL + i, PL + i, V_N))
    e("v_or3_b32 v%d, v%d, v%d, v%d" % (M, PL, PL + 1, PL + 2))
    i = 3
    while i < 32:
        if i + 1 < 32:
            e("v_or3_b32 v%d, v%d, v%d, v%d" % (M, M, PL + i, PL + i + 1)); i += 2
        else:
            e("v_or_b32 v%d, v%d, v%d" % (M, M, PL + i)); i += 1
    e("v_and_b32 v%d, 0x%x, v%d" % (M, TAGMASK, M))
    e("v_cmp_ne_u32 %s, 0, v%d" % (sr(S_EXEC, 2), M))
    e("s_sub_u32 %s, %s, 1" % (sr(S_T2), sr(S_T2)))
    e("s_cmp_eq_u32 %s, 0" % sr(S_T2))
    e("s_cbranch_scc1 L_got")
    e("s_cmp_lg_u64 %s, 0" % sr(S_EXEC, 2))
    e("s_cbranch_scc1 L_retry")
    e("L_got:")
    g.stamp(6)
    if opts.get("prof"):
        e("s_sub_u32 %s, 0x10000, %s" % (sr(S_T3), sr(S_T2)))
    a = V_ACC
    for r in range(4):
        e("v_add_f32 v%d, v%d, v%d" % (a + r, PL + r, PL + 4 + r))
    for c in range(2, 8):
        for r in range(4):
            e("v_add_f32 v%d, v%d, v%d" % (a + r, a + r, PL + 4 * c + r))
    g.hilo_write(LDS_TAB)
    e("s_waitcnt lgkmcnt(0)")
    e("s_barrier")
    g.stamp(7)
    g.read_table(LDS_TAB)
    e("s_waitcnt lgkmcnt(0)")
    g.out_tile(0, V_ACC, sm)
    g.out_tile(1, V_K - 4, sm)
    g.stamp(8)
    if opts.get("prof"):
        e("s_waitcnt vmcnt(0)")
        g.stamp(9)
        g.flush_stamps()
        e("v_mov_b32 v254, %s" % sr(S_T3))
        e("v_mov_b32 v255, 0")
        e("buffer_store_dwordx2 v[254:255], v253, %s, 0 offen offset:%d" % (sr(SRD_WS, 4), 15 * 8))
    if opts.get("fixdur"):
        e("s_waitcnt vmcnt(0) lgkmcnt(0)")
        e("L_hold:")
        e("s_memrealtime s[98:99]")
        e("s_waitcnt lgkmcnt(0)")
        e("s_sub_u32 s98, s98, s96")
        e("s_cmp_lt_u32 s98, %d" % (opts["fixdur"] * 100))
        e("s_cbranch_scc1 L_hold")
    e("L_end:")
    e("s_endpgm")
    txt = HEADER
    txt += "; @launch grid=(256,1,1) block=(512,1,1) lds=%d\n" % (LDS_N + 64)
    txt += '.amdgcn_target "amdgcn-amd-amdhsa--gfx950"\n'
    txt += kernel_text(NAME + "_kernel", g)
    txt += kd(NAME + "_kernel")
    return txt


LDS_CNT = LDS_N + 4


def gen_fused4(opts):
    lm = MODS[opts.get("mod", 1)]
    qm = MODS[opts.get("qmod", opts.get("mod", 1))]
    sm = MODS[opts.get("smod", 4)]
    xm = MODS[opts.get("xmod", 2)]
    prio = opts.get("prio", 1)
    nw = opts.get("nwave", 1)
    qsplit = opts.get("qsplit", 6)
    SPIN = opts.get("spin", 0x4000)
    SL = PART_BYTES
    S_N = S_CNT
    S_MASK = 61
    R0, R1 = V_ACC, V_K
    G0, G1 = 64, 96
    V_T0, V_T1, V_A0, V_A1, V_N, V_M = 218, 219, 220, 221, 222, 223
    V_TA0, V_TA1 = 216, 217
    g = Gen(opts)
    e = g
    g.zero_stamps()
    g.prologue("L_end")
    g.stamp(0)
    if prio:
        e("s_setprio 3")
    e("s_mov_b32 %s, 0x%x" % (sr(S_MASK), 0xFFFFFFFF ^ TAGMASK))
    e("s_or_b32 %s, %s, %s" % (sr(S_T0), sr(S_H), sr(S_C)))
    e("s_or_b32 %s, %s, %s" % (sr(S_T0), sr(S_T0), sr(S_WAVE)))
    e("s_cmp_lg_u32 %s, 0" % sr(S_T0))
    e("s_cbranch_scc1 L_nochoose")
    e("v_mul_u32_u24 v%d, %d, v%d" % (V_B0, 4 * SL, V_LANE))
    for i in range(4):
        e("s_mov_b32 %s, %d" % (sr(S_T1), i * SL))
        e("buffer_load_dword v%d, v%d, %s, %s offen%s" % (V_B1 + i, V_B0, sr(SRD_WS, 4), sr(S_T1), xm))
    g.load_w()
    g.load_rows(V_K, SRD_K, lm)
    g.load_v(lm)
    e("s_waitcnt vmcnt(34)")
    for i in range(4):
        e("v_and_b32 v%d, 0x%x, v%d" % (V_B1 + i, TAGMASK, V_B1 + i))
    e("v_readfirstlane_b32 %s, v%d" % (sr(S_N), V_B1))
    e("L_cand:")
    e("s_add_u32 %s, %s, 1" % (sr(S_N), sr(S_N)))
    e("s_and_b32 %s, %s, 0x%x" % (sr(S_N), sr(S_N), TAGMASK))
    e("v_cmp_eq_u32 vcc, %s, v%d" % (sr(S_N), V_B1))
    e("v_cmp_eq_u32 %s, %s, v%d" % (sr(S_EXEC, 2), sr(S_N), V_B1 + 1))
    e("s_or_b64 vcc, vcc, %s" % sr(S_EXEC, 2))
    e("v_cmp_eq_u32 %s, %s, v%d" % (sr(S_EXEC, 2), sr(S_N), V_B1 + 2))
    e("s_or_b64 vcc, vcc, %s" % sr(S_EXEC, 2))
    e("v_cmp_eq_u32 %s, %s, v%d" % (sr(S_EXEC, 2), sr(S_N), V_B1 + 3))
    e("s_or_b64 vcc, vcc, %s" % sr(S_EXEC, 2))
    e("s_cmp_lg_u64 vcc, 0")
    e("s_cbranch_scc1 L_cand")
    e("s_or_b32 %s, %s, 0x80000000" % (sr(S_T1), sr(S_N)))
    e("v_mov_b32 v%d, %s" % (V_B0 + 1, sr(S_T1)))
    e("v_mov_b32 v%d, 0" % V_B0)
    e("s_mov_b64 exec, 1")
    e("buffer_store_dword v%d, v%d, %s, 0 offen%s" % (V_B0 + 1, V_B0, sr(SRD_DBG, 4), xm))
    e("s_mov_b64 exec, -1")
    e("s_waitcnt vmcnt(17)")
    e("s_branch L_issued")
    e("L_nochoose:")
    g.load_w()
    g.load_rows(V_K, SRD_K, lm)
    g.load_v(lm)
    e("L_issued:")
    if prio:
        e("s_setprio 0")
    lq0 = opts.get("lq0", 0)

    def qloads(lo, hi):
        for i in range(lo, hi):
            T, t = divmod(i, 6)
            e("buffer_load_dwordx4 %s, v%d, %s, %s offen offset:%d%s" % (
                vr(V_Q + 24 * T + 4 * t, 4), V_OK, sr(SRD_Q, 4), sr(S_B0 + T), 64 * t, qm))
    e("s_cmp_lt_u32 %s, 4" % sr(S_WAVE))
    e("s_cbranch_scc1 L_noA")
    if lq0 and opts.get("lq0pre", 1):
        qloads(0, lq0)
    e("s_barrier")
    g.stamp(12)
    if lq0 and not opts.get("lq0pre", 1):
        qloads(0, lq0)
    if lq0:
        e("s_waitcnt vmcnt(%d)" % (22 + lq0))
        e("s_mov_b32 %s, 1" % sr(S_T3))
        e("s_branch L_A2")
    e("L_noA:")
    e("s_waitcnt vmcnt(22)")
    e("s_mov_b32 %s, 0" % sr(S_T3))
    e("L_A2:")
    g.proj(V_K, 0, True)
    if lq0:
        e("s_cmp_eq_u32 %s, 0" % sr(S_T3))
        e("s_cbranch_scc1 L_k1e")
        e("s_waitcnt vmcnt(%d)" % (16 + lq0))
        e("s_branch L_k1")
        e("L_k1e:")
    e("s_waitcnt vmcnt(16)")
    if lq0:
        e("L_k1:")
    g.proj(V_K, 1, True)
    g.phi(0)
    g.phi(1)
    g.kv_mfma()
    g.stamp(1)
    if lq0:
        e("s_cmp_eq_u32 %s, 0" % sr(S_T3))
        e("s_cbranch_scc1 L_v1e")
        e("s_waitcnt vmcnt(%d)" % lq0)
        e("s_branch L_v1")
        e("L_v1e:")
    e("s_waitcnt vmcnt(0)")
    if lq0:
        e("L_v1:")
    g.stamp(2)
    g.kv_tiles()
    e("s_mul_i32 %s, %s, %d" % (sr(S_T0), sr(S_WAVE), PART_BYTES))
    e("v_lshlrev_b32 v%d, 4, v%d" % (V_B0, V_LANE))
    e("v_add_u32 v%d, %s, v%d" % (V_B0, sr(S_T0), V_B0))
    e("s_mov_b32 exec_lo, -1")
    e("s_mov_b32 exec_hi, 0")
    for tau in range(13):
        e("ds_write_b128 v%d, %s offset:%d" % (V_B0, vr(V_ACC + 4 * tau, 4), tau * 512))
    e("s_mov_b64 exec, -1")
    g.stamp(10)
    e("s_cmp_ge_u32 %s, 4" % sr(S_WAVE))
    e("s_cbranch_scc1 L_late")
    e("s_cmp_lg_u32 %s, %d" % (sr(S_WAVE), nw))
    e("s_cbranch_scc1 L_notag")
    if prio:
        e("s_setprio 3")
    e("s_mov_b32 %s, 0x%x" % (sr(S_T2), SPIN))
    e("v_mov_b32 v%d, 0" % V_B0)
    e("L_tagspin:")
    e("buffer_load_dword v%d, v%d, %s, 0 offen sc1" % (V_B0 + 1, V_B0, sr(SRD_DBG, 4)))
    e("s_waitcnt vmcnt(0)")
    e("v_readfirstlane_b32 %s, v%d" % (sr(S_N), V_B0 + 1))
    e("s_sub_u32 %s, %s, 1" % (sr(S_T2), sr(S_T2)))
    e("s_cmp_eq_u32 %s, 0" % sr(S_T2))
    e("s_cbranch_scc1 L_tagput")
    e("s_cmp_ge_i32 %s, 0" % sr(S_N))
    e("s_cbranch_scc1 L_tagspin")
    e("L_tagput:")
    e("v_and_b32 v%d, 0x%x, v%d" % (V_B0 + 2, TAGMASK, V_B0 + 1))
    e("v_mov_b32 v%d, 0" % (V_B0 + 3))
    e("v_mov_b32 v%d, %d" % (V_B0, LDS_N))
    e("ds_write_b64 v%d, %s" % (V_B0, vr(V_B0 + 2, 2)))
    if prio:
        e("s_setprio 0")
    e("L_notag:")
    e("s_waitcnt lgkmcnt(0)")
    e("s_barrier")
    g.stamp(12)
    if prio and opts.get("eprio", 1):
        e("s_setprio 3")
    g.load_rows(V_Q, SRD_Q, qm)
    if prio:
        e("s_setprio 0")
    g.stamp(3)
    e("s_waitcnt vmcnt(0)")
    e("s_branch L_qproj")
    e("L_late:")
    if prio:
        e("s_setprio 3")
    e("v_mov_b32 v%d, %d" % (V_B0, LDS_N))
    e("v_mov_b32 v%d, 1" % (V_B0 + 1))
    e("s_waitcnt lgkmcnt(0)")
    e("s_mov_b64 exec, 1")
    e("ds_add_u32 v%d, v%d offset:4" % (V_B0, V_B0 + 1))
    e("s_mov_b64 exec, -1")
    e("s_sub_u32 %s, %s, 4" % (sr(S_T0), sr(S_WAVE)))
    e("s_mul_i32 %s, %s, 104" % (sr(S_T0), sr(S_T0)))
    e("v_add_u32 v%d, %s, v%d" % (V_T0, sr(S_T0), V_LANE))
    e("v_min_u32 v%d, 39, v%d" % (V_T1, V_LANE))
    e("s_add_u32 %s, %s, 64" % (sr(S_T0), sr(S_T0)))
    e("v_add_u32 v%d, %s, v%d" % (V_T1, sr(S_T0), V_T1))
    e("v_lshlrev_b32 v%d, 4, v%d" % (V_A0, V_T0))
    e("v_lshlrev_b32 v%d, 4, v%d" % (V_A1, V_T1))
    e("s_mov_b32 %s, 0x%x" % (sr(S_T2), 0x100000))
    e("L_lspin:")
    e("ds_read_b64 %s, v%d" % (vr(V_B0 + 2, 2), V_B0))
    e("s_waitcnt lgkmcnt(0)")
    e("v_readfirstlane_b32 %s, v%d" % (sr(S_T1), V_B0 + 3))
    e("s_sub_u32 %s, %s, 1" % (sr(S_T2), sr(S_T2)))
    e("s_cmp_eq_u32 %s, 0" % sr(S_T2))
    e("s_cbranch_scc1 L_lgo")
    e("s_cmp_lg_u32 %s, 4" % sr(S_T1))
    e("s_cbranch_scc1 L_lspin")
    e("L_lgo:")
    g.stamp(3)
    e("v_mov_b32 v%d, v%d" % (V_N, V_B0 + 2))
    for rb, va in ((R0, V_A0), (R1, V_A1)):
        for w in range(8):
            e("ds_read_b128 %s, v%d offset:%d" % (vr(rb + 4 * w, 4), va, w * PART_BYTES))
    for k, (rb, va) in enumerate(((R0, V_A0), (R1, V_A1))):
        base = 8 if k == 0 else 0
        for w in range(1, 8):
            e("s_waitcnt lgkmcnt(%d)" % min(15, base + 7 - w))
            for r in range(4):
                e("v_add_f32 v%d, v%d, v%d" % (rb + r, rb + r, rb + 4 * w + r))
        for r in range(4):
            e("v_bfi_b32 v%d, %s, v%d, v%d" % (rb + r, sr(S_MASK), rb + r, V_N))
        e("buffer_store_dwordx4 %s, v%d, %s, %s offen%s" % (vr(rb, 4), va, sr(SRD_WS, 4), sr(S_PART), xm))
    g.stamp(4)

    def gather():
        e("s_mov_b32 %s, %s" % (sr(S_T0), sr(S_HPART)))
        for c in range(8):
            e("buffer_load_dwordx4 %s, v%d, %s, %s offen%s" % (vr(G0 + 4 * c, 4), V_A0, sr(SRD_WS, 4), sr(S_T0), xm))
            e("buffer_load_dwordx4 %s, v%d, %s, %s offen%s" % (vr(G1 + 4 * c, 4), V_A1, sr(SRD_WS, 4), sr(S_T0), xm))
            if c < 7:
                e("s_add_u32 %s, %s, %d" % (sr(S_T0), sr(S_T0), SL))
    if prio and opts.get("qlow", 0):
        e("s_setprio 0")
    qsplit = max(qsplit, lq0)
    qloads(lq0, qsplit)
    if opts.get("ackwait"):
        e("s_waitcnt vmcnt(%d)" % (qsplit - lq0))
        g.stamp(13)
    gather()
    qloads(qsplit, 12)
    g.stamp(11)
    g.table_addr(V_T0, 208, V_TA0)
    g.table_addr(V_T1, 208, V_TA1)
    e("s_mov_b32 %s, 0x%x" % (sr(S_T2), SPIN))
    e("s_waitcnt vmcnt(%d)" % (12 - qsplit))
    e("s_branch L_chk")
    e("L_retry:")
    gather()
    e("s_waitcnt vmcnt(0)")
    e("L_chk:")
    for i in range(64):
        e("v_xor_b32 v%d, v%d, v%d" % (G0 + i, G0 + i, V_N))
    e("v_or3_b32 v%d, v%d, v%d, v%d" % (V_M, G0, G0 + 1, G0 + 2))
    i = 3
    while i < 64:
        if i + 1 < 64:
            e("v_or3_b32 v%d, v%d, v%d, v%d" % (V_M, V_M, G0 + i, G0 + i + 1)); i += 2
        else:
            e("v_or_b32 v%d, v%d, v%d" % (V_M, V_M, G0 + i)); i += 1
    e("v_and_b32 v%d, 0x%x, v%d" % (V_M, TAGMASK, V_M))
    e("v_cmp_ne_u32 %s, 0, v%d" % (sr(S_EXEC, 2), V_M))
    e("s_sub_u32 %s, %s, 1" % (sr(S_T2), sr(S_T2)))
    e("s_cmp_eq_u32 %s, 0" % sr(S_T2))
    e("s_cbranch_scc1 L_got")
    e("s_cmp_lg_u64 %s, 0" % sr(S_EXEC, 2))
    e("s_cbranch_scc1 L_retry")
    e("L_got:")
    g.stamp(6)
    if opts.get("prof"):
        e("s_sub_u32 %s, 0x%x, %s" % (sr(S_T3), SPIN, sr(S_T2)))
    for gb, ta, tmp in ((G0, V_TA0, V_ACC + 8), (G1, V_TA1, V_ACC + 16)):
        for r in range(4):
            e("v_add_f32 v%d, v%d, v%d" % (gb + r, gb + r, gb + 4 + r))
        for c in range(2, 8):
            for r in range(4):
                e("v_add_f32 v%d, v%d, v%d" % (gb + r, gb + r, gb + 4 * c + r))
        g.hilo_write(LDS_TAB, gb, tmp, ta)
    e("s_waitcnt lgkmcnt(0)")
    e("s_barrier")
    g.stamp(7)
    g.read_table(LDS_TAB)
    e("s_waitcnt vmcnt(0)")
    e("L_qproj:")
    g.stamp(5)
    if prio:
        e("s_setprio 0")
    for T in range(2):
        g.proj(V_Q, T, False)
        g.phi(T)
        g.pack_phi_q(T)
    e("s_cmp_ge_u32 %s, 4" % sr(S_WAVE))
    e("s_cbranch_scc1 L_out")
    if opts.get("prof"):
        e("s_mov_b32 %s, 0" % sr(S_T3))
    e("s_barrier")
    g.stamp(7)
    g.read_table(LDS_TAB)
    e("L_out:")
    e("s_waitcnt lgkmcnt(0)")
    g.out_tile(0, V_ACC, sm)
    g.out_tile(1, V_K - 4, sm)
    g.stamp(8)
    if opts.get("prof"):
        e("s_waitcnt vmcnt(0)")
        g.stamp(9)
        g.flush_stamps()
        e("v_mov_b32 v254, %s" % sr(S_T3))
        e("v_mov_b32 v255, 0")
        e("buffer_store_dwordx2 v[254:255], v253, %s, 0 offen offset:%d" % (sr(SRD_WS, 4), 15 * 8))
    e("L_end:")
    e("s_endpgm")
    txt = HEADER
    txt += "; @launch grid=(256,1,1) block=(512,1,1) lds=%d\n" % (LDS_N + 64)
    txt += '.amdgcn_target "amdgcn-amd-amdhsa--gfx950"\n'
    txt += kernel_text(NAME + "_kernel", g)
    txt += kd(NAME + "_kernel")
    return txt


def gen_fused5(opts):
    lm = MODS[opts.get("mod", 1)]
    qm = MODS[opts.get("qmod", opts.get("mod", 1))]
    sm = MODS[opts.get("smod", 4)]
    xm = MODS[opts.get("xmod", 2)]
    prio = opts.get("prio", 1)
    nw = opts.get("nwave", 2)
    lq0 = opts.get("lq0", 6)
    SPIN = opts.get("spin", 0x4000)
    SL = PART_BYTES
    V_CNT = V_SS + 3
    S_N = S_CNT
    S_MASK = 61
    S_LATE = S_T3
    g = Gen(opts)
    e = g

    def qloads(lo, hi):
        for i in range(lo, hi):
            T, t = divmod(i, 6)
            e("buffer_load_dwordx4 %s, v%d, %s, %s offen offset:%d%s" % (
                vr(V_Q + 24 * T + 4 * t, 4), V_OK, sr(SRD_Q, 4), sr(S_B0 + T), 64 * t, qm))

    def wait2(n_early, n_late, tag):
        if n_early == n_late:
            e("s_waitcnt vmcnt(%d)" % n_early)
            return
        e("s_cmp_ge_u32 %s, 4" % sr(S_WAVE))
        e("s_cbranch_scc1 L_w2l_%s" % tag)
        e("s_waitcnt vmcnt(%d)" % n_early)
        e("s_branch L_w2d_%s" % tag)
        e("L_w2l_%s:" % tag)
        e("s_waitcnt vmcnt(%d)" % n_late)
        e("L_w2d_%s:" % tag)

    g.zero_stamps()
    g.prologue("L_end")
    g.stamp(0)
    if prio:
        e("s_setprio 3")
    e("s_mov_b32 %s, 0x%x" % (sr(S_MASK), 0xFFFFFFFF ^ TAGMASK))
    e("s_or_b32 %s, %s, %s" % (sr(S_T0), sr(S_H), sr(S_C)))
    e("s_or_b32 %s, %s, %s" % (sr(S_T0), sr(S_T0), sr(S_WAVE)))
    e("s_cmp_lg_u32 %s, 0" % sr(S_T0))
    e("s_cbranch_scc1 L_nochoose")
    e("v_mul_u32_u24 v%d, %d, v%d" % (V_B0, 4 * SL, V_LANE))
    for i in range(4):
        e("s_mov_b32 %s, %d" % (sr(S_T1), i * SL))
        e("buffer_load_dword v%d, v%d, %s, %s offen%s" % (V_B1 + i, V_B0, sr(SRD_WS, 4), sr(S_T1), xm))
    g.load_w()
    g.load_rows(V_K, SRD_K, lm)
    g.load_v(lm)
    e("s_waitcnt vmcnt(34)")
    for i in range(4):
        e("v_and_b32 v%d, 0x%x, v%d" % (V_B1 + i, TAGMASK, V_B1 + i))
    e("v_readfirstlane_b32 %s, v%d" % (sr(S_N), V_B1))
    e("L_cand:")
    e("s_add_u32 %s, %s, 1" % (sr(S_N), sr(S_N)))
    e("s_and_b32 %s, %s, 0x%x" % (sr(S_N), sr(S_N), TAGMASK))
    e("v_cmp_eq_u32 vcc, %s, v%d" % (sr(S_N), V_B1))
    e("v_cmp_eq_u32 %s, %s, v%d" % (sr(S_EXEC, 2), sr(S_N), V_B1 + 1))
    e("s_or_b64 vcc, vcc, %s" % sr(S_EXEC, 2))
    e("v_cmp_eq_u32 %s, %s, v%d" % (sr(S_EXEC, 2), sr(S_N), V_B1 + 2))
    e("s_or_b64 vcc, vcc, %s" % sr(S_EXEC, 2))
    e("v_cmp_eq_u32 %s, %s, v%d" % (sr(S_EXEC, 2), sr(S_N), V_B1 + 3))
    e("s_or_b64 vcc, vcc, %s" % sr(S_EXEC, 2))
    e("s_cmp_lg_u64 vcc, 0")
    e("s_cbranch_scc1 L_cand")
    e("s_or_b32 %s, %s, 0x80000000" % (sr(S_T1), sr(S_N)))
    e("v_mov_b32 v%d, %s" % (V_B0 + 1, sr(S_T1)))
    e("v_mov_b32 v%d, 0" % V_B0)
    e("s_mov_b64 exec, 1")
    e("buffer_store_dword v%d, v%d, %s, 0 offen%s" % (V_B0 + 1, V_B0, sr(SRD_DBG, 4), xm))
    e("s_mov_b64 exec, -1")
    e("s_waitcnt vmcnt(17)")
    e("s_branch L_issued")
    e("L_nochoose:")
    g.load_w()
    g.load_rows(V_K, SRD_K, lm)
    g.load_v(lm)
    if lq0:
        e("s_cmp_lt_u32 %s, 4" % sr(S_WAVE))
        e("s_cbranch_scc1 L_issued")
        qloads(0, lq0)
    e("L_issued:")
    if prio:
        e("s_setprio 0")
    wait2(22, 22 + lq0, "k0")
    g.proj(V_K, 0, True)
    wait2(16, 16 + lq0, "k1")
    g.proj(V_K, 1, True)
    g.phi(0)
    g.phi(1)
    g.kv_mfma()
    g.stamp(1)
    wait2(0, lq0, "v")
    g.stamp(2)
    if prio:
        e("s_cmp_lt_u32 %s, 4" % sr(S_WAVE))
        e("s_cbranch_scc1 L_nop3")
        e("s_setprio 3")
        e("L_nop3:")
    g.kv_tiles()
    e("s_mul_i32 %s, %s, %d" % (sr(S_T0), sr(S_WAVE), PART_BYTES))
    e("v_lshlrev_b32 v%d, 4, v%d" % (V_B0, V_LANE))
    e("v_add_u32 v%d, %s, v%d" % (V_B0, sr(S_T0), V_B0))
    e("s_mov_b32 exec_lo, -1")
    e("s_mov_b32 exec_hi, 0")
    for tau in range(13):
        e("ds_write_b128 v%d, %s offset:%d" % (V_B0, vr(V_ACC + 4 * tau, 4), tau * 512))
    e("s_mov_b64 exec, -1")
    e("s_cmp_ge_u32 %s, 4" % sr(S_WAVE))
    e("s_cbranch_scc1 L_noq1")
    tagmode = opts.get("tagmode", 1)
    if tagmode == 0:
        e("s_cmp_lg_u32 %s, %d" % (sr(S_WAVE), nw))
        e("s_cbranch_scc1 L_notag")
        if prio:
            e("s_setprio 3")
        e("s_mov_b32 %s, 0x%x" % (sr(S_T2), SPIN))
        e("v_mov_b32 v%d, 0" % V_B0)
        e("L_tagspin:")
        e("buffer_load_dword v%d, v%d, %s, 0 offen sc1" % (V_B0 + 1, V_B0, sr(SRD_DBG, 4)))
        e("s_waitcnt vmcnt(0)")
        e("v_readfirstlane_b32 %s, v%d" % (sr(S_N), V_B0 + 1))
        e("s_sub_u32 %s, %s, 1" % (sr(S_T2), sr(S_T2)))
        e("s_cmp_eq_u32 %s, 0" % sr(S_T2))
        e("s_cbranch_scc1 L_tagput")
        e("s_cmp_ge_i32 %s, 0" % sr(S_N))
        e("s_cbranch_scc1 L_tagspin")
        e("L_tagput:")
        e("v_and_b32 v%d, 0x%x, v%d" % (V_B0 + 1, TAGMASK, V_B0 + 1))
        e("v_mov_b32 v%d, %d" % (V_B0, LDS_N))
        e("ds_write_b32 v%d, v%d" % (V_B0, V_B0 + 1))
        if prio:
            e("s_setprio 0")
        e("L_notag:")
        qloads(0, 12)
    else:
        e("s_cmp_lg_u32 %s, %d" % (sr(S_WAVE), nw))
        e("s_cbranch_scc1 L_notag")
        if tagmode == 1:
            e("s_load_dword %s, %s, 0 glc" % (sr(S_N), sr(S_DBG, 2)))
        qloads(0, 12)
        if tagmode == 1:
            e("s_waitcnt lgkmcnt(0)")
        else:
            e("s_mov_b32 %s, 0x80000123" % sr(S_N))
        e("s_cmp_lt_i32 %s, 0" % sr(S_N))
        e("s_cbranch_scc1 L_tagput")
        e("s_mov_b32 %s, 0x%x" % (sr(S_T2), SPIN))
        e("v_mov_b32 v%d, 0" % V_B0)
        e("L_tagspin:")
        e("buffer_load_dword v%d, v%d, %s, 0 offen sc1" % (V_B0 + 1, V_B0, sr(SRD_DBG, 4)))
        e("s_waitcnt vmcnt(0)")
        e("v_readfirstlane_b32 %s, v%d" % (sr(S_N), V_B0 + 1))
        e("s_sub_u32 %s, %s, 1" % (sr(S_T2), sr(S_T2)))
        e("s_cmp_eq_u32 %s, 0" % sr(S_T2))
        e("s_cbranch_scc1 L_tagput")
        e("s_cmp_ge_i32 %s, 0" % sr(S_N))
        e("s_cbranch_scc1 L_tagspin")
        e("L_tagput:")
        if opts.get("prof"):
            e("s_mov_b32 %s, %s" % (sr(S_ST0 + 28), sr(S_T2)))
        e("s_and_b32 %s, %s, 0x%x" % (sr(S_N), sr(S_N), TAGMASK))
        e("v_mov_b32 v%d, %s" % (V_B0 + 1, sr(S_N)))
        e("v_mov_b32 v%d, %d" % (V_B0, LDS_N))
        e("ds_write_b32 v%d, v%d" % (V_B0, V_B0 + 1))
        e("s_branch L_noq1")
        e("L_notag:")
        qloads(0, 12)
    e("L_noq1:")
    g.stamp(10)
    if prio:
        e("s_setprio 3")
    e("v_min_u32 v%d, 415, v0" % (V_B1 + 1))
    e("v_lshlrev_b32 v%d, 4, v%d" % (V_B1, V_B1 + 1))
    e("v_mov_b32 v%d, %d" % (V_B0, LDS_N))
    e("s_waitcnt lgkmcnt(0)")
    e("s_barrier")
    g.stamp(3)
    e("ds_read_b32 v%d, v%d" % (V_CNT, V_B0))
    for w in range(8):
        e("ds_read_b128 %s, v%d offset:%d" % (vr(V_ACC + 4 * w, 4), V_B1, w * PART_BYTES))
    for w in range(1, 8):
        e("s_waitcnt lgkmcnt(%d)" % (7 - w))
        for r in range(4):
            e("v_add_f32 v%d, v%d, v%d" % (V_ACC + r, V_ACC + r, V_ACC + 4 * w + r))
    for r in range(4):
        e("v_bfi_b32 v%d, %s, v%d, v%d" % (V_ACC + r, sr(S_MASK), V_ACC + r, V_CNT))
    e("buffer_store_dwordx4 %s, v%d, %s, %s offen%s" % (vr(V_ACC, 4), V_B1, sr(SRD_WS, 4), sr(S_PART), xm))
    g.stamp(4)
    V_N = V_B0 + 2
    e("v_mov_b32 v%d, v%d" % (V_N, V_CNT))
    if lq0 < 12:
        e("s_cmp_lt_u32 %s, 4" % sr(S_WAVE))
        e("s_cbranch_scc1 L_noq2")
        qloads(lq0, 12)
        e("L_noq2:")
    PL = V_ACC + 4

    def payload_loads():
        e("s_mov_b32 %s, %s" % (sr(S_T0), sr(S_HPART)))
        for c in range(8):
            e("buffer_load_dwordx4 %s, v%d, %s, %s offen%s" % (vr(PL + 4 * c, 4), V_B1, sr(SRD_WS, 4), sr(S_T0), xm))
            if c < 7:
                e("s_add_u32 %s, %s, %d" % (sr(S_T0), sr(S_T0), SL))
    g.table_addr(V_B1 + 1)
    if opts.get("eqfirst", 1):
        e("s_cmp_ge_u32 %s, 4" % sr(S_WAVE))
        e("s_cbranch_scc1 L_noeq")
        e("s_waitcnt vmcnt(1)")
        for T in range(2):
            g.proj(V_Q, T, False)
            g.phi(T)
            g.pack_phi_q(T)
        e("L_noeq:")
    if opts.get("pbar", 1):
        e("s_barrier")
    payload_loads()
    g.stamp(11)
    if opts.get("eqfirst", 1):
        e("s_cmp_lt_u32 %s, 4" % sr(S_WAVE))
        e("s_cbranch_scc1 L_nolq")
    e("s_waitcnt vmcnt(8)")
    g.stamp(5)
    for T in range(2):
        g.proj(V_Q, T, False)
        g.phi(T)
        g.pack_phi_q(T)
    if opts.get("eqfirst", 1):
        e("L_nolq:")
    e("s_mov_b32 %s, 0x%x" % (sr(S_T2), SPIN))
    e("s_waitcnt vmcnt(0)")
    e("s_branch L_chk")
    e("L_retry:")
    payload_loads()
    e("s_waitcnt vmcnt(0)")
    e("L_chk:")
    M = V_ACC + 36
    for i in range(32):
        e("v_xor_b32 v%d, v%d, v%d" % (PL + i, PL + i, V_N))
    e("v_or3_b32 v%d, v%d, v%d, v%d" % (M, PL, PL + 1, PL + 2))
    i = 3
    while i < 32:
        if i + 1 < 32:
            e("v_or3_b32 v%d, v%d, v%d, v%d" % (M, M, PL + i, PL + i + 1)); i += 2
        else:
            e("v_or_b32 v%d, v%d, v%d" % (M, M, PL + i)); i += 1
    e("v_and_b32 v%d, 0x%x, v%d" % (M, TAGMASK, M))
    e("v_cmp_ne_u32 %s, 0, v%d" % (sr(S_EXEC, 2), M))
    e("s_sub_u32 %s, %s, 1" % (sr(S_T2), sr(S_T2)))
    e("s_cmp_eq_u32 %s, 0" % sr(S_T2))
    e("s_cbranch_scc1 L_got")
    e("s_cmp_lg_u64 %s, 0" % sr(S_EXEC, 2))
    e("s_cbranch_scc1 L_retry")
    e("L_got:")
    g.stamp(6)
    if opts.get("prof"):
        e("s_sub_u32 %s, 0x%x, %s" % (sr(S_T3), SPIN, sr(S_T2)))
    a = V_ACC
    for r in range(4):
        e("v_add_f32 v%d, v%d, v%d" % (a + r, PL + r, PL + 4 + r))
    for c in range(2, 8):
        for r in range(4):
            e("v_add_f32 v%d, v%d, v%d" % (a + r, a + r, PL + 4 * c + r))
    g.hilo_write(LDS_TAB)
    e("s_waitcnt lgkmcnt(0)")
    e("s_barrier")
    g.stamp(7)
    g.read_table(LDS_TAB)
    e("s_waitcnt lgkmcnt(0)")
    g.out_tile(0, V_ACC, sm)
    g.out_tile(1, V_K - 4, sm)
    g.stamp(8)
    if opts.get("prof"):
        e("s_waitcnt vmcnt(0)")
        g.stamp(9)
        g.flush_stamps()
        e("v_mov_b32 v254, %s" % sr(S_T3))
        e("v_mov_b32 v255, 0")
        e("buffer_store_dwordx2 v[254:255], v253, %s, 0 offen offset:%d" % (sr(SRD_WS, 4), 15 * 8))
    e("L_end:")
    e("s_endpgm")
    txt = HEADER
    txt += "; @launch grid=(256,1,1) block=(512,1,1) lds=%d\n" % (LDS_N + 64)
    txt += '.amdgcn_target "amdgcn-amd-amdhsa--gfx950"\n'
    txt += kernel_text(NAME + "_kernel", g)
    txt += kd(NAME + "_kernel")
    return txt


X_TAB = 0
X_N = PART_BYTES
X_PART = PART_BYTES + 128
X_XBUF = X_PART + 8 * PART_BYTES
X_END = X_XBUF + 8 * 12288
V_RE, V_RO = 2, 5
V_SW = 128
V_T = 134
V_STG = 136
S_B04, S_B14, S_XB, S_PB = 63, 64, 65, 98


def gen_fused6(opts):
    lm = MODS[opts.get("mod", 1)]
    qm = MODS[opts.get("qmod", opts.get("mod", 1))]
    wm = MODS[opts.get("wmod", 0)]
    sm = MODS[opts.get("smod", 4)]
    xm = MODS[opts.get("xmod", 2)]
    prio = opts.get("prio", 1)
    lq0 = opts.get("lq0", 6)
    SPIN = opts.get("spin", 0x4000)
    SL = PART_BYTES
    V_CNT = V_SS + 3
    S_N = S_CNT
    S_MASK = 61
    S_B04, S_B14, S_XB, S_PB = 99, 100, 101, 19
    VQ = V_K
    g = Gen(opts)
    e = g

    def dma_rows(srd, lo, hi, mod):
        last = None
        for j in range(lo, hi):
            T, jj = divmod(j, 6)
            grp = (T, jj >> 2)
            if grp != last:
                e("s_add_u32 m0, %s, %d" % (sr(S_XB), T * 6144 + (jj >> 2) * 4096))
                last = grp
            so = ((S_B0, S_B04), (S_B1, S_B14))[T][jj >> 2]
            e("buffer_load_dwordx4 v%d, %s, %s offen offset:%d%s lds" % (V_SW + jj, sr(srd, 4), sr(so), (jj & 3) * 1024, mod))

    def dma_w():
        e("s_mov_b32 m0, %s" % sr(S_PB))
        for jj in range(3):
            e("buffer_load_dwordx4 v%d, %s, 0 offen offset:%d%s lds" % (V_SW + jj, sr(SRD_W, 4), jj * 1024, wm))

    def read_frag(vbase, T):
        for t in range(6):
            e("ds_read_b128 %s, v%d offset:%d" % (vr(vbase + 24 * T + 4 * t, 4), (V_RE, V_RO)[t & 1], T * 6144 + (t >> 1) * 128))

    def read_w():
        for t in range(6):
            e("ds_read_b128 %s, v%d offset:%d" % (vr(V_W + 4 * t, 4), V_T + (t & 1), (t >> 1) * 128))

    def wait2(n_early, n_late, tag):
        if n_early == n_late:
            e("s_waitcnt vmcnt(%d)" % n_early)
            return
        e("s_cmp_ge_u32 %s, 4" % sr(S_WAVE))
        e("s_cbranch_scc1 L_w2l_%s" % tag)
        e("s_waitcnt vmcnt(%d)" % n_early)
        e("s_branch L_w2d_%s" % tag)
        e("L_w2l_%s:" % tag)
        e("s_waitcnt vmcnt(%d)" % n_late)
        e("L_w2d_%s:" % tag)

    def qproj():
        read_frag(VQ, 0)
        read_frag(VQ, 1)
        e("s_waitcnt lgkmcnt(6)")
        g.proj(VQ, 0, False)
        g.phi(0)
        g.pack_phi_q(0)
        e("s_waitcnt lgkmcnt(0)")
        g.proj(VQ, 1, False)
        g.phi(1)
        g.pack_phi_q(1)

    g.zero_stamps()
    e("s_cmp_ge_u32 s2, 256")
    e("s_cbranch_scc1 L_end")
    e("s_load_dwordx8 s[4:11], s[0:1], 0")
    e("s_load_dwordx4 s[12:15], s[0:1], 32")
    e("s_load_dwordx2 s[16:17], s[0:1], 48")
    e("v_and_b32 v%d, 63, v0" % V_LANE)
    e("v_lshrrev_b32 v8, 6, v0")
    e("v_and_b32 v9, 15, v0")
    e("v_bfe_u32 v10, v0, 4, 2")
    e("v_readfirstlane_b32 %s, v8" % sr(S_WAVE))
    for jj in range(6):
        e("v_add_u32 v11, %d, v%d" % (64 * jj, V_LANE))
        e("v_mul_u32_u24 v11, 1366, v11")
        e("v_lshrrev_b32 v11, 16, v11")
        e("v_xor_b32 v11, v11, v%d" % V_LANE)
        e("v_lshlrev_b32 v%d, 4, v11" % (V_SW + jj))
    e("v_mul_u32_u24 v13, %d, v10" % (4 * RB))
    e("v_lshlrev_b32 v14, 4, v9")
    e("v_add_u32 v%d, v13, v14" % V_OVA)
    e("v_lshlrev_b32 v14, 3, v9")
    e("v_add_u32 v13, 256, v13")
    e("v_add_u32 v%d, v13, v14" % V_OVB)
    e("s_and_b32 %s, s2, 7" % sr(S_T0))
    e("s_lshr_b32 %s, s2, 6" % sr(S_T1))
    e("s_lshl_b32 %s, %s, 3" % (sr(S_T1), sr(S_T1)))
    e("s_or_b32 %s, %s, %s" % (sr(S_H), sr(S_T0), sr(S_T1)))
    e("s_lshr_b32 %s, s2, 3" % sr(S_C))
    e("s_and_b32 %s, %s, 7" % (sr(S_C), sr(S_C)))
    e("s_mul_i32 %s, %s, %d" % (sr(S_T0), sr(S_H), 2048 * RB))
    e("s_mul_i32 %s, %s, %d" % (sr(S_T1), sr(S_C), 256 * RB))
    e("s_add_u32 %s, %s, %s" % (sr(S_T0), sr(S_T0), sr(S_T1)))
    e("s_mul_i32 %s, %s, %d" % (sr(S_XB), sr(S_WAVE), 32 * RB))
    e("s_add_u32 %s, %s, %s" % (sr(S_B0), sr(S_T0), sr(S_XB)))
    e("s_add_u32 %s, %s, %d" % (sr(S_XB), sr(S_XB), X_XBUF))
    e("s_add_u32 %s, %s, %d" % (sr(S_B1), sr(S_B0), 16 * RB))
    e("s_add_u32 %s, %s, 4096" % (sr(S_B04), sr(S_B0)))
    e("s_add_u32 %s, %s, 4096" % (sr(S_B14), sr(S_B1)))
    e("s_mul_i32 %s, %s, %d" % (sr(S_PB), sr(S_WAVE), PART_BYTES))
    e("s_add_u32 %s, %s, %d" % (sr(S_PB), sr(S_PB), X_PART))
    if opts.get("prof"):
        e("s_lshl_b32 %s, s2, 3" % sr(S_PROF))
        e("s_add_u32 %s, %s, %s" % (sr(S_PROF), sr(S_PROF), sr(S_WAVE)))
        e("s_lshl_b32 %s, %s, 7" % (sr(S_PROF), sr(S_PROF)))
        e("s_add_u32 %s, %s, 0x%x" % (sr(S_PROF), sr(S_PROF), 128 << 20))
    e("s_or_b32 %s, %s, %s" % (sr(S_T2), sr(S_H), sr(S_C)))
    e("s_or_b32 %s, %s, %s" % (sr(S_T2), sr(S_T2), sr(S_WAVE)))
    e("s_waitcnt lgkmcnt(0)")

    def srd(r, ptr, nbytes):
        e("s_mov_b32 %s, %s" % (sr(r), sr(ptr)))
        e("s_and_b32 %s, %s, 0xffff" % (sr(r + 1), sr(ptr + 1)))
        e("s_mov_b32 %s, 0x%x" % (sr(r + 2), nbytes))
        e("s_mov_b32 %s, 0x20000" % sr(r + 3))
    srd(SRD_K, S_K, TENSOR_BYTES)
    srd(SRD_W, S_W, 8 * RB)
    srd(SRD_V, S_V, TENSOR_BYTES)
    srd(SRD_WS, S_WS, WS_BYTES)
    srd(SRD_DBG, S_DBG, 256)
    g.stamp(0)
    if prio:
        e("s_setprio 3")
    e("s_cmp_lg_u32 %s, 0" % sr(S_T2))
    e("s_cbranch_scc1 L_nochoose")
    e("v_mul_u32_u24 v%d, %d, v%d" % (V_B0, 4 * SL, V_LANE))
    for i in range(4):
        e("s_mov_b32 %s, %d" % (sr(S_T1), i * SL))
        e("buffer_load_dword v%d, v%d, %s, %s offen%s" % (V_B1 + i, V_B0, sr(SRD_WS, 4), sr(S_T1), xm))
    dma_rows(SRD_K, 0, 6, lm)
    dma_w()
    dma_rows(SRD_K, 6, 12, lm)
    g.load_v(lm)
    e("s_waitcnt vmcnt(31)")
    for i in range(4):
        e("v_and_b32 v%d, 0x%x, v%d" % (V_B1 + i, TAGMASK, V_B1 + i))
    e("v_readfirstlane_b32 %s, v%d" % (sr(S_N), V_B1))
    e("L_cand:")
    e("s_add_u32 %s, %s, 1" % (sr(S_N), sr(S_N)))
    e("s_and_b32 %s, %s, 0x%x" % (sr(S_N), sr(S_N), TAGMASK))
    e("v_cmp_eq_u32 vcc, %s, v%d" % (sr(S_N), V_B1))
    e("v_cmp_eq_u32 %s, %s, v%d" % (sr(S_EXEC, 2), sr(S_N), V_B1 + 1))
    e("s_or_b64 vcc, vcc, %s" % sr(S_EXEC, 2))
    e("v_cmp_eq_u32 %s, %s, v%d" % (sr(S_EXEC, 2), sr(S_N), V_B1 + 2))
    e("s_or_b64 vcc, vcc, %s" % sr(S_EXEC, 2))
    e("v_cmp_eq_u32 %s, %s, v%d" % (sr(S_EXEC, 2), sr(S_N), V_B1 + 3))
    e("s_or_b64 vcc, vcc, %s" % sr(S_EXEC, 2))
    e("s_cmp_lg_u64 vcc, 0")
    e("s_cbranch_scc1 L_cand")
    e("s_or_b32 %s, %s, 0x80000000" % (sr(S_T1), sr(S_N)))
    e("v_mov_b32 v%d, %s" % (V_B0 + 1, sr(S_T1)))
    e("v_mov_b32 v%d, 0" % V_B0)
    e("s_mov_b64 exec, 1")
    e("buffer_store_dword v%d, v%d, %s, 0 offen%s" % (V_B0 + 1, V_B0, sr(SRD_DBG, 4), xm))
    e("s_mov_b64 exec, -1")
    e("s_waitcnt vmcnt(17)")
    e("s_branch L_issued")
    e("L_nochoose:")
    dma_rows(SRD_K, 0, 6, lm)
    dma_w()
    dma_rows(SRD_K, 6, 12, lm)
    g.load_v(lm)
    e("s_cmp_lt_u32 %s, 4" % sr(S_WAVE))
    e("s_cbranch_scc1 L_issued")
    e("v_mov_b32 v%d, 0" % V_B0)
    e("buffer_load_dword v%d, v%d, %s, 0 offen sc1" % (V_B0 + 1, V_B0, sr(SRD_DBG, 4)))
    e("L_issued:")
    if prio:
        e("s_setprio 0")
    srd(SRD_Q, S_Q, TENSOR_BYTES)
    srd(SRD_O, S_O, TENSOR_BYTES)
    e("s_mul_i32 %s, %s, %d" % (sr(S_HPART), sr(S_H), 8 * SL))
    e("s_mul_i32 %s, %s, %d" % (sr(S_T1), sr(S_C), SL))
    e("s_add_u32 %s, %s, %s" % (sr(S_PART), sr(S_HPART), sr(S_T1)))
    e("s_mov_b32 %s, 0x05040100" % sr(S_SELLO))
    e("s_mov_b32 %s, 0x07060302" % sr(S_SELHI))
    e("s_mov_b32 %s, %s" % (sr(S_CEXP), hx(f32(C_EXP))))
    e("s_mov_b32 %s, 0x%x" % (sr(S_MASK), 0xFFFFFFFF ^ TAGMASK))
    e("v_mov_b32 v%d, %s" % (V_CSQ, hx(f32(C_SQ))))
    e("v_mov_b32 v%d, %s" % (V_M15, hx(f32(C_BIAS))))
    e("v_and_b32 v9, 15, v0")
    e("v_bfe_u32 v10, v0, 4, 2")
    e("v_lshrrev_b32 v11, 1, v9")
    e("v_mul_u32_u24 v12, %d, v9" % RB)
    e("v_add_u32 v12, %s, v12" % sr(S_XB))
    e("v_xor_b32 v13, v10, v11")
    e("v_lshl_add_u32 v%d, v13, 4, v12" % V_RE)
    e("v_xor_b32 v13, 4, v13")
    e("v_lshl_add_u32 v%d, v13, 4, v12" % V_RO)
    e("v_and_b32 v9, 7, v9")
    e("v_lshrrev_b32 v11, 1, v9")
    e("v_mul_u32_u24 v12, %d, v9" % RB)
    e("v_add_u32 v12, %s, v12" % sr(S_PB))
    e("v_xor_b32 v13, v10, v11")
    e("v_lshl_add_u32 v%d, v13, 4, v12" % V_T)
    e("v_xor_b32 v13, 4, v13")
    e("v_lshl_add_u32 v%d, v13, 4, v12" % (V_T + 1))
    wait2(22, 23, "k0")
    read_w()
    read_frag(V_K, 0)
    wait2(16, 17, "k1")
    e("s_waitcnt lgkmcnt(6)")
    read_frag(V_K, 1)
    e("s_waitcnt lgkmcnt(6)")
    g.proj(V_K, 0, True)
    e("s_waitcnt lgkmcnt(0)")
    g.proj(V_K, 1, True)
    g.phi(0)
    g.phi(1)
    g.kv_mfma()
    g.stamp(1)
    e("s_cmp_lt_u32 %s, 4" % sr(S_WAVE))
    e("s_cbranch_scc1 L_vearly")
    if lq0:
        dma_rows(SRD_Q, 0, lq0, qm)
    e("s_waitcnt vmcnt(%d)" % lq0)
    if prio:
        e("s_setprio 3")
    e("v_readfirstlane_b32 %s, v%d" % (sr(S_N), V_B0 + 1))
    e("s_cmp_lt_i32 %s, 0" % sr(S_N))
    e("s_cbranch_scc1 L_tagput")
    e("s_mov_b32 %s, 0x%x" % (sr(S_T2), SPIN))
    e("v_mov_b32 v%d, 0" % V_B0)
    e("L_tagspin:")
    e("buffer_load_dword v%d, v%d, %s, 0 offen sc1" % (V_B0 + 1, V_B0, sr(SRD_DBG, 4)))
    e("s_waitcnt vmcnt(0)")
    e("v_readfirstlane_b32 %s, v%d" % (sr(S_N), V_B0 + 1))
    e("s_sub_u32 %s, %s, 1" % (sr(S_T2), sr(S_T2)))
    e("s_cmp_eq_u32 %s, 0" % sr(S_T2))
    e("s_cbranch_scc1 L_tagput")
    e("s_cmp_ge_i32 %s, 0" % sr(S_N))
    e("s_cbranch_scc1 L_tagspin")
    e("L_tagput:")
    e("s_and_b32 %s, %s, 0x%x" % (sr(S_N), sr(S_N), TAGMASK))
    e("v_mov_b32 v%d, %s" % (V_B0 + 1, sr(S_N)))
    e("v_mov_b32 v%d, %d" % (V_B0, X_N))
    e("ds_write_b32 v%d, v%d" % (V_B0, V_B0 + 1))
    e("s_branch L_vready")
    e("L_vearly:")
    e("s_waitcnt vmcnt(0)")
    e("L_vready:")
    g.stamp(2)
    g.kv_tiles()
    e("v_lshlrev_b32 v%d, 4, v%d" % (V_B0, V_LANE))
    e("v_add_u32 v%d, %s, v%d" % (V_B0, sr(S_PB), V_B0))
    e("s_mov_b32 exec_lo, -1")
    e("s_mov_b32 exec_hi, 0")
    for tau in range(13):
        e("ds_write_b128 v%d, %s offset:%d" % (V_B0, vr(V_ACC + 4 * tau, 4), tau * 512))
    e("s_mov_b64 exec, -1")
    e("s_cmp_ge_u32 %s, 4" % sr(S_WAVE))
    e("s_cbranch_scc1 L_noq1")
    dma_rows(SRD_Q, 0, 12, qm)
    e("L_noq1:")
    g.stamp(10)
    if prio:
        e("s_setprio 3")
    e("v_min_u32 v%d, 415, v0" % (V_B1 + 1))
    e("v_lshlrev_b32 v%d, 4, v%d" % (V_B1, V_B1 + 1))
    e("v_add_u32 v%d, %d, v%d" % (V_B1 + 2, X_PART, V_B1))
    e("v_mov_b32 v%d, %d" % (V_B0, X_N))
    e("s_waitcnt lgkmcnt(0)")
    e("s_barrier")
    g.stamp(3)
    e("ds_read_b32 v%d, v%d" % (V_CNT, V_B0))
    for w in range(8):
        e("ds_read_b128 %s, v%d offset:%d" % (vr(V_ACC + 4 * w, 4), V_B1 + 2, w * PART_BYTES))
    for w in range(1, 8):
        e("s_waitcnt lgkmcnt(%d)" % (7 - w))
        for r in range(4):
            e("v_add_f32 v%d, v%d, v%d" % (V_ACC + r, V_ACC + r, V_ACC + 4 * w + r))
    for r in range(4):
        e("v_bfi_b32 v%d, %s, v%d, v%d" % (V_ACC + r, sr(S_MASK), V_ACC + r, V_CNT))
    e("buffer_store_dwordx4 %s, v%d, %s, %s offen%s" % (vr(V_ACC, 4), V_B1, sr(SRD_WS, 4), sr(S_PART), xm))
    g.stamp(4)
    V_N = V_B0 + 2
    e("v_mov_b32 v%d, v%d" % (V_N, V_CNT))
    e("s_cmp_lt_u32 %s, 4" % sr(S_WAVE))
    e("s_cbranch_scc1 L_noq2")
    if lq0 < 12:
        dma_rows(SRD_Q, lq0, 12, qm)
    g.table_addr(V_B1 + 1)
    if opts.get("ack", 1):
        e("s_waitcnt vmcnt(%d)" % (12 - lq0))
    e("s_branch L_q2done")
    e("L_noq2:")
    g.table_addr(V_B1 + 1)
    e("s_waitcnt vmcnt(1)")
    qproj()
    if opts.get("ack", 1):
        e("s_waitcnt vmcnt(0)")
    e("L_q2done:")
    PL = V_ACC + 4

    def payload_loads():
        e("s_mov_b32 %s, %s" % (sr(S_T0), sr(S_HPART)))
        for c in range(8):
            e("buffer_load_dwordx4 %s, v%d, %s, %s offen%s" % (vr(PL + 4 * c, 4), V_B1, sr(SRD_WS, 4), sr(S_T0), xm))
            if c < 7:
                e("s_add_u32 %s, %s, %d" % (sr(S_T0), sr(S_T0), SL))
    if opts.get("pbar", 1):
        e("s_barrier")
    e("s_mov_b32 %s, 0x%x" % (sr(S_T2), SPIN))
    e("L_retry:")
    payload_loads()
    g.stamp(11)
    M = V_ACC + 36
    a = V_ACC
    for c in range(8):
        e("s_waitcnt vmcnt(%d)" % (7 - c))
        for r in range(4):
            e("v_xor_b32 v%d, v%d, v%d" % (PL + 4 * c + r, PL + 4 * c + r, V_N))
        if c == 0:
            e("v_or3_b32 v%d, v%d, v%d, v%d" % (M, PL, PL + 1, PL + 2))
            e("v_or_b32 v%d, v%d, v%d" % (M, M, PL + 3))
        else:
            e("v_or3_b32 v%d, v%d, v%d, v%d" % (M, M, PL + 4 * c, PL + 4 * c + 1))
            e("v_or3_b32 v%d, v%d, v%d, v%d" % (M, M, PL + 4 * c + 2, PL + 4 * c + 3))
        if c == 1:
            for r in range(4):
                e("v_add_f32 v%d, v%d, v%d" % (a + r, PL + r, PL + 4 + r))
        elif c > 1:
            for r in range(4):
                e("v_add_f32 v%d, v%d, v%d" % (a + r, a + r, PL + 4 * c + r))
    e("v_and_b32 v%d, 0x%x, v%d" % (M, TAGMASK, M))
    e("v_cmp_ne_u32 %s, 0, v%d" % (sr(S_EXEC, 2), M))
    e("s_sub_u32 %s, %s, 1" % (sr(S_T2), sr(S_T2)))
    e("s_cmp_eq_u32 %s, 0" % sr(S_T2))
    e("s_cbranch_scc1 L_got")
    e("s_cmp_lg_u64 %s, 0" % sr(S_EXEC, 2))
    e("s_cbranch_scc1 L_retry")
    e("L_got:")
    g.stamp(6)
    if opts.get("prof"):
        e("s_sub_u32 %s, 0x%x, %s" % (sr(S_T3), SPIN, sr(S_T2)))
    g.hilo_write(X_TAB)
    e("s_waitcnt lgkmcnt(0)")
    e("s_barrier")
    g.stamp(7)
    g.read_table(X_TAB)
    e("s_cmp_lt_u32 %s, 4" % sr(S_WAVE))
    e("s_cbranch_scc1 L_out")
    e("s_waitcnt lgkmcnt(0)")
    qproj()
    e("L_out:")
    g.stamp(5)
    e("s_waitcnt lgkmcnt(0)")
    e("v_lshlrev_b32 v%d, 4, v%d" % (V_T, V_LANE))
    e("v_add_u32 v%d, %s, v%d" % (V_T, sr(S_XB), V_T))

    def out_compute(T, accbase):
        den = accbase + 48
        e("v_mfma_f32_16x16x16_bf16 %s, %s, %s, 0" % (vr(den, 4), vr(V_AT + 24, 2), vr(V_P + 2 * T, 2)))
        for t in range(12):
            e("v_mfma_f32_16x16x16_bf16 %s, %s, %s, 0" % (vr(accbase + 4 * t, 4), vr(V_AT + 2 * t, 2), vr(V_P + 2 * T, 2)))
        e("v_add_f32 v%d, %s, v%d" % (den, hx(f32(1e-6)), den))
        e("v_rcp_f32 v%d, v%d" % (den, den))
        for u in range(6):
            x = accbase + 8 * u
            for r in range(8):
                e("v_mul_f32 v%d, v%d, v%d" % (x + r, x + r, den))
            for r in range(4):
                e("v_cvt_pk_bf16_f32 v%d, v%d, v%d" % (x + r, x + 2 * r, x + 2 * r + 1))
            e("ds_write_b128 v%d, %s offset:%d" % ((V_RE, V_RO)[u & 1], vr(x, 4), T * 6144 + (u >> 1) * 128))

    def out_store(T, stg):
        for jj in range(6):
            e("ds_read_b128 %s, v%d offset:%d" % (vr(stg + 4 * jj, 4), V_T, T * 6144 + jj * 1024))
        for jj in range(6):
            e("s_waitcnt lgkmcnt(%d)" % (5 - jj))
            so = ((S_B0, S_B04), (S_B1, S_B14))[T][jj >> 2]
            e("buffer_store_dwordx4 %s, v%d, %s, %s offen offset:%d%s" % (
                vr(stg + 4 * jj, 4), V_SW + jj, sr(SRD_O, 4), sr(so), (jj & 3) * 1024, sm))
    out_compute(0, V_ACC)
    e("s_waitcnt lgkmcnt(0)")
    out_store(0, V_STG)
    out_compute(1, V_K - 4)
    e("s_waitcnt lgkmcnt(0)")
    out_store(1, V_ACC)
    g.stamp(8)
    if opts.get("prof"):
        e("s_waitcnt vmcnt(0)")
        g.stamp(9)
        g.flush_stamps()
        e("v_mov_b32 v254, %s" % sr(S_T3))
        e("v_mov_b32 v255, 0")
        e("buffer_store_dwordx2 v[254:255], v253, %s, 0 offen offset:%d" % (sr(SRD_WS, 4), 15 * 8))
    e("L_end:")
    e("s_endpgm")
    txt = HEADER
    txt += "; @launch grid=(256,1,1) block=(512,1,1) lds=%d\n" % X_END
    txt += '.amdgcn_target "amdgcn-amd-amdhsa--gfx950"\n'
    txt += kernel_text(NAME + "_kernel", g)
    txt += kd(NAME + "_kernel")
    return txt


def gen_lat(opts):
    opts = dict(opts); opts["prof"] = 1
    g = Gen(opts)
    e = g
    mod = MODS[opts.get("mod", 1)]
    pm = MODS[opts.get("pmod", 2)]
    g.prologue("L_end")
    e("s_cmp_eq_u32 %s, 7" % sr(S_WAVE))
    e("s_cbranch_scc1 L_probe")
    g.stamp(0)
    if opts.get("stream", 1):
        g.load_rows(V_K, SRD_K, mod)
        g.load_rows(V_VA, SRD_V, mod)
        g.load_rows(V_Q, SRD_Q, mod)
    e("s_waitcnt vmcnt(0)")
    g.stamp(1)
    g.flush_stamps()
    e("s_endpgm")
    e("L_probe:")
    g.stamps = []
    for i in range(13):
        g.stamp(i)
        if opts.get("delay"):
            pass
        e("buffer_load_dwordx4 v[8:11], v%d, %s, 0 offen offset:%d%s" % (V_OW, sr(SRD_W, 4), 0, pm))
        e("s_waitcnt vmcnt(0)")
    g.stamp(13)
    g.flush_stamps()
    e("L_end:")
    e("s_endpgm")
    txt = HEADER
    txt += "; @launch grid=(256,1,1) block=(512,1,1) lds=0\n"
    txt += '.amdgcn_target "amdgcn-amd-amdhsa--gfx950"\n'
    txt += kernel_text(NAME + "_kernel", g)
    txt += kd(NAME + "_kernel")
    return txt


def gen_bench(opts):
    opts = dict(opts); opts["prof"] = 1
    g = Gen(opts)
    mod = {0: "", 1: " nt", 2: " sc1", 3: " sc0 sc1", 4: " sc0 sc1 nt", 5: " sc1 nt", 6: " sc0", 7: " sc0 nt"}[opts.get("mod", 0)]
    smod = {0: "", 1: " nt", 2: " sc1", 3: " sc0 sc1", 4: " sc0 sc1 nt", 5: " sc1 nt", 6: " sc0", 7: " sc0 nt"}[opts.get("smod", 0)]
    pat = opts.get("pat", 0)
    g.prologue("L_end")
    g.stamp(0)
    thr = opts.get("thr")
    if thr is not None:
        _call = Gen.__call__
        class TG(Gen):
            def __call__(self, t):
                _call(self, t)
                if t.startswith("buffer_load"):
                    _call(self, "s_waitcnt vmcnt(%d)" % (thr - 1))
        g.__class__ = TG
    g("v_lshlrev_b32 v8, 4, v%d" % V_LANE)
    g("s_add_u32 s98, %s, 4096" % sr(S_B0))
    g("s_add_u32 s99, %s, 8192" % sr(S_B0))
    def coal(vbase, srd):
        for i in range(12):
            so = (sr(S_B0), "s98", "s99")[i // 4]
            g("buffer_load_dwordx4 %s, v8, %s, %s offen offset:%d%s" % (vr(vbase + 4 * i, 4), sr(srd, 4), so, (i % 4) * 1024, mod))
    def coal_store(vbase, srd):
        for i in range(12):
            so = (sr(S_B0), "s98", "s99")[i // 4]
            g("buffer_store_dwordx4 %s, v8, %s, %s offen offset:%d%s" % (vr(vbase + 4 * i, 4), sr(srd, 4), so, (i % 4) * 1024, smod))
    def row_store(vbase, srd):
        for T in range(2):
            for t in range(6):
                g("buffer_store_dwordx4 %s, v%d, %s, %s offen offset:%d%s" % (
                    vr(vbase + 24 * T + 4 * t, 4), V_OK, sr(srd, 4), sr(S_B0 + T), 64 * t, smod))
    def dma(srd, ldsbase):
        g("s_mul_i32 s100, %s, 12288" % sr(S_WAVE))
        g("s_add_u32 s100, s100, %d" % ldsbase)
        for i in range(12):
            so = (sr(S_B0), "s98", "s99")[i // 4]
            g("s_add_u32 m0, s100, %d" % ((i // 4) * 4096))
            g("s_nop 0")
            g("buffer_load_dwordx4 v8, %s, %s offen offset:%d%s lds" % (sr(srd, 4), so, (i % 4) * 1024, mod))
    what = opts.get("what", 3)
    if pat == 3:
        if what & 1: dma(SRD_K, 0)
        what &= ~1
        pat = 0
    if opts.get("wload"):
        g.load_w()
    if what & 1:
        if pat in (0, 4): coal(V_K, SRD_K)
        else: g.load_rows(V_K, SRD_K, mod)
    if what & 2:
        if pat == 0: coal(V_VA, SRD_V)
        elif pat == 1: g.load_rows(V_VA, SRD_V, mod)
        else: g.load_v(mod)
    if what & 4:
        if pat in (0, 4): coal(V_Q, SRD_Q)
        else: g.load_rows(V_Q, SRD_Q, mod)
    g("s_waitcnt vmcnt(0)")
    g.stamp(1)
    if what & 8:
        if opts.get("spat", 0) == 0: coal_store(V_Q, SRD_O)
        else: row_store(V_Q, SRD_O)
        g.stamp(2)
        g("s_waitcnt vmcnt(0)")
        g.stamp(3)
    g.flush_stamps()
    g("L_end:")
    g("s_endpgm")
    txt = HEADER
    txt += "; @launch grid=(%d,1,1) block=(%d,1,1) lds=%d\n" % (opts.get("grid", 256), opts.get("block", 512), opts.get("lds", 0))
    txt += '.amdgcn_target "amdgcn-amd-amdhsa--gfx950"\n'
    txt += kernel_text(NAME + "_kernel", g)
    txt += kd(NAME + "_kernel", opts.get("vgpr", 256))
    return txt


if __name__ == "__main__":
    import argparse
    ap = argparse.ArgumentParser()
    ap.add_argument("variant")
    ap.add_argument("-o", default="cdna_kernels/%s.s" % NAME)
    ap.add_argument("--opt", action="append", default=[])
    a = ap.parse_args()
    opts = {}
    for kv in a.opt:
        k, _, v = kv.partition("=")
        opts[k] = (int(v, 0) if v else 1)
    txt = globals()["gen_" + a.variant](opts)
    open(a.o, "w").write(txt)
    print("wrote", a.o, len(txt))
```

```python
import struct, sys, os, math
sys.path.insert(0, os.path.dirname(os.path.abspath(__file__)))
import hazard

NAME = "standalone__linear_kernel_rfa__prompt"


def f32(x):
    return struct.unpack("<I", struct.pack("<f", x))[0]


def hx(x):
    return "0x%08x" % (x & 0xFFFFFFFF)


D = 192
RB = 384
TENSOR_BYTES = 32 * 2048 * RB
PART_BYTES = 13 * 512
WS_BYTES = 268435456
SCALE = float(D) ** -0.25
LOG2E = 1.4426950408889634
C_EXP = SCALE * LOG2E
C_SQ = -0.5 * SCALE
C_BIAS = -1.5


def vr(a, n=1):
    return "v%d" % a if n == 1 else "v[%d:%d]" % (a, a + n - 1)


def sr(a, n=1):
    return "s%d" % a if n == 1 else "s[%d:%d]" % (a, a + n - 1)


S_Q, S_K, S_V, S_W = 4, 6, 8, 10
S_O, S_DBG, S_WS = 12, 14, 16
S_WAVE = 18
S_TMP = 19
SRD_K, SRD_V, SRD_W, SRD_WS, SRD_Q, SRD_O, SRD_DBG = 20, 24, 28, 32, 36, 40, 44
S_B0, S_B1 = 48, 49
S_SELLO, S_SELHI = 50, 51
S_CEXP = 52
S_H, S_C = 53, 54
S_PART = 55
S_HPART = 56
S_T0, S_T1, S_T2, S_T3 = 57, 58, 59, 60
S_EXEC = 62
S_STAMP = 64
S_PROF = 66
S_CNT = 67
S_ST0 = 68

V_TID = 0
V_LANE = 1
V_OK = 2
V_OVA = 3
V_OVB = 4
V_OW = 5
V_CSQ = 6
V_M15 = 7
V_W = 8
V_K = 32
V_VA = 80
V_VB = 112
V_Q = 128
V_ACC = 176
V_DP = 228
V_SS = 236
V_P = 240
V_B0 = 244
V_B1 = 248
V_ONE = 252
V_AT = 80
V_X = 106


class Gen:
    def __init__(self, opts):
        self.L = []
        self.o = opts
        self.uid = 0

    def __call__(self, s):
        for l in s.split("\n"):
            self.L.append("    " + l.strip() if l.strip() and not l.strip().endswith(":") else l.strip())

    def label(self, base):
        self.uid += 1
        return "%s_%d" % (base, self.uid)

    def stamp(self, idx):
        if not self.o.get("prof"):
            return
        self.stamps = getattr(self, "stamps", set())
        if not isinstance(self.stamps, set):
            self.stamps = set(self.stamps)
        self.stamps.add(idx)
        self("s_memrealtime %s" % sr(S_ST0 + 2 * idx, 2))

    def zero_stamps(self):
        if not self.o.get("prof"):
            return
        for i in range(15):
            self("s_mov_b64 %s, 0" % sr(S_ST0 + 2 * i, 2))

    def flush_stamps(self):
        if not self.o.get("prof"):
            return
        e = self
        e("s_waitcnt lgkmcnt(0)")
        e("v_mov_b32 v253, %s" % sr(S_PROF))
        e("s_mov_b64 exec, 1")
        for idx in sorted(self.stamps):
            e("v_mov_b32 v254, %s" % sr(S_ST0 + 2 * idx))
            e("v_mov_b32 v255, %s" % sr(S_ST0 + 2 * idx + 1))
            e("buffer_store_dwordx2 v[254:255], v253, %s, 0 offen offset:%d" % (sr(SRD_WS, 4), idx * 8))
            e("s_nop 1")

    def prologue(self, end_label):
        e = self
        e("s_cmp_ge_u32 s2, 256")
        e("s_cbranch_scc1 %s" % end_label)
        e("s_load_dwordx8 s[4:11], s[0:1], 0")
        e("s_load_dwordx4 s[12:15], s[0:1], 32")
        e("s_load_dwordx2 s[16:17], s[0:1], 48")
        e("v_and_b32 v%d, 63, v0" % V_LANE)
        e("v_lshrrev_b32 v8, 6, v0")
        e("v_and_b32 v9, 15, v0")
        e("v_bfe_u32 v10, v0, 4, 2")
        e("v_readfirstlane_b32 %s, v8" % sr(S_WAVE))
        e("v_mul_u32_u24 v11, %d, v9" % RB)
        e("v_lshlrev_b32 v12, 4, v10")
        e("v_add_u32 v%d, v11, v12" % V_OK)
        e("v_mul_u32_u24 v13, %d, v10" % (4 * RB))
        e("v_lshlrev_b32 v14, 4, v9")
        e("v_add_u32 v%d, v13, v14" % V_OVA)
        e("v_lshlrev_b32 v14, 3, v9")
        e("v_add_u32 v13, 256, v13")
        e("v_add_u32 v%d, v13, v14" % V_OVB)
        e("v_and_b32 v14, 7, v9")
        e("v_mul_u32_u24 v14, %d, v14" % RB)
        e("v_add_u32 v%d, v14, v12" % V_OW)
        e("v_mov_b32 v%d, %s" % (V_CSQ, hx(f32(C_SQ))))
        e("v_mov_b32 v%d, %s" % (V_M15, hx(f32(C_BIAS))))
        e("s_and_b32 %s, s2, 7" % sr(S_T0))
        e("s_lshr_b32 %s, s2, 6" % sr(S_T1))
        e("s_lshl_b32 %s, %s, 3" % (sr(S_T1), sr(S_T1)))
        e("s_or_b32 %s, %s, %s" % (sr(S_H), sr(S_T0), sr(S_T1)))
        e("s_lshr_b32 %s, s2, 3" % sr(S_C))
        e("s_and_b32 %s, %s, 7" % (sr(S_C), sr(S_C)))
        e("s_mul_i32 %s, %s, %d" % (sr(S_T0), sr(S_H), 2048 * RB))
        e("s_mul_i32 %s, %s, %d" % (sr(S_T1), sr(S_C), 256 * RB))
        e("s_add_u32 %s, %s, %s" % (sr(S_T0), sr(S_T0), sr(S_T1)))
        e("s_mul_i32 %s, %s, %d" % (sr(S_T1), sr(S_WAVE), 32 * RB))
        e("s_add_u32 %s, %s, %s" % (sr(S_B0), sr(S_T0), sr(S_T1)))
        e("s_add_u32 %s, %s, %d" % (sr(S_B1), sr(S_B0), 16 * RB))
        e("s_mul_i32 %s, %s, %d" % (sr(S_HPART), sr(S_H), 8 * PART_BYTES))
        e("s_mul_i32 %s, %s, %d" % (sr(S_T1), sr(S_C), PART_BYTES))
        e("s_add_u32 %s, %s, %s" % (sr(S_PART), sr(S_HPART), sr(S_T1)))
        e("s_mov_b32 %s, 0x05040100" % sr(S_SELLO))
        e("s_mov_b32 %s, 0x07060302" % sr(S_SELHI))
        e("s_mov_b32 %s, %s" % (sr(S_CEXP), hx(f32(C_EXP))))
        if self.o.get("prof"):
            e("s_lshl_b32 %s, s2, 3" % sr(S_PROF))
            e("s_add_u32 %s, %s, %s" % (sr(S_PROF), sr(S_PROF), sr(S_WAVE)))
            e("s_lshl_b32 %s, %s, 7" % (sr(S_PROF), sr(S_PROF)))
            e("s_add_u32 %s, %s, 0x%x" % (sr(S_PROF), sr(S_PROF), 128 << 20))
        e("s_waitcnt lgkmcnt(0)")
        for srd, ptr, nbytes in ((SRD_K, S_K, TENSOR_BYTES), (SRD_V, S_V, TENSOR_BYTES), (SRD_W, S_W, 8 * RB),
                                 (SRD_WS, S_WS, WS_BYTES), (SRD_Q, S_Q, TENSOR_BYTES), (SRD_O, S_O, TENSOR_BYTES),
                                 (SRD_DBG, S_DBG, 256)):
            e("s_mov_b32 %s, %s" % (sr(srd), sr(ptr)))
            e("s_and_b32 %s, %s, 0xffff" % (sr(srd + 1), sr(ptr + 1)))
            e("s_mov_b32 %s, 0x%x" % (sr(srd + 2), nbytes))
            e("s_mov_b32 %s, 0x20000" % sr(srd + 3))

    def load_w(self):
        for t in range(6):
            self("buffer_load_dwordx4 %s, v%d, %s, 0 offen offset:%d" % (vr(V_W + 4 * t, 4), V_OW, sr(SRD_W, 4), 64 * t))

    def load_rows(self, vbase, srd, mod=""):
        for T in range(2):
            for t in range(6):
                self("buffer_load_dwordx4 %s, v%d, %s, %s offen offset:%d%s" % (
                    vr(vbase + 24 * T + 4 * t, 4), V_OK, sr(srd, 4), sr(S_B0 + T), 64 * t, mod))

    def load_v(self, mod=""):
        for j in range(8):
            self("buffer_load_dwordx4 %s, v%d, %s, %s offen offset:%d%s" % (
                vr(V_VA + 4 * j, 4), V_OVA, sr(SRD_V, 4), sr(S_B0 + (j >> 2)), (j & 3) * RB, mod))
            self("buffer_load_dwordx2 %s, v%d, %s, %s offen offset:%d%s" % (
                vr(V_VB + 2 * j, 2), V_OVB, sr(SRD_V, 4), sr(S_B0 + (j >> 2)), (j & 3) * RB, mod))

    def proj(self, vbase, T, is_k):
        e = self
        dp = V_DP + 4 * T
        ss0, ss1 = V_SS + 2 * T, V_SS + 2 * T + 1
        e("v_mov_b32 v%d, 0" % ss0)
        e("v_mov_b32 v%d, 0" % ss1)
        for t in range(6):
            x = vbase + 24 * T + 4 * t
            c = "0" if t == 0 else vr(dp, 4)
            if is_k:
                e("v_mfma_f32_16x16x32_bf16 %s, %s, %s, %s" % (vr(dp, 4), vr(x, 4), vr(V_W + 4 * t, 4), c))
            else:
                e("v_mfma_f32_16x16x32_bf16 %s, %s, %s, %s" % (vr(dp, 4), vr(V_W + 4 * t, 4), vr(x, 4), c))
            for i in range(4):
                e("v_dot2c_f32_bf16 v%d, v%d, v%d" % ((ss0, ss1)[i & 1], x + i, x + i))
        e("v_add_f32 v%d, v%d, v%d" % (ss0, ss0, ss1))
        if is_k:
            e("v_mfma_f32_16x16x4_f32 %s, v%d, v%d, %s" % (vr(dp, 4), ss0, V_CSQ, vr(dp, 4)))
        else:
            e("v_mfma_f32_16x16x4_f32 %s, v%d, v%d, %s" % (vr(dp, 4), V_CSQ, ss0, vr(dp, 4)))

    def phi(self, T):
        e = self
        dp = V_DP + 4 * T
        for r in range(4):
            e("v_fma_f32 v%d, v%d, %s, v%d" % (dp + r, dp + r, sr(S_CEXP), V_M15))
        for r in range(4):
            e("v_exp_f32 v%d, v%d" % (dp + r, dp + r))
        for r in range(4):
            e("v_add_f32 v%d, %s, v%d" % (dp + r, hx(f32(1e-6)), dp + r))

    def kv_mfma(self):
        e = self
        e("v_cvt_pk_bf16_f32 v%d, v%d, v%d" % (V_P + 0, V_DP + 0, V_DP + 1))
        e("v_cvt_pk_bf16_f32 v%d, v%d, v%d" % (V_P + 1, V_DP + 2, V_DP + 3))
        e("v_cvt_pk_bf16_f32 v%d, v%d, v%d" % (V_P + 2, V_DP + 4, V_DP + 5))
        e("v_cvt_pk_bf16_f32 v%d, v%d, v%d" % (V_P + 3, V_DP + 6, V_DP + 7))

    def kv_tiles(self):
        e = self
        for i in range(4):
            e("v_mov_b32 v%d, 0x3f803f80" % (V_ONE + i))
        e("v_mfma_f32_16x16x32_bf16 %s, %s, %s, 0" % (vr(V_ACC + 48, 4), vr(V_P, 4), vr(V_ONE, 4)))
        for tau in range(12):
            b = (V_B0, V_B1)[tau & 1]
            if tau < 8:
                c, half = tau >> 1, tau & 1
                src = lambda j: V_VA + 4 * j + c
            else:
                c, half = (tau - 8) >> 1, (tau - 8) & 1
                src = lambda j: V_VB + 2 * j + c
            sel = (S_SELLO, S_SELHI)[half]
            for p in range(4):
                e("v_perm_b32 v%d, v%d, v%d, %s" % (b + p, src(2 * p + 1), src(2 * p), sr(sel)))
            e("v_mfma_f32_16x16x32_bf16 %s, %s, %s, 0" % (vr(V_ACC + 4 * tau, 4), vr(V_P, 4), vr(b, 4)))

    def wg_reduce_and_store(self, mod):
        e = self
        e("s_mul_i32 %s, %s, %d" % (sr(S_T0), sr(S_WAVE), PART_BYTES))
        e("v_lshlrev_b32 v%d, 4, v%d" % (V_B0, V_LANE))
        e("v_add_u32 v%d, %s, v%d" % (V_B0, sr(S_T0), V_B0))
        e("s_mov_b32 exec_lo, -1")
        e("s_mov_b32 exec_hi, 0")
        for tau in range(13):
            e("ds_write_b128 v%d, %s offset:%d" % (V_B0, vr(V_ACC + 4 * tau, 4), tau * 512))
        e("s_mov_b64 exec, -1")
        e("v_lshlrev_b32 v%d, 4, v0" % V_B1)
        e("s_waitcnt lgkmcnt(0)")
        e("s_barrier")
        skip = self.label("L_red_skip")
        e("v_cmp_gt_u32 vcc, 416, v0")
        e("s_and_saveexec_b64 %s, vcc" % sr(S_EXEC, 2))
        e("s_cbranch_execz %s" % skip)
        for w in range(8):
            e("ds_read_b128 %s, v%d offset:%d" % (vr(V_ACC + 4 * w, 4), V_B1, w * PART_BYTES))
        for w in range(1, 8):
            e("s_waitcnt lgkmcnt(%d)" % (7 - w))
            for r in range(4):
                e("v_add_f32 v%d, v%d, v%d" % (V_ACC + r, V_ACC + r, V_ACC + 4 * w + r))
        if self.o.get("sanitize"):
            for r in range(4):
                e("v_min_u32 v%d, -2, v%d" % (V_ACC + r, V_ACC + r))
        e("buffer_store_dwordx4 %s, v%d, %s, %s offen%s" % (vr(V_ACC, 4), V_B1, sr(SRD_WS, 4), sr(S_PART), mod))
        e("%s:" % skip)
        e("s_mov_b64 exec, %s" % sr(S_EXEC, 2))

    def table_addr(self, vt=0, x=V_X, dst=None):
        e = self
        if dst is None:
            dst = x
        e("v_lshrrev_b32 v%d, 5, v%d" % (x + 1, vt))
        e("v_and_b32 v%d, 15, v%d" % (x + 2, vt))
        e("v_bfe_u32 v%d, v%d, 4, 1" % (x + 3, vt))
        e("v_lshl_add_u32 v%d, v%d, 3, v%d" % (x + 4, x + 2, x + 1))
        e("v_lshl_add_u32 v%d, v%d, 2, v%d" % (x + 5, x + 2, x + 1))
        e("v_add_u32 v%d, 120, v%d" % (x + 5, x + 5))
        e("v_cmp_gt_u32 vcc, 8, v%d" % (x + 1))
        e("v_cndmask_b32 v%d, v%d, v%d, vcc" % (x + 4, x + 5, x + 4))
        e("v_lshrrev_b32 v%d, 5, v%d" % (x + 5, x + 4))
        e("v_bfe_u32 v%d, v%d, 2, 1" % (x + 6, x + 4))
        e("v_lshl_add_u32 v%d, v%d, 1, v%d" % (x + 5, x + 5, x + 6))
        e("v_bfe_u32 v%d, v%d, 3, 2" % (x + 6, x + 4))
        e("v_and_b32 v%d, 3, v%d" % (x + 7, x + 4))
        e("v_lshl_add_u32 v%d, v%d, 2, v%d" % (x + 6, x + 6, x + 7))
        e("v_cmp_eq_u32 vcc, 12, v%d" % (x + 1))
        e("v_cndmask_b32 v%d, v%d, v%d, vcc" % (x + 5, x + 5, x + 1))
        e("v_cndmask_b32 v%d, v%d, v%d, vcc" % (x + 6, x + 6, x + 2))
        e("v_lshl_add_u32 v%d, v%d, 4, v%d" % (x + 6, x + 3, x + 6))
        e("v_lshlrev_b32 v%d, 3, v%d" % (x + 6, x + 6))
        e("v_lshl_add_u32 v%d, v%d, 9, v%d" % (dst, x + 5, x + 6))

    def gather_partials(self, mod, lds_base):
        e = self
        skip = self.label("L_gat_skip")
        e("v_lshlrev_b32 v%d, 4, v0" % V_B1)
        e("v_cmp_gt_u32 vcc, 416, v0")
        e("s_and_saveexec_b64 %s, vcc" % sr(S_EXEC, 2))
        e("s_cbranch_execz %s" % skip)
        e("s_mov_b32 %s, %s" % (sr(S_T0), sr(S_HPART)))
        for c in range(8):
            e("buffer_load_dwordx4 %s, v%d, %s, %s offen%s" % (vr(V_ACC + 4 * c, 4), V_B1, sr(SRD_WS, 4), sr(S_T0), mod))
            if c < 7:
                e("s_add_u32 %s, %s, %d" % (sr(S_T0), sr(S_T0), PART_BYTES))
        self.table_addr()
        for c in range(1, 8):
            e("s_waitcnt vmcnt(%d)" % (7 - c))
            for r in range(4):
                e("v_add_f32 v%d, v%d, v%d" % (V_ACC + r, V_ACC + r, V_ACC + 4 * c + r))
        self.hilo_write(lds_base)
        e("%s:" % skip)
        e("s_mov_b64 exec, %s" % sr(S_EXEC, 2))

    def hilo_write(self, lds_base, a=V_ACC, tmp=V_ACC + 8, vaddr=V_X):
        e = self
        hi = tmp
        lo = tmp + 2
        t = tmp + 4
        e("v_cvt_pk_bf16_f32 v%d, v%d, v%d" % (hi, a, a + 1))
        e("v_cvt_pk_bf16_f32 v%d, v%d, v%d" % (hi + 1, a + 2, a + 3))
        e("v_lshlrev_b32 v%d, 16, v%d" % (t, hi))
        e("v_and_b32 v%d, 0xffff0000, v%d" % (t + 1, hi))
        e("v_lshlrev_b32 v%d, 16, v%d" % (t + 2, hi + 1))
        e("v_and_b32 v%d, 0xffff0000, v%d" % (t + 3, hi + 1))
        for r in range(4):
            e("v_sub_f32 v%d, v%d, v%d" % (t + r, a + r, t + r))
        e("v_cvt_pk_bf16_f32 v%d, v%d, v%d" % (lo, t, t + 1))
        e("v_cvt_pk_bf16_f32 v%d, v%d, v%d" % (lo + 1, t + 2, t + 3))
        e("ds_write_b64 v%d, %s offset:%d" % (vaddr, vr(hi, 2), lds_base))
        e("ds_write_b64 v%d, %s offset:%d" % (vaddr, vr(lo, 2), lds_base + 256))

    def read_table(self, lds_base):
        e = self
        e("v_lshlrev_b32 v%d, 3, v%d" % (V_B0, V_LANE))
        for t in range(13):
            e("ds_read_b64 %s, v%d offset:%d" % (vr(V_AT + 2 * t, 2), V_B0, lds_base + t * 512))

    def pack_phi_q(self, T):
        e = self
        dp = V_DP + 4 * T
        e("v_cvt_pk_bf16_f32 v%d, v%d, v%d" % (V_P + 2 * T, dp, dp + 1))
        e("v_cvt_pk_bf16_f32 v%d, v%d, v%d" % (V_P + 2 * T + 1, dp + 2, dp + 3))

    def out_tile(self, T, accbase, mod):
        e = self
        den = accbase + 48
        e("v_mfma_f32_16x16x16_bf16 %s, %s, %s, 0" % (vr(den, 4), vr(V_AT + 24, 2), vr(V_P + 2 * T, 2)))
        for t in range(12):
            e("v_mfma_f32_16x16x16_bf16 %s, %s, %s, 0" % (vr(accbase + 4 * t, 4), vr(V_AT + 2 * t, 2), vr(V_P + 2 * T, 2)))
        e("v_add_f32 v%d, %s, v%d" % (den, hx(f32(1e-6)), den))
        e("v_rcp_f32 v%d, v%d" % (den, den))
        for u in range(6):
            a = accbase + 8 * u
            for r in range(8):
                e("v_mul_f32 v%d, v%d, v%d" % (a + r, a + r, den))
            o = a
            e("v_cvt_pk_bf16_f32 v%d, v%d, v%d" % (o + 0, a + 0, a + 1))
            e("v_cvt_pk_bf16_f32 v%d, v%d, v%d" % (o + 1, a + 2, a + 3))
            e("v_cvt_pk_bf16_f32 v%d, v%d, v%d" % (o + 2, a + 4, a + 5))
            e("v_cvt_pk_bf16_f32 v%d, v%d, v%d" % (o + 3, a + 6, a + 7))
            e("buffer_store_dwordx4 %s, v%d, %s, %s offen offset:%d%s" % (
                vr(o, 4), V_OK, sr(SRD_O, 4), sr(S_B0 + T), 64 * u, mod))


def kd(name, vgpr=256, sgpr=102):
    acc = min(256, (vgpr + 3) // 4 * 4)
    return """.section .rodata,"a"
.p2align 6
.amdhsa_kernel %s
  .amdhsa_next_free_vgpr %d
  .amdhsa_next_free_sgpr %d
  .amdhsa_accum_offset %d
  .amdhsa_group_segment_fixed_size 0
  .amdhsa_kernarg_size 56
  .amdhsa_user_sgpr_count 2
  .amdhsa_user_sgpr_kernarg_segment_ptr 1
  .amdhsa_system_sgpr_workgroup_id_x 1
.end_amdhsa_kernel
""" % (name, vgpr, sgpr, acc)


HEADER = """; Kernarg layout (56 bytes): q, k, v, omega, out, debug, ws  (8-byte pointers)
"""


def kernel_text(name, g):
    lines, n = hazard.fix(g.L)
    return ".text\n.globl %s\n.p2align 8\n.type %s,@function\n%s:\n%s\n" % (name, name, name, "\n".join(lines))


MODS = {0: "", 1: " nt", 2: " sc1", 3: " sc0 sc1", 4: " sc0 sc1 nt", 5: " sc1 nt", 6: " sc0", 7: " sc0 nt"}


def gen_split(opts):
    lm = MODS[opts.get("mod", 1)]
    sm = MODS[opts.get("smod", 0)]
    g = Gen(opts)
    g.prologue("L_end1")
    g.stamp(0)
    g.load_w()
    g.load_rows(V_K, SRD_K, lm)
    g.load_v(lm)
    g("s_waitcnt vmcnt(22)")
    g.proj(V_K, 0, True)
    g("s_waitcnt vmcnt(16)")
    g.proj(V_K, 1, True)
    g.phi(0)
    g.phi(1)
    g.kv_mfma()
    g.stamp(1)
    g("s_waitcnt vmcnt(0)")
    g.stamp(2)
    g.kv_tiles()
    g.wg_reduce_and_store("")
    g.stamp(3)
    g.flush_stamps()
    g("L_end1:")
    g("s_endpgm")
    h = Gen(opts)
    h.uid = 1000
    h.prologue("L_end2")
    h.stamp(4)
    h.load_w()
    h.load_rows(V_Q, SRD_Q, lm)
    h.gather_partials("", 0)
    h("s_waitcnt vmcnt(0) lgkmcnt(0)")
    h("s_barrier")
    h.read_table(0)
    for T in range(2):
        h.proj(V_Q, T, False)
        h.phi(T)
        h.pack_phi_q(T)
    h("s_waitcnt lgkmcnt(0)")
    h.stamp(5)
    h.out_tile(0, V_ACC, sm)
    h.out_tile(1, V_K - 4, sm)
    h.stamp(6)
    h.flush_stamps()
    h("L_end2:")
    h("s_endpgm")
    lds1 = 8 * PART_BYTES
    lds2 = PART_BYTES
    txt = HEADER
    txt += "; @launch kernel=rfa_kv_kernel grid=(256,1,1) block=(512,1,1) lds=%d\n" % lds1
    txt += "; @launch kernel=rfa_out_kernel grid=(256,1,1) block=(512,1,1) lds=%d\n" % lds2
    txt += '.amdgcn_target "amdgcn-amd-amdhsa--gfx950"\n'
    txt += kernel_text("rfa_kv_kernel", g)
    txt += kernel_text("rfa_out_kernel", h)
    txt += kd("rfa_kv_kernel") + kd("rfa_out_kernel")
    return txt


SLOT = 7168
LDS_TAB = 8 * PART_BYTES


def gen_fused(opts):
    lm = MODS[opts.get("mod", 1)]
    qm = MODS[opts.get("qmod", opts.get("mod", 1))]
    sm = MODS[opts.get("smod", 0)]
    xm = MODS[opts.get("xmod", 2)]
    qpos = opts.get("qpos", 2)
    g = Gen(opts)
    e = g
    g.prologue("L_end")
    e("s_mul_i32 %s, %s, %d" % (sr(S_HPART), sr(S_H), 8 * SLOT))
    e("s_mul_i32 %s, %s, %d" % (sr(S_T1), sr(S_C), SLOT))
    e("s_add_u32 %s, %s, %s" % (sr(S_PART), sr(S_HPART), sr(S_T1)))
    g.stamp(0)
    e("s_cmp_lg_u32 %s, 7" % sr(S_WAVE))
    e("s_cbranch_scc1 L_noclear")
    e("v_lshlrev_b32 v8, 4, v%d" % V_LANE)
    for i in range(4):
        e("v_mov_b32 v%d, -1" % (12 + i))
    e("s_add_u32 %s, %s, 4096" % (sr(S_T0), sr(S_PART)))
    for i in range(7):
        e("buffer_store_dwordx4 v[12:15], v8, %s, %s offen offset:%d%s" % (
            sr(SRD_WS, 4), sr(S_PART) if i < 4 else sr(S_T0), (i & 3) * 1024, xm))
    e("s_nop 1")
    e("L_noclear:")
    g.load_w()
    g.load_rows(V_K, SRD_K, lm)
    g.load_v(lm)
    nq = 0
    if qpos == 0:
        g.load_rows(V_Q, SRD_Q, qm); nq = 12
    if opts.get("bara", 1):
        e("s_barrier")
    if qpos == 1:
        g.load_rows(V_Q, SRD_Q, qm); nq = 12
    e("s_waitcnt vmcnt(%d)" % (22 + nq))
    g.proj(V_K, 0, True)
    e("s_waitcnt vmcnt(%d)" % (16 + nq))
    g.proj(V_K, 1, True)
    g.phi(0)
    g.phi(1)
    g.kv_mfma()
    g.stamp(1)
    e("s_lshl_b32 %s, %s, 2" % (sr(S_T0), sr(S_H)))
    e("v_mov_b32 v%d, %s" % (V_B0, sr(S_T0)))
    e("s_cmp_lg_u32 %s, 7" % sr(S_WAVE))
    e("s_cbranch_scc1 L_nosig")
    e("v_mov_b32 v%d, 1" % (V_B0 + 1))
    e("s_mov_b64 exec, 1")
    e("buffer_atomic_add v%d, v%d, %s, 0 offen" % (V_B0 + 1, V_B0, sr(SRD_DBG, 4)))
    e("s_mov_b64 exec, -1")
    e("L_nosig:")
    e("s_cmp_lg_u32 %s, 0" % sr(S_WAVE))
    e("s_cbranch_scc1 L_nocnt")
    e("buffer_load_dword v%d, v%d, %s, 0 offen sc1" % (V_B1 + 3, V_B0, sr(SRD_DBG, 4)))
    e("L_nocnt:")
    if qpos == 2:
        g.load_rows(V_Q, SRD_Q, qm)
        e("s_waitcnt vmcnt(12)")
    elif qpos in (0, 1):
        e("s_waitcnt vmcnt(%d)" % 13)
        e("s_cmp_eq_u32 %s, 7" % sr(S_WAVE))
        e("s_cbranch_scc1 L_vok")
        e("s_cmp_eq_u32 %s, 0" % sr(S_WAVE))
        e("s_cbranch_scc1 L_vok")
        e("s_waitcnt vmcnt(12)")
        e("L_vok:")
    else:
        e("s_waitcnt vmcnt(0)")
    g.stamp(2)
    if qpos in (0, 1):
        pass
    else:
        e("v_readfirstlane_b32 %s, v%d" % (sr(S_CNT), V_B1 + 3))
    g.kv_tiles()
    e("s_mul_i32 %s, %s, %d" % (sr(S_T0), sr(S_WAVE), PART_BYTES))
    e("v_lshlrev_b32 v%d, 4, v%d" % (V_B0, V_LANE))
    e("v_add_u32 v%d, %s, v%d" % (V_B0, sr(S_T0), V_B0))
    e("s_mov_b32 exec_lo, -1")
    e("s_mov_b32 exec_hi, 0")
    for tau in range(13):
        e("ds_write_b128 v%d, %s offset:%d" % (V_B0, vr(V_ACC + 4 * tau, 4), tau * 512))
    e("s_mov_b64 exec, -1")
    if qpos == 3:
        g.load_rows(V_Q, SRD_Q, qm)
    e("s_cmp_lg_u32 %s, 0" % sr(S_WAVE))
    e("s_cbranch_scc1 L_cntok")
    e("s_cmp_eq_u32 %s, 8" % sr(S_CNT))
    e("s_cbranch_scc1 L_cntok")
    e("s_lshl_b32 %s, %s, 2" % (sr(S_T0), sr(S_H)))
    e("v_mov_b32 v%d, %s" % (V_B1, sr(S_T0)))
    e("s_mov_b32 %s, 0x10000" % sr(S_T2))
    e("L_cntspin:")
    e("buffer_load_dword v%d, v%d, %s, 0 offen sc1" % (V_B1 + 3, V_B1, sr(SRD_DBG, 4)))
    e("s_waitcnt vmcnt(0)")
    e("v_readfirstlane_b32 %s, v%d" % (sr(S_CNT), V_B1 + 3))
    e("s_sub_u32 %s, %s, 1" % (sr(S_T2), sr(S_T2)))
    e("s_cmp_eq_u32 %s, 0" % sr(S_T2))
    e("s_cbranch_scc1 L_cntok")
    e("s_cmp_lg_u32 %s, 8" % sr(S_CNT))
    e("s_cbranch_scc1 L_cntspin")
    e("L_cntok:")
    e("v_min_u32 v%d, 415, v0" % (V_B1 + 1))
    e("v_lshlrev_b32 v%d, 4, v%d" % (V_B1, V_B1 + 1))
    e("s_waitcnt lgkmcnt(0)")
    e("s_barrier")
    g.stamp(3)
    for w in range(8):
        e("ds_read_b128 %s, v%d offset:%d" % (vr(V_ACC + 4 * w, 4), V_B1, w * PART_BYTES))
    for w in range(1, 8):
        e("s_waitcnt lgkmcnt(%d)" % (7 - w))
        for r in range(4):
            e("v_add_f32 v%d, v%d, v%d" % (V_ACC + r, V_ACC + r, V_ACC + 4 * w + r))
    for r in range(4):
        e("v_min_u32 v%d, -2, v%d" % (V_ACC + r, V_ACC + r))
    e("buffer_store_dwordx4 %s, v%d, %s, %s offen%s" % (vr(V_ACC, 4), V_B1, sr(SRD_WS, 4), sr(S_PART), xm))
    g.stamp(4)
    PL = V_ACC + 4

    def payload_loads():
        e("s_mov_b32 %s, %s" % (sr(S_T0), sr(S_HPART)))
        for c in range(8):
            e("buffer_load_dwordx4 %s, v%d, %s, %s offen%s" % (vr(PL + 4 * c, 4), V_B1, sr(SRD_WS, 4), sr(S_T0), xm))
            if c < 7:
                e("s_add_u32 %s, %s, %d" % (sr(S_T0), sr(S_T0), SLOT))
    payload_loads()
    g.table_addr(V_B1 + 1)
    e("s_waitcnt vmcnt(9)")
    g.stamp(5)
    for T in range(2):
        g.proj(V_Q, T, False)
        g.phi(T)
        g.pack_phi_q(T)
    e("s_mov_b32 %s, 0x10000" % sr(S_T2))
    e("s_waitcnt vmcnt(0)")
    e("s_branch L_chk")
    e("L_retry:")
    payload_loads()
    e("s_waitcnt vmcnt(0)")
    e("L_chk:")
    M = V_ACC + 36
    e("v_max3_u32 v%d, v%d, v%d, v%d" % (M, PL, PL + 1, PL + 2))
    i = 3
    while i < 32:
        if i + 1 < 32:
            e("v_max3_u32 v%d, v%d, v%d, v%d" % (M, M, PL + i, PL + i + 1)); i += 2
        else:
            e("v_max_u32 v%d, v%d, v%d" % (M, M, PL + i)); i += 1
    e("v_cmp_eq_u32 %s, -1, v%d" % (sr(S_EXEC, 2), M))
    e("s_sub_u32 %s, %s, 1" % (sr(S_T2), sr(S_T2)))
    e("s_cmp_eq_u32 %s, 0" % sr(S_T2))
    e("s_cbranch_scc1 L_got")
    e("s_cmp_lg_u64 %s, 0" % sr(S_EXEC, 2))
    e("s_cbranch_scc1 L_retry")
    e("L_got:")
    g.stamp(6)
    if opts.get("prof"):
        e("s_sub_u32 %s, 0x10000, %s" % (sr(S_T3), sr(S_T2)))
    a = V_ACC
    for r in range(4):
        e("v_add_f32 v%d, v%d, v%d" % (a + r, PL + r, PL + 4 + r))
    for c in range(2, 8):
        for r in range(4):
            e("v_add_f32 v%d, v%d, v%d" % (a + r, a + r, PL + 4 * c + r))
    g.hilo_write(LDS_TAB)
    e("s_waitcnt lgkmcnt(0)")
    e("s_barrier")
    g.stamp(7)
    g.read_table(LDS_TAB)
    e("s_waitcnt lgkmcnt(0)")
    g.out_tile(0, V_ACC, sm)
    g.out_tile(1, V_K - 4, sm)
    g.stamp(8)
    if opts.get("prof"):
        e("s_waitcnt vmcnt(0)")
        g.stamp(9)
        g.flush_stamps()
        e("v_mov_b32 v254, %s" % sr(S_T3))
        e("v_mov_b32 v255, 0")
        e("buffer_store_dwordx2 v[254:255], v253, %s, 0 offen offset:%d" % (sr(SRD_WS, 4), 15 * 8))
    e("L_end:")
    e("s_endpgm")
    txt = HEADER
    txt += "; @launch grid=(256,1,1) block=(512,1,1) lds=%d\n" % (LDS_TAB + PART_BYTES)
    txt += '.amdgcn_target "amdgcn-amd-amdhsa--gfx950"\n'
    txt += kernel_text(NAME + "_kernel", g)
    txt += kd(NAME + "_kernel")
    return txt


def gen_fused2(opts):
    lm = MODS[opts.get("mod", 1)]
    qm = MODS[opts.get("qmod", opts.get("mod", 1))]
    sm = MODS[opts.get("smod", 0)]
    xm = MODS[opts.get("xmod", 2)]
    nearly = opts.get("nearly", 4)
    prio = opts.get("prio", 1)
    bara = opts.get("bara", 0)
    V_CNT = V_SS + 3
    g = Gen(opts)
    e = g
    g.prologue("L_end")
    e("s_mul_i32 %s, %s, %d" % (sr(S_HPART), sr(S_H), 8 * SLOT))
    e("s_mul_i32 %s, %s, %d" % (sr(S_T1), sr(S_C), SLOT))
    e("s_add_u32 %s, %s, %s" % (sr(S_PART), sr(S_HPART), sr(S_T1)))
    g.stamp(0)
    if prio:
        e("s_setprio 3")
    e("s_cmp_lg_u32 %s, 0" % sr(S_C))
    e("s_cbranch_scc1 L_noclear")
    e("v_lshlrev_b32 v8, 4, v%d" % V_LANE)
    for i in range(4):
        e("v_mov_b32 v%d, -1" % (12 + i))
    e("s_mul_i32 %s, %s, %d" % (sr(S_T0), sr(S_WAVE), SLOT))
    e("s_add_u32 %s, %s, %s" % (sr(S_T0), sr(S_T0), sr(S_HPART)))
    e("s_add_u32 %s, %s, 4096" % (sr(S_T1), sr(S_T0)))
    for i in range(7):
        e("buffer_store_dwordx4 v[12:15], v8, %s, %s offen offset:%d%s" % (
            sr(SRD_WS, 4), sr(S_T0) if i < 4 else sr(S_T1), (i & 3) * 1024, xm))
    e("s_nop 1")
    g.load_w()
    g.load_rows(V_K, SRD_K, lm)
    e("s_waitcnt vmcnt(18)")
    e("s_barrier")
    e("s_cmp_lg_u32 %s, 7" % sr(S_WAVE))
    e("s_cbranch_scc1 L_noflag")
    e("s_lshl_b32 %s, %s, 2" % (sr(S_T0), sr(S_H)))
    e("v_mov_b32 v%d, %s" % (V_B0, sr(S_T0)))
    e("v_mov_b32 v%d, 1" % (V_B0 + 1))
    e("s_mov_b64 exec, 1")
    e("buffer_store_dword v%d, v%d, %s, 0 offen%s" % (V_B0 + 1, V_B0, sr(SRD_DBG, 4), xm))
    e("s_mov_b64 exec, -1")
    g.load_v(lm)
    if bara:
        e("s_barrier")
    e("s_waitcnt vmcnt(16)")
    e("s_branch L_kready")
    e("L_noflag:")
    g.load_v(lm)
    if bara:
        e("s_barrier")
    e("s_branch L_kready")
    e("L_noclear:")
    g.load_w()
    g.load_rows(V_K, SRD_K, lm)
    g.load_v(lm)
    if bara:
        e("s_barrier")
    e("L_kready:")
    if prio:
        e("s_setprio 0")
    e("s_waitcnt vmcnt(22)")
    g.proj(V_K, 0, True)
    e("s_waitcnt vmcnt(16)")
    g.proj(V_K, 1, True)
    g.phi(0)
    g.phi(1)
    g.kv_mfma()
    g.stamp(1)
    e("s_cmp_lg_u32 %s, 0" % sr(S_WAVE))
    e("s_cbranch_scc1 L_nocnt")
    e("s_lshl_b32 %s, %s, 2" % (sr(S_T0), sr(S_H)))
    e("v_mov_b32 v%d, %s" % (V_B0, sr(S_T0)))
    e("buffer_load_dword v%d, v%d, %s, 0 offen sc1" % (V_CNT, V_B0, sr(SRD_DBG, 4)))
    e("s_waitcnt vmcnt(1)")
    e("s_branch L_vready")
    e("L_nocnt:")
    e("s_waitcnt vmcnt(0)")
    e("L_vready:")
    g.stamp(2)
    g.kv_tiles()
    e("s_mul_i32 %s, %s, %d" % (sr(S_T0), sr(S_WAVE), PART_BYTES))
    e("v_lshlrev_b32 v%d, 4, v%d" % (V_B0, V_LANE))
    e("v_add_u32 v%d, %s, v%d" % (V_B0, sr(S_T0), V_B0))
    e("s_mov_b32 exec_lo, -1")
    e("s_mov_b32 exec_hi, 0")
    for tau in range(13):
        e("ds_write_b128 v%d, %s offset:%d" % (V_B0, vr(V_ACC + 4 * tau, 4), tau * 512))
    e("s_mov_b64 exec, -1")
    if nearly > 0:
        e("s_cmp_ge_u32 %s, %d" % (sr(S_WAVE), nearly))
        e("s_cbranch_scc1 L_noq1")
        g.load_rows(V_Q, SRD_Q, qm)
        e("L_noq1:")
    g.stamp(10)
    if prio:
        e("s_setprio 3")
    e("s_cmp_lg_u32 %s, 0" % sr(S_WAVE))
    e("s_cbranch_scc1 L_cntok")
    e("s_waitcnt vmcnt(%d)" % (12 if nearly > 0 else 0))
    e("v_readfirstlane_b32 %s, v%d" % (sr(S_CNT), V_CNT))
    e("s_cmp_eq_u32 %s, 1" % sr(S_CNT))
    e("s_cbranch_scc1 L_cntok")
    e("s_lshl_b32 %s, %s, 2" % (sr(S_T0), sr(S_H)))
    e("v_mov_b32 v%d, %s" % (V_B1, sr(S_T0)))
    e("s_mov_b32 %s, 0x10000" % sr(S_T2))
    e("L_cntspin:")
    e("buffer_load_dword v%d, v%d, %s, 0 offen sc1" % (V_CNT, V_B1, sr(SRD_DBG, 4)))
    e("s_waitcnt vmcnt(0)")
    e("v_readfirstlane_b32 %s, v%d" % (sr(S_CNT), V_CNT))
    e("s_sub_u32 %s, %s, 1" % (sr(S_T2), sr(S_T2)))
    e("s_cmp_eq_u32 %s, 0" % sr(S_T2))
    e("s_cbranch_scc1 L_cntok")
    e("s_cmp_lg_u32 %s, 1" % sr(S_CNT))
    e("s_cbranch_scc1 L_cntspin")
    e("L_cntok:")
    e("v_min_u32 v%d, 415, v0" % (V_B1 + 1))
    e("v_lshlrev_b32 v%d, 4, v%d" % (V_B1, V_B1 + 1))
    e("s_waitcnt lgkmcnt(0)")
    e("s_barrier")
    g.stamp(3)
    for w in range(8):
        e("ds_read_b128 %s, v%d offset:%d" % (vr(V_ACC + 4 * w, 4), V_B1, w * PART_BYTES))
    for w in range(1, 8):
        e("s_waitcnt lgkmcnt(%d)" % (7 - w))
        for r in range(4):
            e("v_add_f32 v%d, v%d, v%d" % (V_ACC + r, V_ACC + r, V_ACC + 4 * w + r))
    for r in range(4):
        e("v_min_u32 v%d, -2, v%d" % (V_ACC + r, V_ACC + r))
    e("buffer_store_dwordx4 %s, v%d, %s, %s offen%s" % (vr(V_ACC, 4), V_B1, sr(SRD_WS, 4), sr(S_PART), xm))
    g.stamp(4)
    if nearly < 8:
        if prio:
            e("s_setprio 0")
        if nearly > 0:
            e("s_cmp_lt_u32 %s, %d" % (sr(S_WAVE), nearly))
            e("s_cbranch_scc1 L_noq2")
        g.load_rows(V_Q, SRD_Q, qm)
        if nearly > 0:
            e("L_noq2:")
    PL = V_ACC + 4

    def payload_loads():
        e("s_mov_b32 %s, %s" % (sr(S_T0), sr(S_HPART)))
        for c in range(8):
            e("buffer_load_dwordx4 %s, v%d, %s, %s offen%s" % (vr(PL + 4 * c, 4), V_B1, sr(SRD_WS, 4), sr(S_T0), xm))
            if c < 7:
                e("s_add_u32 %s, %s, %d" % (sr(S_T0), sr(S_T0), SLOT))
    if opts.get("pbar"):
        e("s_barrier")
    payload_loads()
    g.stamp(11)
    g.table_addr(V_B1 + 1)
    e("s_waitcnt vmcnt(8)")
    g.stamp(5)
    for T in range(2):
        g.proj(V_Q, T, False)
        g.phi(T)
        g.pack_phi_q(T)
    e("s_mov_b32 %s, 0x10000" % sr(S_T2))
    e("s_waitcnt vmcnt(0)")
    e("s_branch L_chk")
    e("L_retry:")
    payload_loads()
    e("s_waitcnt vmcnt(0)")
    e("L_chk:")
    M = V_ACC + 36
    e("v_max3_u32 v%d, v%d, v%d, v%d" % (M, PL, PL + 1, PL + 2))
    i = 3
    while i < 32:
        if i + 1 < 32:
            e("v_max3_u32 v%d, v%d, v%d, v%d" % (M, M, PL + i, PL + i + 1)); i += 2
        else:
            e("v_max_u32 v%d, v%d, v%d" % (M, M, PL + i)); i += 1
    e("v_cmp_eq_u32 %s, -1, v%d" % (sr(S_EXEC, 2), M))
    e("s_sub_u32 %s, %s, 1" % (sr(S_T2), sr(S_T2)))
    e("s_cmp_eq_u32 %s, 0" % sr(S_T2))
    e("s_cbranch_scc1 L_got")
    e("s_cmp_lg_u64 %s, 0" % sr(S_EXEC, 2))
    e("s_cbranch_scc1 L_retry")
    e("L_got:")
    g.stamp(6)
    if opts.get("prof"):
        e("s_sub_u32 %s, 0x10000, %s" % (sr(S_T3), sr(S_T2)))
    a = V_ACC
    for r in range(4):
        e("v_add_f32 v%d, v%d, v%d" % (a + r, PL + r, PL + 4 + r))
    for c in range(2, 8):
        for r in range(4):
            e("v_add_f32 v%d, v%d, v%d" % (a + r, a + r, PL + 4 * c + r))
    g.hilo_write(LDS_TAB)
    e("s_waitcnt lgkmcnt(0)")
    e("s_barrier")
    g.stamp(7)
    g.read_table(LDS_TAB)
    e("s_waitcnt lgkmcnt(0)")
    g.out_tile(0, V_ACC, sm)
    g.out_tile(1, V_K - 4, sm)
    g.stamp(8)
    if opts.get("prof"):
        e("s_waitcnt vmcnt(0)")
        g.stamp(9)
        g.flush_stamps()
        e("v_mov_b32 v254, %s" % sr(S_T3))
        e("v_mov_b32 v255, 0")
        e("buffer_store_dwordx2 v[254:255], v253, %s, 0 offen offset:%d" % (sr(SRD_WS, 4), 15 * 8))
    e("L_end:")
    e("s_endpgm")
    txt = HEADER
    txt += "; @launch grid=(256,1,1) block=(512,1,1) lds=%d\n" % (LDS_TAB + PART_BYTES)
    txt += '.amdgcn_target "amdgcn-amd-amdhsa--gfx950"\n'
    txt += kernel_text(NAME + "_kernel", g)
    txt += kd(NAME + "_kernel")
    return txt


LDS_N = LDS_TAB + PART_BYTES
TAGMASK = 0xFFF


def gen_fused3(opts):
    lm = MODS[opts.get("mod", 1)]
    qm = MODS[opts.get("qmod", opts.get("mod", 1))]
    sm = MODS[opts.get("smod", 0)]
    xm = MODS[opts.get("xmod", 2)]
    nearly = opts.get("nearly", 3)
    prio = opts.get("prio", 1)
    nw = opts.get("nwave", 4)
    SL = PART_BYTES
    V_CNT = V_SS + 3
    S_N = S_CNT
    S_MASK = 61
    g = Gen(opts)
    e = g
    if opts.get("fixdur"):
        e("s_memrealtime s[96:97]")
    g.prologue("L_end")
    g.stamp(0)
    if prio:
        e("s_setprio 3")
    e("s_mov_b32 %s, 0x%x" % (sr(S_MASK), 0xFFFFFFFF ^ TAGMASK))
    e("s_or_b32 %s, %s, %s" % (sr(S_T0), sr(S_H), sr(S_C)))
    e("s_or_b32 %s, %s, %s" % (sr(S_T0), sr(S_T0), sr(S_WAVE)))
    e("s_cmp_lg_u32 %s, 0" % sr(S_T0))
    e("s_cbranch_scc1 L_nochoose")
    e("v_mul_u32_u24 v%d, %d, v%d" % (V_B0, 4 * SL, V_LANE))
    for i in range(4):
        e("s_mov_b32 %s, %d" % (sr(S_T1), i * SL))
        e("buffer_load_dword v%d, v%d, %s, %s offen%s" % (V_B1 + i, V_B0, sr(SRD_WS, 4), sr(S_T1), xm))
    g.load_w()
    g.load_rows(V_K, SRD_K, lm)
    g.load_v(lm)
    e("s_waitcnt vmcnt(34)")
    for i in range(4):
        e("v_and_b32 v%d, 0x%x, v%d" % (V_B1 + i, TAGMASK, V_B1 + i))
    e("v_readfirstlane_b32 %s, v%d" % (sr(S_N), V_B1))
    e("L_cand:")
    e("s_add_u32 %s, %s, 1" % (sr(S_N), sr(S_N)))
    e("s_and_b32 %s, %s, 0x%x" % (sr(S_N), sr(S_N), TAGMASK))
    e("v_cmp_eq_u32 vcc, %s, v%d" % (sr(S_N), V_B1))
    e("v_cmp_eq_u32 %s, %s, v%d" % (sr(S_EXEC, 2), sr(S_N), V_B1 + 1))
    e("s_or_b64 vcc, vcc, %s" % sr(S_EXEC, 2))
    e("v_cmp_eq_u32 %s, %s, v%d" % (sr(S_EXEC, 2), sr(S_N), V_B1 + 2))
    e("s_or_b64 vcc, vcc, %s" % sr(S_EXEC, 2))
    e("v_cmp_eq_u32 %s, %s, v%d" % (sr(S_EXEC, 2), sr(S_N), V_B1 + 3))
    e("s_or_b64 vcc, vcc, %s" % sr(S_EXEC, 2))
    e("s_cmp_lg_u64 vcc, 0")
    e("s_cbranch_scc1 L_cand")
    e("s_or_b32 %s, %s, 0x80000000" % (sr(S_T1), sr(S_N)))
    e("v_mov_b32 v%d, %s" % (V_B0 + 1, sr(S_T1)))
    e("v_mov_b32 v%d, 0" % V_B0)
    e("s_mov_b64 exec, 1")
    e("buffer_store_dword v%d, v%d, %s, 0 offen%s" % (V_B0 + 1, V_B0, sr(SRD_DBG, 4), xm))
    e("s_mov_b64 exec, -1")
    if prio:
        e("s_setprio 0")
    e("s_waitcnt vmcnt(17)")
    e("s_branch L_kready")
    e("L_nochoose:")
    g.load_w()
    g.load_rows(V_K, SRD_K, lm)
    g.load_v(lm)
    e("s_cmp_lg_u32 %s, %d" % (sr(S_WAVE), nw))
    e("s_cbranch_scc1 L_notagld")
    e("v_mov_b32 v%d, 0" % V_B0)
    e("buffer_load_dword v%d, v%d, %s, 0 offen sc1" % (V_B0 + 1, V_B0, sr(SRD_DBG, 4)))
    if prio:
        e("s_setprio 0")
    e("s_waitcnt vmcnt(17)")
    e("s_branch L_kready")
    e("L_notagld:")
    if prio:
        e("s_setprio 0")
    e("L_kready:")
    e("s_waitcnt vmcnt(22)")
    g.proj(V_K, 0, True)
    e("s_waitcnt vmcnt(16)")
    g.proj(V_K, 1, True)
    g.phi(0)
    g.phi(1)
    g.kv_mfma()
    g.stamp(1)
    e("s_waitcnt vmcnt(0)")
    g.stamp(2)
    e("s_cmp_lg_u32 %s, %d" % (sr(S_WAVE), nw))
    e("s_cbranch_scc1 L_tagok")
    e("v_readfirstlane_b32 %s, v%d" % (sr(S_N), V_B0 + 1))
    e("s_cmp_lt_i32 %s, 0" % sr(S_N))
    e("s_cbranch_scc1 L_tagput")
    e("s_mov_b32 %s, 0x10000" % sr(S_T2))
    e("v_mov_b32 v%d, 0" % V_B0)
    e("L_tagspin:")
    e("buffer_load_dword v%d, v%d, %s, 0 offen sc1" % (V_B0 + 1, V_B0, sr(SRD_DBG, 4)))
    e("s_waitcnt vmcnt(0)")
    e("v_readfirstlane_b32 %s, v%d" % (sr(S_N), V_B0 + 1))
    e("s_sub_u32 %s, %s, 1" % (sr(S_T2), sr(S_T2)))
    e("s_cmp_eq_u32 %s, 0" % sr(S_T2))
    e("s_cbranch_scc1 L_tagput")
    e("s_cmp_ge_i32 %s, 0" % sr(S_N))
    e("s_cbranch_scc1 L_tagspin")
    e("L_tagput:")
    e("v_and_b32 v%d, 0x%x, v%d" % (V_B0 + 1, TAGMASK, V_B0 + 1))
    e("v_mov_b32 v%d, %d" % (V_B0, LDS_N))
    e("ds_write_b32 v%d, v%d" % (V_B0, V_B0 + 1))
    e("L_tagok:")
    g.kv_tiles()
    e("s_mul_i32 %s, %s, %d" % (sr(S_T0), sr(S_WAVE), PART_BYTES))
    e("v_lshlrev_b32 v%d, 4, v%d" % (V_B0, V_LANE))
    e("v_add_u32 v%d, %s, v%d" % (V_B0, sr(S_T0), V_B0))
    e("s_mov_b32 exec_lo, -1")
    e("s_mov_b32 exec_hi, 0")
    for tau in range(13):
        e("ds_write_b128 v%d, %s offset:%d" % (V_B0, vr(V_ACC + 4 * tau, 4), tau * 512))
    e("s_mov_b64 exec, -1")
    if nearly > 0:
        e("s_cmp_ge_u32 %s, %d" % (sr(S_WAVE), nearly))
        e("s_cbranch_scc1 L_noq1")
        g.load_rows(V_Q, SRD_Q, qm)
        e("L_noq1:")
    g.stamp(10)
    if prio:
        e("s_setprio 3")
    e("v_min_u32 v%d, 415, v0" % (V_B1 + 1))
    e("v_lshlrev_b32 v%d, 4, v%d" % (V_B1, V_B1 + 1))
    e("v_mov_b32 v%d, %d" % (V_B0, LDS_N))
    e("s_waitcnt lgkmcnt(0)")
    e("s_barrier")
    g.stamp(3)
    e("ds_read_b32 v%d, v%d" % (V_CNT, V_B0))
    for w in range(8):
        e("ds_read_b128 %s, v%d offset:%d" % (vr(V_ACC + 4 * w, 4), V_B1, w * PART_BYTES))
    for w in range(1, 8):
        e("s_waitcnt lgkmcnt(%d)" % (7 - w))
        for r in range(4):
            e("v_add_f32 v%d, v%d, v%d" % (V_ACC + r, V_ACC + r, V_ACC + 4 * w + r))
    for r in range(4):
        e("v_bfi_b32 v%d, %s, v%d, v%d" % (V_ACC + r, sr(S_MASK), V_ACC + r, V_CNT))
    e("buffer_store_dwordx4 %s, v%d, %s, %s offen%s" % (vr(V_ACC, 4), V_B1, sr(SRD_WS, 4), sr(S_PART), xm))
    g.stamp(4)
    V_N = V_B0 + 2
    e("v_mov_b32 v%d, v%d" % (V_N, V_CNT))
    if nearly < 8:
        if prio:
            e("s_setprio 0")
        if nearly > 0:
            e("s_cmp_lt_u32 %s, %d" % (sr(S_WAVE), nearly))
            e("s_cbranch_scc1 L_noq2")
        g.load_rows(V_Q, SRD_Q, qm)
        if nearly > 0:
            e("L_noq2:")
    PL = V_ACC + 4

    def payload_loads():
        e("s_mov_b32 %s, %s" % (sr(S_T0), sr(S_HPART)))
        for c in range(8):
            e("buffer_load_dwordx4 %s, v%d, %s, %s offen%s" % (vr(PL + 4 * c, 4), V_B1, sr(SRD_WS, 4), sr(S_T0), xm))
            if c < 7:
                e("s_add_u32 %s, %s, %d" % (sr(S_T0), sr(S_T0), SL))
    if opts.get("pbar", 1):
        e("s_barrier")
    payload_loads()
    g.stamp(11)
    g.table_addr(V_B1 + 1)
    e("s_waitcnt vmcnt(8)")
    g.stamp(5)
    for T in range(2):
        g.proj(V_Q, T, False)
        g.phi(T)
        g.pack_phi_q(T)
    e("s_mov_b32 %s, 0x10000" % sr(S_T2))
    e("s_waitcnt vmcnt(0)")
    e("s_branch L_chk")
    e("L_retry:")
    payload_loads()
    e("s_waitcnt vmcnt(0)")
    e("L_chk:")
    M = V_ACC + 36
    for i in range(32):
        e("v_xor_b32 v%d, v%d, v%d" % (PL + i, PL + i, V_N))
    e("v_or3_b32 v%d, v%d, v%d, v%d" % (M, PL, PL + 1, PL + 2))
    i = 3
    while i < 32:
        if i + 1 < 32:
            e("v_or3_b32 v%d, v%d, v%d, v%d" % (M, M, PL + i, PL + i + 1)); i += 2
        else:
            e("v_or_b32 v%d, v%d, v%d" % (M, M, PL + i)); i += 1
    e("v_and_b32 v%d, 0x%x, v%d" % (M, TAGMASK, M))
    e("v_cmp_ne_u32 %s, 0, v%d" % (sr(S_EXEC, 2), M))
    e("s_sub_u32 %s, %s, 1" % (sr(S_T2), sr(S_T2)))
    e("s_cmp_eq_u32 %s, 0" % sr(S_T2))
    e("s_cbranch_scc1 L_got")
    e("s_cmp_lg_u64 %s, 0" % sr(S_EXEC, 2))
    e("s_cbranch_scc1 L_retry")
    e("L_got:")
    g.stamp(6)
    if opts.get("prof"):
        e("s_sub_u32 %s, 0x10000, %s" % (sr(S_T3), sr(S_T2)))
    a = V_ACC
    for r in range(4):
        e("v_add_f32 v%d, v%d, v%d" % (a + r, PL + r, PL + 4 + r))
    for c in range(2, 8):
        for r in range(4):
            e("v_add_f32 v%d, v%d, v%d" % (a + r, a + r, PL + 4 * c + r))
    g.hilo_write(LDS_TAB)
    e("s_waitcnt lgkmcnt(0)")
    e("s_barrier")
    g.stamp(7)
    g.read_table(LDS_TAB)
    e("s_waitcnt lgkmcnt(0)")
    g.out_tile(0, V_ACC, sm)
    g.out_tile(1, V_K - 4, sm)
    g.stamp(8)
    if opts.get("prof"):
        e("s_waitcnt vmcnt(0)")
        g.stamp(9)
        g.flush_stamps()
        e("v_mov_b32 v254, %s" % sr(S_T3))
        e("v_mov_b32 v255, 0")
        e("buffer_store_dwordx2 v[254:255], v253, %s, 0 offen offset:%d" % (sr(SRD_WS, 4), 15 * 8))
    if opts.get("fixdur"):
        e("s_waitcnt vmcnt(0) lgkmcnt(0)")
        e("L_hold:")
        e("s_memrealtime s[98:99]")
        e("s_waitcnt lgkmcnt(0)")
        e("s_sub_u32 s98, s98, s96")
        e("s_cmp_lt_u32 s98, %d" % (opts["fixdur"] * 100))
        e("s_cbranch_scc1 L_hold")
    e("L_end:")
    e("s_endpgm")
    txt = HEADER
    txt += "; @launch grid=(256,1,1) block=(512,1,1) lds=%d\n" % (LDS_N + 64)
    txt += '.amdgcn_target "amdgcn-amd-amdhsa--gfx950"\n'
    txt += kernel_text(NAME + "_kernel", g)
    txt += kd(NAME + "_kernel")
    return txt


LDS_CNT = LDS_N + 4


def gen_fused4(opts):
    lm = MODS[opts.get("mod", 1)]
    qm = MODS[opts.get("qmod", opts.get("mod", 1))]
    sm = MODS[opts.get("smod", 4)]
    xm = MODS[opts.get("xmod", 2)]
    prio = opts.get("prio", 1)
    nw = opts.get("nwave", 1)
    qsplit = opts.get("qsplit", 6)
    SPIN = opts.get("spin", 0x4000)
    SL = PART_BYTES
    S_N = S_CNT
    S_MASK = 61
    R0, R1 = V_ACC, V_K
    G0, G1 = 64, 96
    V_T0, V_T1, V_A0, V_A1, V_N, V_M = 218, 219, 220, 221, 222, 223
    V_TA0, V_TA1 = 216, 217
    g = Gen(opts)
    e = g
    g.zero_stamps()
    g.prologue("L_end")
    g.stamp(0)
    if prio:
        e("s_setprio 3")
    e("s_mov_b32 %s, 0x%x" % (sr(S_MASK), 0xFFFFFFFF ^ TAGMASK))
    e("s_or_b32 %s, %s, %s" % (sr(S_T0), sr(S_H), sr(S_C)))
    e("s_or_b32 %s, %s, %s" % (sr(S_T0), sr(S_T0), sr(S_WAVE)))
    e("s_cmp_lg_u32 %s, 0" % sr(S_T0))
    e("s_cbranch_scc1 L_nochoose")
    e("v_mul_u32_u24 v%d, %d, v%d" % (V_B0, 4 * SL, V_LANE))
    for i in range(4):
        e("s_mov_b32 %s, %d" % (sr(S_T1), i * SL))
        e("buffer_load_dword v%d, v%d, %s, %s offen%s" % (V_B1 + i, V_B0, sr(SRD_WS, 4), sr(S_T1), xm))
    g.load_w()
    g.load_rows(V_K, SRD_K, lm)
    g.load_v(lm)
    e("s_waitcnt vmcnt(34)")
    for i in range(4):
        e("v_and_b32 v%d, 0x%x, v%d" % (V_B1 + i, TAGMASK, V_B1 + i))
    e("v_readfirstlane_b32 %s, v%d" % (sr(S_N), V_B1))
    e("L_cand:")
    e("s_add_u32 %s, %s, 1" % (sr(S_N), sr(S_N)))
    e("s_and_b32 %s, %s, 0x%x" % (sr(S_N), sr(S_N), TAGMASK))
    e("v_cmp_eq_u32 vcc, %s, v%d" % (sr(S_N), V_B1))
    e("v_cmp_eq_u32 %s, %s, v%d" % (sr(S_EXEC, 2), sr(S_N), V_B1 + 1))
    e("s_or_b64 vcc, vcc, %s" % sr(S_EXEC, 2))
    e("v_cmp_eq_u32 %s, %s, v%d" % (sr(S_EXEC, 2), sr(S_N), V_B1 + 2))
    e("s_or_b64 vcc, vcc, %s" % sr(S_EXEC, 2))
    e("v_cmp_eq_u32 %s, %s, v%d" % (sr(S_EXEC, 2), sr(S_N), V_B1 + 3))
    e("s_or_b64 vcc, vcc, %s" % sr(S_EXEC, 2))
    e("s_cmp_lg_u64 vcc, 0")
    e("s_cbranch_scc1 L_cand")
    e("s_or_b32 %s, %s, 0x80000000" % (sr(S_T1), sr(S_N)))
    e("v_mov_b32 v%d, %s" % (V_B0 + 1, sr(S_T1)))
    e("v_mov_b32 v%d, 0" % V_B0)
    e("s_mov_b64 exec, 1")
    e("buffer_store_dword v%d, v%d, %s, 0 offen%s" % (V_B0 + 1, V_B0, sr(SRD_DBG, 4), xm))
    e("s_mov_b64 exec, -1")
    e("s_waitcnt vmcnt(17)")
    e("s_branch L_issued")
    e("L_nochoose:")
    g.load_w()
    g.load_rows(V_K, SRD_K, lm)
    g.load_v(lm)
    e("L_issued:")
    if prio:
        e("s_setprio 0")
    lq0 = opts.get("lq0", 0)

    def qloads(lo, hi):
        for i in range(lo, hi):
            T, t = divmod(i, 6)
            e("buffer_load_dwordx4 %s, v%d, %s, %s offen offset:%d%s" % (
                vr(V_Q + 24 * T + 4 * t, 4), V_OK, sr(SRD_Q, 4), sr(S_B0 + T), 64 * t, qm))
    e("s_cmp_lt_u32 %s, 4" % sr(S_WAVE))
    e("s_cbranch_scc1 L_noA")
    if lq0 and opts.get("lq0pre", 1):
        qloads(0, lq0)
    e("s_barrier")
    g.stamp(12)
    if lq0 and not opts.get("lq0pre", 1):
        qloads(0, lq0)
    if lq0:
        e("s_waitcnt vmcnt(%d)" % (22 + lq0))
        e("s_mov_b32 %s, 1" % sr(S_T3))
        e("s_branch L_A2")
    e("L_noA:")
    e("s_waitcnt vmcnt(22)")
    e("s_mov_b32 %s, 0" % sr(S_T3))
    e("L_A2:")
    g.proj(V_K, 0, True)
    if lq0:
        e("s_cmp_eq_u32 %s, 0" % sr(S_T3))
        e("s_cbranch_scc1 L_k1e")
        e("s_waitcnt vmcnt(%d)" % (16 + lq0))
        e("s_branch L_k1")
        e("L_k1e:")
    e("s_waitcnt vmcnt(16)")
    if lq0:
        e("L_k1:")
    g.proj(V_K, 1, True)
    g.phi(0)
    g.phi(1)
    g.kv_mfma()
    g.stamp(1)
    if lq0:
        e("s_cmp_eq_u32 %s, 0" % sr(S_T3))
        e("s_cbranch_scc1 L_v1e")
        e("s_waitcnt vmcnt(%d)" % lq0)
        e("s_branch L_v1")
        e("L_v1e:")
    e("s_waitcnt vmcnt(0)")
    if lq0:
        e("L_v1:")
    g.stamp(2)
    g.kv_tiles()
    e("s_mul_i32 %s, %s, %d" % (sr(S_T0), sr(S_WAVE), PART_BYTES))
    e("v_lshlrev_b32 v%d, 4, v%d" % (V_B0, V_LANE))
    e("v_add_u32 v%d, %s, v%d" % (V_B0, sr(S_T0), V_B0))
    e("s_mov_b32 exec_lo, -1")
    e("s_mov_b32 exec_hi, 0")
    for tau in range(13):
        e("ds_write_b128 v%d, %s offset:%d" % (V_B0, vr(V_ACC + 4 * tau, 4), tau * 512))
    e("s_mov_b64 exec, -1")
    g.stamp(10)
    e("s_cmp_ge_u32 %s, 4" % sr(S_WAVE))
    e("s_cbranch_scc1 L_late")
    e("s_cmp_lg_u32 %s, %d" % (sr(S_WAVE), nw))
    e("s_cbranch_scc1 L_notag")
    if prio:
        e("s_setprio 3")
    e("s_mov_b32 %s, 0x%x" % (sr(S_T2), SPIN))
    e("v_mov_b32 v%d, 0" % V_B0)
    e("L_tagspin:")
    e("buffer_load_dword v%d, v%d, %s, 0 offen sc1" % (V_B0 + 1, V_B0, sr(SRD_DBG, 4)))
    e("s_waitcnt vmcnt(0)")
    e("v_readfirstlane_b32 %s, v%d" % (sr(S_N), V_B0 + 1))
    e("s_sub_u32 %s, %s, 1" % (sr(S_T2), sr(S_T2)))
    e("s_cmp_eq_u32 %s, 0" % sr(S_T2))
    e("s_cbranch_scc1 L_tagput")
    e("s_cmp_ge_i32 %s, 0" % sr(S_N))
    e("s_cbranch_scc1 L_tagspin")
    e("L_tagput:")
    e("v_and_b32 v%d, 0x%x, v%d" % (V_B0 + 2, TAGMASK, V_B0 + 1))
    e("v_mov_b32 v%d, 0" % (V_B0 + 3))
    e("v_mov_b32 v%d, %d" % (V_B0, LDS_N))
    e("ds_write_b64 v%d, %s" % (V_B0, vr(V_B0 + 2, 2)))
    if prio:
        e("s_setprio 0")
    e("L_notag:")
    e("s_waitcnt lgkmcnt(0)")
    e("s_barrier")
    g.stamp(12)
    if prio and opts.get("eprio", 1):
        e("s_setprio 3")
    g.load_rows(V_Q, SRD_Q, qm)
    if prio:
        e("s_setprio 0")
    g.stamp(3)
    e("s_waitcnt vmcnt(0)")
    e("s_branch L_qproj")
    e("L_late:")
    if prio:
        e("s_setprio 3")
    e("v_mov_b32 v%d, %d" % (V_B0, LDS_N))
    e("v_mov_b32 v%d, 1" % (V_B0 + 1))
    e("s_waitcnt lgkmcnt(0)")
    e("s_mov_b64 exec, 1")
    e("ds_add_u32 v%d, v%d offset:4" % (V_B0, V_B0 + 1))
    e("s_mov_b64 exec, -1")
    e("s_sub_u32 %s, %s, 4" % (sr(S_T0), sr(S_WAVE)))
    e("s_mul_i32 %s, %s, 104" % (sr(S_T0), sr(S_T0)))
    e("v_add_u32 v%d, %s, v%d" % (V_T0, sr(S_T0), V_LANE))
    e("v_min_u32 v%d, 39, v%d" % (V_T1, V_LANE))
    e("s_add_u32 %s, %s, 64" % (sr(S_T0), sr(S_T0)))
    e("v_add_u32 v%d, %s, v%d" % (V_T1, sr(S_T0), V_T1))
    e("v_lshlrev_b32 v%d, 4, v%d" % (V_A0, V_T0))
    e("v_lshlrev_b32 v%d, 4, v%d" % (V_A1, V_T1))
    e("s_mov_b32 %s, 0x%x" % (sr(S_T2), 0x100000))
    e("L_lspin:")
    e("ds_read_b64 %s, v%d" % (vr(V_B0 + 2, 2), V_B0))
    e("s_waitcnt lgkmcnt(0)")
    e("v_readfirstlane_b32 %s, v%d" % (sr(S_T1), V_B0 + 3))
    e("s_sub_u32 %s, %s, 1" % (sr(S_T2), sr(S_T2)))
    e("s_cmp_eq_u32 %s, 0" % sr(S_T2))
    e("s_cbranch_scc1 L_lgo")
    e("s_cmp_lg_u32 %s, 4" % sr(S_T1))
    e("s_cbranch_scc1 L_lspin")
    e("L_lgo:")
    g.stamp(3)
    e("v_mov_b32 v%d, v%d" % (V_N, V_B0 + 2))
    for rb, va in ((R0, V_A0), (R1, V_A1)):
        for w in range(8):
            e("ds_read_b128 %s, v%d offset:%d" % (vr(rb + 4 * w, 4), va, w * PART_BYTES))
    for k, (rb, va) in enumerate(((R0, V_A0), (R1, V_A1))):
        base = 8 if k == 0 else 0
        for w in range(1, 8):
            e("s_waitcnt lgkmcnt(%d)" % min(15, base + 7 - w))
            for r in range(4):
                e("v_add_f32 v%d, v%d, v%d" % (rb + r, rb + r, rb + 4 * w + r))
        for r in range(4):
            e("v_bfi_b32 v%d, %s, v%d, v%d" % (rb + r, sr(S_MASK), rb + r, V_N))
        e("buffer_store_dwordx4 %s, v%d, %s, %s offen%s" % (vr(rb, 4), va, sr(SRD_WS, 4), sr(S_PART), xm))
    g.stamp(4)

    def gather():
        e("s_mov_b32 %s, %s" % (sr(S_T0), sr(S_HPART)))
        for c in range(8):
            e("buffer_load_dwordx4 %s, v%d, %s, %s offen%s" % (vr(G0 + 4 * c, 4), V_A0, sr(SRD_WS, 4), sr(S_T0), xm))
            e("buffer_load_dwordx4 %s, v%d, %s, %s offen%s" % (vr(G1 + 4 * c, 4), V_A1, sr(SRD_WS, 4), sr(S_T0), xm))
            if c < 7:
                e("s_add_u32 %s, %s, %d" % (sr(S_T0), sr(S_T0), SL))
    if prio and opts.get("qlow", 0):
        e("s_setprio 0")
    qsplit = max(qsplit, lq0)
    qloads(lq0, qsplit)
    if opts.get("ackwait"):
        e("s_waitcnt vmcnt(%d)" % (qsplit - lq0))
        g.stamp(13)
    gather()
    qloads(qsplit, 12)
    g.stamp(11)
    g.table_addr(V_T0, 208, V_TA0)
    g.table_addr(V_T1, 208, V_TA1)
    e("s_mov_b32 %s, 0x%x" % (sr(S_T2), SPIN))
    e("s_waitcnt vmcnt(%d)" % (12 - qsplit))
    e("s_branch L_chk")
    e("L_retry:")
    gather()
    e("s_waitcnt vmcnt(0)")
    e("L_chk:")
    for i in range(64):
        e("v_xor_b32 v%d, v%d, v%d" % (G0 + i, G0 + i, V_N))
    e("v_or3_b32 v%d, v%d, v%d, v%d" % (V_M, G0, G0 + 1, G0 + 2))
    i = 3
    while i < 64:
        if i + 1 < 64:
            e("v_or3_b32 v%d, v%d, v%d, v%d" % (V_M, V_M, G0 + i, G0 + i + 1)); i += 2
        else:
            e("v_or_b32 v%d, v%d, v%d" % (V_M, V_M, G0 + i)); i += 1
    e("v_and_b32 v%d, 0x%x, v%d" % (V_M, TAGMASK, V_M))
    e("v_cmp_ne_u32 %s, 0, v%d" % (sr(S_EXEC, 2), V_M))
    e("s_sub_u32 %s, %s, 1" % (sr(S_T2), sr(S_T2)))
    e("s_cmp_eq_u32 %s, 0" % sr(S_T2))
    e("s_cbranch_scc1 L_got")
    e("s_cmp_lg_u64 %s, 0" % sr(S_EXEC, 2))
    e("s_cbranch_scc1 L_retry")
    e("L_got:")
    g.stamp(6)
    if opts.get("prof"):
        e("s_sub_u32 %s, 0x%x, %s" % (sr(S_T3), SPIN, sr(S_T2)))
    for gb, ta, tmp in ((G0, V_TA0, V_ACC + 8), (G1, V_TA1, V_ACC + 16)):
        for r in range(4):
            e("v_add_f32 v%d, v%d, v%d" % (gb + r, gb + r, gb + 4 + r))
        for c in range(2, 8):
            for r in range(4):
                e("v_add_f32 v%d, v%d, v%d" % (gb + r, gb + r, gb + 4 * c + r))
        g.hilo_write(LDS_TAB, gb, tmp, ta)
    e("s_waitcnt lgkmcnt(0)")
    e("s_barrier")
    g.stamp(7)
    g.read_table(LDS_TAB)
    e("s_waitcnt vmcnt(0)")
    e("L_qproj:")
    g.stamp(5)
    if prio:
        e("s_setprio 0")
    for T in range(2):
        g.proj(V_Q, T, False)
        g.phi(T)
        g.pack_phi_q(T)
    e("s_cmp_ge_u32 %s, 4" % sr(S_WAVE))
    e("s_cbranch_scc1 L_out")
    if opts.get("prof"):
        e("s_mov_b32 %s, 0" % sr(S_T3))
    e("s_barrier")
    g.stamp(7)
    g.read_table(LDS_TAB)
    e("L_out:")
    e("s_waitcnt lgkmcnt(0)")
    g.out_tile(0, V_ACC, sm)
    g.out_tile(1, V_K - 4, sm)
    g.stamp(8)
    if opts.get("prof"):
        e("s_waitcnt vmcnt(0)")
        g.stamp(9)
        g.flush_stamps()
        e("v_mov_b32 v254, %s" % sr(S_T3))
        e("v_mov_b32 v255, 0")
        e("buffer_store_dwordx2 v[254:255], v253, %s, 0 offen offset:%d" % (sr(SRD_WS, 4), 15 * 8))
    e("L_end:")
    e("s_endpgm")
    txt = HEADER
    txt += "; @launch grid=(256,1,1) block=(512,1,1) lds=%d\n" % (LDS_N + 64)
    txt += '.amdgcn_target "amdgcn-amd-amdhsa--gfx950"\n'
    txt += kernel_text(NAME + "_kernel", g)
    txt += kd(NAME + "_kernel")
    return txt


def gen_fused5(opts):
    lm = MODS[opts.get("mod", 1)]
    qm = MODS[opts.get("qmod", opts.get("mod", 1))]
    sm = MODS[opts.get("smod", 4)]
    xm = MODS[opts.get("xmod", 2)]
    prio = opts.get("prio", 1)
    nw = opts.get("nwave", 2)
    lq0 = opts.get("lq0", 6)
    SPIN = opts.get("spin", 0x4000)
    SL = PART_BYTES
    V_CNT = V_SS + 3
    S_N = S_CNT
    S_MASK = 61
    S_LATE = S_T3
    g = Gen(opts)
    e = g

    def qloads(lo, hi):
        for i in range(lo, hi):
            T, t = divmod(i, 6)
            e("buffer_load_dwordx4 %s, v%d, %s, %s offen offset:%d%s" % (
                vr(V_Q + 24 * T + 4 * t, 4), V_OK, sr(SRD_Q, 4), sr(S_B0 + T), 64 * t, qm))

    def wait2(n_early, n_late, tag):
        if n_early == n_late:
            e("s_waitcnt vmcnt(%d)" % n_early)
            return
        e("s_cmp_ge_u32 %s, 4" % sr(S_WAVE))
        e("s_cbranch_scc1 L_w2l_%s" % tag)
        e("s_waitcnt vmcnt(%d)" % n_early)
        e("s_branch L_w2d_%s" % tag)
        e("L_w2l_%s:" % tag)
        e("s_waitcnt vmcnt(%d)" % n_late)
        e("L_w2d_%s:" % tag)

    g.zero_stamps()
    g.prologue("L_end")
    g.stamp(0)
    if prio:
        e("s_setprio 3")
    e("s_mov_b32 %s, 0x%x" % (sr(S_MASK), 0xFFFFFFFF ^ TAGMASK))
    e("s_or_b32 %s, %s, %s" % (sr(S_T0), sr(S_H), sr(S_C)))
    e("s_or_b32 %s, %s, %s" % (sr(S_T0), sr(S_T0), sr(S_WAVE)))
    e("s_cmp_lg_u32 %s, 0" % sr(S_T0))
    e("s_cbranch_scc1 L_nochoose")
    e("v_mul_u32_u24 v%d, %d, v%d" % (V_B0, 4 * SL, V_LANE))
    for i in range(4):
        e("s_mov_b32 %s, %d" % (sr(S_T1), i * SL))
        e("buffer_load_dword v%d, v%d, %s, %s offen%s" % (V_B1 + i, V_B0, sr(SRD_WS, 4), sr(S_T1), xm))
    g.load_w()
    g.load_rows(V_K, SRD_K, lm)
    g.load_v(lm)
    e("s_waitcnt vmcnt(34)")
    for i in range(4):
        e("v_and_b32 v%d, 0x%x, v%d" % (V_B1 + i, TAGMASK, V_B1 + i))
    e("v_readfirstlane_b32 %s, v%d" % (sr(S_N), V_B1))
    e("L_cand:")
    e("s_add_u32 %s, %s, 1" % (sr(S_N), sr(S_N)))
    e("s_and_b32 %s, %s, 0x%x" % (sr(S_N), sr(S_N), TAGMASK))
    e("v_cmp_eq_u32 vcc, %s, v%d" % (sr(S_N), V_B1))
    e("v_cmp_eq_u32 %s, %s, v%d" % (sr(S_EXEC, 2), sr(S_N), V_B1 + 1))
    e("s_or_b64 vcc, vcc, %s" % sr(S_EXEC, 2))
    e("v_cmp_eq_u32 %s, %s, v%d" % (sr(S_EXEC, 2), sr(S_N), V_B1 + 2))
    e("s_or_b64 vcc, vcc, %s" % sr(S_EXEC, 2))
    e("v_cmp_eq_u32 %s, %s, v%d" % (sr(S_EXEC, 2), sr(S_N), V_B1 + 3))
    e("s_or_b64 vcc, vcc, %s" % sr(S_EXEC, 2))
    e("s_cmp_lg_u64 vcc, 0")
    e("s_cbranch_scc1 L_cand")
    e("s_or_b32 %s, %s, 0x80000000" % (sr(S_T1), sr(S_N)))
    e("v_mov_b32 v%d, %s" % (V_B0 + 1, sr(S_T1)))
    e("v_mov_b32 v%d, 0" % V_B0)
    e("s_mov_b64 exec, 1")
    e("buffer_store_dword v%d, v%d, %s, 0 offen%s" % (V_B0 + 1, V_B0, sr(SRD_DBG, 4), xm))
    e("s_mov_b64 exec, -1")
    e("s_waitcnt vmcnt(17)")
    e("s_branch L_issued")
    e("L_nochoose:")
    g.load_w()
    g.load_rows(V_K, SRD_K, lm)
    g.load_v(lm)
    if lq0:
        e("s_cmp_lt_u32 %s, 4" % sr(S_WAVE))
        e("s_cbranch_scc1 L_issued")
        qloads(0, lq0)
    e("L_issued:")
    if prio:
        e("s_setprio 0")
    wait2(22, 22 + lq0, "k0")
    g.proj(V_K, 0, True)
    wait2(16, 16 + lq0, "k1")
    g.proj(V_K, 1, True)
    g.phi(0)
    g.phi(1)
    g.kv_mfma()
    g.stamp(1)
    wait2(0, lq0, "v")
    g.stamp(2)
    if prio:
        e("s_cmp_lt_u32 %s, 4" % sr(S_WAVE))
        e("s_cbranch_scc1 L_nop3")
        e("s_setprio 3")
        e("L_nop3:")
    g.kv_tiles()
    e("s_mul_i32 %s, %s, %d" % (sr(S_T0), sr(S_WAVE), PART_BYTES))
    e("v_lshlrev_b32 v%d, 4, v%d" % (V_B0, V_LANE))
    e("v_add_u32 v%d, %s, v%d" % (V_B0, sr(S_T0), V_B0))
    e("s_mov_b32 exec_lo, -1")
    e("s_mov_b32 exec_hi, 0")
    for tau in range(13):
        e("ds_write_b128 v%d, %s offset:%d" % (V_B0, vr(V_ACC + 4 * tau, 4), tau * 512))
    e("s_mov_b64 exec, -1")
    e("s_cmp_ge_u32 %s, 4" % sr(S_WAVE))
    e("s_cbranch_scc1 L_noq1")
    tagmode = opts.get("tagmode", 1)
    if tagmode == 0:
        e("s_cmp_lg_u32 %s, %d" % (sr(S_WAVE), nw))
        e("s_cbranch_scc1 L_notag")
        if prio:
            e("s_setprio 3")
        e("s_mov_b32 %s, 0x%x" % (sr(S_T2), SPIN))
        e("v_mov_b32 v%d, 0" % V_B0)
        e("L_tagspin:")
        e("buffer_load_dword v%d, v%d, %s, 0 offen sc1" % (V_B0 + 1, V_B0, sr(SRD_DBG, 4)))
        e("s_waitcnt vmcnt(0)")
        e("v_readfirstlane_b32 %s, v%d" % (sr(S_N), V_B0 + 1))
        e("s_sub_u32 %s, %s, 1" % (sr(S_T2), sr(S_T2)))
        e("s_cmp_eq_u32 %s, 0" % sr(S_T2))
        e("s_cbranch_scc1 L_tagput")
        e("s_cmp_ge_i32 %s, 0" % sr(S_N))
        e("s_cbranch_scc1 L_tagspin")
        e("L_tagput:")
        e("v_and_b32 v%d, 0x%x, v%d" % (V_B0 + 1, TAGMASK, V_B0 + 1))
        e("v_mov_b32 v%d, %d" % (V_B0, LDS_N))
        e("ds_write_b32 v%d, v%d" % (V_B0, V_B0 + 1))
        if prio:
            e("s_setprio 0")
        e("L_notag:")
        qloads(0, 12)
    else:
        e("s_cmp_lg_u32 %s, %d" % (sr(S_WAVE), nw))
        e("s_cbranch_scc1 L_notag")
        if tagmode == 1:
            e("s_load_dword %s, %s, 0 glc" % (sr(S_N), sr(S_DBG, 2)))
        qloads(0, 12)
        if tagmode == 1:
            e("s_waitcnt lgkmcnt(0)")
        else:
            e("s_mov_b32 %s, 0x80000123" % sr(S_N))
        e("s_cmp_lt_i32 %s, 0" % sr(S_N))
        e("s_cbranch_scc1 L_tagput")
        e("s_mov_b32 %s, 0x%x" % (sr(S_T2), SPIN))
        e("v_mov_b32 v%d, 0" % V_B0)
        e("L_tagspin:")
        e("buffer_load_dword v%d, v%d, %s, 0 offen sc1" % (V_B0 + 1, V_B0, sr(SRD_DBG, 4)))
        e("s_waitcnt vmcnt(0)")
        e("v_readfirstlane_b32 %s, v%d" % (sr(S_N), V_B0 + 1))
        e("s_sub_u32 %s, %s, 1" % (sr(S_T2), sr(S_T2)))
        e("s_cmp_eq_u32 %s, 0" % sr(S_T2))
        e("s_cbranch_scc1 L_tagput")
        e("s_cmp_ge_i32 %s, 0" % sr(S_N))
        e("s_cbranch_scc1 L_tagspin")
        e("L_tagput:")
        if opts.get("prof"):
            e("s_mov_b32 %s, %s" % (sr(S_ST0 + 28), sr(S_T2)))
        e("s_and_b32 %s, %s, 0x%x" % (sr(S_N), sr(S_N), TAGMASK))
        e("v_mov_b32 v%d, %s" % (V_B0 + 1, sr(S_N)))
        e("v_mov_b32 v%d, %d" % (V_B0, LDS_N))
        e("ds_write_b32 v%d, v%d" % (V_B0, V_B0 + 1))
        e("s_branch L_noq1")
        e("L_notag:")
        qloads(0, 12)
    e("L_noq1:")
    g.stamp(10)
    if prio:
        e("s_setprio 3")
    e("v_min_u32 v%d, 415, v0" % (V_B1 + 1))
    e("v_lshlrev_b32 v%d, 4, v%d" % (V_B1, V_B1 + 1))
    e("v_mov_b32 v%d, %d" % (V_B0, LDS_N))
    e("s_waitcnt lgkmcnt(0)")
    e("s_barrier")
    g.stamp(3)
    e("ds_read_b32 v%d, v%d" % (V_CNT, V_B0))
    for w in range(8):
        e("ds_read_b128 %s, v%d offset:%d" % (vr(V_ACC + 4 * w, 4), V_B1, w * PART_BYTES))
    for w in range(1, 8):
        e("s_waitcnt lgkmcnt(%d)" % (7 - w))
        for r in range(4):
            e("v_add_f32 v%d, v%d, v%d" % (V_ACC + r, V_ACC + r, V_ACC + 4 * w + r))
    for r in range(4):
        e("v_bfi_b32 v%d, %s, v%d, v%d" % (V_ACC + r, sr(S_MASK), V_ACC + r, V_CNT))
    e("buffer_store_dwordx4 %s, v%d, %s, %s offen%s" % (vr(V_ACC, 4), V_B1, sr(SRD_WS, 4), sr(S_PART), xm))
    g.stamp(4)
    V_N = V_B0 + 2
    e("v_mov_b32 v%d, v%d" % (V_N, V_CNT))
    if lq0 < 12:
        e("s_cmp_lt_u32 %s, 4" % sr(S_WAVE))
        e("s_cbranch_scc1 L_noq2")
        qloads(lq0, 12)
        e("L_noq2:")
    PL = V_ACC + 4

    def payload_loads():
        e("s_mov_b32 %s, %s" % (sr(S_T0), sr(S_HPART)))
        for c in range(8):
            e("buffer_load_dwordx4 %s, v%d, %s, %s offen%s" % (vr(PL + 4 * c, 4), V_B1, sr(SRD_WS, 4), sr(S_T0), xm))
            if c < 7:
                e("s_add_u32 %s, %s, %d" % (sr(S_T0), sr(S_T0), SL))
    g.table_addr(V_B1 + 1)
    if opts.get("eqfirst", 1):
        e("s_cmp_ge_u32 %s, 4" % sr(S_WAVE))
        e("s_cbranch_scc1 L_noeq")
        e("s_waitcnt vmcnt(1)")
        for T in range(2):
            g.proj(V_Q, T, False)
            g.phi(T)
            g.pack_phi_q(T)
        e("L_noeq:")
    if opts.get("pbar", 1):
        e("s_barrier")
    payload_loads()
    g.stamp(11)
    if opts.get("eqfirst", 1):
        e("s_cmp_lt_u32 %s, 4" % sr(S_WAVE))
        e("s_cbranch_scc1 L_nolq")
    e("s_waitcnt vmcnt(8)")
    g.stamp(5)
    for T in range(2):
        g.proj(V_Q, T, False)
        g.phi(T)
        g.pack_phi_q(T)
    if opts.get("eqfirst", 1):
        e("L_nolq:")
    e("s_mov_b32 %s, 0x%x" % (sr(S_T2), SPIN))
    e("s_waitcnt vmcnt(0)")
    e("s_branch L_chk")
    e("L_retry:")
    payload_loads()
    e("s_waitcnt vmcnt(0)")
    e("L_chk:")
    M = V_ACC + 36
    for i in range(32):
        e("v_xor_b32 v%d, v%d, v%d" % (PL + i, PL + i, V_N))
    e("v_or3_b32 v%d, v%d, v%d, v%d" % (M, PL, PL + 1, PL + 2))
    i = 3
    while i < 32:
        if i + 1 < 32:
            e("v_or3_b32 v%d, v%d, v%d, v%d" % (M, M, PL + i, PL + i + 1)); i += 2
        else:
            e("v_or_b32 v%d, v%d, v%d" % (M, M, PL + i)); i += 1
    e("v_and_b32 v%d, 0x%x, v%d" % (M, TAGMASK, M))
    e("v_cmp_ne_u32 %s, 0, v%d" % (sr(S_EXEC, 2), M))
    e("s_sub_u32 %s, %s, 1" % (sr(S_T2), sr(S_T2)))
    e("s_cmp_eq_u32 %s, 0" % sr(S_T2))
    e("s_cbranch_scc1 L_got")
    e("s_cmp_lg_u64 %s, 0" % sr(S_EXEC, 2))
    e("s_cbranch_scc1 L_retry")
    e("L_got:")
    g.stamp(6)
    if opts.get("prof"):
        e("s_sub_u32 %s, 0x%x, %s" % (sr(S_T3), SPIN, sr(S_T2)))
    a = V_ACC
    for r in range(4):
        e("v_add_f32 v%d, v%d, v%d" % (a + r, PL + r, PL + 4 + r))
    for c in range(2, 8):
        for r in range(4):
            e("v_add_f32 v%d, v%d, v%d" % (a + r, a + r, PL + 4 * c + r))
    g.hilo_write(LDS_TAB)
    e("s_waitcnt lgkmcnt(0)")
    e("s_barrier")
    g.stamp(7)
    g.read_table(LDS_TAB)
    e("s_waitcnt lgkmcnt(0)")
    g.out_tile(0, V_ACC, sm)
    g.out_tile(1, V_K - 4, sm)
    g.stamp(8)
    if opts.get("prof"):
        e("s_waitcnt vmcnt(0)")
        g.stamp(9)
        g.flush_stamps()
        e("v_mov_b32 v254, %s" % sr(S_T3))
        e("v_mov_b32 v255, 0")
        e("buffer_store_dwordx2 v[254:255], v253, %s, 0 offen offset:%d" % (sr(SRD_WS, 4), 15 * 8))
    e("L_end:")
    e("s_endpgm")
    txt = HEADER
    txt += "; @launch grid=(256,1,1) block=(512,1,1) lds=%d\n" % (LDS_N + 64)
    txt += '.amdgcn_target "amdgcn-amd-amdhsa--gfx950"\n'
    txt += kernel_text(NAME + "_kernel", g)
    txt += kd(NAME + "_kernel")
    return txt


X_TAB = 0
X_N = PART_BYTES
X_PART = PART_BYTES + 128
X_XBUF = X_PART + 8 * PART_BYTES
X_END = X_XBUF + 8 * 12288
V_RE, V_RO = 2, 5
V_SW = 128
V_T = 134
V_STG = 136
S_B04, S_B14, S_XB, S_PB = 63, 64, 65, 98


def gen_fused6(opts):
    lm = MODS[opts.get("mod", 1)]
    qm = MODS[opts.get("qmod", opts.get("mod", 1))]
    wm = MODS[opts.get("wmod", 0)]
    sm = MODS[opts.get("smod", 4)]
    xm = MODS[opts.get("xmod", 2)]
    prio = opts.get("prio", 1)
    lq0 = opts.get("lq0", 6)
    SPIN = opts.get("spin", 0x4000)
    SL = PART_BYTES
    V_CNT = V_SS + 3
    S_N = S_CNT
    S_MASK = 61
    S_B04, S_B14, S_XB, S_PB = 99, 100, 101, 19
    VQ = V_K
    g = Gen(opts)
    e = g

    def dma_rows(srd, lo, hi, mod):
        last = None
        for j in range(lo, hi):
            T, jj = divmod(j, 6)
            grp = (T, jj >> 2)
            if grp != last:
                e("s_add_u32 m0, %s, %d" % (sr(S_XB), T * 6144 + (jj >> 2) * 4096))
                last = grp
            so = ((S_B0, S_B04), (S_B1, S_B14))[T][jj >> 2]
            e("buffer_load_dwordx4 v%d, %s, %s offen offset:%d%s lds" % (V_SW + jj, sr(srd, 4), sr(so), (jj & 3) * 1024, mod))

    def dma_w():
        e("s_mov_b32 m0, %s" % sr(S_PB))
        for jj in range(3):
            e("buffer_load_dwordx4 v%d, %s, 0 offen offset:%d%s lds" % (V_SW + jj, sr(SRD_W, 4), jj * 1024, wm))

    def read_frag(vbase, T):
        for t in range(6):
            e("ds_read_b128 %s, v%d offset:%d" % (vr(vbase + 24 * T + 4 * t, 4), (V_RE, V_RO)[t & 1], T * 6144 + (t >> 1) * 128))

    def read_w():
        for t in range(6):
            e("ds_read_b128 %s, v%d offset:%d" % (vr(V_W + 4 * t, 4), V_T + (t & 1), (t >> 1) * 128))

    def wait2(n_early, n_late, tag):
        if n_early == n_late:
            e("s_waitcnt vmcnt(%d)" % n_early)
            return
        e("s_cmp_ge_u32 %s, 4" % sr(S_WAVE))
        e("s_cbranch_scc1 L_w2l_%s" % tag)
        e("s_waitcnt vmcnt(%d)" % n_early)
        e("s_branch L_w2d_%s" % tag)
        e("L_w2l_%s:" % tag)
        e("s_waitcnt vmcnt(%d)" % n_late)
        e("L_w2d_%s:" % tag)

    def qproj():
        read_frag(VQ, 0)
        read_frag(VQ, 1)
        e("s_waitcnt lgkmcnt(6)")
        g.proj(VQ, 0, False)
        g.phi(0)
        g.pack_phi_q(0)
        e("s_waitcnt lgkmcnt(0)")
        g.proj(VQ, 1, False)
        g.phi(1)
        g.pack_phi_q(1)

    g.zero_stamps()
    e("s_cmp_ge_u32 s2, 256")
    e("s_cbranch_scc1 L_end")
    if opts.get("cpf"):
        e("s_getpc_b64 s[90:91]")
        e("L_pc:")
    e("s_load_dwordx8 s[4:11], s[0:1], 0")
    e("s_load_dwordx4 s[12:15], s[0:1], 32")
    e("s_load_dwordx2 s[16:17], s[0:1], 48")
    e("v_and_b32 v%d, 63, v0" % V_LANE)
    e("v_lshrrev_b32 v8, 6, v0")
    e("v_and_b32 v9, 15, v0")
    e("v_bfe_u32 v10, v0, 4, 2")
    e("v_readfirstlane_b32 %s, v8" % sr(S_WAVE))
    if opts.get("cpf"):
        e("v_cmp_gt_u32 vcc, 64, v0")
        e("s_and_saveexec_b64 s[92:93], vcc")
        e("s_cbranch_execz L_nocpf")
        e("v_lshlrev_b32 v11, 7, v0")
        e("v_min_u32 v12, L_end-L_pc, v11")
        e("global_load_dword v254, v12, s[90:91]")
        if opts["cpf"] > 1:
            e("v_add_u32 v11, 8192, v11")
            e("v_min_u32 v12, L_end-L_pc, v11")
            e("global_load_dword v255, v12, s[90:91]")
        e("L_nocpf:")
        e("s_mov_b64 exec, s[92:93]")
    for jj in range(6):
        e("v_add_u32 v11, %d, v%d" % (64 * jj, V_LANE))
        e("v_mul_u32_u24 v11, 1366, v11")
        e("v_lshrrev_b32 v11, 16, v11")
        e("v_xor_b32 v11, v11, v%d" % V_LANE)
        e("v_lshlrev_b32 v%d, 4, v11" % (V_SW + jj))
    e("v_mul_u32_u24 v13, %d, v10" % (4 * RB))
    e("v_lshlrev_b32 v14, 4, v9")
    e("v_add_u32 v%d, v13, v14" % V_OVA)
    e("v_lshlrev_b32 v14, 3, v9")
    e("v_add_u32 v13, 256, v13")
    e("v_add_u32 v%d, v13, v14" % V_OVB)
    e("s_and_b32 %s, s2, 7" % sr(S_T0))
    e("s_lshr_b32 %s, s2, 6" % sr(S_T1))
    e("s_lshl_b32 %s, %s, 3" % (sr(S_T1), sr(S_T1)))
    e("s_or_b32 %s, %s, %s" % (sr(S_H), sr(S_T0), sr(S_T1)))
    e("s_lshr_b32 %s, s2, 3" % sr(S_C))
    e("s_and_b32 %s, %s, 7" % (sr(S_C), sr(S_C)))
    e("s_mul_i32 %s, %s, %d" % (sr(S_T0), sr(S_H), 2048 * RB))
    e("s_mul_i32 %s, %s, %d" % (sr(S_T1), sr(S_C), 256 * RB))
    e("s_add_u32 %s, %s, %s" % (sr(S_T0), sr(S_T0), sr(S_T1)))
    e("s_mul_i32 %s, %s, %d" % (sr(S_XB), sr(S_WAVE), 32 * RB))
    e("s_add_u32 %s, %s, %s" % (sr(S_B0), sr(S_T0), sr(S_XB)))
    e("s_add_u32 %s, %s, %d" % (sr(S_XB), sr(S_XB), X_XBUF))
    e("s_add_u32 %s, %s, %d" % (sr(S_B1), sr(S_B0), 16 * RB))
    e("s_add_u32 %s, %s, 4096" % (sr(S_B04), sr(S_B0)))
    e("s_add_u32 %s, %s, 4096" % (sr(S_B14), sr(S_B1)))
    e("s_mul_i32 %s, %s, %d" % (sr(S_PB), sr(S_WAVE), PART_BYTES))
    e("s_add_u32 %s, %s, %d" % (sr(S_PB), sr(S_PB), X_PART))
    if opts.get("prof"):
        e("s_lshl_b32 %s, s2, 3" % sr(S_PROF))
        e("s_add_u32 %s, %s, %s" % (sr(S_PROF), sr(S_PROF), sr(S_WAVE)))
        e("s_lshl_b32 %s, %s, 7" % (sr(S_PROF), sr(S_PROF)))
        e("s_add_u32 %s, %s, 0x%x" % (sr(S_PROF), sr(S_PROF), 128 << 20))
    e("s_or_b32 %s, %s, %s" % (sr(S_T2), sr(S_H), sr(S_C)))
    e("s_or_b32 %s, %s, %s" % (sr(S_T2), sr(S_T2), sr(S_WAVE)))
    e("s_waitcnt lgkmcnt(0)")

    def srd(r, ptr, nbytes):
        e("s_mov_b32 %s, %s" % (sr(r), sr(ptr)))
        e("s_and_b32 %s, %s, 0xffff" % (sr(r + 1), sr(ptr + 1)))
        e("s_mov_b32 %s, 0x%x" % (sr(r + 2), nbytes))
        e("s_mov_b32 %s, 0x20000" % sr(r + 3))
    srd(SRD_K, S_K, TENSOR_BYTES)
    srd(SRD_W, S_W, 8 * RB)
    srd(SRD_V, S_V, TENSOR_BYTES)
    srd(SRD_WS, S_WS, WS_BYTES)
    srd(SRD_DBG, S_DBG, 256)
    g.stamp(0)
    if prio:
        e("s_setprio 3")
    e("s_cmp_lg_u32 %s, 0" % sr(S_T2))
    e("s_cbranch_scc1 L_nochoose")
    e("v_mul_u32_u24 v%d, %d, v%d" % (V_B0, 4 * SL, V_LANE))
    for i in range(4):
        e("s_mov_b32 %s, %d" % (sr(S_T1), i * SL))
        e("buffer_load_dword v%d, v%d, %s, %s offen%s" % (V_B1 + i, V_B0, sr(SRD_WS, 4), sr(S_T1), xm))
    dma_rows(SRD_K, 0, 6, lm)
    dma_w()
    dma_rows(SRD_K, 6, 12, lm)
    g.load_v(lm)
    e("s_waitcnt vmcnt(31)")
    for i in range(4):
        e("v_and_b32 v%d, 0x%x, v%d" % (V_B1 + i, TAGMASK, V_B1 + i))
    e("v_readfirstlane_b32 %s, v%d" % (sr(S_N), V_B1))
    e("L_cand:")
    e("s_add_u32 %s, %s, 1" % (sr(S_N), sr(S_N)))
    e("s_and_b32 %s, %s, 0x%x" % (sr(S_N), sr(S_N), TAGMASK))
    e("v_cmp_eq_u32 vcc, %s, v%d" % (sr(S_N), V_B1))
    e("v_cmp_eq_u32 %s, %s, v%d" % (sr(S_EXEC, 2), sr(S_N), V_B1 + 1))
    e("s_or_b64 vcc, vcc, %s" % sr(S_EXEC, 2))
    e("v_cmp_eq_u32 %s, %s, v%d" % (sr(S_EXEC, 2), sr(S_N), V_B1 + 2))
    e("s_or_b64 vcc, vcc, %s" % sr(S_EXEC, 2))
    e("v_cmp_eq_u32 %s, %s, v%d" % (sr(S_EXEC, 2), sr(S_N), V_B1 + 3))
    e("s_or_b64 vcc, vcc, %s" % sr(S_EXEC, 2))
    e("s_cmp_lg_u64 vcc, 0")
    e("s_cbranch_scc1 L_cand")
    e("s_or_b32 %s, %s, 0x80000000" % (sr(S_T1), sr(S_N)))
    e("v_mov_b32 v%d, %s" % (V_B0 + 1, sr(S_T1)))
    e("v_mov_b32 v%d, 0" % V_B0)
    e("s_mov_b64 exec, 1")
    e("buffer_store_dword v%d, v%d, %s, 0 offen%s" % (V_B0 + 1, V_B0, sr(SRD_DBG, 4), xm))
    e("s_mov_b64 exec, -1")
    e("s_waitcnt vmcnt(17)")
    e("s_branch L_issued")
    e("L_nochoose:")
    dma_rows(SRD_K, 0, 6, lm)
    dma_w()
    dma_rows(SRD_K, 6, 12, lm)
    g.load_v(lm)
    e("s_cmp_lt_u32 %s, 4" % sr(S_WAVE))
    e("s_cbranch_scc1 L_issued")
    e("v_mov_b32 v%d, 0" % V_B0)
    e("buffer_load_dword v%d, v%d, %s, 0 offen sc1" % (V_B0 + 1, V_B0, sr(SRD_DBG, 4)))
    e("L_issued:")
    if prio:
        e("s_setprio 0")
    srd(SRD_Q, S_Q, TENSOR_BYTES)
    srd(SRD_O, S_O, TENSOR_BYTES)
    e("s_mul_i32 %s, %s, %d" % (sr(S_HPART), sr(S_H), 8 * SL))
    e("s_mul_i32 %s, %s, %d" % (sr(S_T1), sr(S_C), SL))
    e("s_add_u32 %s, %s, %s" % (sr(S_PART), sr(S_HPART), sr(S_T1)))
    e("s_mov_b32 %s, 0x05040100" % sr(S_SELLO))
    e("s_mov_b32 %s, 0x07060302" % sr(S_SELHI))
    e("s_mov_b32 %s, %s" % (sr(S_CEXP), hx(f32(C_EXP))))
    e("s_mov_b32 %s, 0x%x" % (sr(S_MASK), 0xFFFFFFFF ^ TAGMASK))
    e("v_mov_b32 v%d, %s" % (V_CSQ, hx(f32(C_SQ))))
    e("v_mov_b32 v%d, %s" % (V_M15, hx(f32(C_BIAS))))
    e("v_and_b32 v9, 15, v0")
    e("v_bfe_u32 v10, v0, 4, 2")
    e("v_lshrrev_b32 v11, 1, v9")
    e("v_mul_u32_u24 v12, %d, v9" % RB)
    e("v_add_u32 v12, %s, v12" % sr(S_XB))
    e("v_xor_b32 v13, v10, v11")
    e("v_lshl_add_u32 v%d, v13, 4, v12" % V_RE)
    e("v_xor_b32 v13, 4, v13")
    e("v_lshl_add_u32 v%d, v13, 4, v12" % V_RO)
    e("v_and_b32 v9, 7, v9")
    e("v_lshrrev_b32 v11, 1, v9")
    e("v_mul_u32_u24 v12, %d, v9" % RB)
    e("v_add_u32 v12, %s, v12" % sr(S_PB))
    e("v_xor_b32 v13, v10, v11")
    e("v_lshl_add_u32 v%d, v13, 4, v12" % V_T)
    e("v_xor_b32 v13, 4, v13")
    e("v_lshl_add_u32 v%d, v13, 4, v12" % (V_T + 1))
    wait2(22, 23, "k0")
    read_w()
    read_frag(V_K, 0)
    wait2(16, 17, "k1")
    e("s_waitcnt lgkmcnt(6)")
    read_frag(V_K, 1)
    e("s_waitcnt lgkmcnt(6)")
    g.proj(V_K, 0, True)
    e("s_waitcnt lgkmcnt(0)")
    g.proj(V_K, 1, True)
    g.phi(0)
    g.phi(1)
    g.kv_mfma()
    g.stamp(1)
    e("s_cmp_lt_u32 %s, 4" % sr(S_WAVE))
    e("s_cbranch_scc1 L_vearly")
    if lq0:
        dma_rows(SRD_Q, 0, lq0, qm)
    e("s_waitcnt vmcnt(%d)" % lq0)
    if prio:
        e("s_setprio 3")
    e("v_readfirstlane_b32 %s, v%d" % (sr(S_N), V_B0 + 1))
    e("s_cmp_lt_i32 %s, 0" % sr(S_N))
    e("s_cbranch_scc1 L_tagput")
    e("s_mov_b32 %s, 0x%x" % (sr(S_T2), SPIN))
    e("v_mov_b32 v%d, 0" % V_B0)
    e("L_tagspin:")
    e("buffer_load_dword v%d, v%d, %s, 0 offen sc1" % (V_B0 + 1, V_B0, sr(SRD_DBG, 4)))
    e("s_waitcnt vmcnt(0)")
    e("v_readfirstlane_b32 %s, v%d" % (sr(S_N), V_B0 + 1))
    e("s_sub_u32 %s, %s, 1" % (sr(S_T2), sr(S_T2)))
    e("s_cmp_eq_u32 %s, 0" % sr(S_T2))
    e("s_cbranch_scc1 L_tagput")
    e("s_cmp_ge_i32 %s, 0" % sr(S_N))
    e("s_cbranch_scc1 L_tagspin")
    e("L_tagput:")
    e("s_and_b32 %s, %s, 0x%x" % (sr(S_N), sr(S_N), TAGMASK))
    e("v_mov_b32 v%d, %s" % (V_B0 + 1, sr(S_N)))
    e("v_mov_b32 v%d, %d" % (V_B0, X_N))
    e("ds_write_b32 v%d, v%d" % (V_B0, V_B0 + 1))
    e("s_branch L_vready")
    e("L_vearly:")
    e("s_waitcnt vmcnt(0)")
    e("L_vready:")
    g.stamp(2)
    g.kv_tiles()
    e("v_lshlrev_b32 v%d, 4, v%d" % (V_B0, V_LANE))
    e("v_add_u32 v%d, %s, v%d" % (V_B0, sr(S_PB), V_B0))
    e("s_mov_b32 exec_lo, -1")
    e("s_mov_b32 exec_hi, 0")
    for tau in range(13):
        e("ds_write_b128 v%d, %s offset:%d" % (V_B0, vr(V_ACC + 4 * tau, 4), tau * 512))
    e("s_mov_b64 exec, -1")
    e("s_cmp_ge_u32 %s, 4" % sr(S_WAVE))
    e("s_cbranch_scc1 L_noq1")
    dma_rows(SRD_Q, 0, 12, qm)
    e("L_noq1:")
    g.stamp(10)
    if prio:
        e("s_setprio 3")
    e("v_min_u32 v%d, 415, v0" % (V_B1 + 1))
    e("v_lshlrev_b32 v%d, 4, v%d" % (V_B1, V_B1 + 1))
    e("v_add_u32 v%d, %d, v%d" % (V_B1 + 2, X_PART, V_B1))
    e("v_mov_b32 v%d, %d" % (V_B0, X_N))
    e("s_waitcnt lgkmcnt(0)")
    e("s_barrier")
    g.stamp(3)
    e("ds_read_b32 v%d, v%d" % (V_CNT, V_B0))
    for w in range(8):
        e("ds_read_b128 %s, v%d offset:%d" % (vr(V_ACC + 4 * w, 4), V_B1 + 2, w * PART_BYTES))
    for w in range(1, 8):
        e("s_waitcnt lgkmcnt(%d)" % (7 - w))
        for r in range(4):
            e("v_add_f32 v%d, v%d, v%d" % (V_ACC + r, V_ACC + r, V_ACC + 4 * w + r))
    for r in range(4):
        e("v_bfi_b32 v%d, %s, v%d, v%d" % (V_ACC + r, sr(S_MASK), V_ACC + r, V_CNT))
    e("buffer_store_dwordx4 %s, v%d, %s, %s offen%s" % (vr(V_ACC, 4), V_B1, sr(SRD_WS, 4), sr(S_PART), MODS[opts.get("pubmod", 2)]))
    g.stamp(4)
    V_N = V_B0 + 2
    e("v_mov_b32 v%d, v%d" % (V_N, V_CNT))
    e("s_cmp_lt_u32 %s, 4" % sr(S_WAVE))
    e("s_cbranch_scc1 L_noq2")
    if lq0 < 12:
        dma_rows(SRD_Q, lq0, 12, qm)
    g.table_addr(V_B1 + 1)
    if opts.get("ack", 1):
        e("s_waitcnt vmcnt(%d)" % (12 - lq0))
    e("s_branch L_q2done")
    e("L_noq2:")
    g.table_addr(V_B1 + 1)
    e("s_waitcnt vmcnt(1)")
    qproj()
    if opts.get("ack", 1):
        e("s_waitcnt vmcnt(0)")
    e("L_q2done:")
    PL = V_ACC + 4

    def payload_loads():
        e("s_mov_b32 %s, %s" % (sr(S_T0), sr(S_HPART)))
        for c in range(8):
            e("buffer_load_dwordx4 %s, v%d, %s, %s offen%s" % (vr(PL + 4 * c, 4), V_B1, sr(SRD_WS, 4), sr(S_T0), xm))
            if c < 7:
                e("s_add_u32 %s, %s, %d" % (sr(S_T0), sr(S_T0), SL))
    if opts.get("pbar", 1):
        e("s_barrier")
    e("s_mov_b32 %s, 0x%x" % (sr(S_T2), SPIN))
    e("L_retry:")
    payload_loads()
    g.stamp(11)
    M = V_ACC + 36
    a = V_ACC
    for c in range(8):
        e("s_waitcnt vmcnt(%d)" % (7 - c))
        for r in range(4):
            e("v_xor_b32 v%d, v%d, v%d" % (PL + 4 * c + r, PL + 4 * c + r, V_N))
        if c == 0:
            e("v_or3_b32 v%d, v%d, v%d, v%d" % (M, PL, PL + 1, PL + 2))
            e("v_or_b32 v%d, v%d, v%d" % (M, M, PL + 3))
        else:
            e("v_or3_b32 v%d, v%d, v%d, v%d" % (M, M, PL + 4 * c, PL + 4 * c + 1))
            e("v_or3_b32 v%d, v%d, v%d, v%d" % (M, M, PL + 4 * c + 2, PL + 4 * c + 3))
        if c == 1:
            for r in range(4):
                e("v_add_f32 v%d, v%d, v%d" % (a + r, PL + r, PL + 4 + r))
        elif c > 1:
            for r in range(4):
                e("v_add_f32 v%d, v%d, v%d" % (a + r, a + r, PL + 4 * c + r))
    e("v_and_b32 v%d, 0x%x, v%d" % (M, TAGMASK, M))
    e("v_cmp_ne_u32 %s, 0, v%d" % (sr(S_EXEC, 2), M))
    e("s_sub_u32 %s, %s, 1" % (sr(S_T2), sr(S_T2)))
    e("s_cmp_eq_u32 %s, 0" % sr(S_T2))
    e("s_cbranch_scc1 L_got")
    e("s_cmp_lg_u64 %s, 0" % sr(S_EXEC, 2))
    e("s_cbranch_scc1 L_retry")
    e("L_got:")
    g.stamp(6)
    if opts.get("prof"):
        e("s_sub_u32 %s, 0x%x, %s" % (sr(S_T3), SPIN, sr(S_T2)))
    g.hilo_write(X_TAB)
    e("s_waitcnt lgkmcnt(0)")
    e("s_barrier")
    g.stamp(7)
    g.read_table(X_TAB)
    e("s_cmp_lt_u32 %s, 4" % sr(S_WAVE))
    e("s_cbranch_scc1 L_out")
    e("s_waitcnt lgkmcnt(0)")
    qproj()
    e("L_out:")
    g.stamp(5)
    e("s_waitcnt lgkmcnt(0)")
    e("v_lshlrev_b32 v%d, 4, v%d" % (V_T, V_LANE))
    e("v_add_u32 v%d, %s, v%d" % (V_T, sr(S_XB), V_T))

    def out_compute(T, accbase):
        den = accbase + 48
        e("v_mfma_f32_16x16x16_bf16 %s, %s, %s, 0" % (vr(den, 4), vr(V_AT + 24, 2), vr(V_P + 2 * T, 2)))
        for t in range(12):
            e("v_mfma_f32_16x16x16_bf16 %s, %s, %s, 0" % (vr(accbase + 4 * t, 4), vr(V_AT + 2 * t, 2), vr(V_P + 2 * T, 2)))
        e("v_add_f32 v%d, %s, v%d" % (den, hx(f32(1e-6)), den))
        e("v_rcp_f32 v%d, v%d" % (den, den))
        for u in range(6):
            x = accbase + 8 * u
            for r in range(8):
                e("v_mul_f32 v%d, v%d, v%d" % (x + r, x + r, den))
            for r in range(4):
                e("v_cvt_pk_bf16_f32 v%d, v%d, v%d" % (x + r, x + 2 * r, x + 2 * r + 1))
            e("ds_write_b128 v%d, %s offset:%d" % ((V_RE, V_RO)[u & 1], vr(x, 4), T * 6144 + (u >> 1) * 128))

    def out_store(T, stg):
        for jj in range(6):
            e("ds_read_b128 %s, v%d offset:%d" % (vr(stg + 4 * jj, 4), V_T, T * 6144 + jj * 1024))
        for jj in range(6):
            e("s_waitcnt lgkmcnt(%d)" % (5 - jj))
            so = ((S_B0, S_B04), (S_B1, S_B14))[T][jj >> 2]
            e("buffer_store_dwordx4 %s, v%d, %s, %s offen offset:%d%s" % (
                vr(stg + 4 * jj, 4), V_SW + jj, sr(SRD_O, 4), sr(so), (jj & 3) * 1024, sm))
    out_compute(0, V_ACC)
    e("s_waitcnt lgkmcnt(0)")
    out_store(0, V_STG)
    out_compute(1, V_K - 4)
    e("s_waitcnt lgkmcnt(0)")
    out_store(1, V_ACC)
    g.stamp(8)
    if opts.get("prof"):
        e("s_waitcnt vmcnt(0)")
        g.stamp(9)
        g.flush_stamps()
        e("v_mov_b32 v254, %s" % sr(S_T3))
        e("v_mov_b32 v255, 0")
        e("buffer_store_dwordx2 v[254:255], v253, %s, 0 offen offset:%d" % (sr(SRD_WS, 4), 15 * 8))
    e("L_end:")
    e("s_endpgm")
    txt = HEADER
    txt += "; @launch grid=(256,1,1) block=(512,1,1) lds=%d\n" % X_END
    txt += '.amdgcn_target "amdgcn-amd-amdhsa--gfx950"\n'
    txt += kernel_text(NAME + "_kernel", g)
    txt += kd(NAME + "_kernel")
    return txt


def gen_lat(opts):
    opts = dict(opts); opts["prof"] = 1
    g = Gen(opts)
    e = g
    mod = MODS[opts.get("mod", 1)]
    pm = MODS[opts.get("pmod", 2)]
    g.prologue("L_end")
    e("s_cmp_eq_u32 %s, 7" % sr(S_WAVE))
    e("s_cbranch_scc1 L_probe")
    g.stamp(0)
    if opts.get("stream", 1):
        g.load_rows(V_K, SRD_K, mod)
        g.load_rows(V_VA, SRD_V, mod)
        g.load_rows(V_Q, SRD_Q, mod)
    e("s_waitcnt vmcnt(0)")
    g.stamp(1)
    g.flush_stamps()
    e("s_endpgm")
    e("L_probe:")
    g.stamps = []
    for i in range(13):
        g.stamp(i)
        if opts.get("delay"):
            pass
        e("buffer_load_dwordx4 v[8:11], v%d, %s, 0 offen offset:%d%s" % (V_OW, sr(SRD_W, 4), 0, pm))
        e("s_waitcnt vmcnt(0)")
    g.stamp(13)
    g.flush_stamps()
    e("L_end:")
    e("s_endpgm")
    txt = HEADER
    txt += "; @launch grid=(256,1,1) block=(512,1,1) lds=0\n"
    txt += '.amdgcn_target "amdgcn-amd-amdhsa--gfx950"\n'
    txt += kernel_text(NAME + "_kernel", g)
    txt += kd(NAME + "_kernel")
    return txt


def gen_bench(opts):
    opts = dict(opts); opts["prof"] = 1
    g = Gen(opts)
    mod = {0: "", 1: " nt", 2: " sc1", 3: " sc0 sc1", 4: " sc0 sc1 nt", 5: " sc1 nt", 6: " sc0", 7: " sc0 nt"}[opts.get("mod", 0)]
    smod = {0: "", 1: " nt", 2: " sc1", 3: " sc0 sc1", 4: " sc0 sc1 nt", 5: " sc1 nt", 6: " sc0", 7: " sc0 nt"}[opts.get("smod", 0)]
    pat = opts.get("pat", 0)
    g.prologue("L_end")
    g.stamp(0)
    thr = opts.get("thr")
    if thr is not None:
        _call = Gen.__call__
        class TG(Gen):
            def __call__(self, t):
                _call(self, t)
                if t.startswith("buffer_load"):
                    _call(self, "s_waitcnt vmcnt(%d)" % (thr - 1))
        g.__class__ = TG
    g("v_lshlrev_b32 v8, 4, v%d" % V_LANE)
    g("s_add_u32 s98, %s, 4096" % sr(S_B0))
    g("s_add_u32 s99, %s, 8192" % sr(S_B0))
    def coal(vbase, srd):
        for i in range(12):
            so = (sr(S_B0), "s98", "s99")[i // 4]
            g("buffer_load_dwordx4 %s, v8, %s, %s offen offset:%d%s" % (vr(vbase + 4 * i, 4), sr(srd, 4), so, (i % 4) * 1024, mod))
    def coal_store(vbase, srd):
        for i in range(12):
            so = (sr(S_B0), "s98", "s99")[i // 4]
            g("buffer_store_dwordx4 %s, v8, %s, %s offen offset:%d%s" % (vr(vbase + 4 * i, 4), sr(srd, 4), so, (i % 4) * 1024, smod))
    def row_store(vbase, srd):
        for T in range(2):
            for t in range(6):
                g("buffer_store_dwordx4 %s, v%d, %s, %s offen offset:%d%s" % (
                    vr(vbase + 24 * T + 4 * t, 4), V_OK, sr(srd, 4), sr(S_B0 + T), 64 * t, smod))
    def dma(srd, ldsbase):
        g("s_mul_i32 s100, %s, 12288" % sr(S_WAVE))
        g("s_add_u32 s100, s100, %d" % ldsbase)
        for i in range(12):
            so = (sr(S_B0), "s98", "s99")[i // 4]
            g("s_add_u32 m0, s100, %d" % ((i // 4) * 4096))
            g("s_nop 0")
            g("buffer_load_dwordx4 v8, %s, %s offen offset:%d%s lds" % (sr(srd, 4), so, (i % 4) * 1024, mod))
    what = opts.get("what", 3)
    if pat == 3:
        if what & 1: dma(SRD_K, 0)
        what &= ~1
        pat = 0
    if opts.get("wload"):
        g.load_w()
    if what & 1:
        if pat in (0, 4): coal(V_K, SRD_K)
        else: g.load_rows(V_K, SRD_K, mod)
    if what & 2:
        if pat == 0: coal(V_VA, SRD_V)
        elif pat == 1: g.load_rows(V_VA, SRD_V, mod)
        else: g.load_v(mod)
    if what & 4:
        if pat in (0, 4): coal(V_Q, SRD_Q)
        else: g.load_rows(V_Q, SRD_Q, mod)
    g("s_waitcnt vmcnt(0)")
    g.stamp(1)
    if what & 8:
        if opts.get("spat", 0) == 0: coal_store(V_Q, SRD_O)
        else: row_store(V_Q, SRD_O)
        g.stamp(2)
        g("s_waitcnt vmcnt(0)")
        g.stamp(3)
    g.flush_stamps()
    g("L_end:")
    g("s_endpgm")
    txt = HEADER
    txt += "; @launch grid=(%d,1,1) block=(%d,1,1) lds=%d\n" % (opts.get("grid", 256), opts.get("block", 512), opts.get("lds", 0))
    txt += '.amdgcn_target "amdgcn-amd-amdhsa--gfx950"\n'
    txt += kernel_text(NAME + "_kernel", g)
    txt += kd(NAME + "_kernel", opts.get("vgpr", 256))
    return txt


if __name__ == "__main__":
    import argparse
    ap = argparse.ArgumentParser()
    ap.add_argument("variant")
    ap.add_argument("-o", default="cdna_kernels/%s.s" % NAME)
    ap.add_argument("--opt", action="append", default=[])
    a = ap.parse_args()
    opts = {}
    for kv in a.opt:
        k, _, v = kv.partition("=")
        opts[k] = (int(v, 0) if v else 1)
    txt = globals()["gen_" + a.variant](opts)
    open(a.o, "w").write(txt)
    print("wrote", a.o, len(txt))
```

```python
import struct, sys, os, math
sys.path.insert(0, os.path.dirname(os.path.abspath(__file__)))
import hazard

NAME = "standalone__linear_kernel_rfa__prompt"


def f32(x):
    return struct.unpack("<I", struct.pack("<f", x))[0]


def hx(x):
    return "0x%08x" % (x & 0xFFFFFFFF)


D = 192
RB = 384
TENSOR_BYTES = 32 * 2048 * RB
PART_BYTES = 13 * 512
WS_BYTES = 268435456
SCALE = float(D) ** -0.25
LOG2E = 1.4426950408889634
C_EXP = SCALE * LOG2E
C_SQ = -0.5 * SCALE
C_BIAS = -1.5


def vr(a, n=1):
    return "v%d" % a if n == 1 else "v[%d:%d]" % (a, a + n - 1)


def sr(a, n=1):
    return "s%d" % a if n == 1 else "s[%d:%d]" % (a, a + n - 1)


S_Q, S_K, S_V, S_W = 4, 6, 8, 10
S_O, S_DBG, S_WS = 12, 14, 16
S_WAVE = 18
S_TMP = 19
SRD_K, SRD_V, SRD_W, SRD_WS, SRD_Q, SRD_O, SRD_DBG = 20, 24, 28, 32, 36, 40, 44
S_B0, S_B1 = 48, 49
S_SELLO, S_SELHI = 50, 51
S_CEXP = 52
S_H, S_C = 53, 54
S_PART = 55
S_HPART = 56
S_T0, S_T1, S_T2, S_T3 = 57, 58, 59, 60
S_EXEC = 62
S_STAMP = 64
S_PROF = 66
S_CNT = 67
S_ST0 = 68

V_TID = 0
V_LANE = 1
V_OK = 2
V_OVA = 3
V_OVB = 4
V_OW = 5
V_CSQ = 6
V_M15 = 7
V_W = 8
V_K = 32
V_VA = 80
V_VB = 112
V_Q = 128
V_ACC = 176
V_DP = 228
V_SS = 236
V_P = 240
V_B0 = 244
V_B1 = 248
V_ONE = 252
V_AT = 80
V_X = 106


class Gen:
    def __init__(self, opts):
        self.L = []
        self.o = opts
        self.uid = 0

    def __call__(self, s):
        for l in s.split("\n"):
            self.L.append("    " + l.strip() if l.strip() and not l.strip().endswith(":") else l.strip())

    def label(self, base):
        self.uid += 1
        return "%s_%d" % (base, self.uid)

    def stamp(self, idx):
        if not self.o.get("prof"):
            return
        self.stamps = getattr(self, "stamps", set())
        if not isinstance(self.stamps, set):
            self.stamps = set(self.stamps)
        self.stamps.add(idx)
        self("s_memrealtime %s" % sr(S_ST0 + 2 * idx, 2))

    def zero_stamps(self):
        if not self.o.get("prof"):
            return
        for i in range(15):
            self("s_mov_b64 %s, 0" % sr(S_ST0 + 2 * i, 2))

    def flush_stamps(self):
        if not self.o.get("prof"):
            return
        e = self
        e("s_waitcnt lgkmcnt(0)")
        e("v_mov_b32 v253, %s" % sr(S_PROF))
        e("s_mov_b64 exec, 1")
        for idx in sorted(self.stamps):
            e("v_mov_b32 v254, %s" % sr(S_ST0 + 2 * idx))
            e("v_mov_b32 v255, %s" % sr(S_ST0 + 2 * idx + 1))
            e("buffer_store_dwordx2 v[254:255], v253, %s, 0 offen offset:%d" % (sr(SRD_WS, 4), idx * 8))
            e("s_nop 1")

    def prologue(self, end_label):
        e = self
        e("s_cmp_ge_u32 s2, 256")
        e("s_cbranch_scc1 %s" % end_label)
        e("s_load_dwordx8 s[4:11], s[0:1], 0")
        e("s_load_dwordx4 s[12:15], s[0:1], 32")
        e("s_load_dwordx2 s[16:17], s[0:1], 48")
        e("v_and_b32 v%d, 63, v0" % V_LANE)
        e("v_lshrrev_b32 v8, 6, v0")
        e("v_and_b32 v9, 15, v0")
        e("v_bfe_u32 v10, v0, 4, 2")
        e("v_readfirstlane_b32 %s, v8" % sr(S_WAVE))
        e("v_mul_u32_u24 v11, %d, v9" % RB)
        e("v_lshlrev_b32 v12, 4, v10")
        e("v_add_u32 v%d, v11, v12" % V_OK)
        e("v_mul_u32_u24 v13, %d, v10" % (4 * RB))
        e("v_lshlrev_b32 v14, 4, v9")
        e("v_add_u32 v%d, v13, v14" % V_OVA)
        e("v_lshlrev_b32 v14, 3, v9")
        e("v_add_u32 v13, 256, v13")
        e("v_add_u32 v%d, v13, v14" % V_OVB)
        e("v_and_b32 v14, 7, v9")
        e("v_mul_u32_u24 v14, %d, v14" % RB)
        e("v_add_u32 v%d, v14, v12" % V_OW)
        e("v_mov_b32 v%d, %s" % (V_CSQ, hx(f32(C_SQ))))
        e("v_mov_b32 v%d, %s" % (V_M15, hx(f32(C_BIAS))))
        e("s_and_b32 %s, s2, 7" % sr(S_T0))
        e("s_lshr_b32 %s, s2, 6" % sr(S_T1))
        e("s_lshl_b32 %s, %s, 3" % (sr(S_T1), sr(S_T1)))
        e("s_or_b32 %s, %s, %s" % (sr(S_H), sr(S_T0), sr(S_T1)))
        e("s_lshr_b32 %s, s2, 3" % sr(S_C))
        e("s_and_b32 %s, %s, 7" % (sr(S_C), sr(S_C)))
        e("s_mul_i32 %s, %s, %d" % (sr(S_T0), sr(S_H), 2048 * RB))
        e("s_mul_i32 %s, %s, %d" % (sr(S_T1), sr(S_C), 256 * RB))
        e("s_add_u32 %s, %s, %s" % (sr(S_T0), sr(S_T0), sr(S_T1)))
        e("s_mul_i32 %s, %s, %d" % (sr(S_T1), sr(S_WAVE), 32 * RB))
        e("s_add_u32 %s, %s, %s" % (sr(S_B0), sr(S_T0), sr(S_T1)))
        e("s_add_u32 %s, %s, %d" % (sr(S_B1), sr(S_B0), 16 * RB))
        e("s_mul_i32 %s, %s, %d" % (sr(S_HPART), sr(S_H), 8 * PART_BYTES))
        e("s_mul_i32 %s, %s, %d" % (sr(S_T1), sr(S_C), PART_BYTES))
        e("s_add_u32 %s, %s, %s" % (sr(S_PART), sr(S_HPART), sr(S_T1)))
        e("s_mov_b32 %s, 0x05040100" % sr(S_SELLO))
        e("s_mov_b32 %s, 0x07060302" % sr(S_SELHI))
        e("s_mov_b32 %s, %s" % (sr(S_CEXP), hx(f32(C_EXP))))
        if self.o.get("prof"):
            e("s_lshl_b32 %s, s2, 3" % sr(S_PROF))
            e("s_add_u32 %s, %s, %s" % (sr(S_PROF), sr(S_PROF), sr(S_WAVE)))
            e("s_lshl_b32 %s, %s, 7" % (sr(S_PROF), sr(S_PROF)))
            e("s_add_u32 %s, %s, 0x%x" % (sr(S_PROF), sr(S_PROF), 128 << 20))
        e("s_waitcnt lgkmcnt(0)")
        for srd, ptr, nbytes in ((SRD_K, S_K, TENSOR_BYTES), (SRD_V, S_V, TENSOR_BYTES), (SRD_W, S_W, 8 * RB),
                                 (SRD_WS, S_WS, WS_BYTES), (SRD_Q, S_Q, TENSOR_BYTES), (SRD_O, S_O, TENSOR_BYTES),
                                 (SRD_DBG, S_DBG, 256)):
            e("s_mov_b32 %s, %s" % (sr(srd), sr(ptr)))
            e("s_and_b32 %s, %s, 0xffff" % (sr(srd + 1), sr(ptr + 1)))
            e("s_mov_b32 %s, 0x%x" % (sr(srd + 2), nbytes))
            e("s_mov_b32 %s, 0x20000" % sr(srd + 3))

    def load_w(self):
        for t in range(6):
            self("buffer_load_dwordx4 %s, v%d, %s, 0 offen offset:%d" % (vr(V_W + 4 * t, 4), V_OW, sr(SRD_W, 4), 64 * t))

    def load_rows(self, vbase, srd, mod=""):
        for T in range(2):
            for t in range(6):
                self("buffer_load_dwordx4 %s, v%d, %s, %s offen offset:%d%s" % (
                    vr(vbase + 24 * T + 4 * t, 4), V_OK, sr(srd, 4), sr(S_B0 + T), 64 * t, mod))

    def load_v(self, mod=""):
        for j in range(8):
            self("buffer_load_dwordx4 %s, v%d, %s, %s offen offset:%d%s" % (
                vr(V_VA + 4 * j, 4), V_OVA, sr(SRD_V, 4), sr(S_B0 + (j >> 2)), (j & 3) * RB, mod))
            self("buffer_load_dwordx2 %s, v%d, %s, %s offen offset:%d%s" % (
                vr(V_VB + 2 * j, 2), V_OVB, sr(SRD_V, 4), sr(S_B0 + (j >> 2)), (j & 3) * RB, mod))

    def proj(self, vbase, T, is_k):
        e = self
        dp = V_DP + 4 * T
        ss0, ss1 = V_SS + 2 * T, V_SS + 2 * T + 1
        e("v_mov_b32 v%d, 0" % ss0)
        e("v_mov_b32 v%d, 0" % ss1)
        for t in range(6):
            x = vbase + 24 * T + 4 * t
            c = "0" if t == 0 else vr(dp, 4)
            if is_k:
                e("v_mfma_f32_16x16x32_bf16 %s, %s, %s, %s" % (vr(dp, 4), vr(x, 4), vr(V_W + 4 * t, 4), c))
            else:
                e("v_mfma_f32_16x16x32_bf16 %s, %s, %s, %s" % (vr(dp, 4), vr(V_W + 4 * t, 4), vr(x, 4), c))
            for i in range(4):
                e("v_dot2c_f32_bf16 v%d, v%d, v%d" % ((ss0, ss1)[i & 1], x + i, x + i))
        e("v_add_f32 v%d, v%d, v%d" % (ss0, ss0, ss1))
        if is_k:
            e("v_mfma_f32_16x16x4_f32 %s, v%d, v%d, %s" % (vr(dp, 4), ss0, V_CSQ, vr(dp, 4)))
        else:
            e("v_mfma_f32_16x16x4_f32 %s, v%d, v%d, %s" % (vr(dp, 4), V_CSQ, ss0, vr(dp, 4)))

    def phi(self, T):
        e = self
        dp = V_DP + 4 * T
        for r in range(4):
            e("v_fma_f32 v%d, v%d, %s, v%d" % (dp + r, dp + r, sr(S_CEXP), V_M15))
        for r in range(4):
            e("v_exp_f32 v%d, v%d" % (dp + r, dp + r))
        for r in range(4):
            e("v_add_f32 v%d, %s, v%d" % (dp + r, hx(f32(1e-6)), dp + r))

    def kv_mfma(self):
        e = self
        e("v_cvt_pk_bf16_f32 v%d, v%d, v%d" % (V_P + 0, V_DP + 0, V_DP + 1))
        e("v_cvt_pk_bf16_f32 v%d, v%d, v%d" % (V_P + 1, V_DP + 2, V_DP + 3))
        e("v_cvt_pk_bf16_f32 v%d, v%d, v%d" % (V_P + 2, V_DP + 4, V_DP + 5))
        e("v_cvt_pk_bf16_f32 v%d, v%d, v%d" % (V_P + 3, V_DP + 6, V_DP + 7))

    def kv_tiles(self):
        e = self
        for i in range(4):
            e("v_mov_b32 v%d, 0x3f803f80" % (V_ONE + i))
        e("v_mfma_f32_16x16x32_bf16 %s, %s, %s, 0" % (vr(V_ACC + 48, 4), vr(V_P, 4), vr(V_ONE, 4)))
        for tau in range(12):
            b = (V_B0, V_B1)[tau & 1]
            if tau < 8:
                c, half = tau >> 1, tau & 1
                src = lambda j: V_VA + 4 * j + c
            else:
                c, half = (tau - 8) >> 1, (tau - 8) & 1
                src = lambda j: V_VB + 2 * j + c
            sel = (S_SELLO, S_SELHI)[half]
            for p in range(4):
                e("v_perm_b32 v%d, v%d, v%d, %s" % (b + p, src(2 * p + 1), src(2 * p), sr(sel)))
            e("v_mfma_f32_16x16x32_bf16 %s, %s, %s, 0" % (vr(V_ACC + 4 * tau, 4), vr(V_P, 4), vr(b, 4)))

    def wg_reduce_and_store(self, mod):
        e = self
        e("s_mul_i32 %s, %s, %d" % (sr(S_T0), sr(S_WAVE), PART_BYTES))
        e("v_lshlrev_b32 v%d, 4, v%d" % (V_B0, V_LANE))
        e("v_add_u32 v%d, %s, v%d" % (V_B0, sr(S_T0), V_B0))
        e("s_mov_b32 exec_lo, -1")
        e("s_mov_b32 exec_hi, 0")
        for tau in range(13):
            e("ds_write_b128 v%d, %s offset:%d" % (V_B0, vr(V_ACC + 4 * tau, 4), tau * 512))
        e("s_mov_b64 exec, -1")
        e("v_lshlrev_b32 v%d, 4, v0" % V_B1)
        e("s_waitcnt lgkmcnt(0)")
        e("s_barrier")
        skip = self.label("L_red_skip")
        e("v_cmp_gt_u32 vcc, 416, v0")
        e("s_and_saveexec_b64 %s, vcc" % sr(S_EXEC, 2))
        e("s_cbranch_execz %s" % skip)
        for w in range(8):
            e("ds_read_b128 %s, v%d offset:%d" % (vr(V_ACC + 4 * w, 4), V_B1, w * PART_BYTES))
        for w in range(1, 8):
            e("s_waitcnt lgkmcnt(%d)" % (7 - w))
            for r in range(4):
                e("v_add_f32 v%d, v%d, v%d" % (V_ACC + r, V_ACC + r, V_ACC + 4 * w + r))
        if self.o.get("sanitize"):
            for r in range(4):
                e("v_min_u32 v%d, -2, v%d" % (V_ACC + r, V_ACC + r))
        e("buffer_store_dwordx4 %s, v%d, %s, %s offen%s" % (vr(V_ACC, 4), V_B1, sr(SRD_WS, 4), sr(S_PART), mod))
        e("%s:" % skip)
        e("s_mov_b64 exec, %s" % sr(S_EXEC, 2))

    def table_addr(self, vt=0, x=V_X, dst=None):
        e = self
        if dst is None:
            dst = x
        e("v_lshrrev_b32 v%d, 5, v%d" % (x + 1, vt))
        e("v_and_b32 v%d, 15, v%d" % (x + 2, vt))
        e("v_bfe_u32 v%d, v%d, 4, 1" % (x + 3, vt))
        e("v_lshl_add_u32 v%d, v%d, 3, v%d" % (x + 4, x + 2, x + 1))
        e("v_lshl_add_u32 v%d, v%d, 2, v%d" % (x + 5, x + 2, x + 1))
        e("v_add_u32 v%d, 120, v%d" % (x + 5, x + 5))
        e("v_cmp_gt_u32 vcc, 8, v%d" % (x + 1))
        e("v_cndmask_b32 v%d, v%d, v%d, vcc" % (x + 4, x + 5, x + 4))
        e("v_lshrrev_b32 v%d, 5, v%d" % (x + 5, x + 4))
        e("v_bfe_u32 v%d, v%d, 2, 1" % (x + 6, x + 4))
        e("v_lshl_add_u32 v%d, v%d, 1, v%d" % (x + 5, x + 5, x + 6))
        e("v_bfe_u32 v%d, v%d, 3, 2" % (x + 6, x + 4))
        e("v_and_b32 v%d, 3, v%d" % (x + 7, x + 4))
        e("v_lshl_add_u32 v%d, v%d, 2, v%d" % (x + 6, x + 6, x + 7))
        e("v_cmp_eq_u32 vcc, 12, v%d" % (x + 1))
        e("v_cndmask_b32 v%d, v%d, v%d, vcc" % (x + 5, x + 5, x + 1))
        e("v_cndmask_b32 v%d, v%d, v%d, vcc" % (x + 6, x + 6, x + 2))
        e("v_lshl_add_u32 v%d, v%d, 4, v%d" % (x + 6, x + 3, x + 6))
        e("v_lshlrev_b32 v%d, 3, v%d" % (x + 6, x + 6))
        e("v_lshl_add_u32 v%d, v%d, 9, v%d" % (dst, x + 5, x + 6))

    def gather_partials(self, mod, lds_base):
        e = self
        skip = self.label("L_gat_skip")
        e("v_lshlrev_b32 v%d, 4, v0" % V_B1)
        e("v_cmp_gt_u32 vcc, 416, v0")
        e("s_and_saveexec_b64 %s, vcc" % sr(S_EXEC, 2))
        e("s_cbranch_execz %s" % skip)
        e("s_mov_b32 %s, %s" % (sr(S_T0), sr(S_HPART)))
        for c in range(8):
            e("buffer_load_dwordx4 %s, v%d, %s, %s offen%s" % (vr(V_ACC + 4 * c, 4), V_B1, sr(SRD_WS, 4), sr(S_T0), mod))
            if c < 7:
                e("s_add_u32 %s, %s, %d" % (sr(S_T0), sr(S_T0), PART_BYTES))
        self.table_addr()
        for c in range(1, 8):
            e("s_waitcnt vmcnt(%d)" % (7 - c))
            for r in range(4):
                e("v_add_f32 v%d, v%d, v%d" % (V_ACC + r, V_ACC + r, V_ACC + 4 * c + r))
        self.hilo_write(lds_base)
        e("%s:" % skip)
        e("s_mov_b64 exec, %s" % sr(S_EXEC, 2))

    def hilo_write(self, lds_base, a=V_ACC, tmp=V_ACC + 8, vaddr=V_X):
        e = self
        hi = tmp
        lo = tmp + 2
        t = tmp + 4
        e("v_cvt_pk_bf16_f32 v%d, v%d, v%d" % (hi, a, a + 1))
        e("v_cvt_pk_bf16_f32 v%d, v%d, v%d" % (hi + 1, a + 2, a + 3))
        e("v_lshlrev_b32 v%d, 16, v%d" % (t, hi))
        e("v_and_b32 v%d, 0xffff0000, v%d" % (t + 1, hi))
        e("v_lshlrev_b32 v%d, 16, v%d" % (t + 2, hi + 1))
        e("v_and_b32 v%d, 0xffff0000, v%d" % (t + 3, hi + 1))
        for r in range(4):
            e("v_sub_f32 v%d, v%d, v%d" % (t + r, a + r, t + r))
        e("v_cvt_pk_bf16_f32 v%d, v%d, v%d" % (lo, t, t + 1))
        e("v_cvt_pk_bf16_f32 v%d, v%d, v%d" % (lo + 1, t + 2, t + 3))
        e("ds_write_b64 v%d, %s offset:%d" % (vaddr, vr(hi, 2), lds_base))
        e("ds_write_b64 v%d, %s offset:%d" % (vaddr, vr(lo, 2), lds_base + 256))

    def read_table(self, lds_base):
        e = self
        e("v_lshlrev_b32 v%d, 3, v%d" % (V_B0, V_LANE))
        for t in range(13):
            e("ds_read_b64 %s, v%d offset:%d" % (vr(V_AT + 2 * t, 2), V_B0, lds_base + t * 512))

    def pack_phi_q(self, T):
        e = self
        dp = V_DP + 4 * T
        e("v_cvt_pk_bf16_f32 v%d, v%d, v%d" % (V_P + 2 * T, dp, dp + 1))
        e("v_cvt_pk_bf16_f32 v%d, v%d, v%d" % (V_P + 2 * T + 1, dp + 2, dp + 3))

    def out_tile(self, T, accbase, mod):
        e = self
        den = accbase + 48
        e("v_mfma_f32_16x16x16_bf16 %s, %s, %s, 0" % (vr(den, 4), vr(V_AT + 24, 2), vr(V_P + 2 * T, 2)))
        for t in range(12):
            e("v_mfma_f32_16x16x16_bf16 %s, %s, %s, 0" % (vr(accbase + 4 * t, 4), vr(V_AT + 2 * t, 2), vr(V_P + 2 * T, 2)))
        e("v_add_f32 v%d, %s, v%d" % (den, hx(f32(1e-6)), den))
        e("v_rcp_f32 v%d, v%d" % (den, den))
        for u in range(6):
            a = accbase + 8 * u
            for r in range(8):
                e("v_mul_f32 v%d, v%d, v%d" % (a + r, a + r, den))
            o = a
            e("v_cvt_pk_bf16_f32 v%d, v%d, v%d" % (o + 0, a + 0, a + 1))
            e("v_cvt_pk_bf16_f32 v%d, v%d, v%d" % (o + 1, a + 2, a + 3))
            e("v_cvt_pk_bf16_f32 v%d, v%d, v%d" % (o + 2, a + 4, a + 5))
            e("v_cvt_pk_bf16_f32 v%d, v%d, v%d" % (o + 3, a + 6, a + 7))
            e("buffer_store_dwordx4 %s, v%d, %s, %s offen offset:%d%s" % (
                vr(o, 4), V_OK, sr(SRD_O, 4), sr(S_B0 + T), 64 * u, mod))


def kd(name, vgpr=256, sgpr=102):
    acc = min(256, (vgpr + 3) // 4 * 4)
    return """.section .rodata,"a"
.p2align 6
.amdhsa_kernel %s
  .amdhsa_next_free_vgpr %d
  .amdhsa_next_free_sgpr %d
  .amdhsa_accum_offset %d
  .amdhsa_group_segment_fixed_size 0
  .amdhsa_kernarg_size 56
  .amdhsa_user_sgpr_count 2
  .amdhsa_user_sgpr_kernarg_segment_ptr 1
  .amdhsa_system_sgpr_workgroup_id_x 1
.end_amdhsa_kernel
""" % (name, vgpr, sgpr, acc)


HEADER = """; Kernarg layout (56 bytes): q, k, v, omega, out, debug, ws  (8-byte pointers)
"""


def kernel_text(name, g):
    lines, n = hazard.fix(g.L)
    return ".text\n.globl %s\n.p2align 8\n.type %s,@function\n%s:\n%s\n" % (name, name, name, "\n".join(lines))


MODS = {0: "", 1: " nt", 2: " sc1", 3: " sc0 sc1", 4: " sc0 sc1 nt", 5: " sc1 nt", 6: " sc0", 7: " sc0 nt"}


def gen_split(opts):
    lm = MODS[opts.get("mod", 1)]
    sm = MODS[opts.get("smod", 0)]
    g = Gen(opts)
    g.prologue("L_end1")
    g.stamp(0)
    g.load_w()
    g.load_rows(V_K, SRD_K, lm)
    g.load_v(lm)
    g("s_waitcnt vmcnt(22)")
    g.proj(V_K, 0, True)
    g("s_waitcnt vmcnt(16)")
    g.proj(V_K, 1, True)
    g.phi(0)
    g.phi(1)
    g.kv_mfma()
    g.stamp(1)
    g("s_waitcnt vmcnt(0)")
    g.stamp(2)
    g.kv_tiles()
    g.wg_reduce_and_store("")
    g.stamp(3)
    g.flush_stamps()
    g("L_end1:")
    g("s_endpgm")
    h = Gen(opts)
    h.uid = 1000
    h.prologue("L_end2")
    h.stamp(4)
    h.load_w()
    h.load_rows(V_Q, SRD_Q, lm)
    h.gather_partials("", 0)
    h("s_waitcnt vmcnt(0) lgkmcnt(0)")
    h("s_barrier")
    h.read_table(0)
    for T in range(2):
        h.proj(V_Q, T, False)
        h.phi(T)
        h.pack_phi_q(T)
    h("s_waitcnt lgkmcnt(0)")
    h.stamp(5)
    h.out_tile(0, V_ACC, sm)
    h.out_tile(1, V_K - 4, sm)
    h.stamp(6)
    h.flush_stamps()
    h("L_end2:")
    h("s_endpgm")
    lds1 = 8 * PART_BYTES
    lds2 = PART_BYTES
    txt = HEADER
    txt += "; @launch kernel=rfa_kv_kernel grid=(256,1,1) block=(512,1,1) lds=%d\n" % lds1
    txt += "; @launch kernel=rfa_out_kernel grid=(256,1,1) block=(512,1,1) lds=%d\n" % lds2
    txt += '.amdgcn_target "amdgcn-amd-amdhsa--gfx950"\n'
    txt += kernel_text("rfa_kv_kernel", g)
    txt += kernel_text("rfa_out_kernel", h)
    txt += kd("rfa_kv_kernel") + kd("rfa_out_kernel")
    return txt


SLOT = 7168
LDS_TAB = 8 * PART_BYTES


def gen_fused(opts):
    lm = MODS[opts.get("mod", 1)]
    qm = MODS[opts.get("qmod", opts.get("mod", 1))]
    sm = MODS[opts.get("smod", 0)]
    xm = MODS[opts.get("xmod", 2)]
    qpos = opts.get("qpos", 2)
    g = Gen(opts)
    e = g
    g.prologue("L_end")
    e("s_mul_i32 %s, %s, %d" % (sr(S_HPART), sr(S_H), 8 * SLOT))
    e("s_mul_i32 %s, %s, %d" % (sr(S_T1), sr(S_C), SLOT))
    e("s_add_u32 %s, %s, %s" % (sr(S_PART), sr(S_HPART), sr(S_T1)))
    g.stamp(0)
    e("s_cmp_lg_u32 %s, 7" % sr(S_WAVE))
    e("s_cbranch_scc1 L_noclear")
    e("v_lshlrev_b32 v8, 4, v%d" % V_LANE)
    for i in range(4):
        e("v_mov_b32 v%d, -1" % (12 + i))
    e("s_add_u32 %s, %s, 4096" % (sr(S_T0), sr(S_PART)))
    for i in range(7):
        e("buffer_store_dwordx4 v[12:15], v8, %s, %s offen offset:%d%s" % (
            sr(SRD_WS, 4), sr(S_PART) if i < 4 else sr(S_T0), (i & 3) * 1024, xm))
    e("s_nop 1")
    e("L_noclear:")
    g.load_w()
    g.load_rows(V_K, SRD_K, lm)
    g.load_v(lm)
    nq = 0
    if qpos == 0:
        g.load_rows(V_Q, SRD_Q, qm); nq = 12
    if opts.get("bara", 1):
        e("s_barrier")
    if qpos == 1:
        g.load_rows(V_Q, SRD_Q, qm); nq = 12
    e("s_waitcnt vmcnt(%d)" % (22 + nq))
    g.proj(V_K, 0, True)
    e("s_waitcnt vmcnt(%d)" % (16 + nq))
    g.proj(V_K, 1, True)
    g.phi(0)
    g.phi(1)
    g.kv_mfma()
    g.stamp(1)
    e("s_lshl_b32 %s, %s, 2" % (sr(S_T0), sr(S_H)))
    e("v_mov_b32 v%d, %s" % (V_B0, sr(S_T0)))
    e("s_cmp_lg_u32 %s, 7" % sr(S_WAVE))
    e("s_cbranch_scc1 L_nosig")
    e("v_mov_b32 v%d, 1" % (V_B0 + 1))
    e("s_mov_b64 exec, 1")
    e("buffer_atomic_add v%d, v%d, %s, 0 offen" % (V_B0 + 1, V_B0, sr(SRD_DBG, 4)))
    e("s_mov_b64 exec, -1")
    e("L_nosig:")
    e("s_cmp_lg_u32 %s, 0" % sr(S_WAVE))
    e("s_cbranch_scc1 L_nocnt")
    e("buffer_load_dword v%d, v%d, %s, 0 offen sc1" % (V_B1 + 3, V_B0, sr(SRD_DBG, 4)))
    e("L_nocnt:")
    if qpos == 2:
        g.load_rows(V_Q, SRD_Q, qm)
        e("s_waitcnt vmcnt(12)")
    elif qpos in (0, 1):
        e("s_waitcnt vmcnt(%d)" % 13)
        e("s_cmp_eq_u32 %s, 7" % sr(S_WAVE))
        e("s_cbranch_scc1 L_vok")
        e("s_cmp_eq_u32 %s, 0" % sr(S_WAVE))
        e("s_cbranch_scc1 L_vok")
        e("s_waitcnt vmcnt(12)")
        e("L_vok:")
    else:
        e("s_waitcnt vmcnt(0)")
    g.stamp(2)
    if qpos in (0, 1):
        pass
    else:
        e("v_readfirstlane_b32 %s, v%d" % (sr(S_CNT), V_B1 + 3))
    g.kv_tiles()
    e("s_mul_i32 %s, %s, %d" % (sr(S_T0), sr(S_WAVE), PART_BYTES))
    e("v_lshlrev_b32 v%d, 4, v%d" % (V_B0, V_LANE))
    e("v_add_u32 v%d, %s, v%d" % (V_B0, sr(S_T0), V_B0))
    e("s_mov_b32 exec_lo, -1")
    e("s_mov_b32 exec_hi, 0")
    for tau in range(13):
        e("ds_write_b128 v%d, %s offset:%d" % (V_B0, vr(V_ACC + 4 * tau, 4), tau * 512))
    e("s_mov_b64 exec, -1")
    if qpos == 3:
        g.load_rows(V_Q, SRD_Q, qm)
    e("s_cmp_lg_u32 %s, 0" % sr(S_WAVE))
    e("s_cbranch_scc1 L_cntok")
    e("s_cmp_eq_u32 %s, 8" % sr(S_CNT))
    e("s_cbranch_scc1 L_cntok")
    e("s_lshl_b32 %s, %s, 2" % (sr(S_T0), sr(S_H)))
    e("v_mov_b32 v%d, %s" % (V_B1, sr(S_T0)))
    e("s_mov_b32 %s, 0x10000" % sr(S_T2))
    e("L_cntspin:")
    e("buffer_load_dword v%d, v%d, %s, 0 offen sc1" % (V_B1 + 3, V_B1, sr(SRD_DBG, 4)))
    e("s_waitcnt vmcnt(0)")
    e("v_readfirstlane_b32 %s, v%d" % (sr(S_CNT), V_B1 + 3))
    e("s_sub_u32 %s, %s, 1" % (sr(S_T2), sr(S_T2)))
    e("s_cmp_eq_u32 %s, 0" % sr(S_T2))
    e("s_cbranch_scc1 L_cntok")
    e("s_cmp_lg_u32 %s, 8" % sr(S_CNT))
    e("s_cbranch_scc1 L_cntspin")
    e("L_cntok:")
    e("v_min_u32 v%d, 415, v0" % (V_B1 + 1))
    e("v_lshlrev_b32 v%d, 4, v%d" % (V_B1, V_B1 + 1))
    e("s_waitcnt lgkmcnt(0)")
    e("s_barrier")
    g.stamp(3)
    for w in range(8):
        e("ds_read_b128 %s, v%d offset:%d" % (vr(V_ACC + 4 * w, 4), V_B1, w * PART_BYTES))
    for w in range(1, 8):
        e("s_waitcnt lgkmcnt(%d)" % (7 - w))
        for r in range(4):
            e("v_add_f32 v%d, v%d, v%d" % (V_ACC + r, V_ACC + r, V_ACC + 4 * w + r))
    for r in range(4):
        e("v_min_u32 v%d, -2, v%d" % (V_ACC + r, V_ACC + r))
    e("buffer_store_dwordx4 %s, v%d, %s, %s offen%s" % (vr(V_ACC, 4), V_B1, sr(SRD_WS, 4), sr(S_PART), xm))
    g.stamp(4)
    PL = V_ACC + 4

    def payload_loads():
        e("s_mov_b32 %s, %s" % (sr(S_T0), sr(S_HPART)))
        for c in range(8):
            e("buffer_load_dwordx4 %s, v%d, %s, %s offen%s" % (vr(PL + 4 * c, 4), V_B1, sr(SRD_WS, 4), sr(S_T0), xm))
            if c < 7:
                e("s_add_u32 %s, %s, %d" % (sr(S_T0), sr(S_T0), SLOT))
    payload_loads()
    g.table_addr(V_B1 + 1)
    e("s_waitcnt vmcnt(9)")
    g.stamp(5)
    for T in range(2):
        g.proj(V_Q, T, False)
        g.phi(T)
        g.pack_phi_q(T)
    e("s_mov_b32 %s, 0x10000" % sr(S_T2))
    e("s_waitcnt vmcnt(0)")
    e("s_branch L_chk")
    e("L_retry:")
    payload_loads()
    e("s_waitcnt vmcnt(0)")
    e("L_chk:")
    M = V_ACC + 36
    e("v_max3_u32 v%d, v%d, v%d, v%d" % (M, PL, PL + 1, PL + 2))
    i = 3
    while i < 32:
        if i + 1 < 32:
            e("v_max3_u32 v%d, v%d, v%d, v%d" % (M, M, PL + i, PL + i + 1)); i += 2
        else:
            e("v_max_u32 v%d, v%d, v%d" % (M, M, PL + i)); i += 1
    e("v_cmp_eq_u32 %s, -1, v%d" % (sr(S_EXEC, 2), M))
    e("s_sub_u32 %s, %s, 1" % (sr(S_T2), sr(S_T2)))
    e("s_cmp_eq_u32 %s, 0" % sr(S_T2))
    e("s_cbranch_scc1 L_got")
    e("s_cmp_lg_u64 %s, 0" % sr(S_EXEC, 2))
    e("s_cbranch_scc1 L_retry")
    e("L_got:")
    g.stamp(6)
    if opts.get("prof"):
        e("s_sub_u32 %s, 0x10000, %s" % (sr(S_T3), sr(S_T2)))
    a = V_ACC
    for r in range(4):
        e("v_add_f32 v%d, v%d, v%d" % (a + r, PL + r, PL + 4 + r))
    for c in range(2, 8):
        for r in range(4):
            e("v_add_f32 v%d, v%d, v%d" % (a + r, a + r, PL + 4 * c + r))
    g.hilo_write(LDS_TAB)
    e("s_waitcnt lgkmcnt(0)")
    e("s_barrier")
    g.stamp(7)
    g.read_table(LDS_TAB)
    e("s_waitcnt lgkmcnt(0)")
    g.out_tile(0, V_ACC, sm)
    g.out_tile(1, V_K - 4, sm)
    g.stamp(8)
    if opts.get("prof"):
        e("s_waitcnt vmcnt(0)")
        g.stamp(9)
        g.flush_stamps()
        e("v_mov_b32 v254, %s" % sr(S_T3))
        e("v_mov_b32 v255, 0")
        e("buffer_store_dwordx2 v[254:255], v253, %s, 0 offen offset:%d" % (sr(SRD_WS, 4), 15 * 8))
    e("L_end:")
    e("s_endpgm")
    txt = HEADER
    txt += "; @launch grid=(256,1,1) block=(512,1,1) lds=%d\n" % (LDS_TAB + PART_BYTES)
    txt += '.amdgcn_target "amdgcn-amd-amdhsa--gfx950"\n'
    txt += kernel_text(NAME + "_kernel", g)
    txt += kd(NAME + "_kernel")
    return txt


def gen_fused2(opts):
    lm = MODS[opts.get("mod", 1)]
    qm = MODS[opts.get("qmod", opts.get("mod", 1))]
    sm = MODS[opts.get("smod", 0)]
    xm = MODS[opts.get("xmod", 2)]
    nearly = opts.get("nearly", 4)
    prio = opts.get("prio", 1)
    bara = opts.get("bara", 0)
    V_CNT = V_SS + 3
    g = Gen(opts)
    e = g
    g.prologue("L_end")
    e("s_mul_i32 %s, %s, %d" % (sr(S_HPART), sr(S_H), 8 * SLOT))
    e("s_mul_i32 %s, %s, %d" % (sr(S_T1), sr(S_C), SLOT))
    e("s_add_u32 %s, %s, %s" % (sr(S_PART), sr(S_HPART), sr(S_T1)))
    g.stamp(0)
    if prio:
        e("s_setprio 3")
    e("s_cmp_lg_u32 %s, 0" % sr(S_C))
    e("s_cbranch_scc1 L_noclear")
    e("v_lshlrev_b32 v8, 4, v%d" % V_LANE)
    for i in range(4):
        e("v_mov_b32 v%d, -1" % (12 + i))
    e("s_mul_i32 %s, %s, %d" % (sr(S_T0), sr(S_WAVE), SLOT))
    e("s_add_u32 %s, %s, %s" % (sr(S_T0), sr(S_T0), sr(S_HPART)))
    e("s_add_u32 %s, %s, 4096" % (sr(S_T1), sr(S_T0)))
    for i in range(7):
        e("buffer_store_dwordx4 v[12:15], v8, %s, %s offen offset:%d%s" % (
            sr(SRD_WS, 4), sr(S_T0) if i < 4 else sr(S_T1), (i & 3) * 1024, xm))
    e("s_nop 1")
    g.load_w()
    g.load_rows(V_K, SRD_K, lm)
    e("s_waitcnt vmcnt(18)")
    e("s_barrier")
    e("s_cmp_lg_u32 %s, 7" % sr(S_WAVE))
    e("s_cbranch_scc1 L_noflag")
    e("s_lshl_b32 %s, %s, 2" % (sr(S_T0), sr(S_H)))
    e("v_mov_b32 v%d, %s" % (V_B0, sr(S_T0)))
    e("v_mov_b32 v%d, 1" % (V_B0 + 1))
    e("s_mov_b64 exec, 1")
    e("buffer_store_dword v%d, v%d, %s, 0 offen%s" % (V_B0 + 1, V_B0, sr(SRD_DBG, 4), xm))
    e("s_mov_b64 exec, -1")
    g.load_v(lm)
    if bara:
        e("s_barrier")
    e("s_waitcnt vmcnt(16)")
    e("s_branch L_kready")
    e("L_noflag:")
    g.load_v(lm)
    if bara:
        e("s_barrier")
    e("s_branch L_kready")
    e("L_noclear:")
    g.load_w()
    g.load_rows(V_K, SRD_K, lm)
    g.load_v(lm)
    if bara:
        e("s_barrier")
    e("L_kready:")
    if prio:
        e("s_setprio 0")
    e("s_waitcnt vmcnt(22)")
    g.proj(V_K, 0, True)
    e("s_waitcnt vmcnt(16)")
    g.proj(V_K, 1, True)
    g.phi(0)
    g.phi(1)
    g.kv_mfma()
    g.stamp(1)
    e("s_cmp_lg_u32 %s, 0" % sr(S_WAVE))
    e("s_cbranch_scc1 L_nocnt")
    e("s_lshl_b32 %s, %s, 2" % (sr(S_T0), sr(S_H)))
    e("v_mov_b32 v%d, %s" % (V_B0, sr(S_T0)))
    e("buffer_load_dword v%d, v%d, %s, 0 offen sc1" % (V_CNT, V_B0, sr(SRD_DBG, 4)))
    e("s_waitcnt vmcnt(1)")
    e("s_branch L_vready")
    e("L_nocnt:")
    e("s_waitcnt vmcnt(0)")
    e("L_vready:")
    g.stamp(2)
    g.kv_tiles()
    e("s_mul_i32 %s, %s, %d" % (sr(S_T0), sr(S_WAVE), PART_BYTES))
    e("v_lshlrev_b32 v%d, 4, v%d" % (V_B0, V_LANE))
    e("v_add_u32 v%d, %s, v%d" % (V_B0, sr(S_T0), V_B0))
    e("s_mov_b32 exec_lo, -1")
    e("s_mov_b32 exec_hi, 0")
    for tau in range(13):
        e("ds_write_b128 v%d, %s offset:%d" % (V_B0, vr(V_ACC + 4 * tau, 4), tau * 512))
    e("s_mov_b64 exec, -1")
    if nearly > 0:
        e("s_cmp_ge_u32 %s, %d" % (sr(S_WAVE), nearly))
        e("s_cbranch_scc1 L_noq1")
        g.load_rows(V_Q, SRD_Q, qm)
        e("L_noq1:")
    g.stamp(10)
    if prio:
        e("s_setprio 3")
    e("s_cmp_lg_u32 %s, 0" % sr(S_WAVE))
    e("s_cbranch_scc1 L_cntok")
    e("s_waitcnt vmcnt(%d)" % (12 if nearly > 0 else 0))
    e("v_readfirstlane_b32 %s, v%d" % (sr(S_CNT), V_CNT))
    e("s_cmp_eq_u32 %s, 1" % sr(S_CNT))
    e("s_cbranch_scc1 L_cntok")
    e("s_lshl_b32 %s, %s, 2" % (sr(S_T0), sr(S_H)))
    e("v_mov_b32 v%d, %s" % (V_B1, sr(S_T0)))
    e("s_mov_b32 %s, 0x10000" % sr(S_T2))
    e("L_cntspin:")
    e("buffer_load_dword v%d, v%d, %s, 0 offen sc1" % (V_CNT, V_B1, sr(SRD_DBG, 4)))
    e("s_waitcnt vmcnt(0)")
    e("v_readfirstlane_b32 %s, v%d" % (sr(S_CNT), V_CNT))
    e("s_sub_u32 %s, %s, 1" % (sr(S_T2), sr(S_T2)))
    e("s_cmp_eq_u32 %s, 0" % sr(S_T2))
    e("s_cbranch_scc1 L_cntok")
    e("s_cmp_lg_u32 %s, 1" % sr(S_CNT))
    e("s_cbranch_scc1 L_cntspin")
    e("L_cntok:")
    e("v_min_u32 v%d, 415, v0" % (V_B1 + 1))
    e("v_lshlrev_b32 v%d, 4, v%d" % (V_B1, V_B1 + 1))
    e("s_waitcnt lgkmcnt(0)")
    e("s_barrier")
    g.stamp(3)
    for w in range(8):
        e("ds_read_b128 %s, v%d offset:%d" % (vr(V_ACC + 4 * w, 4), V_B1, w * PART_BYTES))
    for w in range(1, 8):
        e("s_waitcnt lgkmcnt(%d)" % (7 - w))
        for r in range(4):
            e("v_add_f32 v%d, v%d, v%d" % (V_ACC + r, V_ACC + r, V_ACC + 4 * w + r))
    for r in range(4):
        e("v_min_u32 v%d, -2, v%d" % (V_ACC + r, V_ACC + r))
    e("buffer_store_dwordx4 %s, v%d, %s, %s offen%s" % (vr(V_ACC, 4), V_B1, sr(SRD_WS, 4), sr(S_PART), xm))
    g.stamp(4)
    if nearly < 8:
        if prio:
            e("s_setprio 0")
        if nearly > 0:
            e("s_cmp_lt_u32 %s, %d" % (sr(S_WAVE), nearly))
            e("s_cbranch_scc1 L_noq2")
        g.load_rows(V_Q, SRD_Q, qm)
        if nearly > 0:
            e("L_noq2:")
    PL = V_ACC + 4

    def payload_loads():
        e("s_mov_b32 %s, %s" % (sr(S_T0), sr(S_HPART)))
        for c in range(8):
            e("buffer_load_dwordx4 %s, v%d, %s, %s offen%s" % (vr(PL + 4 * c, 4), V_B1, sr(SRD_WS, 4), sr(S_T0), xm))
            if c < 7:
                e("s_add_u32 %s, %s, %d" % (sr(S_T0), sr(S_T0), SLOT))
    if opts.get("pbar"):
        e("s_barrier")
    payload_loads()
    g.stamp(11)
    g.table_addr(V_B1 + 1)
    e("s_waitcnt vmcnt(8)")
    g.stamp(5)
    for T in range(2):
        g.proj(V_Q, T, False)
        g.phi(T)
        g.pack_phi_q(T)
    e("s_mov_b32 %s, 0x10000" % sr(S_T2))
    e("s_waitcnt vmcnt(0)")
    e("s_branch L_chk")
    e("L_retry:")
    payload_loads()
    e("s_waitcnt vmcnt(0)")
    e("L_chk:")
    M = V_ACC + 36
    e("v_max3_u32 v%d, v%d, v%d, v%d" % (M, PL, PL + 1, PL + 2))
    i = 3
    while i < 32:
        if i + 1 < 32:
            e("v_max3_u32 v%d, v%d, v%d, v%d" % (M, M, PL + i, PL + i + 1)); i += 2
        else:
            e("v_max_u32 v%d, v%d, v%d" % (M, M, PL + i)); i += 1
    e("v_cmp_eq_u32 %s, -1, v%d" % (sr(S_EXEC, 2), M))
    e("s_sub_u32 %s, %s, 1" % (sr(S_T2), sr(S_T2)))
    e("s_cmp_eq_u32 %s, 0" % sr(S_T2))
    e("s_cbranch_scc1 L_got")
    e("s_cmp_lg_u64 %s, 0" % sr(S_EXEC, 2))
    e("s_cbranch_scc1 L_retry")
    e("L_got:")
    g.stamp(6)
    if opts.get("prof"):
        e("s_sub_u32 %s, 0x10000, %s" % (sr(S_T3), sr(S_T2)))
    a = V_ACC
    for r in range(4):
        e("v_add_f32 v%d, v%d, v%d" % (a + r, PL + r, PL + 4 + r))
    for c in range(2, 8):
        for r in range(4):
            e("v_add_f32 v%d, v%d, v%d" % (a + r, a + r, PL + 4 * c + r))
    g.hilo_write(LDS_TAB)
    e("s_waitcnt lgkmcnt(0)")
    e("s_barrier")
    g.stamp(7)
    g.read_table(LDS_TAB)
    e("s_waitcnt lgkmcnt(0)")
    g.out_tile(0, V_ACC, sm)
    g.out_tile(1, V_K - 4, sm)
    g.stamp(8)
    if opts.get("prof"):
        e("s_waitcnt vmcnt(0)")
        g.stamp(9)
        g.flush_stamps()
        e("v_mov_b32 v254, %s" % sr(S_T3))
        e("v_mov_b32 v255, 0")
        e("buffer_store_dwordx2 v[254:255], v253, %s, 0 offen offset:%d" % (sr(SRD_WS, 4), 15 * 8))
    e("L_end:")
    e("s_endpgm")
    txt = HEADER
    txt += "; @launch grid=(256,1,1) block=(512,1,1) lds=%d\n" % (LDS_TAB + PART_BYTES)
    txt += '.amdgcn_target "amdgcn-amd-amdhsa--gfx950"\n'
    txt += kernel_text(NAME + "_kernel", g)
    txt += kd(NAME + "_kernel")
    return txt


LDS_N = LDS_TAB + PART_BYTES
TAGMASK = 0xFFF


def gen_fused3(opts):
    lm = MODS[opts.get("mod", 1)]
    qm = MODS[opts.get("qmod", opts.get("mod", 1))]
    sm = MODS[opts.get("smod", 0)]
    xm = MODS[opts.get("xmod", 2)]
    nearly = opts.get("nearly", 3)
    prio = opts.get("prio", 1)
    nw = opts.get("nwave", 4)
    SL = PART_BYTES
    V_CNT = V_SS + 3
    S_N = S_CNT
    S_MASK = 61
    g = Gen(opts)
    e = g
    if opts.get("fixdur"):
        e("s_memrealtime s[96:97]")
    g.prologue("L_end")
    g.stamp(0)
    if prio:
        e("s_setprio 3")
    e("s_mov_b32 %s, 0x%x" % (sr(S_MASK), 0xFFFFFFFF ^ TAGMASK))
    e("s_or_b32 %s, %s, %s" % (sr(S_T0), sr(S_H), sr(S_C)))
    e("s_or_b32 %s, %s, %s" % (sr(S_T0), sr(S_T0), sr(S_WAVE)))
    e("s_cmp_lg_u32 %s, 0" % sr(S_T0))
    e("s_cbranch_scc1 L_nochoose")
    e("v_mul_u32_u24 v%d, %d, v%d" % (V_B0, 4 * SL, V_LANE))
    for i in range(4):
        e("s_mov_b32 %s, %d" % (sr(S_T1), i * SL))
        e("buffer_load_dword v%d, v%d, %s, %s offen%s" % (V_B1 + i, V_B0, sr(SRD_WS, 4), sr(S_T1), xm))
    g.load_w()
    g.load_rows(V_K, SRD_K, lm)
    g.load_v(lm)
    e("s_waitcnt vmcnt(34)")
    for i in range(4):
        e("v_and_b32 v%d, 0x%x, v%d" % (V_B1 + i, TAGMASK, V_B1 + i))
    e("v_readfirstlane_b32 %s, v%d" % (sr(S_N), V_B1))
    e("L_cand:")
    e("s_add_u32 %s, %s, 1" % (sr(S_N), sr(S_N)))
    e("s_and_b32 %s, %s, 0x%x" % (sr(S_N), sr(S_N), TAGMASK))
    e("v_cmp_eq_u32 vcc, %s, v%d" % (sr(S_N), V_B1))
    e("v_cmp_eq_u32 %s, %s, v%d" % (sr(S_EXEC, 2), sr(S_N), V_B1 + 1))
    e("s_or_b64 vcc, vcc, %s" % sr(S_EXEC, 2))
    e("v_cmp_eq_u32 %s, %s, v%d" % (sr(S_EXEC, 2), sr(S_N), V_B1 + 2))
    e("s_or_b64 vcc, vcc, %s" % sr(S_EXEC, 2))
    e("v_cmp_eq_u32 %s, %s, v%d" % (sr(S_EXEC, 2), sr(S_N), V_B1 + 3))
    e("s_or_b64 vcc, vcc, %s" % sr(S_EXEC, 2))
    e("s_cmp_lg_u64 vcc, 0")
    e("s_cbranch_scc1 L_cand")
    e("s_or_b32 %s, %s, 0x80000000" % (sr(S_T1), sr(S_N)))
    e("v_mov_b32 v%d, %s" % (V_B0 + 1, sr(S_T1)))
    e("v_mov_b32 v%d, 0" % V_B0)
    e("s_mov_b64 exec, 1")
    e("buffer_store_dword v%d, v%d, %s, 0 offen%s" % (V_B0 + 1, V_B0, sr(SRD_DBG, 4), xm))
    e("s_mov_b64 exec, -1")
    if prio:
        e("s_setprio 0")
    e("s_waitcnt vmcnt(17)")
    e("s_branch L_kready")
    e("L_nochoose:")
    g.load_w()
    g.load_rows(V_K, SRD_K, lm)
    g.load_v(lm)
    e("s_cmp_lg_u32 %s, %d" % (sr(S_WAVE), nw))
    e("s_cbranch_scc1 L_notagld")
    e("v_mov_b32 v%d, 0" % V_B0)
    e("buffer_load_dword v%d, v%d, %s, 0 offen sc1" % (V_B0 + 1, V_B0, sr(SRD_DBG, 4)))
    if prio:
        e("s_setprio 0")
    e("s_waitcnt vmcnt(17)")
    e("s_branch L_kready")
    e("L_notagld:")
    if prio:
        e("s_setprio 0")
    e("L_kready:")
    e("s_waitcnt vmcnt(22)")
    g.proj(V_K, 0, True)
    e("s_waitcnt vmcnt(16)")
    g.proj(V_K, 1, True)
    g.phi(0)
    g.phi(1)
    g.kv_mfma()
    g.stamp(1)
    e("s_waitcnt vmcnt(0)")
    g.stamp(2)
    e("s_cmp_lg_u32 %s, %d" % (sr(S_WAVE), nw))
    e("s_cbranch_scc1 L_tagok")
    e("v_readfirstlane_b32 %s, v%d" % (sr(S_N), V_B0 + 1))
    e("s_cmp_lt_i32 %s, 0" % sr(S_N))
    e("s_cbranch_scc1 L_tagput")
    e("s_mov_b32 %s, 0x10000" % sr(S_T2))
    e("v_mov_b32 v%d, 0" % V_B0)
    e("L_tagspin:")
    e("buffer_load_dword v%d, v%d, %s, 0 offen sc1" % (V_B0 + 1, V_B0, sr(SRD_DBG, 4)))
    e("s_waitcnt vmcnt(0)")
    e("v_readfirstlane_b32 %s, v%d" % (sr(S_N), V_B0 + 1))
    e("s_sub_u32 %s, %s, 1" % (sr(S_T2), sr(S_T2)))
    e("s_cmp_eq_u32 %s, 0" % sr(S_T2))
    e("s_cbranch_scc1 L_tagput")
    e("s_cmp_ge_i32 %s, 0" % sr(S_N))
    e("s_cbranch_scc1 L_tagspin")
    e("L_tagput:")
    e("v_and_b32 v%d, 0x%x, v%d" % (V_B0 + 1, TAGMASK, V_B0 + 1))
    e("v_mov_b32 v%d, %d" % (V_B0, LDS_N))
    e("ds_write_b32 v%d, v%d" % (V_B0, V_B0 + 1))
    e("L_tagok:")
    g.kv_tiles()
    e("s_mul_i32 %s, %s, %d" % (sr(S_T0), sr(S_WAVE), PART_BYTES))
    e("v_lshlrev_b32 v%d, 4, v%d" % (V_B0, V_LANE))
    e("v_add_u32 v%d, %s, v%d" % (V_B0, sr(S_T0), V_B0))
    e("s_mov_b32 exec_lo, -1")
    e("s_mov_b32 exec_hi, 0")
    for tau in range(13):
        e("ds_write_b128 v%d, %s offset:%d" % (V_B0, vr(V_ACC + 4 * tau, 4), tau * 512))
    e("s_mov_b64 exec, -1")
    if nearly > 0:
        e("s_cmp_ge_u32 %s, %d" % (sr(S_WAVE), nearly))
        e("s_cbranch_scc1 L_noq1")
        g.load_rows(V_Q, SRD_Q, qm)
        e("L_noq1:")
    g.stamp(10)
    if prio:
        e("s_setprio 3")
    e("v_min_u32 v%d, 415, v0" % (V_B1 + 1))
    e("v_lshlrev_b32 v%d, 4, v%d" % (V_B1, V_B1 + 1))
    e("v_mov_b32 v%d, %d" % (V_B0, LDS_N))
    e("s_waitcnt lgkmcnt(0)")
    e("s_barrier")
    g.stamp(3)
    e("ds_read_b32 v%d, v%d" % (V_CNT, V_B0))
    for w in range(8):
        e("ds_read_b128 %s, v%d offset:%d" % (vr(V_ACC + 4 * w, 4), V_B1, w * PART_BYTES))
    for w in range(1, 8):
        e("s_waitcnt lgkmcnt(%d)" % (7 - w))
        for r in range(4):
            e("v_add_f32 v%d, v%d, v%d" % (V_ACC + r, V_ACC + r, V_ACC + 4 * w + r))
    for r in range(4):
        e("v_bfi_b32 v%d, %s, v%d, v%d" % (V_ACC + r, sr(S_MASK), V_ACC + r, V_CNT))
    e("buffer_store_dwordx4 %s, v%d, %s, %s offen%s" % (vr(V_ACC, 4), V_B1, sr(SRD_WS, 4), sr(S_PART), xm))
    g.stamp(4)
    V_N = V_B0 + 2
    e("v_mov_b32 v%d, v%d" % (V_N, V_CNT))
    if nearly < 8:
        if prio:
            e("s_setprio 0")
        if nearly > 0:
            e("s_cmp_lt_u32 %s, %d" % (sr(S_WAVE), nearly))
            e("s_cbranch_scc1 L_noq2")
        g.load_rows(V_Q, SRD_Q, qm)
        if nearly > 0:
            e("L_noq2:")
    PL = V_ACC + 4

    def payload_loads():
        e("s_mov_b32 %s, %s" % (sr(S_T0), sr(S_HPART)))
        for c in range(8):
            e("buffer_load_dwordx4 %s, v%d, %s, %s offen%s" % (vr(PL + 4 * c, 4), V_B1, sr(SRD_WS, 4), sr(S_T0), xm))
            if c < 7:
                e("s_add_u32 %s, %s, %d" % (sr(S_T0), sr(S_T0), SL))
    if opts.get("pbar", 1):
        e("s_barrier")
    payload_loads()
    g.stamp(11)
    g.table_addr(V_B1 + 1)
    e("s_waitcnt vmcnt(8)")
    g.stamp(5)
    for T in range(2):
        g.proj(V_Q, T, False)
        g.phi(T)
        g.pack_phi_q(T)
    e("s_mov_b32 %s, 0x10000" % sr(S_T2))
    e("s_waitcnt vmcnt(0)")
    e("s_branch L_chk")
    e("L_retry:")
    payload_loads()
    e("s_waitcnt vmcnt(0)")
    e("L_chk:")
    M = V_ACC + 36
    for i in range(32):
        e("v_xor_b32 v%d, v%d, v%d" % (PL + i, PL + i, V_N))
    e("v_or3_b32 v%d, v%d, v%d, v%d" % (M, PL, PL + 1, PL + 2))
    i = 3
    while i < 32:
        if i + 1 < 32:
            e("v_or3_b32 v%d, v%d, v%d, v%d" % (M, M, PL + i, PL + i + 1)); i += 2
        else:
            e("v_or_b32 v%d, v%d, v%d" % (M, M, PL + i)); i += 1
    e("v_and_b32 v%d, 0x%x, v%d" % (M, TAGMASK, M))
    e("v_cmp_ne_u32 %s, 0, v%d" % (sr(S_EXEC, 2), M))
    e("s_sub_u32 %s, %s, 1" % (sr(S_T2), sr(S_T2)))
    e("s_cmp_eq_u32 %s, 0" % sr(S_T2))
    e("s_cbranch_scc1 L_got")
    e("s_cmp_lg_u64 %s, 0" % sr(S_EXEC, 2))
    e("s_cbranch_scc1 L_retry")
    e("L_got:")
    g.stamp(6)
    if opts.get("prof"):
        e("s_sub_u32 %s, 0x10000, %s" % (sr(S_T3), sr(S_T2)))
    a = V_ACC
    for r in range(4):
        e("v_add_f32 v%d, v%d, v%d" % (a + r, PL + r, PL + 4 + r))
    for c in range(2, 8):
        for r in range(4):
            e("v_add_f32 v%d, v%d, v%d" % (a + r, a + r, PL + 4 * c + r))
    g.hilo_write(LDS_TAB)
    e("s_waitcnt lgkmcnt(0)")
    e("s_barrier")
    g.stamp(7)
    g.read_table(LDS_TAB)
    e("s_waitcnt lgkmcnt(0)")
    g.out_tile(0, V_ACC, sm)
    g.out_tile(1, V_K - 4, sm)
    g.stamp(8)
    if opts.get("prof"):
        e("s_waitcnt vmcnt(0)")
        g.stamp(9)
        g.flush_stamps()
        e("v_mov_b32 v254, %s" % sr(S_T3))
        e("v_mov_b32 v255, 0")
        e("buffer_store_dwordx2 v[254:255], v253, %s, 0 offen offset:%d" % (sr(SRD_WS, 4), 15 * 8))
    if opts.get("fixdur"):
        e("s_waitcnt vmcnt(0) lgkmcnt(0)")
        e("L_hold:")
        e("s_memrealtime s[98:99]")
        e("s_waitcnt lgkmcnt(0)")
        e("s_sub_u32 s98, s98, s96")
        e("s_cmp_lt_u32 s98, %d" % (opts["fixdur"] * 100))
        e("s_cbranch_scc1 L_hold")
    e("L_end:")
    e("s_endpgm")
    txt = HEADER
    txt += "; @launch grid=(256,1,1) block=(512,1,1) lds=%d\n" % (LDS_N + 64)
    txt += '.amdgcn_target "amdgcn-amd-amdhsa--gfx950"\n'
    txt += kernel_text(NAME + "_kernel", g)
    txt += kd(NAME + "_kernel")
    return txt


LDS_CNT = LDS_N + 4


def gen_fused4(opts):
    lm = MODS[opts.get("mod", 1)]
    qm = MODS[opts.get("qmod", opts.get("mod", 1))]
    sm = MODS[opts.get("smod", 4)]
    xm = MODS[opts.get("xmod", 2)]
    prio = opts.get("prio", 1)
    nw = opts.get("nwave", 1)
    qsplit = opts.get("qsplit", 6)
    SPIN = opts.get("spin", 0x4000)
    SL = PART_BYTES
    S_N = S_CNT
    S_MASK = 61
    R0, R1 = V_ACC, V_K
    G0, G1 = 64, 96
    V_T0, V_T1, V_A0, V_A1, V_N, V_M = 218, 219, 220, 221, 222, 223
    V_TA0, V_TA1 = 216, 217
    g = Gen(opts)
    e = g
    g.zero_stamps()
    g.prologue("L_end")
    g.stamp(0)
    if prio:
        e("s_setprio 3")
    e("s_mov_b32 %s, 0x%x" % (sr(S_MASK), 0xFFFFFFFF ^ TAGMASK))
    e("s_or_b32 %s, %s, %s" % (sr(S_T0), sr(S_H), sr(S_C)))
    e("s_or_b32 %s, %s, %s" % (sr(S_T0), sr(S_T0), sr(S_WAVE)))
    e("s_cmp_lg_u32 %s, 0" % sr(S_T0))
    e("s_cbranch_scc1 L_nochoose")
    e("v_mul_u32_u24 v%d, %d, v%d" % (V_B0, 4 * SL, V_LANE))
    for i in range(4):
        e("s_mov_b32 %s, %d" % (sr(S_T1), i * SL))
        e("buffer_load_dword v%d, v%d, %s, %s offen%s" % (V_B1 + i, V_B0, sr(SRD_WS, 4), sr(S_T1), xm))
    g.load_w()
    g.load_rows(V_K, SRD_K, lm)
    g.load_v(lm)
    e("s_waitcnt vmcnt(34)")
    for i in range(4):
        e("v_and_b32 v%d, 0x%x, v%d" % (V_B1 + i, TAGMASK, V_B1 + i))
    e("v_readfirstlane_b32 %s, v%d" % (sr(S_N), V_B1))
    e("L_cand:")
    e("s_add_u32 %s, %s, 1" % (sr(S_N), sr(S_N)))
    e("s_and_b32 %s, %s, 0x%x" % (sr(S_N), sr(S_N), TAGMASK))
    e("v_cmp_eq_u32 vcc, %s, v%d" % (sr(S_N), V_B1))
    e("v_cmp_eq_u32 %s, %s, v%d" % (sr(S_EXEC, 2), sr(S_N), V_B1 + 1))
    e("s_or_b64 vcc, vcc, %s" % sr(S_EXEC, 2))
    e("v_cmp_eq_u32 %s, %s, v%d" % (sr(S_EXEC, 2), sr(S_N), V_B1 + 2))
    e("s_or_b64 vcc, vcc, %s" % sr(S_EXEC, 2))
    e("v_cmp_eq_u32 %s, %s, v%d" % (sr(S_EXEC, 2), sr(S_N), V_B1 + 3))
    e("s_or_b64 vcc, vcc, %s" % sr(S_EXEC, 2))
    e("s_cmp_lg_u64 vcc, 0")
    e("s_cbranch_scc1 L_cand")
    e("s_or_b32 %s, %s, 0x80000000" % (sr(S_T1), sr(S_N)))
    e("v_mov_b32 v%d, %s" % (V_B0 + 1, sr(S_T1)))
    e("v_mov_b32 v%d, 0" % V_B0)
    e("s_mov_b64 exec, 1")
    e("buffer_store_dword v%d, v%d, %s, 0 offen%s" % (V_B0 + 1, V_B0, sr(SRD_DBG, 4), xm))
    e("s_mov_b64 exec, -1")
    e("s_waitcnt vmcnt(17)")
    e("s_branch L_issued")
    e("L_nochoose:")
    g.load_w()
    g.load_rows(V_K, SRD_K, lm)
    g.load_v(lm)
    e("L_issued:")
    if prio:
        e("s_setprio 0")
    lq0 = opts.get("lq0", 0)

    def qloads(lo, hi):
        for i in range(lo, hi):
            T, t = divmod(i, 6)
            e("buffer_load_dwordx4 %s, v%d, %s, %s offen offset:%d%s" % (
                vr(V_Q + 24 * T + 4 * t, 4), V_OK, sr(SRD_Q, 4), sr(S_B0 + T), 64 * t, qm))
    e("s_cmp_lt_u32 %s, 4" % sr(S_WAVE))
    e("s_cbranch_scc1 L_noA")
    if lq0 and opts.get("lq0pre", 1):
        qloads(0, lq0)
    e("s_barrier")
    g.stamp(12)
    if lq0 and not opts.get("lq0pre", 1):
        qloads(0, lq0)
    if lq0:
        e("s_waitcnt vmcnt(%d)" % (22 + lq0))
        e("s_mov_b32 %s, 1" % sr(S_T3))
        e("s_branch L_A2")
    e("L_noA:")
    e("s_waitcnt vmcnt(22)")
    e("s_mov_b32 %s, 0" % sr(S_T3))
    e("L_A2:")
    g.proj(V_K, 0, True)
    if lq0:
        e("s_cmp_eq_u32 %s, 0" % sr(S_T3))
        e("s_cbranch_scc1 L_k1e")
        e("s_waitcnt vmcnt(%d)" % (16 + lq0))
        e("s_branch L_k1")
        e("L_k1e:")
    e("s_waitcnt vmcnt(16)")
    if lq0:
        e("L_k1:")
    g.proj(V_K, 1, True)
    g.phi(0)
    g.phi(1)
    g.kv_mfma()
    g.stamp(1)
    if lq0:
        e("s_cmp_eq_u32 %s, 0" % sr(S_T3))
        e("s_cbranch_scc1 L_v1e")
        e("s_waitcnt vmcnt(%d)" % lq0)
        e("s_branch L_v1")
        e("L_v1e:")
    e("s_waitcnt vmcnt(0)")
    if lq0:
        e("L_v1:")
    g.stamp(2)
    g.kv_tiles()
    e("s_mul_i32 %s, %s, %d" % (sr(S_T0), sr(S_WAVE), PART_BYTES))
    e("v_lshlrev_b32 v%d, 4, v%d" % (V_B0, V_LANE))
    e("v_add_u32 v%d, %s, v%d" % (V_B0, sr(S_T0), V_B0))
    e("s_mov_b32 exec_lo, -1")
    e("s_mov_b32 exec_hi, 0")
    for tau in range(13):
        e("ds_write_b128 v%d, %s offset:%d" % (V_B0, vr(V_ACC + 4 * tau, 4), tau * 512))
    e("s_mov_b64 exec, -1")
    g.stamp(10)
    e("s_cmp_ge_u32 %s, 4" % sr(S_WAVE))
    e("s_cbranch_scc1 L_late")
    e("s_cmp_lg_u32 %s, %d" % (sr(S_WAVE), nw))
    e("s_cbranch_scc1 L_notag")
    if prio:
        e("s_setprio 3")
    e("s_mov_b32 %s, 0x%x" % (sr(S_T2), SPIN))
    e("v_mov_b32 v%d, 0" % V_B0)
    e("L_tagspin:")
    e("buffer_load_dword v%d, v%d, %s, 0 offen sc1" % (V_B0 + 1, V_B0, sr(SRD_DBG, 4)))
    e("s_waitcnt vmcnt(0)")
    e("v_readfirstlane_b32 %s, v%d" % (sr(S_N), V_B0 + 1))
    e("s_sub_u32 %s, %s, 1" % (sr(S_T2), sr(S_T2)))
    e("s_cmp_eq_u32 %s, 0" % sr(S_T2))
    e("s_cbranch_scc1 L_tagput")
    e("s_cmp_ge_i32 %s, 0" % sr(S_N))
    e("s_cbranch_scc1 L_tagspin")
    e("L_tagput:")
    e("v_and_b32 v%d, 0x%x, v%d" % (V_B0 + 2, TAGMASK, V_B0 + 1))
    e("v_mov_b32 v%d, 0" % (V_B0 + 3))
    e("v_mov_b32 v%d, %d" % (V_B0, LDS_N))
    e("ds_write_b64 v%d, %s" % (V_B0, vr(V_B0 + 2, 2)))
    if prio:
        e("s_setprio 0")
    e("L_notag:")
    e("s_waitcnt lgkmcnt(0)")
    e("s_barrier")
    g.stamp(12)
    if prio and opts.get("eprio", 1):
        e("s_setprio 3")
    g.load_rows(V_Q, SRD_Q, qm)
    if prio:
        e("s_setprio 0")
    g.stamp(3)
    e("s_waitcnt vmcnt(0)")
    e("s_branch L_qproj")
    e("L_late:")
    if prio:
        e("s_setprio 3")
    e("v_mov_b32 v%d, %d" % (V_B0, LDS_N))
    e("v_mov_b32 v%d, 1" % (V_B0 + 1))
    e("s_waitcnt lgkmcnt(0)")
    e("s_mov_b64 exec, 1")
    e("ds_add_u32 v%d, v%d offset:4" % (V_B0, V_B0 + 1))
    e("s_mov_b64 exec, -1")
    e("s_sub_u32 %s, %s, 4" % (sr(S_T0), sr(S_WAVE)))
    e("s_mul_i32 %s, %s, 104" % (sr(S_T0), sr(S_T0)))
    e("v_add_u32 v%d, %s, v%d" % (V_T0, sr(S_T0), V_LANE))
    e("v_min_u32 v%d, 39, v%d" % (V_T1, V_LANE))
    e("s_add_u32 %s, %s, 64" % (sr(S_T0), sr(S_T0)))
    e("v_add_u32 v%d, %s, v%d" % (V_T1, sr(S_T0), V_T1))
    e("v_lshlrev_b32 v%d, 4, v%d" % (V_A0, V_T0))
    e("v_lshlrev_b32 v%d, 4, v%d" % (V_A1, V_T1))
    e("s_mov_b32 %s, 0x%x" % (sr(S_T2), 0x100000))
    e("L_lspin:")
    e("ds_read_b64 %s, v%d" % (vr(V_B0 + 2, 2), V_B0))
    e("s_waitcnt lgkmcnt(0)")
    e("v_readfirstlane_b32 %s, v%d" % (sr(S_T1), V_B0 + 3))
    e("s_sub_u32 %s, %s, 1" % (sr(S_T2), sr(S_T2)))
    e("s_cmp_eq_u32 %s, 0" % sr(S_T2))
    e("s_cbranch_scc1 L_lgo")
    e("s_cmp_lg_u32 %s, 4" % sr(S_T1))
    e("s_cbranch_scc1 L_lspin")
    e("L_lgo:")
    g.stamp(3)
    e("v_mov_b32 v%d, v%d" % (V_N, V_B0 + 2))
    for rb, va in ((R0, V_A0), (R1, V_A1)):
        for w in range(8):
            e("ds_read_b128 %s, v%d offset:%d" % (vr(rb + 4 * w, 4), va, w * PART_BYTES))
    for k, (rb, va) in enumerate(((R0, V_A0), (R1, V_A1))):
        base = 8 if k == 0 else 0
        for w in range(1, 8):
            e("s_waitcnt lgkmcnt(%d)" % min(15, base + 7 - w))
            for r in range(4):
                e("v_add_f32 v%d, v%d, v%d" % (rb + r, rb + r, rb + 4 * w + r))
        for r in range(4):
            e("v_bfi_b32 v%d, %s, v%d, v%d" % (rb + r, sr(S_MASK), rb + r, V_N))
        e("buffer_store_dwordx4 %s, v%d, %s, %s offen%s" % (vr(rb, 4), va, sr(SRD_WS, 4), sr(S_PART), xm))
    g.stamp(4)

    def gather():
        e("s_mov_b32 %s, %s" % (sr(S_T0), sr(S_HPART)))
        for c in range(8):
            e("buffer_load_dwordx4 %s, v%d, %s, %s offen%s" % (vr(G0 + 4 * c, 4), V_A0, sr(SRD_WS, 4), sr(S_T0), xm))
            e("buffer_load_dwordx4 %s, v%d, %s, %s offen%s" % (vr(G1 + 4 * c, 4), V_A1, sr(SRD_WS, 4), sr(S_T0), xm))
            if c < 7:
                e("s_add_u32 %s, %s, %d" % (sr(S_T0), sr(S_T0), SL))
    if prio and opts.get("qlow", 0):
        e("s_setprio 0")
    qsplit = max(qsplit, lq0)
    qloads(lq0, qsplit)
    if opts.get("ackwait"):
        e("s_waitcnt vmcnt(%d)" % (qsplit - lq0))
        g.stamp(13)
    gather()
    qloads(qsplit, 12)
    g.stamp(11)
    g.table_addr(V_T0, 208, V_TA0)
    g.table_addr(V_T1, 208, V_TA1)
    e("s_mov_b32 %s, 0x%x" % (sr(S_T2), SPIN))
    e("s_waitcnt vmcnt(%d)" % (12 - qsplit))
    e("s_branch L_chk")
    e("L_retry:")
    gather()
    e("s_waitcnt vmcnt(0)")
    e("L_chk:")
    for i in range(64):
        e("v_xor_b32 v%d, v%d, v%d" % (G0 + i, G0 + i, V_N))
    e("v_or3_b32 v%d, v%d, v%d, v%d" % (V_M, G0, G0 + 1, G0 + 2))
    i = 3
    while i < 64:
        if i + 1 < 64:
            e("v_or3_b32 v%d, v%d, v%d, v%d" % (V_M, V_M, G0 + i, G0 + i + 1)); i += 2
        else:
            e("v_or_b32 v%d, v%d, v%d" % (V_M, V_M, G0 + i)); i += 1
    e("v_and_b32 v%d, 0x%x, v%d" % (V_M, TAGMASK, V_M))
    e("v_cmp_ne_u32 %s, 0, v%d" % (sr(S_EXEC, 2), V_M))
    e("s_sub_u32 %s, %s, 1" % (sr(S_T2), sr(S_T2)))
    e("s_cmp_eq_u32 %s, 0" % sr(S_T2))
    e("s_cbranch_scc1 L_got")
    e("s_cmp_lg_u64 %s, 0" % sr(S_EXEC, 2))
    e("s_cbranch_scc1 L_retry")
    e("L_got:")
    g.stamp(6)
    if opts.get("prof"):
        e("s_sub_u32 %s, 0x%x, %s" % (sr(S_T3), SPIN, sr(S_T2)))
    for gb, ta, tmp in ((G0, V_TA0, V_ACC + 8), (G1, V_TA1, V_ACC + 16)):
        for r in range(4):
            e("v_add_f32 v%d, v%d, v%d" % (gb + r, gb + r, gb + 4 + r))
        for c in range(2, 8):
            for r in range(4):
                e("v_add_f32 v%d, v%d, v%d" % (gb + r, gb + r, gb + 4 * c + r))
        g.hilo_write(LDS_TAB, gb, tmp, ta)
    e("s_waitcnt lgkmcnt(0)")
    e("s_barrier")
    g.stamp(7)
    g.read_table(LDS_TAB)
    e("s_waitcnt vmcnt(0)")
    e("L_qproj:")
    g.stamp(5)
    if prio:
        e("s_setprio 0")
    for T in range(2):
        g.proj(V_Q, T, False)
        g.phi(T)
        g.pack_phi_q(T)
    e("s_cmp_ge_u32 %s, 4" % sr(S_WAVE))
    e("s_cbranch_scc1 L_out")
    if opts.get("prof"):
        e("s_mov_b32 %s, 0" % sr(S_T3))
    e("s_barrier")
    g.stamp(7)
    g.read_table(LDS_TAB)
    e("L_out:")
    e("s_waitcnt lgkmcnt(0)")
    g.out_tile(0, V_ACC, sm)
    g.out_tile(1, V_K - 4, sm)
    g.stamp(8)
    if opts.get("prof"):
        e("s_waitcnt vmcnt(0)")
        g.stamp(9)
        g.flush_stamps()
        e("v_mov_b32 v254, %s" % sr(S_T3))
        e("v_mov_b32 v255, 0")
        e("buffer_store_dwordx2 v[254:255], v253, %s, 0 offen offset:%d" % (sr(SRD_WS, 4), 15 * 8))
    e("L_end:")
    e("s_endpgm")
    txt = HEADER
    txt += "; @launch grid=(256,1,1) block=(512,1,1) lds=%d\n" % (LDS_N + 64)
    txt += '.amdgcn_target "amdgcn-amd-amdhsa--gfx950"\n'
    txt += kernel_text(NAME + "_kernel", g)
    txt += kd(NAME + "_kernel")
    return txt


def gen_fused5(opts):
    lm = MODS[opts.get("mod", 1)]
    qm = MODS[opts.get("qmod", opts.get("mod", 1))]
    sm = MODS[opts.get("smod", 4)]
    xm = MODS[opts.get("xmod", 2)]
    prio = opts.get("prio", 1)
    nw = opts.get("nwave", 2)
    lq0 = opts.get("lq0", 6)
    SPIN = opts.get("spin", 0x4000)
    SL = PART_BYTES
    V_CNT = V_SS + 3
    S_N = S_CNT
    S_MASK = 61
    S_LATE = S_T3
    g = Gen(opts)
    e = g

    def qloads(lo, hi):
        for i in range(lo, hi):
            T, t = divmod(i, 6)
            e("buffer_load_dwordx4 %s, v%d, %s, %s offen offset:%d%s" % (
                vr(V_Q + 24 * T + 4 * t, 4), V_OK, sr(SRD_Q, 4), sr(S_B0 + T), 64 * t, qm))

    def wait2(n_early, n_late, tag):
        if n_early == n_late:
            e("s_waitcnt vmcnt(%d)" % n_early)
            return
        e("s_cmp_ge_u32 %s, 4" % sr(S_WAVE))
        e("s_cbranch_scc1 L_w2l_%s" % tag)
        e("s_waitcnt vmcnt(%d)" % n_early)
        e("s_branch L_w2d_%s" % tag)
        e("L_w2l_%s:" % tag)
        e("s_waitcnt vmcnt(%d)" % n_late)
        e("L_w2d_%s:" % tag)

    g.zero_stamps()
    g.prologue("L_end")
    g.stamp(0)
    if prio:
        e("s_setprio 3")
    e("s_mov_b32 %s, 0x%x" % (sr(S_MASK), 0xFFFFFFFF ^ TAGMASK))
    e("s_or_b32 %s, %s, %s" % (sr(S_T0), sr(S_H), sr(S_C)))
    e("s_or_b32 %s, %s, %s" % (sr(S_T0), sr(S_T0), sr(S_WAVE)))
    e("s_cmp_lg_u32 %s, 0" % sr(S_T0))
    e("s_cbranch_scc1 L_nochoose")
    e("v_mul_u32_u24 v%d, %d, v%d" % (V_B0, 4 * SL, V_LANE))
    for i in range(4):
        e("s_mov_b32 %s, %d" % (sr(S_T1), i * SL))
        e("buffer_load_dword v%d, v%d, %s, %s offen%s" % (V_B1 + i, V_B0, sr(SRD_WS, 4), sr(S_T1), xm))
    g.load_w()
    g.load_rows(V_K, SRD_K, lm)
    g.load_v(lm)
    e("s_waitcnt vmcnt(34)")
    for i in range(4):
        e("v_and_b32 v%d, 0x%x, v%d" % (V_B1 + i, TAGMASK, V_B1 + i))
    e("v_readfirstlane_b32 %s, v%d" % (sr(S_N), V_B1))
    e("L_cand:")
    e("s_add_u32 %s, %s, 1" % (sr(S_N), sr(S_N)))
    e("s_and_b32 %s, %s, 0x%x" % (sr(S_N), sr(S_N), TAGMASK))
    e("v_cmp_eq_u32 vcc, %s, v%d" % (sr(S_N), V_B1))
    e("v_cmp_eq_u32 %s, %s, v%d" % (sr(S_EXEC, 2), sr(S_N), V_B1 + 1))
    e("s_or_b64 vcc, vcc, %s" % sr(S_EXEC, 2))
    e("v_cmp_eq_u32 %s, %s, v%d" % (sr(S_EXEC, 2), sr(S_N), V_B1 + 2))
    e("s_or_b64 vcc, vcc, %s" % sr(S_EXEC, 2))
    e("v_cmp_eq_u32 %s, %s, v%d" % (sr(S_EXEC, 2), sr(S_N), V_B1 + 3))
    e("s_or_b64 vcc, vcc, %s" % sr(S_EXEC, 2))
    e("s_cmp_lg_u64 vcc, 0")
    e("s_cbranch_scc1 L_cand")
    e("s_or_b32 %s, %s, 0x80000000" % (sr(S_T1), sr(S_N)))
    e("v_mov_b32 v%d, %s" % (V_B0 + 1, sr(S_T1)))
    e("v_mov_b32 v%d, 0" % V_B0)
    e("s_mov_b64 exec, 1")
    e("buffer_store_dword v%d, v%d, %s, 0 offen%s" % (V_B0 + 1, V_B0, sr(SRD_DBG, 4), xm))
    e("s_mov_b64 exec, -1")
    e("s_waitcnt vmcnt(17)")
    e("s_branch L_issued")
    e("L_nochoose:")
    g.load_w()
    g.load_rows(V_K, SRD_K, lm)
    g.load_v(lm)
    if lq0:
        e("s_cmp_lt_u32 %s, 4" % sr(S_WAVE))
        e("s_cbranch_scc1 L_issued")
        qloads(0, lq0)
    e("L_issued:")
    if prio:
        e("s_setprio 0")
    wait2(22, 22 + lq0, "k0")
    g.proj(V_K, 0, True)
    wait2(16, 16 + lq0, "k1")
    g.proj(V_K, 1, True)
    g.phi(0)
    g.phi(1)
    g.kv_mfma()
    g.stamp(1)
    wait2(0, lq0, "v")
    g.stamp(2)
    if prio:
        e("s_cmp_lt_u32 %s, 4" % sr(S_WAVE))
        e("s_cbranch_scc1 L_nop3")
        e("s_setprio 3")
        e("L_nop3:")
    g.kv_tiles()
    e("s_mul_i32 %s, %s, %d" % (sr(S_T0), sr(S_WAVE), PART_BYTES))
    e("v_lshlrev_b32 v%d, 4, v%d" % (V_B0, V_LANE))
    e("v_add_u32 v%d, %s, v%d" % (V_B0, sr(S_T0), V_B0))
    e("s_mov_b32 exec_lo, -1")
    e("s_mov_b32 exec_hi, 0")
    for tau in range(13):
        e("ds_write_b128 v%d, %s offset:%d" % (V_B0, vr(V_ACC + 4 * tau, 4), tau * 512))
    e("s_mov_b64 exec, -1")
    e("s_cmp_ge_u32 %s, 4" % sr(S_WAVE))
    e("s_cbranch_scc1 L_noq1")
    tagmode = opts.get("tagmode", 1)
    if tagmode == 0:
        e("s_cmp_lg_u32 %s, %d" % (sr(S_WAVE), nw))
        e("s_cbranch_scc1 L_notag")
        if prio:
            e("s_setprio 3")
        e("s_mov_b32 %s, 0x%x" % (sr(S_T2), SPIN))
        e("v_mov_b32 v%d, 0" % V_B0)
        e("L_tagspin:")
        e("buffer_load_dword v%d, v%d, %s, 0 offen sc1" % (V_B0 + 1, V_B0, sr(SRD_DBG, 4)))
        e("s_waitcnt vmcnt(0)")
        e("v_readfirstlane_b32 %s, v%d" % (sr(S_N), V_B0 + 1))
        e("s_sub_u32 %s, %s, 1" % (sr(S_T2), sr(S_T2)))
        e("s_cmp_eq_u32 %s, 0" % sr(S_T2))
        e("s_cbranch_scc1 L_tagput")
        e("s_cmp_ge_i32 %s, 0" % sr(S_N))
        e("s_cbranch_scc1 L_tagspin")
        e("L_tagput:")
        e("v_and_b32 v%d, 0x%x, v%d" % (V_B0 + 1, TAGMASK, V_B0 + 1))
        e("v_mov_b32 v%d, %d" % (V_B0, LDS_N))
        e("ds_write_b32 v%d, v%d" % (V_B0, V_B0 + 1))
        if prio:
            e("s_setprio 0")
        e("L_notag:")
        qloads(0, 12)
    else:
        e("s_cmp_lg_u32 %s, %d" % (sr(S_WAVE), nw))
        e("s_cbranch_scc1 L_notag")
        if tagmode == 1:
            e("s_load_dword %s, %s, 0 glc" % (sr(S_N), sr(S_DBG, 2)))
        qloads(0, 12)
        if tagmode == 1:
            e("s_waitcnt lgkmcnt(0)")
        else:
            e("s_mov_b32 %s, 0x80000123" % sr(S_N))
        e("s_cmp_lt_i32 %s, 0" % sr(S_N))
        e("s_cbranch_scc1 L_tagput")
        e("s_mov_b32 %s, 0x%x" % (sr(S_T2), SPIN))
        e("v_mov_b32 v%d, 0" % V_B0)
        e("L_tagspin:")
        e("buffer_load_dword v%d, v%d, %s, 0 offen sc1" % (V_B0 + 1, V_B0, sr(SRD_DBG, 4)))
        e("s_waitcnt vmcnt(0)")
        e("v_readfirstlane_b32 %s, v%d" % (sr(S_N), V_B0 + 1))
        e("s_sub_u32 %s, %s, 1" % (sr(S_T2), sr(S_T2)))
        e("s_cmp_eq_u32 %s, 0" % sr(S_T2))
        e("s_cbranch_scc1 L_tagput")
        e("s_cmp_ge_i32 %s, 0" % sr(S_N))
        e("s_cbranch_scc1 L_tagspin")
        e("L_tagput:")
        if opts.get("prof"):
            e("s_mov_b32 %s, %s" % (sr(S_ST0 + 28), sr(S_T2)))
        e("s_and_b32 %s, %s, 0x%x" % (sr(S_N), sr(S_N), TAGMASK))
        e("v_mov_b32 v%d, %s" % (V_B0 + 1, sr(S_N)))
        e("v_mov_b32 v%d, %d" % (V_B0, LDS_N))
        e("ds_write_b32 v%d, v%d" % (V_B0, V_B0 + 1))
        e("s_branch L_noq1")
        e("L_notag:")
        qloads(0, 12)
    e("L_noq1:")
    g.stamp(10)
    if prio:
        e("s_setprio 3")
    e("v_min_u32 v%d, 415, v0" % (V_B1 + 1))
    e("v_lshlrev_b32 v%d, 4, v%d" % (V_B1, V_B1 + 1))
    e("v_mov_b32 v%d, %d" % (V_B0, LDS_N))
    e("s_waitcnt lgkmcnt(0)")
    e("s_barrier")
    g.stamp(3)
    e("ds_read_b32 v%d, v%d" % (V_CNT, V_B0))
    for w in range(8):
        e("ds_read_b128 %s, v%d offset:%d" % (vr(V_ACC + 4 * w, 4), V_B1, w * PART_BYTES))
    for w in range(1, 8):
        e("s_waitcnt lgkmcnt(%d)" % (7 - w))
        for r in range(4):
            e("v_add_f32 v%d, v%d, v%d" % (V_ACC + r, V_ACC + r, V_ACC + 4 * w + r))
    for r in range(4):
        e("v_bfi_b32 v%d, %s, v%d, v%d" % (V_ACC + r, sr(S_MASK), V_ACC + r, V_CNT))
    e("buffer_store_dwordx4 %s, v%d, %s, %s offen%s" % (vr(V_ACC, 4), V_B1, sr(SRD_WS, 4), sr(S_PART), xm))
    g.stamp(4)
    V_N = V_B0 + 2
    e("v_mov_b32 v%d, v%d" % (V_N, V_CNT))
    if lq0 < 12:
        e("s_cmp_lt_u32 %s, 4" % sr(S_WAVE))
        e("s_cbranch_scc1 L_noq2")
        qloads(lq0, 12)
        e("L_noq2:")
    PL = V_ACC + 4

    def payload_loads():
        e("s_mov_b32 %s, %s" % (sr(S_T0), sr(S_HPART)))
        for c in range(8):
            e("buffer_load_dwordx4 %s, v%d, %s, %s offen%s" % (vr(PL + 4 * c, 4), V_B1, sr(SRD_WS, 4), sr(S_T0), xm))
            if c < 7:
                e("s_add_u32 %s, %s, %d" % (sr(S_T0), sr(S_T0), SL))
    g.table_addr(V_B1 + 1)
    if opts.get("eqfirst", 1):
        e("s_cmp_ge_u32 %s, 4" % sr(S_WAVE))
        e("s_cbranch_scc1 L_noeq")
        e("s_waitcnt vmcnt(1)")
        for T in range(2):
            g.proj(V_Q, T, False)
            g.phi(T)
            g.pack_phi_q(T)
        e("L_noeq:")
    if opts.get("pbar", 1):
        e("s_barrier")
    payload_loads()
    g.stamp(11)
    if opts.get("eqfirst", 1):
        e("s_cmp_lt_u32 %s, 4" % sr(S_WAVE))
        e("s_cbranch_scc1 L_nolq")
    e("s_waitcnt vmcnt(8)")
    g.stamp(5)
    for T in range(2):
        g.proj(V_Q, T, False)
        g.phi(T)
        g.pack_phi_q(T)
    if opts.get("eqfirst", 1):
        e("L_nolq:")
    e("s_mov_b32 %s, 0x%x" % (sr(S_T2), SPIN))
    e("s_waitcnt vmcnt(0)")
    e("s_branch L_chk")
    e("L_retry:")
    payload_loads()
    e("s_waitcnt vmcnt(0)")
    e("L_chk:")
    M = V_ACC + 36
    for i in range(32):
        e("v_xor_b32 v%d, v%d, v%d" % (PL + i, PL + i, V_N))
    e("v_or3_b32 v%d, v%d, v%d, v%d" % (M, PL, PL + 1, PL + 2))
    i = 3
    while i < 32:
        if i + 1 < 32:
            e("v_or3_b32 v%d, v%d, v%d, v%d" % (M, M, PL + i, PL + i + 1)); i += 2
        else:
            e("v_or_b32 v%d, v%d, v%d" % (M, M, PL + i)); i += 1
    e("v_and_b32 v%d, 0x%x, v%d" % (M, TAGMASK, M))
    e("v_cmp_ne_u32 %s, 0, v%d" % (sr(S_EXEC, 2), M))
    e("s_sub_u32 %s, %s, 1" % (sr(S_T2), sr(S_T2)))
    e("s_cmp_eq_u32 %s, 0" % sr(S_T2))
    e("s_cbranch_scc1 L_got")
    e("s_cmp_lg_u64 %s, 0" % sr(S_EXEC, 2))
    e("s_cbranch_scc1 L_retry")
    e("L_got:")
    g.stamp(6)
    if opts.get("prof"):
        e("s_sub_u32 %s, 0x%x, %s" % (sr(S_T3), SPIN, sr(S_T2)))
    a = V_ACC
    for r in range(4):
        e("v_add_f32 v%d, v%d, v%d" % (a + r, PL + r, PL + 4 + r))
    for c in range(2, 8):
        for r in range(4):
            e("v_add_f32 v%d, v%d, v%d" % (a + r, a + r, PL + 4 * c + r))
    g.hilo_write(LDS_TAB)
    e("s_waitcnt lgkmcnt(0)")
    e("s_barrier")
    g.stamp(7)
    g.read_table(LDS_TAB)
    e("s_waitcnt lgkmcnt(0)")
    g.out_tile(0, V_ACC, sm)
    g.out_tile(1, V_K - 4, sm)
    g.stamp(8)
    if opts.get("prof"):
        e("s_waitcnt vmcnt(0)")
        g.stamp(9)
        g.flush_stamps()
        e("v_mov_b32 v254, %s" % sr(S_T3))
        e("v_mov_b32 v255, 0")
        e("buffer_store_dwordx2 v[254:255], v253, %s, 0 offen offset:%d" % (sr(SRD_WS, 4), 15 * 8))
    e("L_end:")
    e("s_endpgm")
    txt = HEADER
    txt += "; @launch grid=(256,1,1) block=(512,1,1) lds=%d\n" % (LDS_N + 64)
    txt += '.amdgcn_target "amdgcn-amd-amdhsa--gfx950"\n'
    txt += kernel_text(NAME + "_kernel", g)
    txt += kd(NAME + "_kernel")
    return txt


X_TAB = 0
X_N = PART_BYTES
X_PART = PART_BYTES + 128
X_XBUF = X_PART + 8 * PART_BYTES
X_END = X_XBUF + 8 * 12288
V_RE, V_RO = 2, 5
V_SW = 128
V_T = 134
V_STG = 136
S_B04, S_B14, S_XB, S_PB = 63, 64, 65, 98


def gen_fused6(opts):
    lm = MODS[opts.get("mod", 1)]
    qm = MODS[opts.get("qmod", opts.get("mod", 1))]
    wm = MODS[opts.get("wmod", 0)]
    sm = MODS[opts.get("smod", 4)]
    xm = MODS[opts.get("xmod", 2)]
    prio = opts.get("prio", 1)
    lq0 = opts.get("lq0", 6)
    SPIN = opts.get("spin", 0x4000)
    SL = PART_BYTES
    V_CNT = V_SS + 3
    S_N = S_CNT
    S_MASK = 61
    S_B04, S_B14, S_XB, S_PB = 99, 100, 101, 19
    VQ = V_K
    g = Gen(opts)
    e = g

    def dma_rows(srd, lo, hi, mod):
        last = None
        for j in range(lo, hi):
            T, jj = divmod(j, 6)
            grp = (T, jj >> 2)
            if grp != last:
                e("s_add_u32 m0, %s, %d" % (sr(S_XB), T * 6144 + (jj >> 2) * 4096))
                last = grp
            so = ((S_B0, S_B04), (S_B1, S_B14))[T][jj >> 2]
            e("buffer_load_dwordx4 v%d, %s, %s offen offset:%d%s lds" % (V_SW + jj, sr(srd, 4), sr(so), (jj & 3) * 1024, mod))

    def dma_w():
        e("s_mov_b32 m0, %s" % sr(S_PB))
        for jj in range(3):
            e("buffer_load_dwordx4 v%d, %s, 0 offen offset:%d%s lds" % (V_SW + jj, sr(SRD_W, 4), jj * 1024, wm))

    def read_frag(vbase, T):
        for t in range(6):
            e("ds_read_b128 %s, v%d offset:%d" % (vr(vbase + 24 * T + 4 * t, 4), (V_RE, V_RO)[t & 1], T * 6144 + (t >> 1) * 128))

    def read_w():
        for t in range(6):
            e("ds_read_b128 %s, v%d offset:%d" % (vr(V_W + 4 * t, 4), V_T + (t & 1), (t >> 1) * 128))

    def wait2(n_early, n_late, tag):
        if n_early == n_late:
            e("s_waitcnt vmcnt(%d)" % n_early)
            return
        e("s_cmp_ge_u32 %s, 4" % sr(S_WAVE))
        e("s_cbranch_scc1 L_w2l_%s" % tag)
        e("s_waitcnt vmcnt(%d)" % n_early)
        e("s_branch L_w2d_%s" % tag)
        e("L_w2l_%s:" % tag)
        e("s_waitcnt vmcnt(%d)" % n_late)
        e("L_w2d_%s:" % tag)

    def qproj():
        read_frag(VQ, 0)
        read_frag(VQ, 1)
        e("s_waitcnt lgkmcnt(6)")
        g.proj(VQ, 0, False)
        g.phi(0)
        g.pack_phi_q(0)
        e("s_waitcnt lgkmcnt(0)")
        g.proj(VQ, 1, False)
        g.phi(1)
        g.pack_phi_q(1)

    g.zero_stamps()
    e("s_cmp_ge_u32 s2, 256")
    e("s_cbranch_scc1 L_end")
    if opts.get("cpf"):
        e("s_getpc_b64 s[92:93]")
        e("L_pc:")
    e("s_load_dwordx8 s[4:11], s[0:1], 0")
    e("s_load_dwordx4 s[12:15], s[0:1], 32")
    e("s_load_dwordx2 s[16:17], s[0:1], 48")
    e("v_and_b32 v%d, 63, v0" % V_LANE)
    e("v_lshrrev_b32 v8, 6, v0")
    e("v_and_b32 v9, 15, v0")
    e("v_bfe_u32 v10, v0, 4, 2")
    e("v_readfirstlane_b32 %s, v8" % sr(S_WAVE))
    if opts.get("cpf"):
        e("v_cmp_gt_u32 vcc, 64, v0")
        e("s_and_saveexec_b64 s[94:95], vcc")
        e("s_cbranch_execz L_nocpf")
        e("v_lshlrev_b32 v11, 7, v0")
        e("v_min_u32 v12, L_end-L_pc, v11")
        e("global_load_dword v254, v12, s[92:93]")
        if opts["cpf"] > 1:
            e("v_add_u32 v11, 8192, v11")
            e("v_min_u32 v12, L_end-L_pc, v11")
            e("global_load_dword v255, v12, s[92:93]")
        e("L_nocpf:")
        e("s_mov_b64 exec, s[94:95]")
    for jj in range(6):
        e("v_add_u32 v11, %d, v%d" % (64 * jj, V_LANE))
        e("v_mul_u32_u24 v11, 1366, v11")
        e("v_lshrrev_b32 v11, 16, v11")
        e("v_xor_b32 v11, v11, v%d" % V_LANE)
        e("v_lshlrev_b32 v%d, 4, v11" % (V_SW + jj))
    e("v_mul_u32_u24 v13, %d, v10" % (4 * RB))
    e("v_lshlrev_b32 v14, 4, v9")
    e("v_add_u32 v%d, v13, v14" % V_OVA)
    e("v_lshlrev_b32 v14, 3, v9")
    e("v_add_u32 v13, 256, v13")
    e("v_add_u32 v%d, v13, v14" % V_OVB)
    if opts.get("hrot"):
        e("s_add_u32 %s, s2, %d" % (sr(S_T0), opts["hrot"]))
        e("s_and_b32 %s, %s, 7" % (sr(S_T0), sr(S_T0)))
    else:
        e("s_and_b32 %s, s2, 7" % sr(S_T0))
    e("s_lshr_b32 %s, s2, 6" % sr(S_T1))
    e("s_lshl_b32 %s, %s, 3" % (sr(S_T1), sr(S_T1)))
    e("s_or_b32 %s, %s, %s" % (sr(S_H), sr(S_T0), sr(S_T1)))
    e("s_lshr_b32 %s, s2, 3" % sr(S_C))
    e("s_and_b32 %s, %s, 7" % (sr(S_C), sr(S_C)))
    e("s_mul_i32 %s, %s, %d" % (sr(S_T0), sr(S_H), 2048 * RB))
    e("s_mul_i32 %s, %s, %d" % (sr(S_T1), sr(S_C), 256 * RB))
    e("s_add_u32 %s, %s, %s" % (sr(S_T0), sr(S_T0), sr(S_T1)))
    e("s_mul_i32 %s, %s, %d" % (sr(S_XB), sr(S_WAVE), 32 * RB))
    e("s_add_u32 %s, %s, %s" % (sr(S_B0), sr(S_T0), sr(S_XB)))
    e("s_add_u32 %s, %s, %d" % (sr(S_XB), sr(S_XB), X_XBUF))
    e("s_add_u32 %s, %s, %d" % (sr(S_B1), sr(S_B0), 16 * RB))
    e("s_add_u32 %s, %s, 4096" % (sr(S_B04), sr(S_B0)))
    e("s_add_u32 %s, %s, 4096" % (sr(S_B14), sr(S_B1)))
    e("s_mul_i32 %s, %s, %d" % (sr(S_PB), sr(S_WAVE), PART_BYTES))
    e("s_add_u32 %s, %s, %d" % (sr(S_PB), sr(S_PB), X_PART))
    if opts.get("prof"):
        e("s_lshl_b32 %s, s2, 3" % sr(S_PROF))
        e("s_add_u32 %s, %s, %s" % (sr(S_PROF), sr(S_PROF), sr(S_WAVE)))
        e("s_lshl_b32 %s, %s, 7" % (sr(S_PROF), sr(S_PROF)))
        e("s_add_u32 %s, %s, 0x%x" % (sr(S_PROF), sr(S_PROF), 128 << 20))
    e("s_or_b32 %s, %s, %s" % (sr(S_T2), sr(S_H), sr(S_C)))
    e("s_or_b32 %s, %s, %s" % (sr(S_T2), sr(S_T2), sr(S_WAVE)))
    e("s_waitcnt lgkmcnt(0)")

    def srd(r, ptr, nbytes):
        e("s_mov_b32 %s, %s" % (sr(r), sr(ptr)))
        e("s_and_b32 %s, %s, 0xffff" % (sr(r + 1), sr(ptr + 1)))
        e("s_mov_b32 %s, 0x%x" % (sr(r + 2), nbytes))
        e("s_mov_b32 %s, 0x20000" % sr(r + 3))
    srd(SRD_K, S_K, TENSOR_BYTES)
    srd(SRD_W, S_W, 8 * RB)
    srd(SRD_V, S_V, TENSOR_BYTES)
    srd(SRD_WS, S_WS, WS_BYTES)
    srd(SRD_DBG, S_DBG, 256)
    g.stamp(0)
    if prio:
        e("s_setprio 3")
    e("s_cmp_lg_u32 %s, 0" % sr(S_T2))
    e("s_cbranch_scc1 L_nochoose")
    e("v_mul_u32_u24 v%d, %d, v%d" % (V_B0, 4 * SL, V_LANE))
    for i in range(4):
        e("s_mov_b32 %s, %d" % (sr(S_T1), i * SL))
        e("buffer_load_dword v%d, v%d, %s, %s offen%s" % (V_B1 + i, V_B0, sr(SRD_WS, 4), sr(S_T1), xm))
    dma_rows(SRD_K, 0, 6, lm)
    dma_w()
    dma_rows(SRD_K, 6, 12, lm)
    g.load_v(lm)
    e("s_waitcnt vmcnt(31)")
    for i in range(4):
        e("v_and_b32 v%d, 0x%x, v%d" % (V_B1 + i, TAGMASK, V_B1 + i))
    e("v_readfirstlane_b32 %s, v%d" % (sr(S_N), V_B1))
    e("L_cand:")
    e("s_add_u32 %s, %s, 1" % (sr(S_N), sr(S_N)))
    e("s_and_b32 %s, %s, 0x%x" % (sr(S_N), sr(S_N), TAGMASK))
    e("v_cmp_eq_u32 vcc, %s, v%d" % (sr(S_N), V_B1))
    e("v_cmp_eq_u32 %s, %s, v%d" % (sr(S_EXEC, 2), sr(S_N), V_B1 + 1))
    e("s_or_b64 vcc, vcc, %s" % sr(S_EXEC, 2))
    e("v_cmp_eq_u32 %s, %s, v%d" % (sr(S_EXEC, 2), sr(S_N), V_B1 + 2))
    e("s_or_b64 vcc, vcc, %s" % sr(S_EXEC, 2))
    e("v_cmp_eq_u32 %s, %s, v%d" % (sr(S_EXEC, 2), sr(S_N), V_B1 + 3))
    e("s_or_b64 vcc, vcc, %s" % sr(S_EXEC, 2))
    e("s_cmp_lg_u64 vcc, 0")
    e("s_cbranch_scc1 L_cand")
    e("s_or_b32 %s, %s, 0x80000000" % (sr(S_T1), sr(S_N)))
    e("v_mov_b32 v%d, %s" % (V_B0 + 1, sr(S_T1)))
    e("v_mov_b32 v%d, 0" % V_B0)
    e("s_mov_b64 exec, 1")
    e("buffer_store_dword v%d, v%d, %s, 0 offen%s" % (V_B0 + 1, V_B0, sr(SRD_DBG, 4), xm))
    e("s_mov_b64 exec, -1")
    if opts.get("elbar"):
        e("s_barrier")
    e("s_waitcnt vmcnt(17)")
    e("s_branch L_issued")
    e("L_nochoose:")
    thr = opts.get("thr", 0)
    if opts.get("elbar"):
        e("s_cmp_lt_u32 %s, 4" % sr(S_WAVE))
        e("s_cbranch_scc1 L_noelb")
        e("s_barrier")
        e("L_noelb:")
    mark = len(g.L)
    dma_rows(SRD_K, 0, 6, lm)
    dma_w()
    dma_rows(SRD_K, 6, 12, lm)
    g.load_v(lm)
    if thr:
        body = g.L[mark:]
        del g.L[mark:]
        n = 0
        for l in body:
            g.L.append(l)
            if "buffer_load" in l:
                n += 1
                if n >= thr:
                    g.L.append("    s_waitcnt vmcnt(%d)" % (thr - 1))
    if opts.get("elbar"):
        e("s_cmp_ge_u32 %s, 4" % sr(S_WAVE))
        e("s_cbranch_scc1 L_noelb2")
        e("s_barrier")
        e("L_noelb2:")
    e("s_cmp_lt_u32 %s, 4" % sr(S_WAVE))
    e("s_cbranch_scc1 L_issued")
    e("v_mov_b32 v%d, 0" % V_B0)
    e("buffer_load_dword v%d, v%d, %s, 0 offen sc1" % (V_B0 + 1, V_B0, sr(SRD_DBG, 4)))
    e("L_issued:")
    if prio:
        e("s_setprio 0")
    srd(SRD_Q, S_Q, TENSOR_BYTES)
    srd(SRD_O, S_O, TENSOR_BYTES)
    e("s_mul_i32 %s, %s, %d" % (sr(S_HPART), sr(S_H), 8 * SL))
    e("s_mul_i32 %s, %s, %d" % (sr(S_T1), sr(S_C), SL))
    e("s_add_u32 %s, %s, %s" % (sr(S_PART), sr(S_HPART), sr(S_T1)))
    e("s_mov_b32 %s, 0x05040100" % sr(S_SELLO))
    e("s_mov_b32 %s, 0x07060302" % sr(S_SELHI))
    e("s_mov_b32 %s, %s" % (sr(S_CEXP), hx(f32(C_EXP))))
    e("s_mov_b32 %s, 0x%x" % (sr(S_MASK), 0xFFFFFFFF ^ TAGMASK))
    e("v_mov_b32 v%d, %s" % (V_CSQ, hx(f32(C_SQ))))
    e("v_mov_b32 v%d, %s" % (V_M15, hx(f32(C_BIAS))))
    e("v_and_b32 v9, 15, v0")
    e("v_bfe_u32 v10, v0, 4, 2")
    e("v_lshrrev_b32 v11, 1, v9")
    e("v_mul_u32_u24 v12, %d, v9" % RB)
    e("v_add_u32 v12, %s, v12" % sr(S_XB))
    e("v_xor_b32 v13, v10, v11")
    e("v_lshl_add_u32 v%d, v13, 4, v12" % V_RE)
    e("v_xor_b32 v13, 4, v13")
    e("v_lshl_add_u32 v%d, v13, 4, v12" % V_RO)
    e("v_and_b32 v9, 7, v9")
    e("v_lshrrev_b32 v11, 1, v9")
    e("v_mul_u32_u24 v12, %d, v9" % RB)
    e("v_add_u32 v12, %s, v12" % sr(S_PB))
    e("v_xor_b32 v13, v10, v11")
    e("v_lshl_add_u32 v%d, v13, 4, v12" % V_T)
    e("v_xor_b32 v13, 4, v13")
    e("v_lshl_add_u32 v%d, v13, 4, v12" % (V_T + 1))
    wait2(22, 23, "k0")
    read_w()
    read_frag(V_K, 0)
    wait2(16, 17, "k1")
    e("s_waitcnt lgkmcnt(6)")
    read_frag(V_K, 1)
    e("s_waitcnt lgkmcnt(6)")
    g.proj(V_K, 0, True)
    e("s_waitcnt lgkmcnt(0)")
    g.proj(V_K, 1, True)
    g.phi(0)
    g.phi(1)
    g.kv_mfma()
    g.stamp(1)
    e("s_cmp_lt_u32 %s, 4" % sr(S_WAVE))
    e("s_cbranch_scc1 L_vearly")
    if lq0:
        dma_rows(SRD_Q, 0, lq0, qm)
    e("s_waitcnt vmcnt(%d)" % lq0)
    if prio:
        e("s_setprio 3")
    e("v_readfirstlane_b32 %s, v%d" % (sr(S_N), V_B0 + 1))
    e("s_cmp_lt_i32 %s, 0" % sr(S_N))
    e("s_cbranch_scc1 L_tagput")
    e("s_mov_b32 %s, 0x%x" % (sr(S_T2), SPIN))
    e("v_mov_b32 v%d, 0" % V_B0)
    e("L_tagspin:")
    e("buffer_load_dword v%d, v%d, %s, 0 offen sc1" % (V_B0 + 1, V_B0, sr(SRD_DBG, 4)))
    e("s_waitcnt vmcnt(0)")
    e("v_readfirstlane_b32 %s, v%d" % (sr(S_N), V_B0 + 1))
    e("s_sub_u32 %s, %s, 1" % (sr(S_T2), sr(S_T2)))
    e("s_cmp_eq_u32 %s, 0" % sr(S_T2))
    e("s_cbranch_scc1 L_tagput")
    e("s_cmp_ge_i32 %s, 0" % sr(S_N))
    e("s_cbranch_scc1 L_tagspin")
    e("L_tagput:")
    e("s_and_b32 %s, %s, 0x%x" % (sr(S_N), sr(S_N), TAGMASK))
    e("v_mov_b32 v%d, %s" % (V_B0 + 1, sr(S_N)))
    e("v_mov_b32 v%d, %d" % (V_B0, X_N))
    e("ds_write_b32 v%d, v%d" % (V_B0, V_B0 + 1))
    e("s_branch L_vready")
    e("L_vearly:")
    e("s_waitcnt vmcnt(0)")
    e("L_vready:")
    g.stamp(2)
    g.kv_tiles()
    e("v_lshlrev_b32 v%d, 4, v%d" % (V_B0, V_LANE))
    e("v_add_u32 v%d, %s, v%d" % (V_B0, sr(S_PB), V_B0))
    e("s_mov_b32 exec_lo, -1")
    e("s_mov_b32 exec_hi, 0")
    for tau in range(13):
        e("ds_write_b128 v%d, %s offset:%d" % (V_B0, vr(V_ACC + 4 * tau, 4), tau * 512))
    e("s_mov_b64 exec, -1")
    e("s_cmp_ge_u32 %s, 4" % sr(S_WAVE))
    e("s_cbranch_scc1 L_noq1")
    dma_rows(SRD_Q, 0, 12, qm)
    e("L_noq1:")
    g.stamp(10)
    if prio:
        e("s_setprio 3")
    e("v_min_u32 v%d, 415, v0" % (V_B1 + 1))
    e("v_lshlrev_b32 v%d, 4, v%d" % (V_B1, V_B1 + 1))
    e("v_add_u32 v%d, %d, v%d" % (V_B1 + 2, X_PART, V_B1))
    e("v_mov_b32 v%d, %d" % (V_B0, X_N))
    e("s_waitcnt lgkmcnt(0)")
    e("s_barrier")
    g.stamp(3)
    e("ds_read_b32 v%d, v%d" % (V_CNT, V_B0))
    for w in range(8):
        e("ds_read_b128 %s, v%d offset:%d" % (vr(V_ACC + 4 * w, 4), V_B1 + 2, w * PART_BYTES))
    for w in range(1, 8):
        e("s_waitcnt lgkmcnt(%d)" % (7 - w))
        for r in range(4):
            e("v_add_f32 v%d, v%d, v%d" % (V_ACC + r, V_ACC + r, V_ACC + 4 * w + r))
    for r in range(4):
        e("v_bfi_b32 v%d, %s, v%d, v%d" % (V_ACC + r, sr(S_MASK), V_ACC + r, V_CNT))
    e("buffer_store_dwordx4 %s, v%d, %s, %s offen%s" % (vr(V_ACC, 4), V_B1, sr(SRD_WS, 4), sr(S_PART), MODS[opts.get("pubmod", 2)]))
    g.stamp(4)
    V_N = V_B0 + 2
    e("v_mov_b32 v%d, v%d" % (V_N, V_CNT))
    e("s_cmp_lt_u32 %s, 4" % sr(S_WAVE))
    e("s_cbranch_scc1 L_noq2")
    if lq0 < 12:
        dma_rows(SRD_Q, lq0, 12, qm)
    g.table_addr(V_B1 + 1)
    if opts.get("ack", 1):
        e("s_waitcnt vmcnt(%d)" % (12 - lq0))
    e("s_branch L_q2done")
    e("L_noq2:")
    g.table_addr(V_B1 + 1)
    e("s_waitcnt vmcnt(1)")
    qproj()
    if opts.get("ack", 1):
        e("s_waitcnt vmcnt(0)")
    e("L_q2done:")
    PL = V_ACC + 4

    def payload_loads():
        e("s_mov_b32 %s, %s" % (sr(S_T0), sr(S_HPART)))
        for c in range(8):
            e("buffer_load_dwordx4 %s, v%d, %s, %s offen%s" % (vr(PL + 4 * c, 4), V_B1, sr(SRD_WS, 4), sr(S_T0), xm))
            if c < 7:
                e("s_add_u32 %s, %s, %d" % (sr(S_T0), sr(S_T0), SL))
    if opts.get("pbar", 1):
        e("s_barrier")
    e("s_mov_b32 %s, 0x%x" % (sr(S_T2), SPIN))
    e("L_retry:")
    payload_loads()
    g.stamp(11)
    M = V_ACC + 36
    a = V_ACC
    for c in range(8):
        e("s_waitcnt vmcnt(%d)" % (7 - c))
        for r in range(4):
            e("v_xor_b32 v%d, v%d, v%d" % (PL + 4 * c + r, PL + 4 * c + r, V_N))
        if c == 0:
            e("v_or3_b32 v%d, v%d, v%d, v%d" % (M, PL, PL + 1, PL + 2))
            e("v_or_b32 v%d, v%d, v%d" % (M, M, PL + 3))
        else:
            e("v_or3_b32 v%d, v%d, v%d, v%d" % (M, M, PL + 4 * c, PL + 4 * c + 1))
            e("v_or3_b32 v%d, v%d, v%d, v%d" % (M, M, PL + 4 * c + 2, PL + 4 * c + 3))
        if c == 1:
            for r in range(4):
                e("v_add_f32 v%d, v%d, v%d" % (a + r, PL + r, PL + 4 + r))
        elif c > 1:
            for r in range(4):
                e("v_add_f32 v%d, v%d, v%d" % (a + r, a + r, PL + 4 * c + r))
    e("v_and_b32 v%d, 0x%x, v%d" % (M, TAGMASK, M))
    e("v_cmp_ne_u32 %s, 0, v%d" % (sr(S_EXEC, 2), M))
    e("s_sub_u32 %s, %s, 1" % (sr(S_T2), sr(S_T2)))
    e("s_cmp_eq_u32 %s, 0" % sr(S_T2))
    e("s_cbranch_scc1 L_got")
    e("s_cmp_lg_u64 %s, 0" % sr(S_EXEC, 2))
    e("s_cbranch_scc1 L_retry")
    e("L_got:")
    g.stamp(6)
    if opts.get("prof"):
        e("s_sub_u32 %s, 0x%x, %s" % (sr(S_T3), SPIN, sr(S_T2)))
    g.hilo_write(X_TAB)
    e("s_waitcnt lgkmcnt(0)")
    e("s_barrier")
    g.stamp(7)
    g.read_table(X_TAB)
    e("s_cmp_lt_u32 %s, 4" % sr(S_WAVE))
    e("s_cbranch_scc1 L_out")
    e("s_waitcnt lgkmcnt(0)")
    qproj()
    e("L_out:")
    g.stamp(5)
    e("s_waitcnt lgkmcnt(0)")
    e("v_lshlrev_b32 v%d, 4, v%d" % (V_T, V_LANE))
    e("v_add_u32 v%d, %s, v%d" % (V_T, sr(S_XB), V_T))

    def out_compute(T, accbase):
        den = accbase + 48
        e("v_mfma_f32_16x16x16_bf16 %s, %s, %s, 0" % (vr(den, 4), vr(V_AT + 24, 2), vr(V_P + 2 * T, 2)))
        for t in range(12):
            e("v_mfma_f32_16x16x16_bf16 %s, %s, %s, 0" % (vr(accbase + 4 * t, 4), vr(V_AT + 2 * t, 2), vr(V_P + 2 * T, 2)))
        e("v_add_f32 v%d, %s, v%d" % (den, hx(f32(1e-6)), den))
        e("v_rcp_f32 v%d, v%d" % (den, den))
        for u in range(6):
            x = accbase + 8 * u
            for r in range(8):
                e("v_mul_f32 v%d, v%d, v%d" % (x + r, x + r, den))
            for r in range(4):
                e("v_cvt_pk_bf16_f32 v%d, v%d, v%d" % (x + r, x + 2 * r, x + 2 * r + 1))
            e("ds_write_b128 v%d, %s offset:%d" % ((V_RE, V_RO)[u & 1], vr(x, 4), T * 6144 + (u >> 1) * 128))

    def out_store(T, stg):
        for jj in range(6):
            e("ds_read_b128 %s, v%d offset:%d" % (vr(stg + 4 * jj, 4), V_T, T * 6144 + jj * 1024))
        for jj in range(6):
            e("s_waitcnt lgkmcnt(%d)" % (5 - jj))
            so = ((S_B0, S_B04), (S_B1, S_B14))[T][jj >> 2]
            e("buffer_store_dwordx4 %s, v%d, %s, %s offen offset:%d%s" % (
                vr(stg + 4 * jj, 4), V_SW + jj, sr(SRD_O, 4), sr(so), (jj & 3) * 1024, sm))
    out_compute(0, V_ACC)
    e("s_waitcnt lgkmcnt(0)")
    out_store(0, V_STG)
    out_compute(1, V_K - 4)
    e("s_waitcnt lgkmcnt(0)")
    out_store(1, V_ACC)
    g.stamp(8)
    if opts.get("prof"):
        e("s_waitcnt vmcnt(0)")
        g.stamp(9)
        e("s_getreg_b32 %s, hwreg(HW_REG_XCC_ID)" % sr(S_ST0 + 28))
        e("s_and_b32 %s, %s, 15" % (sr(S_ST0 + 28), sr(S_ST0 + 28)))
        e("s_add_u32 %s, %s, 1" % (sr(S_ST0 + 28), sr(S_ST0 + 28)))
        e("s_mov_b32 %s, 0" % sr(S_ST0 + 29))
        g.stamps.add(14)
        g.flush_stamps()
        e("v_mov_b32 v254, %s" % sr(S_T3))
        e("v_mov_b32 v255, 0")
        e("buffer_store_dwordx2 v[254:255], v253, %s, 0 offen offset:%d" % (sr(SRD_WS, 4), 15 * 8))
    e("L_end:")
    e("s_endpgm")
    txt = HEADER
    txt += "; @launch grid=(256,1,1) block=(512,1,1) lds=%d\n" % X_END
    txt += '.amdgcn_target "amdgcn-amd-amdhsa--gfx950"\n'
    txt += kernel_text(NAME + "_kernel", g)
    txt += kd(NAME + "_kernel")
    return txt


def gen_fused7(opts):
    lm = MODS[opts.get("mod", 1)]
    qm = MODS[opts.get("qmod", opts.get("mod", 1))]
    wm = MODS[opts.get("wmod", 0)]
    sm = MODS[opts.get("smod", 4)]
    xm = MODS[opts.get("xmod", 2)]
    prio = opts.get("prio", 1)
    lq0 = opts.get("lq0", 6)
    SPIN = opts.get("spin", 0x4000)
    SL = PART_BYTES
    V_CNT = V_SS + 3
    S_N = S_CNT
    S_MASK = 61
    S_B04, S_B14, S_XB, S_PB = 99, 100, 101, 19
    S_CHOOSE = 3
    VQ = V_K
    g = Gen(opts)
    e = g

    def dma_rows(srd, lo, hi, mod):
        last = None
        for j in range(lo, hi):
            T, jj = divmod(j, 6)
            grp = (T, jj >> 2)
            if grp != last:
                e("s_add_u32 m0, %s, %d" % (sr(S_XB), T * 6144 + (jj >> 2) * 4096))
                last = grp
            so = ((S_B0, S_B04), (S_B1, S_B14))[T][jj >> 2]
            e("buffer_load_dwordx4 v%d, %s, %s offen offset:%d%s lds" % (V_SW + jj, sr(srd, 4), sr(so), (jj & 3) * 1024, mod))

    def dma_w():
        e("s_mov_b32 m0, %s" % sr(S_PB))
        for jj in range(3):
            e("buffer_load_dwordx4 v%d, %s, 0 offen offset:%d%s lds" % (V_SW + jj, sr(SRD_W, 4), jj * 1024, wm))

    def read_frag(vbase, T):
        for t in range(6):
            e("ds_read_b128 %s, v%d offset:%d" % (vr(vbase + 24 * T + 4 * t, 4), (V_RE, V_RO)[t & 1], T * 6144 + (t >> 1) * 128))

    def read_w():
        for t in range(6):
            e("ds_read_b128 %s, v%d offset:%d" % (vr(V_W + 4 * t, 4), V_T + (t & 1), (t >> 1) * 128))

    def wait2(n_early, n_late, tag):
        if n_early == n_late:
            e("s_waitcnt vmcnt(%d)" % n_early)
            return
        e("s_cmp_eq_u32 %s, 4" % sr(S_WAVE))
        e("s_cbranch_scc1 L_w2l_%s" % tag)
        e("s_waitcnt vmcnt(%d)" % n_early)
        e("s_branch L_w2d_%s" % tag)
        e("L_w2l_%s:" % tag)
        e("s_waitcnt vmcnt(%d)" % n_late)
        e("L_w2d_%s:" % tag)

    def qproj():
        read_frag(VQ, 0)
        read_frag(VQ, 1)
        e("s_waitcnt lgkmcnt(6)")
        g.proj(VQ, 0, False)
        g.phi(0)
        g.pack_phi_q(0)
        e("s_waitcnt lgkmcnt(0)")
        g.proj(VQ, 1, False)
        g.phi(1)
        g.pack_phi_q(1)

    g.zero_stamps()
    e("s_cmp_ge_u32 s2, 256")
    e("s_cbranch_scc1 L_end")
    if opts.get("cpf"):
        e("s_getpc_b64 s[92:93]")
        e("L_pc:")
    e("s_load_dwordx8 s[4:11], s[0:1], 0")
    e("s_load_dwordx4 s[12:15], s[0:1], 32")
    e("s_load_dwordx2 s[16:17], s[0:1], 48")
    e("v_and_b32 v%d, 63, v0" % V_LANE)
    e("v_lshrrev_b32 v8, 6, v0")
    e("v_and_b32 v9, 15, v0")
    e("v_bfe_u32 v10, v0, 4, 2")
    e("v_readfirstlane_b32 %s, v8" % sr(S_WAVE))
    if opts.get("cpf"):
        e("v_cmp_gt_u32 vcc, 64, v0")
        e("s_and_saveexec_b64 s[94:95], vcc")
        e("s_cbranch_execz L_nocpf")
        e("v_lshlrev_b32 v11, 7, v0")
        e("v_min_u32 v12, L_end-L_pc, v11")
        e("global_load_dword v254, v12, s[92:93]")
        if opts["cpf"] > 1:
            e("v_add_u32 v11, 8192, v11")
            e("v_min_u32 v12, L_end-L_pc, v11")
            e("global_load_dword v255, v12, s[92:93]")
        e("L_nocpf:")
        e("s_mov_b64 exec, s[94:95]")
    for jj in range(6):
        e("v_add_u32 v11, %d, v%d" % (64 * jj, V_LANE))
        e("v_mul_u32_u24 v11, 1366, v11")
        e("v_lshrrev_b32 v11, 16, v11")
        e("v_xor_b32 v11, v11, v%d" % V_LANE)
        e("v_lshlrev_b32 v%d, 4, v11" % (V_SW + jj))
    e("v_mul_u32_u24 v13, %d, v10" % (4 * RB))
    e("v_lshlrev_b32 v14, 4, v9")
    e("v_add_u32 v%d, v13, v14" % V_OVA)
    e("v_lshlrev_b32 v14, 3, v9")
    e("v_add_u32 v13, 256, v13")
    e("v_add_u32 v%d, v13, v14" % V_OVB)
    if opts.get("hrot"):
        e("s_add_u32 %s, s2, %d" % (sr(S_T0), opts["hrot"]))
        e("s_and_b32 %s, %s, 7" % (sr(S_T0), sr(S_T0)))
    else:
        e("s_and_b32 %s, s2, 7" % sr(S_T0))
    e("s_lshr_b32 %s, s2, 6" % sr(S_T1))
    e("s_lshl_b32 %s, %s, 3" % (sr(S_T1), sr(S_T1)))
    e("s_or_b32 %s, %s, %s" % (sr(S_H), sr(S_T0), sr(S_T1)))
    e("s_lshr_b32 %s, s2, 3" % sr(S_C))
    e("s_and_b32 %s, %s, 7" % (sr(S_C), sr(S_C)))
    e("s_mul_i32 %s, %s, %d" % (sr(S_T0), sr(S_H), 2048 * RB))
    e("s_mul_i32 %s, %s, %d" % (sr(S_T1), sr(S_C), 256 * RB))
    e("s_add_u32 %s, %s, %s" % (sr(S_T0), sr(S_T0), sr(S_T1)))
    e("s_mul_i32 %s, %s, %d" % (sr(S_XB), sr(S_WAVE), 32 * RB))
    e("s_add_u32 %s, %s, %s" % (sr(S_B0), sr(S_T0), sr(S_XB)))
    e("s_add_u32 %s, %s, %d" % (sr(S_XB), sr(S_XB), X_XBUF))
    e("s_add_u32 %s, %s, %d" % (sr(S_B1), sr(S_B0), 16 * RB))
    e("s_add_u32 %s, %s, 4096" % (sr(S_B04), sr(S_B0)))
    e("s_add_u32 %s, %s, 4096" % (sr(S_B14), sr(S_B1)))
    e("s_mul_i32 %s, %s, %d" % (sr(S_PB), sr(S_WAVE), PART_BYTES))
    e("s_add_u32 %s, %s, %d" % (sr(S_PB), sr(S_PB), X_PART))
    if opts.get("prof"):
        e("s_lshl_b32 %s, s2, 3" % sr(S_PROF))
        e("s_add_u32 %s, %s, %s" % (sr(S_PROF), sr(S_PROF), sr(S_WAVE)))
        e("s_lshl_b32 %s, %s, 7" % (sr(S_PROF), sr(S_PROF)))
        e("s_add_u32 %s, %s, 0x%x" % (sr(S_PROF), sr(S_PROF), 128 << 20))
    e("s_or_b32 %s, %s, %s" % (sr(S_T2), sr(S_H), sr(S_C)))
    e("s_or_b32 %s, %s, %s" % (sr(S_T2), sr(S_T2), sr(S_WAVE)))
    e("s_waitcnt lgkmcnt(0)")

    def srd(r, ptr, nbytes):
        e("s_mov_b32 %s, %s" % (sr(r), sr(ptr)))
        e("s_and_b32 %s, %s, 0xffff" % (sr(r + 1), sr(ptr + 1)))
        e("s_mov_b32 %s, 0x%x" % (sr(r + 2), nbytes))
        e("s_mov_b32 %s, 0x20000" % sr(r + 3))
    srd(SRD_K, S_K, TENSOR_BYTES)
    srd(SRD_W, S_W, 8 * RB)
    srd(SRD_V, S_V, TENSOR_BYTES)
    srd(SRD_WS, S_WS, WS_BYTES)
    srd(SRD_DBG, S_DBG, 256)
    g.stamp(0)
    if prio:
        e("s_setprio 3")
    e("s_mov_b32 %s, %s" % (sr(S_CHOOSE), sr(S_T2)))
    e("s_cmp_lg_u32 %s, 0" % sr(S_T2))
    e("s_cbranch_scc1 L_nochoose")
    e("v_mov_b32 v%d, 0" % V_B0)
    e("buffer_load_dword v%d, v%d, %s, 0 offen%s" % (V_B1, V_B0, sr(SRD_WS, 4), xm))
    e("L_nochoose:")
    thr = opts.get("thr", 0)
    if opts.get("elbar"):
        e("s_cmp_lt_u32 %s, 4" % sr(S_WAVE))
        e("s_cbranch_scc1 L_noelb")
        e("s_barrier")
        e("L_noelb:")
    mark = len(g.L)
    dma_rows(SRD_K, 0, 6, lm)
    dma_w()
    dma_rows(SRD_K, 6, 12, lm)
    g.load_v(lm)
    if thr:
        body = g.L[mark:]
        del g.L[mark:]
        n = 0
        for l in body:
            g.L.append(l)
            if "buffer_load" in l:
                n += 1
                if n >= thr:
                    g.L.append("    s_waitcnt vmcnt(%d)" % (thr - 1))
    if opts.get("elbar"):
        e("s_cmp_ge_u32 %s, 4" % sr(S_WAVE))
        e("s_cbranch_scc1 L_noelb2")
        e("s_barrier")
        e("L_noelb2:")
    e("s_cmp_lg_u32 %s, 4" % sr(S_WAVE))
    e("s_cbranch_scc1 L_issued")
    e("v_mov_b32 v%d, 0" % V_B0)
    e("buffer_load_dword v%d, v%d, %s, 0 offen sc1" % (V_B0 + 1, V_B0, sr(SRD_DBG, 4)))
    e("L_issued:")
    if prio:
        e("s_setprio 0")
    srd(SRD_Q, S_Q, TENSOR_BYTES)
    srd(SRD_O, S_O, TENSOR_BYTES)
    e("s_mul_i32 %s, %s, %d" % (sr(S_HPART), sr(S_H), 8 * SL))
    e("s_mul_i32 %s, %s, %d" % (sr(S_T1), sr(S_C), SL))
    e("s_add_u32 %s, %s, %s" % (sr(S_PART), sr(S_HPART), sr(S_T1)))
    e("s_mov_b32 %s, 0x05040100" % sr(S_SELLO))
    e("s_mov_b32 %s, 0x07060302" % sr(S_SELHI))
    e("s_mov_b32 %s, %s" % (sr(S_CEXP), hx(f32(C_EXP))))
    e("s_mov_b32 %s, 0x%x" % (sr(S_MASK), 0xFFFFFFFF ^ TAGMASK))
    e("v_mov_b32 v%d, %s" % (V_CSQ, hx(f32(C_SQ))))
    e("v_mov_b32 v%d, %s" % (V_M15, hx(f32(C_BIAS))))
    e("v_and_b32 v9, 15, v0")
    e("v_bfe_u32 v10, v0, 4, 2")
    e("v_lshrrev_b32 v11, 1, v9")
    e("v_mul_u32_u24 v12, %d, v9" % RB)
    e("v_add_u32 v12, %s, v12" % sr(S_XB))
    e("v_xor_b32 v13, v10, v11")
    e("v_lshl_add_u32 v%d, v13, 4, v12" % V_RE)
    e("v_xor_b32 v13, 4, v13")
    e("v_lshl_add_u32 v%d, v13, 4, v12" % V_RO)
    e("v_and_b32 v9, 7, v9")
    e("v_lshrrev_b32 v11, 1, v9")
    e("v_mul_u32_u24 v12, %d, v9" % RB)
    e("v_add_u32 v12, %s, v12" % sr(S_PB))
    e("v_xor_b32 v13, v10, v11")
    e("v_lshl_add_u32 v%d, v13, 4, v12" % V_T)
    e("v_xor_b32 v13, 4, v13")
    e("v_lshl_add_u32 v%d, v13, 4, v12" % (V_T + 1))
    wait2(22, 23, "k0")
    e("s_cmp_lg_u32 %s, 0" % sr(S_CHOOSE))
    e("s_cbranch_scc1 L_notchooser")
    if prio:
        e("s_setprio 3")
    e("v_add_u32 v%d, 1, v%d" % (V_B1, V_B1))
    e("v_and_b32 v%d, 0x%x, v%d" % (V_B1, TAGMASK, V_B1))
    e("v_or_b32 v%d, 0x80000000, v%d" % (V_B1, V_B1))
    e("v_mov_b32 v%d, 0" % V_B0)
    e("s_mov_b64 exec, 1")
    e("buffer_store_dword v%d, v%d, %s, 0 offen%s" % (V_B1, V_B0, sr(SRD_DBG, 4), xm))
    e("s_mov_b64 exec, -1")
    if prio:
        e("s_setprio 0")
    e("L_notchooser:")
    read_w()
    read_frag(V_K, 0)
    wait2(16, 17, "k1")
    e("s_waitcnt lgkmcnt(6)")
    read_frag(V_K, 1)
    e("s_waitcnt lgkmcnt(6)")
    g.proj(V_K, 0, True)
    e("s_waitcnt lgkmcnt(0)")
    g.proj(V_K, 1, True)
    g.phi(0)
    g.phi(1)
    g.kv_mfma()
    g.stamp(1)
    e("s_cmp_lt_u32 %s, 4" % sr(S_WAVE))
    e("s_cbranch_scc1 L_vearly")
    if lq0:
        dma_rows(SRD_Q, 0, lq0, qm)
    e("s_waitcnt vmcnt(%d)" % lq0)
    if prio:
        e("s_setprio 3")
    e("s_cmp_lg_u32 %s, 4" % sr(S_WAVE))
    e("s_cbranch_scc1 L_vready")
    e("v_readfirstlane_b32 %s, v%d" % (sr(S_N), V_B0 + 1))
    e("s_cmp_lt_i32 %s, 0" % sr(S_N))
    e("s_cbranch_scc1 L_tagput")
    e("s_mov_b32 %s, 0x%x" % (sr(S_T2), SPIN))
    e("v_mov_b32 v%d, 0" % V_B0)
    e("L_tagspin:")
    e("buffer_load_dword v%d, v%d, %s, 0 offen sc1" % (V_B0 + 1, V_B0, sr(SRD_DBG, 4)))
    e("s_waitcnt vmcnt(0)")
    e("v_readfirstlane_b32 %s, v%d" % (sr(S_N), V_B0 + 1))
    e("s_sub_u32 %s, %s, 1" % (sr(S_T2), sr(S_T2)))
    e("s_cmp_eq_u32 %s, 0" % sr(S_T2))
    e("s_cbranch_scc1 L_tagput")
    e("s_cmp_ge_i32 %s, 0" % sr(S_N))
    e("s_cbranch_scc1 L_tagspin")
    e("L_tagput:")
    e("s_and_b32 %s, %s, 0x%x" % (sr(S_N), sr(S_N), TAGMASK))
    e("v_mov_b32 v%d, %s" % (V_B0 + 1, sr(S_N)))
    e("v_mov_b32 v%d, %d" % (V_B0, X_N))
    e("ds_write_b32 v%d, v%d" % (V_B0, V_B0 + 1))
    e("s_branch L_vready")
    e("L_vearly:")
    e("s_waitcnt vmcnt(0)")
    e("L_vready:")
    g.stamp(2)
    g.kv_tiles()
    e("v_lshlrev_b32 v%d, 4, v%d" % (V_B0, V_LANE))
    e("v_add_u32 v%d, %s, v%d" % (V_B0, sr(S_PB), V_B0))
    e("s_mov_b32 exec_lo, -1")
    e("s_mov_b32 exec_hi, 0")
    for tau in range(13):
        e("ds_write_b128 v%d, %s offset:%d" % (V_B0, vr(V_ACC + 4 * tau, 4), tau * 512))
    e("s_mov_b64 exec, -1")
    e("s_cmp_ge_u32 %s, 4" % sr(S_WAVE))
    e("s_cbranch_scc1 L_noq1")
    dma_rows(SRD_Q, 0, 12, qm)
    e("L_noq1:")
    g.stamp(10)
    if prio:
        e("s_setprio 3")
    e("v_min_u32 v%d, 415, v0" % (V_B1 + 1))
    e("v_lshlrev_b32 v%d, 4, v%d" % (V_B1, V_B1 + 1))
    e("v_add_u32 v%d, %d, v%d" % (V_B1 + 2, X_PART, V_B1))
    e("v_mov_b32 v%d, %d" % (V_B0, X_N))
    e("s_waitcnt lgkmcnt(0)")
    e("s_barrier")
    g.stamp(3)
    e("ds_read_b32 v%d, v%d" % (V_CNT, V_B0))
    for w in range(8):
        e("ds_read_b128 %s, v%d offset:%d" % (vr(V_ACC + 4 * w, 4), V_B1 + 2, w * PART_BYTES))
    for w in range(1, 8):
        e("s_waitcnt lgkmcnt(%d)" % (7 - w))
        for r in range(4):
            e("v_add_f32 v%d, v%d, v%d" % (V_ACC + r, V_ACC + r, V_ACC + 4 * w + r))
    for r in range(4):
        e("v_bfi_b32 v%d, %s, v%d, v%d" % (V_ACC + r, sr(S_MASK), V_ACC + r, V_CNT))
    e("buffer_store_dwordx4 %s, v%d, %s, %s offen%s" % (vr(V_ACC, 4), V_B1, sr(SRD_WS, 4), sr(S_PART), MODS[opts.get("pubmod", 2)]))
    g.stamp(4)
    V_N = V_B0 + 2
    e("v_mov_b32 v%d, v%d" % (V_N, V_CNT))
    e("s_cmp_lt_u32 %s, 4" % sr(S_WAVE))
    e("s_cbranch_scc1 L_noq2")
    if lq0 < 12:
        dma_rows(SRD_Q, lq0, 12, qm)
    g.table_addr(V_B1 + 1)
    if opts.get("ack", 1):
        e("s_waitcnt vmcnt(%d)" % (12 - lq0))
    e("s_branch L_q2done")
    e("L_noq2:")
    g.table_addr(V_B1 + 1)
    e("s_waitcnt vmcnt(1)")
    qproj()
    if opts.get("ack", 1):
        e("s_waitcnt vmcnt(0)")
    e("L_q2done:")
    PL = V_ACC + 4

    def payload_loads():
        e("s_mov_b32 %s, %s" % (sr(S_T0), sr(S_HPART)))
        for c in range(8):
            e("buffer_load_dwordx4 %s, v%d, %s, %s offen%s" % (vr(PL + 4 * c, 4), V_B1, sr(SRD_WS, 4), sr(S_T0), xm))
            if c < 7:
                e("s_add_u32 %s, %s, %d" % (sr(S_T0), sr(S_T0), SL))
    if opts.get("pbar", 1):
        e("s_barrier")
    e("s_mov_b32 %s, 0x%x" % (sr(S_T2), SPIN))
    if opts.get("skip7", 1):
        e("s_cmp_eq_u32 %s, 7" % sr(S_WAVE))
        e("s_cbranch_scc1 L_skip7")
    e("L_retry:")
    payload_loads()
    g.stamp(11)
    M = V_ACC + 36
    a = V_ACC
    for c in range(8):
        e("s_waitcnt vmcnt(%d)" % (7 - c))
        for r in range(4):
            e("v_xor_b32 v%d, v%d, v%d" % (PL + 4 * c + r, PL + 4 * c + r, V_N))
        if c == 0:
            e("v_or3_b32 v%d, v%d, v%d, v%d" % (M, PL, PL + 1, PL + 2))
            e("v_or_b32 v%d, v%d, v%d" % (M, M, PL + 3))
        else:
            e("v_or3_b32 v%d, v%d, v%d, v%d" % (M, M, PL + 4 * c, PL + 4 * c + 1))
            e("v_or3_b32 v%d, v%d, v%d, v%d" % (M, M, PL + 4 * c + 2, PL + 4 * c + 3))
        if c == 1:
            for r in range(4):
                e("v_add_f32 v%d, v%d, v%d" % (a + r, PL + r, PL + 4 + r))
        elif c > 1:
            for r in range(4):
                e("v_add_f32 v%d, v%d, v%d" % (a + r, a + r, PL + 4 * c + r))
    e("v_and_b32 v%d, 0x%x, v%d" % (M, TAGMASK, M))
    e("v_cmp_ne_u32 %s, 0, v%d" % (sr(S_EXEC, 2), M))
    e("s_sub_u32 %s, %s, 1" % (sr(S_T2), sr(S_T2)))
    e("s_cmp_eq_u32 %s, 0" % sr(S_T2))
    e("s_cbranch_scc1 L_got")
    e("s_cmp_lg_u64 %s, 0" % sr(S_EXEC, 2))
    e("s_cbranch_scc1 L_retry")
    e("L_got:")
    g.stamp(6)
    if opts.get("prof"):
        e("s_sub_u32 %s, 0x%x, %s" % (sr(S_T3), SPIN, sr(S_T2)))
    g.hilo_write(X_TAB)
    e("s_waitcnt lgkmcnt(0)")
    if opts.get("skip7", 1):
        e("s_branch L_C")
        e("L_skip7:")
        e("s_waitcnt vmcnt(0)")
        if opts.get("prof"):
            e("s_mov_b32 %s, 1" % sr(S_T3))
        e("L_C:")
    e("s_barrier")
    g.stamp(7)
    g.read_table(X_TAB)
    e("s_cmp_lt_u32 %s, 4" % sr(S_WAVE))
    e("s_cbranch_scc1 L_out")
    if prio and opts.get("lqlow", 1):
        e("s_setprio 0")
    e("s_waitcnt lgkmcnt(0)")
    qproj()
    e("L_out:")
    g.stamp(5)
    e("s_waitcnt lgkmcnt(0)")
    e("v_lshlrev_b32 v%d, 4, v%d" % (V_T, V_LANE))
    e("v_add_u32 v%d, %s, v%d" % (V_T, sr(S_XB), V_T))

    def out_compute(T, accbase):
        den = accbase + 48
        e("v_mfma_f32_16x16x16_bf16 %s, %s, %s, 0" % (vr(den, 4), vr(V_AT + 24, 2), vr(V_P + 2 * T, 2)))
        for t in range(12):
            e("v_mfma_f32_16x16x16_bf16 %s, %s, %s, 0" % (vr(accbase + 4 * t, 4), vr(V_AT + 2 * t, 2), vr(V_P + 2 * T, 2)))
        e("v_add_f32 v%d, %s, v%d" % (den, hx(f32(1e-6)), den))
        e("v_rcp_f32 v%d, v%d" % (den, den))
        for u in range(6):
            x = accbase + 8 * u
            for r in range(8):
                e("v_mul_f32 v%d, v%d, v%d" % (x + r, x + r, den))
            for r in range(4):
                e("v_cvt_pk_bf16_f32 v%d, v%d, v%d" % (x + r, x + 2 * r, x + 2 * r + 1))
            e("ds_write_b128 v%d, %s offset:%d" % ((V_RE, V_RO)[u & 1], vr(x, 4), T * 6144 + (u >> 1) * 128))

    def out_store(T, stg):
        for jj in range(6):
            e("ds_read_b128 %s, v%d offset:%d" % (vr(stg + 4 * jj, 4), V_T, T * 6144 + jj * 1024))
        for jj in range(6):
            e("s_waitcnt lgkmcnt(%d)" % (5 - jj))
            so = ((S_B0, S_B04), (S_B1, S_B14))[T][jj >> 2]
            e("buffer_store_dwordx4 %s, v%d, %s, %s offen offset:%d%s" % (
                vr(stg + 4 * jj, 4), V_SW + jj, sr(SRD_O, 4), sr(so), (jj & 3) * 1024, sm))
    out_compute(0, V_ACC)
    e("s_waitcnt lgkmcnt(0)")
    out_store(0, V_STG)
    out_compute(1, V_K - 4)
    e("s_waitcnt lgkmcnt(0)")
    out_store(1, V_ACC)
    g.stamp(8)
    if opts.get("prof"):
        e("s_waitcnt vmcnt(0)")
        g.stamp(9)
        e("s_getreg_b32 %s, hwreg(HW_REG_XCC_ID)" % sr(S_ST0 + 28))
        e("s_and_b32 %s, %s, 15" % (sr(S_ST0 + 28), sr(S_ST0 + 28)))
        e("s_add_u32 %s, %s, 1" % (sr(S_ST0 + 28), sr(S_ST0 + 28)))
        e("s_mov_b32 %s, 0" % sr(S_ST0 + 29))
        g.stamps.add(14)
        g.flush_stamps()
        e("v_mov_b32 v254, %s" % sr(S_T3))
        e("v_mov_b32 v255, 0")
        e("buffer_store_dwordx2 v[254:255], v253, %s, 0 offen offset:%d" % (sr(SRD_WS, 4), 15 * 8))
    e("L_end:")
    e("s_endpgm")
    txt = HEADER
    txt += "; @launch grid=(256,1,1) block=(512,1,1) lds=%d\n" % X_END
    txt += '.amdgcn_target "amdgcn-amd-amdhsa--gfx950"\n'
    txt += kernel_text(NAME + "_kernel", g)
    txt += kd(NAME + "_kernel")
    return txt


def gen_lat(opts):
    opts = dict(opts); opts["prof"] = 1
    g = Gen(opts)
    e = g
    mod = MODS[opts.get("mod", 1)]
    pm = MODS[opts.get("pmod", 2)]
    g.prologue("L_end")
    e("s_cmp_eq_u32 %s, 7" % sr(S_WAVE))
    e("s_cbranch_scc1 L_probe")
    g.stamp(0)
    if opts.get("stream", 1):
        g.load_rows(V_K, SRD_K, mod)
        g.load_rows(V_VA, SRD_V, mod)
        g.load_rows(V_Q, SRD_Q, mod)
    e("s_waitcnt vmcnt(0)")
    g.stamp(1)
    g.flush_stamps()
    e("s_endpgm")
    e("L_probe:")
    g.stamps = []
    for i in range(13):
        g.stamp(i)
        if opts.get("delay"):
            pass
        e("buffer_load_dwordx4 v[8:11], v%d, %s, 0 offen offset:%d%s" % (V_OW, sr(SRD_W, 4), 0, pm))
        e("s_waitcnt vmcnt(0)")
    g.stamp(13)
    g.flush_stamps()
    e("L_end:")
    e("s_endpgm")
    txt = HEADER
    txt += "; @launch grid=(256,1,1) block=(512,1,1) lds=0\n"
    txt += '.amdgcn_target "amdgcn-amd-amdhsa--gfx950"\n'
    txt += kernel_text(NAME + "_kernel", g)
    txt += kd(NAME + "_kernel")
    return txt


def gen_bench(opts):
    opts = dict(opts); opts["prof"] = 1
    g = Gen(opts)
    mod = {0: "", 1: " nt", 2: " sc1", 3: " sc0 sc1", 4: " sc0 sc1 nt", 5: " sc1 nt", 6: " sc0", 7: " sc0 nt"}[opts.get("mod", 0)]
    smod = {0: "", 1: " nt", 2: " sc1", 3: " sc0 sc1", 4: " sc0 sc1 nt", 5: " sc1 nt", 6: " sc0", 7: " sc0 nt"}[opts.get("smod", 0)]
    pat = opts.get("pat", 0)
    g.prologue("L_end")
    g.stamp(0)
    thr = opts.get("thr")
    if thr is not None:
        _call = Gen.__call__
        class TG(Gen):
            def __call__(self, t):
                _call(self, t)
                if t.startswith("buffer_load"):
                    _call(self, "s_waitcnt vmcnt(%d)" % (thr - 1))
        g.__class__ = TG
    g("v_lshlrev_b32 v8, 4, v%d" % V_LANE)
    g("s_add_u32 s98, %s, 4096" % sr(S_B0))
    g("s_add_u32 s99, %s, 8192" % sr(S_B0))
    def coal(vbase, srd):
        for i in range(12):
            so = (sr(S_B0), "s98", "s99")[i // 4]
            g("buffer_load_dwordx4 %s, v8, %s, %s offen offset:%d%s" % (vr(vbase + 4 * i, 4), sr(srd, 4), so, (i % 4) * 1024, mod))
    def coal_store(vbase, srd):
        for i in range(12):
            so = (sr(S_B0), "s98", "s99")[i // 4]
            g("buffer_store_dwordx4 %s, v8, %s, %s offen offset:%d%s" % (vr(vbase + 4 * i, 4), sr(srd, 4), so, (i % 4) * 1024, smod))
    def row_store(vbase, srd):
        for T in range(2):
            for t in range(6):
                g("buffer_store_dwordx4 %s, v%d, %s, %s offen offset:%d%s" % (
                    vr(vbase + 24 * T + 4 * t, 4), V_OK, sr(srd, 4), sr(S_B0 + T), 64 * t, smod))
    def dma(srd, ldsbase):
        g("s_mul_i32 s100, %s, 12288" % sr(S_WAVE))
        g("s_add_u32 s100, s100, %d" % ldsbase)
        for i in range(12):
            so = (sr(S_B0), "s98", "s99")[i // 4]
            g("s_add_u32 m0, s100, %d" % ((i // 4) * 4096))
            g("s_nop 0")
            g("buffer_load_dwordx4 v8, %s, %s offen offset:%d%s lds" % (sr(srd, 4), so, (i % 4) * 1024, mod))
    what = opts.get("what", 3)
    if pat == 3:
        if what & 1: dma(SRD_K, 0)
        what &= ~1
        pat = 0
    if opts.get("wload"):
        g.load_w()
    if what & 1:
        if pat in (0, 4): coal(V_K, SRD_K)
        else: g.load_rows(V_K, SRD_K, mod)
    if what & 2:
        if pat == 0: coal(V_VA, SRD_V)
        elif pat == 1: g.load_rows(V_VA, SRD_V, mod)
        else: g.load_v(mod)
    if what & 4:
        if pat in (0, 4): coal(V_Q, SRD_Q)
        else: g.load_rows(V_Q, SRD_Q, mod)
    g("s_waitcnt vmcnt(0)")
    g.stamp(1)
    if what & 8:
        if opts.get("spat", 0) == 0: coal_store(V_Q, SRD_O)
        else: row_store(V_Q, SRD_O)
        g.stamp(2)
        g("s_waitcnt vmcnt(0)")
        g.stamp(3)
    g.flush_stamps()
    g("L_end:")
    g("s_endpgm")
    txt = HEADER
    txt += "; @launch grid=(%d,1,1) block=(%d,1,1) lds=%d\n" % (opts.get("grid", 256), opts.get("block", 512), opts.get("lds", 0))
    txt += '.amdgcn_target "amdgcn-amd-amdhsa--gfx950"\n'
    txt += kernel_text(NAME + "_kernel", g)
    txt += kd(NAME + "_kernel", opts.get("vgpr", 256))
    return txt


if __name__ == "__main__":
    import argparse
    ap = argparse.ArgumentParser()
    ap.add_argument("variant")
    ap.add_argument("-o", default="cdna_kernels/%s.s" % NAME)
    ap.add_argument("--opt", action="append", default=[])
    a = ap.parse_args()
    opts = {}
    for kv in a.opt:
        k, _, v = kv.partition("=")
        opts[k] = (int(v, 0) if v else 1)
    txt = globals()["gen_" + a.variant](opts)
    open(a.o, "w").write(txt)
    print("wrote", a.o, len(txt))
```

```python
import struct, sys, os, math
sys.path.insert(0, os.path.dirname(os.path.abspath(__file__)))
import hazard

NAME = "standalone__linear_kernel_rfa__prompt"


def f32(x):
    return struct.unpack("<I", struct.pack("<f", x))[0]


def hx(x):
    return "0x%08x" % (x & 0xFFFFFFFF)


D = 192
RB = 384
TENSOR_BYTES = 32 * 2048 * RB
PART_BYTES = 13 * 512
WS_BYTES = 268435456
SCALE = float(D) ** -0.25
LOG2E = 1.4426950408889634
C_EXP = SCALE * LOG2E
C_SQ = -0.5 * SCALE
C_BIAS = -1.5


def vr(a, n=1):
    return "v%d" % a if n == 1 else "v[%d:%d]" % (a, a + n - 1)


def sr(a, n=1):
    return "s%d" % a if n == 1 else "s[%d:%d]" % (a, a + n - 1)


S_Q, S_K, S_V, S_W = 4, 6, 8, 10
S_O, S_DBG, S_WS = 12, 14, 16
S_WAVE = 18
S_TMP = 19
SRD_K, SRD_V, SRD_W, SRD_WS, SRD_Q, SRD_O, SRD_DBG = 20, 24, 28, 32, 36, 40, 44
S_B0, S_B1 = 48, 49
S_SELLO, S_SELHI = 50, 51
S_CEXP = 52
S_H, S_C = 53, 54
S_PART = 55
S_HPART = 56
S_T0, S_T1, S_T2, S_T3 = 57, 58, 59, 60
S_EXEC = 62
S_STAMP = 64
S_PROF = 66
S_CNT = 67
S_ST0 = 68

V_TID = 0
V_LANE = 1
V_OK = 2
V_OVA = 3
V_OVB = 4
V_OW = 5
V_CSQ = 6
V_M15 = 7
V_W = 8
V_K = 32
V_VA = 80
V_VB = 112
V_Q = 128
V_ACC = 176
V_DP = 228
V_SS = 236
V_P = 240
V_B0 = 244
V_B1 = 248
V_ONE = 252
V_AT = 80
V_X = 106


class Gen:
    def __init__(self, opts):
        self.L = []
        self.o = opts
        self.uid = 0

    def __call__(self, s):
        for l in s.split("\n"):
            self.L.append("    " + l.strip() if l.strip() and not l.strip().endswith(":") else l.strip())

    def label(self, base):
        self.uid += 1
        return "%s_%d" % (base, self.uid)

    def stamp(self, idx):
        if not self.o.get("prof"):
            return
        self.stamps = getattr(self, "stamps", set())
        if not isinstance(self.stamps, set):
            self.stamps = set(self.stamps)
        self.stamps.add(idx)
        self("s_memrealtime %s" % sr(S_ST0 + 2 * idx, 2))

    def zero_stamps(self):
        if not self.o.get("prof"):
            return
        for i in range(15):
            self("s_mov_b64 %s, 0" % sr(S_ST0 + 2 * i, 2))

    def flush_stamps(self):
        if not self.o.get("prof"):
            return
        e = self
        e("s_waitcnt lgkmcnt(0)")
        e("v_mov_b32 v253, %s" % sr(S_PROF))
        e("s_mov_b64 exec, 1")
        for idx in sorted(self.stamps):
            e("v_mov_b32 v254, %s" % sr(S_ST0 + 2 * idx))
            e("v_mov_b32 v255, %s" % sr(S_ST0 + 2 * idx + 1))
            e("buffer_store_dwordx2 v[254:255], v253, %s, 0 offen offset:%d" % (sr(SRD_WS, 4), idx * 8))
            e("s_nop 1")

    def prologue(self, end_label):
        e = self
        e("s_cmp_ge_u32 s2, 256")
        e("s_cbranch_scc1 %s" % end_label)
        e("s_load_dwordx8 s[4:11], s[0:1], 0")
        e("s_load_dwordx4 s[12:15], s[0:1], 32")
        e("s_load_dwordx2 s[16:17], s[0:1], 48")
        e("v_and_b32 v%d, 63, v0" % V_LANE)
        e("v_lshrrev_b32 v8, 6, v0")
        e("v_and_b32 v9, 15, v0")
        e("v_bfe_u32 v10, v0, 4, 2")
        e("v_readfirstlane_b32 %s, v8" % sr(S_WAVE))
        e("v_mul_u32_u24 v11, %d, v9" % RB)
        e("v_lshlrev_b32 v12, 4, v10")
        e("v_add_u32 v%d, v11, v12" % V_OK)
        e("v_mul_u32_u24 v13, %d, v10" % (4 * RB))
        e("v_lshlrev_b32 v14, 4, v9")
        e("v_add_u32 v%d, v13, v14" % V_OVA)
        e("v_lshlrev_b32 v14, 3, v9")
        e("v_add_u32 v13, 256, v13")
        e("v_add_u32 v%d, v13, v14" % V_OVB)
        e("v_and_b32 v14, 7, v9")
        e("v_mul_u32_u24 v14, %d, v14" % RB)
        e("v_add_u32 v%d, v14, v12" % V_OW)
        e("v_mov_b32 v%d, %s" % (V_CSQ, hx(f32(C_SQ))))
        e("v_mov_b32 v%d, %s" % (V_M15, hx(f32(C_BIAS))))
        e("s_and_b32 %s, s2, 7" % sr(S_T0))
        e("s_lshr_b32 %s, s2, 6" % sr(S_T1))
        e("s_lshl_b32 %s, %s, 3" % (sr(S_T1), sr(S_T1)))
        e("s_or_b32 %s, %s, %s" % (sr(S_H), sr(S_T0), sr(S_T1)))
        e("s_lshr_b32 %s, s2, 3" % sr(S_C))
        e("s_and_b32 %s, %s, 7" % (sr(S_C), sr(S_C)))
        e("s_mul_i32 %s, %s, %d" % (sr(S_T0), sr(S_H), 2048 * RB))
        e("s_mul_i32 %s, %s, %d" % (sr(S_T1), sr(S_C), 256 * RB))
        e("s_add_u32 %s, %s, %s" % (sr(S_T0), sr(S_T0), sr(S_T1)))
        e("s_mul_i32 %s, %s, %d" % (sr(S_T1), sr(S_WAVE), 32 * RB))
        e("s_add_u32 %s, %s, %s" % (sr(S_B0), sr(S_T0), sr(S_T1)))
        e("s_add_u32 %s, %s, %d" % (sr(S_B1), sr(S_B0), 16 * RB))
        e("s_mul_i32 %s, %s, %d" % (sr(S_HPART), sr(S_H), 8 * PART_BYTES))
        e("s_mul_i32 %s, %s, %d" % (sr(S_T1), sr(S_C), PART_BYTES))
        e("s_add_u32 %s, %s, %s" % (sr(S_PART), sr(S_HPART), sr(S_T1)))
        e("s_mov_b32 %s, 0x05040100" % sr(S_SELLO))
        e("s_mov_b32 %s, 0x07060302" % sr(S_SELHI))
        e("s_mov_b32 %s, %s" % (sr(S_CEXP), hx(f32(C_EXP))))
        if self.o.get("prof"):
            e("s_lshl_b32 %s, s2, 3" % sr(S_PROF))
            e("s_add_u32 %s, %s, %s" % (sr(S_PROF), sr(S_PROF), sr(S_WAVE)))
            e("s_lshl_b32 %s, %s, 7" % (sr(S_PROF), sr(S_PROF)))
            e("s_add_u32 %s, %s, 0x%x" % (sr(S_PROF), sr(S_PROF), 128 << 20))
        e("s_waitcnt lgkmcnt(0)")
        for srd, ptr, nbytes in ((SRD_K, S_K, TENSOR_BYTES), (SRD_V, S_V, TENSOR_BYTES), (SRD_W, S_W, 8 * RB),
                                 (SRD_WS, S_WS, WS_BYTES), (SRD_Q, S_Q, TENSOR_BYTES), (SRD_O, S_O, TENSOR_BYTES),
                                 (SRD_DBG, S_DBG, 256)):
            e("s_mov_b32 %s, %s" % (sr(srd), sr(ptr)))
            e("s_and_b32 %s, %s, 0xffff" % (sr(srd + 1), sr(ptr + 1)))
            e("s_mov_b32 %s, 0x%x" % (sr(srd + 2), nbytes))
            e("s_mov_b32 %s, 0x20000" % sr(srd + 3))

    def load_w(self):
        for t in range(6):
            self("buffer_load_dwordx4 %s, v%d, %s, 0 offen offset:%d" % (vr(V_W + 4 * t, 4), V_OW, sr(SRD_W, 4), 64 * t))

    def load_rows(self, vbase, srd, mod=""):
        for T in range(2):
            for t in range(6):
                self("buffer_load_dwordx4 %s, v%d, %s, %s offen offset:%d%s" % (
                    vr(vbase + 24 * T + 4 * t, 4), V_OK, sr(srd, 4), sr(S_B0 + T), 64 * t, mod))

    def load_v(self, mod=""):
        for j in range(8):
            self("buffer_load_dwordx4 %s, v%d, %s, %s offen offset:%d%s" % (
                vr(V_VA + 4 * j, 4), V_OVA, sr(SRD_V, 4), sr(S_B0 + (j >> 2)), (j & 3) * RB, mod))
            self("buffer_load_dwordx2 %s, v%d, %s, %s offen offset:%d%s" % (
                vr(V_VB + 2 * j, 2), V_OVB, sr(SRD_V, 4), sr(S_B0 + (j >> 2)), (j & 3) * RB, mod))

    def proj(self, vbase, T, is_k):
        e = self
        dp = V_DP + 4 * T
        ss0, ss1 = V_SS + 2 * T, V_SS + 2 * T + 1
        e("v_mov_b32 v%d, 0" % ss0)
        e("v_mov_b32 v%d, 0" % ss1)
        for t in range(6):
            x = vbase + 24 * T + 4 * t
            c = "0" if t == 0 else vr(dp, 4)
            if is_k:
                e("v_mfma_f32_16x16x32_bf16 %s, %s, %s, %s" % (vr(dp, 4), vr(x, 4), vr(V_W + 4 * t, 4), c))
            else:
                e("v_mfma_f32_16x16x32_bf16 %s, %s, %s, %s" % (vr(dp, 4), vr(V_W + 4 * t, 4), vr(x, 4), c))
            for i in range(4):
                e("v_dot2c_f32_bf16 v%d, v%d, v%d" % ((ss0, ss1)[i & 1], x + i, x + i))
        e("v_add_f32 v%d, v%d, v%d" % (ss0, ss0, ss1))
        if is_k:
            e("v_mfma_f32_16x16x4_f32 %s, v%d, v%d, %s" % (vr(dp, 4), ss0, V_CSQ, vr(dp, 4)))
        else:
            e("v_mfma_f32_16x16x4_f32 %s, v%d, v%d, %s" % (vr(dp, 4), V_CSQ, ss0, vr(dp, 4)))

    def phi(self, T):
        e = self
        dp = V_DP + 4 * T
        for r in range(4):
            e("v_fma_f32 v%d, v%d, %s, v%d" % (dp + r, dp + r, sr(S_CEXP), V_M15))
        for r in range(4):
            e("v_exp_f32 v%d, v%d" % (dp + r, dp + r))
        for r in range(4):
            e("v_add_f32 v%d, %s, v%d" % (dp + r, hx(f32(1e-6)), dp + r))

    def kv_mfma(self):
        e = self
        e("v_cvt_pk_bf16_f32 v%d, v%d, v%d" % (V_P + 0, V_DP + 0, V_DP + 1))
        e("v_cvt_pk_bf16_f32 v%d, v%d, v%d" % (V_P + 1, V_DP + 2, V_DP + 3))
        e("v_cvt_pk_bf16_f32 v%d, v%d, v%d" % (V_P + 2, V_DP + 4, V_DP + 5))
        e("v_cvt_pk_bf16_f32 v%d, v%d, v%d" % (V_P + 3, V_DP + 6, V_DP + 7))

    def kv_tiles(self):
        e = self
        for i in range(4):
            e("v_mov_b32 v%d, 0x3f803f80" % (V_ONE + i))
        e("v_mfma_f32_16x16x32_bf16 %s, %s, %s, 0" % (vr(V_ACC + 48, 4), vr(V_P, 4), vr(V_ONE, 4)))
        for tau in range(12):
            b = (V_B0, V_B1)[tau & 1]
            if tau < 8:
                c, half = tau >> 1, tau & 1
                src = lambda j: V_VA + 4 * j + c
            else:
                c, half = (tau - 8) >> 1, (tau - 8) & 1
                src = lambda j: V_VB + 2 * j + c
            sel = (S_SELLO, S_SELHI)[half]
            for p in range(4):
                e("v_perm_b32 v%d, v%d, v%d, %s" % (b + p, src(2 * p + 1), src(2 * p), sr(sel)))
            e("v_mfma_f32_16x16x32_bf16 %s, %s, %s, 0" % (vr(V_ACC + 4 * tau, 4), vr(V_P, 4), vr(b, 4)))

    def wg_reduce_and_store(self, mod):
        e = self
        e("s_mul_i32 %s, %s, %d" % (sr(S_T0), sr(S_WAVE), PART_BYTES))
        e("v_lshlrev_b32 v%d, 4, v%d" % (V_B0, V_LANE))
        e("v_add_u32 v%d, %s, v%d" % (V_B0, sr(S_T0), V_B0))
        e("s_mov_b32 exec_lo, -1")
        e("s_mov_b32 exec_hi, 0")
        for tau in range(13):
            e("ds_write_b128 v%d, %s offset:%d" % (V_B0, vr(V_ACC + 4 * tau, 4), tau * 512))
        e("s_mov_b64 exec, -1")
        e("v_lshlrev_b32 v%d, 4, v0" % V_B1)
        e("s_waitcnt lgkmcnt(0)")
        e("s_barrier")
        skip = self.label("L_red_skip")
        e("v_cmp_gt_u32 vcc, 416, v0")
        e("s_and_saveexec_b64 %s, vcc" % sr(S_EXEC, 2))
        e("s_cbranch_execz %s" % skip)
        for w in range(8):
            e("ds_read_b128 %s, v%d offset:%d" % (vr(V_ACC + 4 * w, 4), V_B1, w * PART_BYTES))
        for w in range(1, 8):
            e("s_waitcnt lgkmcnt(%d)" % (7 - w))
            for r in range(4):
                e("v_add_f32 v%d, v%d, v%d" % (V_ACC + r, V_ACC + r, V_ACC + 4 * w + r))
        if self.o.get("sanitize"):
            for r in range(4):
                e("v_min_u32 v%d, -2, v%d" % (V_ACC + r, V_ACC + r))
        e("buffer_store_dwordx4 %s, v%d, %s, %s offen%s" % (vr(V_ACC, 4), V_B1, sr(SRD_WS, 4), sr(S_PART), mod))
        e("%s:" % skip)
        e("s_mov_b64 exec, %s" % sr(S_EXEC, 2))

    def table_addr(self, vt=0, x=V_X, dst=None):
        e = self
        if dst is None:
            dst = x
        e("v_lshrrev_b32 v%d, 5, v%d" % (x + 1, vt))
        e("v_and_b32 v%d, 15, v%d" % (x + 2, vt))
        e("v_bfe_u32 v%d, v%d, 4, 1" % (x + 3, vt))
        e("v_lshl_add_u32 v%d, v%d, 3, v%d" % (x + 4, x + 2, x + 1))
        e("v_lshl_add_u32 v%d, v%d, 2, v%d" % (x + 5, x + 2, x + 1))
        e("v_add_u32 v%d, 120, v%d" % (x + 5, x + 5))
        e("v_cmp_gt_u32 vcc, 8, v%d" % (x + 1))
        e("v_cndmask_b32 v%d, v%d, v%d, vcc" % (x + 4, x + 5, x + 4))
        e("v_lshrrev_b32 v%d, 5, v%d" % (x + 5, x + 4))
        e("v_bfe_u32 v%d, v%d, 2, 1" % (x + 6, x + 4))
        e("v_lshl_add_u32 v%d, v%d, 1, v%d" % (x + 5, x + 5, x + 6))
        e("v_bfe_u32 v%d, v%d, 3, 2" % (x + 6, x + 4))
        e("v_and_b32 v%d, 3, v%d" % (x + 7, x + 4))
        e("v_lshl_add_u32 v%d, v%d, 2, v%d" % (x + 6, x + 6, x + 7))
        e("v_cmp_eq_u32 vcc, 12, v%d" % (x + 1))
        e("v_cndmask_b32 v%d, v%d, v%d, vcc" % (x + 5, x + 5, x + 1))
        e("v_cndmask_b32 v%d, v%d, v%d, vcc" % (x + 6, x + 6, x + 2))
        e("v_lshl_add_u32 v%d, v%d, 4, v%d" % (x + 6, x + 3, x + 6))
        e("v_lshlrev_b32 v%d, 3, v%d" % (x + 6, x + 6))
        e("v_lshl_add_u32 v%d, v%d, 9, v%d" % (dst, x + 5, x + 6))

    def gather_partials(self, mod, lds_base):
        e = self
        skip = self.label("L_gat_skip")
        e("v_lshlrev_b32 v%d, 4, v0" % V_B1)
        e("v_cmp_gt_u32 vcc, 416, v0")
        e("s_and_saveexec_b64 %s, vcc" % sr(S_EXEC, 2))
        e("s_cbranch_execz %s" % skip)
        e("s_mov_b32 %s, %s" % (sr(S_T0), sr(S_HPART)))
        for c in range(8):
            e("buffer_load_dwordx4 %s, v%d, %s, %s offen%s" % (vr(V_ACC + 4 * c, 4), V_B1, sr(SRD_WS, 4), sr(S_T0), mod))
            if c < 7:
                e("s_add_u32 %s, %s, %d" % (sr(S_T0), sr(S_T0), PART_BYTES))
        self.table_addr()
        for c in range(1, 8):
            e("s_waitcnt vmcnt(%d)" % (7 - c))
            for r in range(4):
                e("v_add_f32 v%d, v%d, v%d" % (V_ACC + r, V_ACC + r, V_ACC + 4 * c + r))
        self.hilo_write(lds_base)
        e("%s:" % skip)
        e("s_mov_b64 exec, %s" % sr(S_EXEC, 2))

    def hilo_write(self, lds_base, a=V_ACC, tmp=V_ACC + 8, vaddr=V_X):
        e = self
        hi = tmp
        lo = tmp + 2
        t = tmp + 4
        e("v_cvt_pk_bf16_f32 v%d, v%d, v%d" % (hi, a, a + 1))
        e("v_cvt_pk_bf16_f32 v%d, v%d, v%d" % (hi + 1, a + 2, a + 3))
        e("v_lshlrev_b32 v%d, 16, v%d" % (t, hi))
        e("v_and_b32 v%d, 0xffff0000, v%d" % (t + 1, hi))
        e("v_lshlrev_b32 v%d, 16, v%d" % (t + 2, hi + 1))
        e("v_and_b32 v%d, 0xffff0000, v%d" % (t + 3, hi + 1))
        for r in range(4):
            e("v_sub_f32 v%d, v%d, v%d" % (t + r, a + r, t + r))
        e("v_cvt_pk_bf16_f32 v%d, v%d, v%d" % (lo, t, t + 1))
        e("v_cvt_pk_bf16_f32 v%d, v%d, v%d" % (lo + 1, t + 2, t + 3))
        e("ds_write_b64 v%d, %s offset:%d" % (vaddr, vr(hi, 2), lds_base))
        e("ds_write_b64 v%d, %s offset:%d" % (vaddr, vr(lo, 2), lds_base + 256))

    def read_table(self, lds_base):
        e = self
        e("v_lshlrev_b32 v%d, 3, v%d" % (V_B0, V_LANE))
        for t in range(13):
            e("ds_read_b64 %s, v%d offset:%d" % (vr(V_AT + 2 * t, 2), V_B0, lds_base + t * 512))

    def pack_phi_q(self, T):
        e = self
        dp = V_DP + 4 * T
        e("v_cvt_pk_bf16_f32 v%d, v%d, v%d" % (V_P + 2 * T, dp, dp + 1))
        e("v_cvt_pk_bf16_f32 v%d, v%d, v%d" % (V_P + 2 * T + 1, dp + 2, dp + 3))

    def out_tile(self, T, accbase, mod):
        e = self
        den = accbase + 48
        e("v_mfma_f32_16x16x16_bf16 %s, %s, %s, 0" % (vr(den, 4), vr(V_AT + 24, 2), vr(V_P + 2 * T, 2)))
        for t in range(12):
            e("v_mfma_f32_16x16x16_bf16 %s, %s, %s, 0" % (vr(accbase + 4 * t, 4), vr(V_AT + 2 * t, 2), vr(V_P + 2 * T, 2)))
        e("v_add_f32 v%d, %s, v%d" % (den, hx(f32(1e-6)), den))
        e("v_rcp_f32 v%d, v%d" % (den, den))
        for u in range(6):
            a = accbase + 8 * u
            for r in range(8):
                e("v_mul_f32 v%d, v%d, v%d" % (a + r, a + r, den))
            o = a
            e("v_cvt_pk_bf16_f32 v%d, v%d, v%d" % (o + 0, a + 0, a + 1))
            e("v_cvt_pk_bf16_f32 v%d, v%d, v%d" % (o + 1, a + 2, a + 3))
            e("v_cvt_pk_bf16_f32 v%d, v%d, v%d" % (o + 2, a + 4, a + 5))
            e("v_cvt_pk_bf16_f32 v%d, v%d, v%d" % (o + 3, a + 6, a + 7))
            e("buffer_store_dwordx4 %s, v%d, %s, %s offen offset:%d%s" % (
                vr(o, 4), V_OK, sr(SRD_O, 4), sr(S_B0 + T), 64 * u, mod))


def kd(name, vgpr=256, sgpr=102):
    acc = min(256, (vgpr + 3) // 4 * 4)
    return """.section .rodata,"a"
.p2align 6
.amdhsa_kernel %s
  .amdhsa_next_free_vgpr %d
  .amdhsa_next_free_sgpr %d
  .amdhsa_accum_offset %d
  .amdhsa_group_segment_fixed_size 0
  .amdhsa_kernarg_size 56
  .amdhsa_user_sgpr_count 2
  .amdhsa_user_sgpr_kernarg_segment_ptr 1
  .amdhsa_system_sgpr_workgroup_id_x 1
.end_amdhsa_kernel
""" % (name, vgpr, sgpr, acc)


HEADER = """; Kernarg layout (56 bytes): q, k, v, omega, out, debug, ws  (8-byte pointers)
"""


def kernel_text(name, g):
    lines, n = hazard.fix(g.L)
    return ".text\n.globl %s\n.p2align 8\n.type %s,@function\n%s:\n%s\n" % (name, name, name, "\n".join(lines))


MODS = {0: "", 1: " nt", 2: " sc1", 3: " sc0 sc1", 4: " sc0 sc1 nt", 5: " sc1 nt", 6: " sc0", 7: " sc0 nt"}


def gen_split(opts):
    lm = MODS[opts.get("mod", 1)]
    sm = MODS[opts.get("smod", 0)]
    g = Gen(opts)
    g.prologue("L_end1")
    g.stamp(0)
    g.load_w()
    g.load_rows(V_K, SRD_K, lm)
    g.load_v(lm)
    g("s_waitcnt vmcnt(22)")
    g.proj(V_K, 0, True)
    g("s_waitcnt vmcnt(16)")
    g.proj(V_K, 1, True)
    g.phi(0)
    g.phi(1)
    g.kv_mfma()
    g.stamp(1)
    g("s_waitcnt vmcnt(0)")
    g.stamp(2)
    g.kv_tiles()
    g.wg_reduce_and_store("")
    g.stamp(3)
    g.flush_stamps()
    g("L_end1:")
    g("s_endpgm")
    h = Gen(opts)
    h.uid = 1000
    h.prologue("L_end2")
    h.stamp(4)
    h.load_w()
    h.load_rows(V_Q, SRD_Q, lm)
    h.gather_partials("", 0)
    h("s_waitcnt vmcnt(0) lgkmcnt(0)")
    h("s_barrier")
    h.read_table(0)
    for T in range(2):
        h.proj(V_Q, T, False)
        h.phi(T)
        h.pack_phi_q(T)
    h("s_waitcnt lgkmcnt(0)")
    h.stamp(5)
    h.out_tile(0, V_ACC, sm)
    h.out_tile(1, V_K - 4, sm)
    h.stamp(6)
    h.flush_stamps()
    h("L_end2:")
    h("s_endpgm")
    lds1 = 8 * PART_BYTES
    lds2 = PART_BYTES
    txt = HEADER
    txt += "; @launch kernel=rfa_kv_kernel grid=(256,1,1) block=(512,1,1) lds=%d\n" % lds1
    txt += "; @launch kernel=rfa_out_kernel grid=(256,1,1) block=(512,1,1) lds=%d\n" % lds2
    txt += '.amdgcn_target "amdgcn-amd-amdhsa--gfx950"\n'
    txt += kernel_text("rfa_kv_kernel", g)
    txt += kernel_text("rfa_out_kernel", h)
    txt += kd("rfa_kv_kernel") + kd("rfa_out_kernel")
    return txt


SLOT = 7168
LDS_TAB = 8 * PART_BYTES


def gen_fused(opts):
    lm = MODS[opts.get("mod", 1)]
    qm = MODS[opts.get("qmod", opts.get("mod", 1))]
    sm = MODS[opts.get("smod", 0)]
    xm = MODS[opts.get("xmod", 2)]
    qpos = opts.get("qpos", 2)
    g = Gen(opts)
    e = g
    g.prologue("L_end")
    e("s_mul_i32 %s, %s, %d" % (sr(S_HPART), sr(S_H), 8 * SLOT))
    e("s_mul_i32 %s, %s, %d" % (sr(S_T1), sr(S_C), SLOT))
    e("s_add_u32 %s, %s, %s" % (sr(S_PART), sr(S_HPART), sr(S_T1)))
    g.stamp(0)
    e("s_cmp_lg_u32 %s, 7" % sr(S_WAVE))
    e("s_cbranch_scc1 L_noclear")
    e("v_lshlrev_b32 v8, 4, v%d" % V_LANE)
    for i in range(4):
        e("v_mov_b32 v%d, -1" % (12 + i))
    e("s_add_u32 %s, %s, 4096" % (sr(S_T0), sr(S_PART)))
    for i in range(7):
        e("buffer_store_dwordx4 v[12:15], v8, %s, %s offen offset:%d%s" % (
            sr(SRD_WS, 4), sr(S_PART) if i < 4 else sr(S_T0), (i & 3) * 1024, xm))
    e("s_nop 1")
    e("L_noclear:")
    g.load_w()
    g.load_rows(V_K, SRD_K, lm)
    g.load_v(lm)
    nq = 0
    if qpos == 0:
        g.load_rows(V_Q, SRD_Q, qm); nq = 12
    if opts.get("bara", 1):
        e("s_barrier")
    if qpos == 1:
        g.load_rows(V_Q, SRD_Q, qm); nq = 12
    e("s_waitcnt vmcnt(%d)" % (22 + nq))
    g.proj(V_K, 0, True)
    e("s_waitcnt vmcnt(%d)" % (16 + nq))
    g.proj(V_K, 1, True)
    g.phi(0)
    g.phi(1)
    g.kv_mfma()
    g.stamp(1)
    e("s_lshl_b32 %s, %s, 2" % (sr(S_T0), sr(S_H)))
    e("v_mov_b32 v%d, %s" % (V_B0, sr(S_T0)))
    e("s_cmp_lg_u32 %s, 7" % sr(S_WAVE))
    e("s_cbranch_scc1 L_nosig")
    e("v_mov_b32 v%d, 1" % (V_B0 + 1))
    e("s_mov_b64 exec, 1")
    e("buffer_atomic_add v%d, v%d, %s, 0 offen" % (V_B0 + 1, V_B0, sr(SRD_DBG, 4)))
    e("s_mov_b64 exec, -1")
    e("L_nosig:")
    e("s_cmp_lg_u32 %s, 0" % sr(S_WAVE))
    e("s_cbranch_scc1 L_nocnt")
    e("buffer_load_dword v%d, v%d, %s, 0 offen sc1" % (V_B1 + 3, V_B0, sr(SRD_DBG, 4)))
    e("L_nocnt:")
    if qpos == 2:
        g.load_rows(V_Q, SRD_Q, qm)
        e("s_waitcnt vmcnt(12)")
    elif qpos in (0, 1):
        e("s_waitcnt vmcnt(%d)" % 13)
        e("s_cmp_eq_u32 %s, 7" % sr(S_WAVE))
        e("s_cbranch_scc1 L_vok")
        e("s_cmp_eq_u32 %s, 0" % sr(S_WAVE))
        e("s_cbranch_scc1 L_vok")
        e("s_waitcnt vmcnt(12)")
        e("L_vok:")
    else:
        e("s_waitcnt vmcnt(0)")
    g.stamp(2)
    if qpos in (0, 1):
        pass
    else:
        e("v_readfirstlane_b32 %s, v%d" % (sr(S_CNT), V_B1 + 3))
    g.kv_tiles()
    e("s_mul_i32 %s, %s, %d" % (sr(S_T0), sr(S_WAVE), PART_BYTES))
    e("v_lshlrev_b32 v%d, 4, v%d" % (V_B0, V_LANE))
    e("v_add_u32 v%d, %s, v%d" % (V_B0, sr(S_T0), V_B0))
    e("s_mov_b32 exec_lo, -1")
    e("s_mov_b32 exec_hi, 0")
    for tau in range(13):
        e("ds_write_b128 v%d, %s offset:%d" % (V_B0, vr(V_ACC + 4 * tau, 4), tau * 512))
    e("s_mov_b64 exec, -1")
    if qpos == 3:
        g.load_rows(V_Q, SRD_Q, qm)
    e("s_cmp_lg_u32 %s, 0" % sr(S_WAVE))
    e("s_cbranch_scc1 L_cntok")
    e("s_cmp_eq_u32 %s, 8" % sr(S_CNT))
    e("s_cbranch_scc1 L_cntok")
    e("s_lshl_b32 %s, %s, 2" % (sr(S_T0), sr(S_H)))
    e("v_mov_b32 v%d, %s" % (V_B1, sr(S_T0)))
    e("s_mov_b32 %s, 0x10000" % sr(S_T2))
    e("L_cntspin:")
    e("buffer_load_dword v%d, v%d, %s, 0 offen sc1" % (V_B1 + 3, V_B1, sr(SRD_DBG, 4)))
    e("s_waitcnt vmcnt(0)")
    e("v_readfirstlane_b32 %s, v%d" % (sr(S_CNT), V_B1 + 3))
    e("s_sub_u32 %s, %s, 1" % (sr(S_T2), sr(S_T2)))
    e("s_cmp_eq_u32 %s, 0" % sr(S_T2))
    e("s_cbranch_scc1 L_cntok")
    e("s_cmp_lg_u32 %s, 8" % sr(S_CNT))
    e("s_cbranch_scc1 L_cntspin")
    e("L_cntok:")
    e("v_min_u32 v%d, 415, v0" % (V_B1 + 1))
    e("v_lshlrev_b32 v%d, 4, v%d" % (V_B1, V_B1 + 1))
    e("s_waitcnt lgkmcnt(0)")
    e("s_barrier")
    g.stamp(3)
    for w in range(8):
        e("ds_read_b128 %s, v%d offset:%d" % (vr(V_ACC + 4 * w, 4), V_B1, w * PART_BYTES))
    for w in range(1, 8):
        e("s_waitcnt lgkmcnt(%d)" % (7 - w))
        for r in range(4):
            e("v_add_f32 v%d, v%d, v%d" % (V_ACC + r, V_ACC + r, V_ACC + 4 * w + r))
    for r in range(4):
        e("v_min_u32 v%d, -2, v%d" % (V_ACC + r, V_ACC + r))
    e("buffer_store_dwordx4 %s, v%d, %s, %s offen%s" % (vr(V_ACC, 4), V_B1, sr(SRD_WS, 4), sr(S_PART), xm))
    g.stamp(4)
    PL = V_ACC + 4

    def payload_loads():
        e("s_mov_b32 %s, %s" % (sr(S_T0), sr(S_HPART)))
        for c in range(8):
            e("buffer_load_dwordx4 %s, v%d, %s, %s offen%s" % (vr(PL + 4 * c, 4), V_B1, sr(SRD_WS, 4), sr(S_T0), xm))
            if c < 7:
                e("s_add_u32 %s, %s, %d" % (sr(S_T0), sr(S_T0), SLOT))
    payload_loads()
    g.table_addr(V_B1 + 1)
    e("s_waitcnt vmcnt(9)")
    g.stamp(5)
    for T in range(2):
        g.proj(V_Q, T, False)
        g.phi(T)
        g.pack_phi_q(T)
    e("s_mov_b32 %s, 0x10000" % sr(S_T2))
    e("s_waitcnt vmcnt(0)")
    e("s_branch L_chk")
    e("L_retry:")
    payload_loads()
    e("s_waitcnt vmcnt(0)")
    e("L_chk:")
    M = V_ACC + 36
    e("v_max3_u32 v%d, v%d, v%d, v%d" % (M, PL, PL + 1, PL + 2))
    i = 3
    while i < 32:
        if i + 1 < 32:
            e("v_max3_u32 v%d, v%d, v%d, v%d" % (M, M, PL + i, PL + i + 1)); i += 2
        else:
            e("v_max_u32 v%d, v%d, v%d" % (M, M, PL + i)); i += 1
    e("v_cmp_eq_u32 %s, -1, v%d" % (sr(S_EXEC, 2), M))
    e("s_sub_u32 %s, %s, 1" % (sr(S_T2), sr(S_T2)))
    e("s_cmp_eq_u32 %s, 0" % sr(S_T2))
    e("s_cbranch_scc1 L_got")
    e("s_cmp_lg_u64 %s, 0" % sr(S_EXEC, 2))
    e("s_cbranch_scc1 L_retry")
    e("L_got:")
    g.stamp(6)
    if opts.get("prof"):
        e("s_sub_u32 %s, 0x10000, %s" % (sr(S_T3), sr(S_T2)))
    a = V_ACC
    for r in range(4):
        e("v_add_f32 v%d, v%d, v%d" % (a + r, PL + r, PL + 4 + r))
    for c in range(2, 8):
        for r in range(4):
            e("v_add_f32 v%d, v%d, v%d" % (a + r, a + r, PL + 4 * c + r))
    g.hilo_write(LDS_TAB)
    e("s_waitcnt lgkmcnt(0)")
    e("s_barrier")
    g.stamp(7)
    g.read_table(LDS_TAB)
    e("s_waitcnt lgkmcnt(0)")
    g.out_tile(0, V_ACC, sm)
    g.out_tile(1, V_K - 4, sm)
    g.stamp(8)
    if opts.get("prof"):
        e("s_waitcnt vmcnt(0)")
        g.stamp(9)
        g.flush_stamps()
        e("v_mov_b32 v254, %s" % sr(S_T3))
        e("v_mov_b32 v255, 0")
        e("buffer_store_dwordx2 v[254:255], v253, %s, 0 offen offset:%d" % (sr(SRD_WS, 4), 15 * 8))
    e("L_end:")
    e("s_endpgm")
    txt = HEADER
    txt += "; @launch grid=(256,1,1) block=(512,1,1) lds=%d\n" % (LDS_TAB + PART_BYTES)
    txt += '.amdgcn_target "amdgcn-amd-amdhsa--gfx950"\n'
    txt += kernel_text(NAME + "_kernel", g)
    txt += kd(NAME + "_kernel")
    return txt


def gen_fused2(opts):
    lm = MODS[opts.get("mod", 1)]
    qm = MODS[opts.get("qmod", opts.get("mod", 1))]
    sm = MODS[opts.get("smod", 0)]
    xm = MODS[opts.get("xmod", 2)]
    nearly = opts.get("nearly", 4)
    prio = opts.get("prio", 1)
    bara = opts.get("bara", 0)
    V_CNT = V_SS + 3
    g = Gen(opts)
    e = g
    g.prologue("L_end")
    e("s_mul_i32 %s, %s, %d" % (sr(S_HPART), sr(S_H), 8 * SLOT))
    e("s_mul_i32 %s, %s, %d" % (sr(S_T1), sr(S_C), SLOT))
    e("s_add_u32 %s, %s, %s" % (sr(S_PART), sr(S_HPART), sr(S_T1)))
    g.stamp(0)
    if prio:
        e("s_setprio 3")
    e("s_cmp_lg_u32 %s, 0" % sr(S_C))
    e("s_cbranch_scc1 L_noclear")
    e("v_lshlrev_b32 v8, 4, v%d" % V_LANE)
    for i in range(4):
        e("v_mov_b32 v%d, -1" % (12 + i))
    e("s_mul_i32 %s, %s, %d" % (sr(S_T0), sr(S_WAVE), SLOT))
    e("s_add_u32 %s, %s, %s" % (sr(S_T0), sr(S_T0), sr(S_HPART)))
    e("s_add_u32 %s, %s, 4096" % (sr(S_T1), sr(S_T0)))
    for i in range(7):
        e("buffer_store_dwordx4 v[12:15], v8, %s, %s offen offset:%d%s" % (
            sr(SRD_WS, 4), sr(S_T0) if i < 4 else sr(S_T1), (i & 3) * 1024, xm))
    e("s_nop 1")
    g.load_w()
    g.load_rows(V_K, SRD_K, lm)
    e("s_waitcnt vmcnt(18)")
    e("s_barrier")
    e("s_cmp_lg_u32 %s, 7" % sr(S_WAVE))
    e("s_cbranch_scc1 L_noflag")
    e("s_lshl_b32 %s, %s, 2" % (sr(S_T0), sr(S_H)))
    e("v_mov_b32 v%d, %s" % (V_B0, sr(S_T0)))
    e("v_mov_b32 v%d, 1" % (V_B0 + 1))
    e("s_mov_b64 exec, 1")
    e("buffer_store_dword v%d, v%d, %s, 0 offen%s" % (V_B0 + 1, V_B0, sr(SRD_DBG, 4), xm))
    e("s_mov_b64 exec, -1")
    g.load_v(lm)
    if bara:
        e("s_barrier")
    e("s_waitcnt vmcnt(16)")
    e("s_branch L_kready")
    e("L_noflag:")
    g.load_v(lm)
    if bara:
        e("s_barrier")
    e("s_branch L_kready")
    e("L_noclear:")
    g.load_w()
    g.load_rows(V_K, SRD_K, lm)
    g.load_v(lm)
    if bara:
        e("s_barrier")
    e("L_kready:")
    if prio:
        e("s_setprio 0")
    e("s_waitcnt vmcnt(22)")
    g.proj(V_K, 0, True)
    e("s_waitcnt vmcnt(16)")
    g.proj(V_K, 1, True)
    g.phi(0)
    g.phi(1)
    g.kv_mfma()
    g.stamp(1)
    e("s_cmp_lg_u32 %s, 0" % sr(S_WAVE))
    e("s_cbranch_scc1 L_nocnt")
    e("s_lshl_b32 %s, %s, 2" % (sr(S_T0), sr(S_H)))
    e("v_mov_b32 v%d, %s" % (V_B0, sr(S_T0)))
    e("buffer_load_dword v%d, v%d, %s, 0 offen sc1" % (V_CNT, V_B0, sr(SRD_DBG, 4)))
    e("s_waitcnt vmcnt(1)")
    e("s_branch L_vready")
    e("L_nocnt:")
    e("s_waitcnt vmcnt(0)")
    e("L_vready:")
    g.stamp(2)
    g.kv_tiles()
    e("s_mul_i32 %s, %s, %d" % (sr(S_T0), sr(S_WAVE), PART_BYTES))
    e("v_lshlrev_b32 v%d, 4, v%d" % (V_B0, V_LANE))
    e("v_add_u32 v%d, %s, v%d" % (V_B0, sr(S_T0), V_B0))
    e("s_mov_b32 exec_lo, -1")
    e("s_mov_b32 exec_hi, 0")
    for tau in range(13):
        e("ds_write_b128 v%d, %s offset:%d" % (V_B0, vr(V_ACC + 4 * tau, 4), tau * 512))
    e("s_mov_b64 exec, -1")
    if nearly > 0:
        e("s_cmp_ge_u32 %s, %d" % (sr(S_WAVE), nearly))
        e("s_cbranch_scc1 L_noq1")
        g.load_rows(V_Q, SRD_Q, qm)
        e("L_noq1:")
    g.stamp(10)
    if prio:
        e("s_setprio 3")
    e("s_cmp_lg_u32 %s, 0" % sr(S_WAVE))
    e("s_cbranch_scc1 L_cntok")
    e("s_waitcnt vmcnt(%d)" % (12 if nearly > 0 else 0))
    e("v_readfirstlane_b32 %s, v%d" % (sr(S_CNT), V_CNT))
    e("s_cmp_eq_u32 %s, 1" % sr(S_CNT))
    e("s_cbranch_scc1 L_cntok")
    e("s_lshl_b32 %s, %s, 2" % (sr(S_T0), sr(S_H)))
    e("v_mov_b32 v%d, %s" % (V_B1, sr(S_T0)))
    e("s_mov_b32 %s, 0x10000" % sr(S_T2))
    e("L_cntspin:")
    e("buffer_load_dword v%d, v%d, %s, 0 offen sc1" % (V_CNT, V_B1, sr(SRD_DBG, 4)))
    e("s_waitcnt vmcnt(0)")
    e("v_readfirstlane_b32 %s, v%d" % (sr(S_CNT), V_CNT))
    e("s_sub_u32 %s, %s, 1" % (sr(S_T2), sr(S_T2)))
    e("s_cmp_eq_u32 %s, 0" % sr(S_T2))
    e("s_cbranch_scc1 L_cntok")
    e("s_cmp_lg_u32 %s, 1" % sr(S_CNT))
    e("s_cbranch_scc1 L_cntspin")
    e("L_cntok:")
    e("v_min_u32 v%d, 415, v0" % (V_B1 + 1))
    e("v_lshlrev_b32 v%d, 4, v%d" % (V_B1, V_B1 + 1))
    e("s_waitcnt lgkmcnt(0)")
    e("s_barrier")
    g.stamp(3)
    for w in range(8):
        e("ds_read_b128 %s, v%d offset:%d" % (vr(V_ACC + 4 * w, 4), V_B1, w * PART_BYTES))
    for w in range(1, 8):
        e("s_waitcnt lgkmcnt(%d)" % (7 - w))
        for r in range(4):
            e("v_add_f32 v%d, v%d, v%d" % (V_ACC + r, V_ACC + r, V_ACC + 4 * w + r))
    for r in range(4):
        e("v_min_u32 v%d, -2, v%d" % (V_ACC + r, V_ACC + r))
    e("buffer_store_dwordx4 %s, v%d, %s, %s offen%s" % (vr(V_ACC, 4), V_B1, sr(SRD_WS, 4), sr(S_PART), xm))
    g.stamp(4)
    if nearly < 8:
        if prio:
            e("s_setprio 0")
        if nearly > 0:
            e("s_cmp_lt_u32 %s, %d" % (sr(S_WAVE), nearly))
            e("s_cbranch_scc1 L_noq2")
        g.load_rows(V_Q, SRD_Q, qm)
        if nearly > 0:
            e("L_noq2:")
    PL = V_ACC + 4

    def payload_loads():
        e("s_mov_b32 %s, %s" % (sr(S_T0), sr(S_HPART)))
        for c in range(8):
            e("buffer_load_dwordx4 %s, v%d, %s, %s offen%s" % (vr(PL + 4 * c, 4), V_B1, sr(SRD_WS, 4), sr(S_T0), xm))
            if c < 7:
                e("s_add_u32 %s, %s, %d" % (sr(S_T0), sr(S_T0), SLOT))
    if opts.get("pbar"):
        e("s_barrier")
    payload_loads()
    g.stamp(11)
    g.table_addr(V_B1 + 1)
    e("s_waitcnt vmcnt(8)")
    g.stamp(5)
    for T in range(2):
        g.proj(V_Q, T, False)
        g.phi(T)
        g.pack_phi_q(T)
    e("s_mov_b32 %s, 0x10000" % sr(S_T2))
    e("s_waitcnt vmcnt(0)")
    e("s_branch L_chk")
    e("L_retry:")
    payload_loads()
    e("s_waitcnt vmcnt(0)")
    e("L_chk:")
    M = V_ACC + 36
    e("v_max3_u32 v%d, v%d, v%d, v%d" % (M, PL, PL + 1, PL + 2))
    i = 3
    while i < 32:
        if i + 1 < 32:
            e("v_max3_u32 v%d, v%d, v%d, v%d" % (M, M, PL + i, PL + i + 1)); i += 2
        else:
            e("v_max_u32 v%d, v%d, v%d" % (M, M, PL + i)); i += 1
    e("v_cmp_eq_u32 %s, -1, v%d" % (sr(S_EXEC, 2), M))
    e("s_sub_u32 %s, %s, 1" % (sr(S_T2), sr(S_T2)))
    e("s_cmp_eq_u32 %s, 0" % sr(S_T2))
    e("s_cbranch_scc1 L_got")
    e("s_cmp_lg_u64 %s, 0" % sr(S_EXEC, 2))
    e("s_cbranch_scc1 L_retry")
    e("L_got:")
    g.stamp(6)
    if opts.get("prof"):
        e("s_sub_u32 %s, 0x10000, %s" % (sr(S_T3), sr(S_T2)))
    a = V_ACC
    for r in range(4):
        e("v_add_f32 v%d, v%d, v%d" % (a + r, PL + r, PL + 4 + r))
    for c in range(2, 8):
        for r in range(4):
            e("v_add_f32 v%d, v%d, v%d" % (a + r, a + r, PL + 4 * c + r))
    g.hilo_write(LDS_TAB)
    e("s_waitcnt lgkmcnt(0)")
    e("s_barrier")
    g.stamp(7)
    g.read_table(LDS_TAB)
    e("s_waitcnt lgkmcnt(0)")
    g.out_tile(0, V_ACC, sm)
    g.out_tile(1, V_K - 4, sm)
    g.stamp(8)
    if opts.get("prof"):
        e("s_waitcnt vmcnt(0)")
        g.stamp(9)
        g.flush_stamps()
        e("v_mov_b32 v254, %s" % sr(S_T3))
        e("v_mov_b32 v255, 0")
        e("buffer_store_dwordx2 v[254:255], v253, %s, 0 offen offset:%d" % (sr(SRD_WS, 4), 15 * 8))
    e("L_end:")
    e("s_endpgm")
    txt = HEADER
    txt += "; @launch grid=(256,1,1) block=(512,1,1) lds=%d\n" % (LDS_TAB + PART_BYTES)
    txt += '.amdgcn_target "amdgcn-amd-amdhsa--gfx950"\n'
    txt += kernel_text(NAME + "_kernel", g)
    txt += kd(NAME + "_kernel")
    return txt


LDS_N = LDS_TAB + PART_BYTES
TAGMASK = 0xFFF


def gen_fused3(opts):
    lm = MODS[opts.get("mod", 1)]
    qm = MODS[opts.get("qmod", opts.get("mod", 1))]
    sm = MODS[opts.get("smod", 0)]
    xm = MODS[opts.get("xmod", 2)]
    nearly = opts.get("nearly", 3)
    prio = opts.get("prio", 1)
    nw = opts.get("nwave", 4)
    SL = PART_BYTES
    V_CNT = V_SS + 3
    S_N = S_CNT
    S_MASK = 61
    g = Gen(opts)
    e = g
    if opts.get("fixdur"):
        e("s_memrealtime s[96:97]")
    g.prologue("L_end")
    g.stamp(0)
    if prio:
        e("s_setprio 3")
    e("s_mov_b32 %s, 0x%x" % (sr(S_MASK), 0xFFFFFFFF ^ TAGMASK))
    e("s_or_b32 %s, %s, %s" % (sr(S_T0), sr(S_H), sr(S_C)))
    e("s_or_b32 %s, %s, %s" % (sr(S_T0), sr(S_T0), sr(S_WAVE)))
    e("s_cmp_lg_u32 %s, 0" % sr(S_T0))
    e("s_cbranch_scc1 L_nochoose")
    e("v_mul_u32_u24 v%d, %d, v%d" % (V_B0, 4 * SL, V_LANE))
    for i in range(4):
        e("s_mov_b32 %s, %d" % (sr(S_T1), i * SL))
        e("buffer_load_dword v%d, v%d, %s, %s offen%s" % (V_B1 + i, V_B0, sr(SRD_WS, 4), sr(S_T1), xm))
    g.load_w()
    g.load_rows(V_K, SRD_K, lm)
    g.load_v(lm)
    e("s_waitcnt vmcnt(34)")
    for i in range(4):
        e("v_and_b32 v%d, 0x%x, v%d" % (V_B1 + i, TAGMASK, V_B1 + i))
    e("v_readfirstlane_b32 %s, v%d" % (sr(S_N), V_B1))
    e("L_cand:")
    e("s_add_u32 %s, %s, 1" % (sr(S_N), sr(S_N)))
    e("s_and_b32 %s, %s, 0x%x" % (sr(S_N), sr(S_N), TAGMASK))
    e("v_cmp_eq_u32 vcc, %s, v%d" % (sr(S_N), V_B1))
    e("v_cmp_eq_u32 %s, %s, v%d" % (sr(S_EXEC, 2), sr(S_N), V_B1 + 1))
    e("s_or_b64 vcc, vcc, %s" % sr(S_EXEC, 2))
    e("v_cmp_eq_u32 %s, %s, v%d" % (sr(S_EXEC, 2), sr(S_N), V_B1 + 2))
    e("s_or_b64 vcc, vcc, %s" % sr(S_EXEC, 2))
    e("v_cmp_eq_u32 %s, %s, v%d" % (sr(S_EXEC, 2), sr(S_N), V_B1 + 3))
    e("s_or_b64 vcc, vcc, %s" % sr(S_EXEC, 2))
    e("s_cmp_lg_u64 vcc, 0")
    e("s_cbranch_scc1 L_cand")
    e("s_or_b32 %s, %s, 0x80000000" % (sr(S_T1), sr(S_N)))
    e("v_mov_b32 v%d, %s" % (V_B0 + 1, sr(S_T1)))
    e("v_mov_b32 v%d, 0" % V_B0)
    e("s_mov_b64 exec, 1")
    e("buffer_store_dword v%d, v%d, %s, 0 offen%s" % (V_B0 + 1, V_B0, sr(SRD_DBG, 4), xm))
    e("s_mov_b64 exec, -1")
    if prio:
        e("s_setprio 0")
    e("s_waitcnt vmcnt(17)")
    e("s_branch L_kready")
    e("L_nochoose:")
    g.load_w()
    g.load_rows(V_K, SRD_K, lm)
    g.load_v(lm)
    e("s_cmp_lg_u32 %s, %d" % (sr(S_WAVE), nw))
    e("s_cbranch_scc1 L_notagld")
    e("v_mov_b32 v%d, 0" % V_B0)
    e("buffer_load_dword v%d, v%d, %s, 0 offen sc1" % (V_B0 + 1, V_B0, sr(SRD_DBG, 4)))
    if prio:
        e("s_setprio 0")
    e("s_waitcnt vmcnt(17)")
    e("s_branch L_kready")
    e("L_notagld:")
    if prio:
        e("s_setprio 0")
    e("L_kready:")
    e("s_waitcnt vmcnt(22)")
    g.proj(V_K, 0, True)
    e("s_waitcnt vmcnt(16)")
    g.proj(V_K, 1, True)
    g.phi(0)
    g.phi(1)
    g.kv_mfma()
    g.stamp(1)
    e("s_waitcnt vmcnt(0)")
    g.stamp(2)
    e("s_cmp_lg_u32 %s, %d" % (sr(S_WAVE), nw))
    e("s_cbranch_scc1 L_tagok")
    e("v_readfirstlane_b32 %s, v%d" % (sr(S_N), V_B0 + 1))
    e("s_cmp_lt_i32 %s, 0" % sr(S_N))
    e("s_cbranch_scc1 L_tagput")
    e("s_mov_b32 %s, 0x10000" % sr(S_T2))
    e("v_mov_b32 v%d, 0" % V_B0)
    e("L_tagspin:")
    e("buffer_load_dword v%d, v%d, %s, 0 offen sc1" % (V_B0 + 1, V_B0, sr(SRD_DBG, 4)))
    e("s_waitcnt vmcnt(0)")
    e("v_readfirstlane_b32 %s, v%d" % (sr(S_N), V_B0 + 1))
    e("s_sub_u32 %s, %s, 1" % (sr(S_T2), sr(S_T2)))
    e("s_cmp_eq_u32 %s, 0" % sr(S_T2))
    e("s_cbranch_scc1 L_tagput")
    e("s_cmp_ge_i32 %s, 0" % sr(S_N))
    e("s_cbranch_scc1 L_tagspin")
    e("L_tagput:")
    e("v_and_b32 v%d, 0x%x, v%d" % (V_B0 + 1, TAGMASK, V_B0 + 1))
    e("v_mov_b32 v%d, %d" % (V_B0, LDS_N))
    e("ds_write_b32 v%d, v%d" % (V_B0, V_B0 + 1))
    e("L_tagok:")
    g.kv_tiles()
    e("s_mul_i32 %s, %s, %d" % (sr(S_T0), sr(S_WAVE), PART_BYTES))
    e("v_lshlrev_b32 v%d, 4, v%d" % (V_B0, V_LANE))
    e("v_add_u32 v%d, %s, v%d" % (V_B0, sr(S_T0), V_B0))
    e("s_mov_b32 exec_lo, -1")
    e("s_mov_b32 exec_hi, 0")
    for tau in range(13):
        e("ds_write_b128 v%d, %s offset:%d" % (V_B0, vr(V_ACC + 4 * tau, 4), tau * 512))
    e("s_mov_b64 exec, -1")
    if nearly > 0:
        e("s_cmp_ge_u32 %s, %d" % (sr(S_WAVE), nearly))
        e("s_cbranch_scc1 L_noq1")
        g.load_rows(V_Q, SRD_Q, qm)
        e("L_noq1:")
    g.stamp(10)
    if prio:
        e("s_setprio 3")
    e("v_min_u32 v%d, 415, v0" % (V_B1 + 1))
    e("v_lshlrev_b32 v%d, 4, v%d" % (V_B1, V_B1 + 1))
    e("v_mov_b32 v%d, %d" % (V_B0, LDS_N))
    e("s_waitcnt lgkmcnt(0)")
    e("s_barrier")
    g.stamp(3)
    e("ds_read_b32 v%d, v%d" % (V_CNT, V_B0))
    for w in range(8):
        e("ds_read_b128 %s, v%d offset:%d" % (vr(V_ACC + 4 * w, 4), V_B1, w * PART_BYTES))
    for w in range(1, 8):
        e("s_waitcnt lgkmcnt(%d)" % (7 - w))
        for r in range(4):
            e("v_add_f32 v%d, v%d, v%d" % (V_ACC + r, V_ACC + r, V_ACC + 4 * w + r))
    for r in range(4):
        e("v_bfi_b32 v%d, %s, v%d, v%d" % (V_ACC + r, sr(S_MASK), V_ACC + r, V_CNT))
    e("buffer_store_dwordx4 %s, v%d, %s, %s offen%s" % (vr(V_ACC, 4), V_B1, sr(SRD_WS, 4), sr(S_PART), xm))
    g.stamp(4)
    V_N = V_B0 + 2
    e("v_mov_b32 v%d, v%d" % (V_N, V_CNT))
    if nearly < 8:
        if prio:
            e("s_setprio 0")
        if nearly > 0:
            e("s_cmp_lt_u32 %s, %d" % (sr(S_WAVE), nearly))
            e("s_cbranch_scc1 L_noq2")
        g.load_rows(V_Q, SRD_Q, qm)
        if nearly > 0:
            e("L_noq2:")
    PL = V_ACC + 4

    def payload_loads():
        e("s_mov_b32 %s, %s" % (sr(S_T0), sr(S_HPART)))
        for c in range(8):
            e("buffer_load_dwordx4 %s, v%d, %s, %s offen%s" % (vr(PL + 4 * c, 4), V_B1, sr(SRD_WS, 4), sr(S_T0), xm))
            if c < 7:
                e("s_add_u32 %s, %s, %d" % (sr(S_T0), sr(S_T0), SL))
    if opts.get("pbar", 1):
        e("s_barrier")
    payload_loads()
    g.stamp(11)
    g.table_addr(V_B1 + 1)
    e("s_waitcnt vmcnt(8)")
    g.stamp(5)
    for T in range(2):
        g.proj(V_Q, T, False)
        g.phi(T)
        g.pack_phi_q(T)
    e("s_mov_b32 %s, 0x10000" % sr(S_T2))
    e("s_waitcnt vmcnt(0)")
    e("s_branch L_chk")
    e("L_retry:")
    payload_loads()
    e("s_waitcnt vmcnt(0)")
    e("L_chk:")
    M = V_ACC + 36
    for i in range(32):
        e("v_xor_b32 v%d, v%d, v%d" % (PL + i, PL + i, V_N))
    e("v_or3_b32 v%d, v%d, v%d, v%d" % (M, PL, PL + 1, PL + 2))
    i = 3
    while i < 32:
        if i + 1 < 32:
            e("v_or3_b32 v%d, v%d, v%d, v%d" % (M, M, PL + i, PL + i + 1)); i += 2
        else:
            e("v_or_b32 v%d, v%d, v%d" % (M, M, PL + i)); i += 1
    e("v_and_b32 v%d, 0x%x, v%d" % (M, TAGMASK, M))
    e("v_cmp_ne_u32 %s, 0, v%d" % (sr(S_EXEC, 2), M))
    e("s_sub_u32 %s, %s, 1" % (sr(S_T2), sr(S_T2)))
    e("s_cmp_eq_u32 %s, 0" % sr(S_T2))
    e("s_cbranch_scc1 L_got")
    e("s_cmp_lg_u64 %s, 0" % sr(S_EXEC, 2))
    e("s_cbranch_scc1 L_retry")
    e("L_got:")
    g.stamp(6)
    if opts.get("prof"):
        e("s_sub_u32 %s, 0x10000, %s" % (sr(S_T3), sr(S_T2)))
    a = V_ACC
    for r in range(4):
        e("v_add_f32 v%d, v%d, v%d" % (a + r, PL + r, PL + 4 + r))
    for c in range(2, 8):
        for r in range(4):
            e("v_add_f32 v%d, v%d, v%d" % (a + r, a + r, PL + 4 * c + r))
    g.hilo_write(LDS_TAB)
    e("s_waitcnt lgkmcnt(0)")
    e("s_barrier")
    g.stamp(7)
    g.read_table(LDS_TAB)
    e("s_waitcnt lgkmcnt(0)")
    g.out_tile(0, V_ACC, sm)
    g.out_tile(1, V_K - 4, sm)
    g.stamp(8)
    if opts.get("prof"):
        e("s_waitcnt vmcnt(0)")
        g.stamp(9)
        g.flush_stamps()
        e("v_mov_b32 v254, %s" % sr(S_T3))
        e("v_mov_b32 v255, 0")
        e("buffer_store_dwordx2 v[254:255], v253, %s, 0 offen offset:%d" % (sr(SRD_WS, 4), 15 * 8))
    if opts.get("fixdur"):
        e("s_waitcnt vmcnt(0) lgkmcnt(0)")
        e("L_hold:")
        e("s_memrealtime s[98:99]")
        e("s_waitcnt lgkmcnt(0)")
        e("s_sub_u32 s98, s98, s96")
        e("s_cmp_lt_u32 s98, %d" % (opts["fixdur"] * 100))
        e("s_cbranch_scc1 L_hold")
    e("L_end:")
    e("s_endpgm")
    txt = HEADER
    txt += "; @launch grid=(256,1,1) block=(512,1,1) lds=%d\n" % (LDS_N + 64)
    txt += '.amdgcn_target "amdgcn-amd-amdhsa--gfx950"\n'
    txt += kernel_text(NAME + "_kernel", g)
    txt += kd(NAME + "_kernel")
    return txt


LDS_CNT = LDS_N + 4


def gen_fused4(opts):
    lm = MODS[opts.get("mod", 1)]
    qm = MODS[opts.get("qmod", opts.get("mod", 1))]
    sm = MODS[opts.get("smod", 4)]
    xm = MODS[opts.get("xmod", 2)]
    prio = opts.get("prio", 1)
    nw = opts.get("nwave", 1)
    qsplit = opts.get("qsplit", 6)
    SPIN = opts.get("spin", 0x4000)
    SL = PART_BYTES
    S_N = S_CNT
    S_MASK = 61
    R0, R1 = V_ACC, V_K
    G0, G1 = 64, 96
    V_T0, V_T1, V_A0, V_A1, V_N, V_M = 218, 219, 220, 221, 222, 223
    V_TA0, V_TA1 = 216, 217
    g = Gen(opts)
    e = g
    g.zero_stamps()
    g.prologue("L_end")
    g.stamp(0)
    if prio:
        e("s_setprio 3")
    e("s_mov_b32 %s, 0x%x" % (sr(S_MASK), 0xFFFFFFFF ^ TAGMASK))
    e("s_or_b32 %s, %s, %s" % (sr(S_T0), sr(S_H), sr(S_C)))
    e("s_or_b32 %s, %s, %s" % (sr(S_T0), sr(S_T0), sr(S_WAVE)))
    e("s_cmp_lg_u32 %s, 0" % sr(S_T0))
    e("s_cbranch_scc1 L_nochoose")
    e("v_mul_u32_u24 v%d, %d, v%d" % (V_B0, 4 * SL, V_LANE))
    for i in range(4):
        e("s_mov_b32 %s, %d" % (sr(S_T1), i * SL))
        e("buffer_load_dword v%d, v%d, %s, %s offen%s" % (V_B1 + i, V_B0, sr(SRD_WS, 4), sr(S_T1), xm))
    g.load_w()
    g.load_rows(V_K, SRD_K, lm)
    g.load_v(lm)
    e("s_waitcnt vmcnt(34)")
    for i in range(4):
        e("v_and_b32 v%d, 0x%x, v%d" % (V_B1 + i, TAGMASK, V_B1 + i))
    e("v_readfirstlane_b32 %s, v%d" % (sr(S_N), V_B1))
    e("L_cand:")
    e("s_add_u32 %s, %s, 1" % (sr(S_N), sr(S_N)))
    e("s_and_b32 %s, %s, 0x%x" % (sr(S_N), sr(S_N), TAGMASK))
    e("v_cmp_eq_u32 vcc, %s, v%d" % (sr(S_N), V_B1))
    e("v_cmp_eq_u32 %s, %s, v%d" % (sr(S_EXEC, 2), sr(S_N), V_B1 + 1))
    e("s_or_b64 vcc, vcc, %s" % sr(S_EXEC, 2))
    e("v_cmp_eq_u32 %s, %s, v%d" % (sr(S_EXEC, 2), sr(S_N), V_B1 + 2))
    e("s_or_b64 vcc, vcc, %s" % sr(S_EXEC, 2))
    e("v_cmp_eq_u32 %s, %s, v%d" % (sr(S_EXEC, 2), sr(S_N), V_B1 + 3))
    e("s_or_b64 vcc, vcc, %s" % sr(S_EXEC, 2))
    e("s_cmp_lg_u64 vcc, 0")
    e("s_cbranch_scc1 L_cand")
    e("s_or_b32 %s, %s, 0x80000000" % (sr(S_T1), sr(S_N)))
    e("v_mov_b32 v%d, %s" % (V_B0 + 1, sr(S_T1)))
    e("v_mov_b32 v%d, 0" % V_B0)
    e("s_mov_b64 exec, 1")
    e("buffer_store_dword v%d, v%d, %s, 0 offen%s" % (V_B0 + 1, V_B0, sr(SRD_DBG, 4), xm))
    e("s_mov_b64 exec, -1")
    e("s_waitcnt vmcnt(17)")
    e("s_branch L_issued")
    e("L_nochoose:")
    g.load_w()
    g.load_rows(V_K, SRD_K, lm)
    g.load_v(lm)
    e("L_issued:")
    if prio:
        e("s_setprio 0")
    lq0 = opts.get("lq0", 0)

    def qloads(lo, hi):
        for i in range(lo, hi):
            T, t = divmod(i, 6)
            e("buffer_load_dwordx4 %s, v%d, %s, %s offen offset:%d%s" % (
                vr(V_Q + 24 * T + 4 * t, 4), V_OK, sr(SRD_Q, 4), sr(S_B0 + T), 64 * t, qm))
    e("s_cmp_lt_u32 %s, 4" % sr(S_WAVE))
    e("s_cbranch_scc1 L_noA")
    if lq0 and opts.get("lq0pre", 1):
        qloads(0, lq0)
    e("s_barrier")
    g.stamp(12)
    if lq0 and not opts.get("lq0pre", 1):
        qloads(0, lq0)
    if lq0:
        e("s_waitcnt vmcnt(%d)" % (22 + lq0))
        e("s_mov_b32 %s, 1" % sr(S_T3))
        e("s_branch L_A2")
    e("L_noA:")
    e("s_waitcnt vmcnt(22)")
    e("s_mov_b32 %s, 0" % sr(S_T3))
    e("L_A2:")
    g.proj(V_K, 0, True)
    if lq0:
        e("s_cmp_eq_u32 %s, 0" % sr(S_T3))
        e("s_cbranch_scc1 L_k1e")
        e("s_waitcnt vmcnt(%d)" % (16 + lq0))
        e("s_branch L_k1")
        e("L_k1e:")
    e("s_waitcnt vmcnt(16)")
    if lq0:
        e("L_k1:")
    g.proj(V_K, 1, True)
    g.phi(0)
    g.phi(1)
    g.kv_mfma()
    g.stamp(1)
    if lq0:
        e("s_cmp_eq_u32 %s, 0" % sr(S_T3))
        e("s_cbranch_scc1 L_v1e")
        e("s_waitcnt vmcnt(%d)" % lq0)
        e("s_branch L_v1")
        e("L_v1e:")
    e("s_waitcnt vmcnt(0)")
    if lq0:
        e("L_v1:")
    g.stamp(2)
    g.kv_tiles()
    e("s_mul_i32 %s, %s, %d" % (sr(S_T0), sr(S_WAVE), PART_BYTES))
    e("v_lshlrev_b32 v%d, 4, v%d" % (V_B0, V_LANE))
    e("v_add_u32 v%d, %s, v%d" % (V_B0, sr(S_T0), V_B0))
    e("s_mov_b32 exec_lo, -1")
    e("s_mov_b32 exec_hi, 0")
    for tau in range(13):
        e("ds_write_b128 v%d, %s offset:%d" % (V_B0, vr(V_ACC + 4 * tau, 4), tau * 512))
    e("s_mov_b64 exec, -1")
    g.stamp(10)
    e("s_cmp_ge_u32 %s, 4" % sr(S_WAVE))
    e("s_cbranch_scc1 L_late")
    e("s_cmp_lg_u32 %s, %d" % (sr(S_WAVE), nw))
    e("s_cbranch_scc1 L_notag")
    if prio:
        e("s_setprio 3")
    e("s_mov_b32 %s, 0x%x" % (sr(S_T2), SPIN))
    e("v_mov_b32 v%d, 0" % V_B0)
    e("L_tagspin:")
    e("buffer_load_dword v%d, v%d, %s, 0 offen sc1" % (V_B0 + 1, V_B0, sr(SRD_DBG, 4)))
    e("s_waitcnt vmcnt(0)")
    e("v_readfirstlane_b32 %s, v%d" % (sr(S_N), V_B0 + 1))
    e("s_sub_u32 %s, %s, 1" % (sr(S_T2), sr(S_T2)))
    e("s_cmp_eq_u32 %s, 0" % sr(S_T2))
    e("s_cbranch_scc1 L_tagput")
    e("s_cmp_ge_i32 %s, 0" % sr(S_N))
    e("s_cbranch_scc1 L_tagspin")
    e("L_tagput:")
    e("v_and_b32 v%d, 0x%x, v%d" % (V_B0 + 2, TAGMASK, V_B0 + 1))
    e("v_mov_b32 v%d, 0" % (V_B0 + 3))
    e("v_mov_b32 v%d, %d" % (V_B0, LDS_N))
    e("ds_write_b64 v%d, %s" % (V_B0, vr(V_B0 + 2, 2)))
    if prio:
        e("s_setprio 0")
    e("L_notag:")
    e("s_waitcnt lgkmcnt(0)")
    e("s_barrier")
    g.stamp(12)
    if prio and opts.get("eprio", 1):
        e("s_setprio 3")
    g.load_rows(V_Q, SRD_Q, qm)
    if prio:
        e("s_setprio 0")
    g.stamp(3)
    e("s_waitcnt vmcnt(0)")
    e("s_branch L_qproj")
    e("L_late:")
    if prio:
        e("s_setprio 3")
    e("v_mov_b32 v%d, %d" % (V_B0, LDS_N))
    e("v_mov_b32 v%d, 1" % (V_B0 + 1))
    e("s_waitcnt lgkmcnt(0)")
    e("s_mov_b64 exec, 1")
    e("ds_add_u32 v%d, v%d offset:4" % (V_B0, V_B0 + 1))
    e("s_mov_b64 exec, -1")
    e("s_sub_u32 %s, %s, 4" % (sr(S_T0), sr(S_WAVE)))
    e("s_mul_i32 %s, %s, 104" % (sr(S_T0), sr(S_T0)))
    e("v_add_u32 v%d, %s, v%d" % (V_T0, sr(S_T0), V_LANE))
    e("v_min_u32 v%d, 39, v%d" % (V_T1, V_LANE))
    e("s_add_u32 %s, %s, 64" % (sr(S_T0), sr(S_T0)))
    e("v_add_u32 v%d, %s, v%d" % (V_T1, sr(S_T0), V_T1))
    e("v_lshlrev_b32 v%d, 4, v%d" % (V_A0, V_T0))
    e("v_lshlrev_b32 v%d, 4, v%d" % (V_A1, V_T1))
    e("s_mov_b32 %s, 0x%x" % (sr(S_T2), 0x100000))
    e("L_lspin:")
    e("ds_read_b64 %s, v%d" % (vr(V_B0 + 2, 2), V_B0))
    e("s_waitcnt lgkmcnt(0)")
    e("v_readfirstlane_b32 %s, v%d" % (sr(S_T1), V_B0 + 3))
    e("s_sub_u32 %s, %s, 1" % (sr(S_T2), sr(S_T2)))
    e("s_cmp_eq_u32 %s, 0" % sr(S_T2))
    e("s_cbranch_scc1 L_lgo")
    e("s_cmp_lg_u32 %s, 4" % sr(S_T1))
    e("s_cbranch_scc1 L_lspin")
    e("L_lgo:")
    g.stamp(3)
    e("v_mov_b32 v%d, v%d" % (V_N, V_B0 + 2))
    for rb, va in ((R0, V_A0), (R1, V_A1)):
        for w in range(8):
            e("ds_read_b128 %s, v%d offset:%d" % (vr(rb + 4 * w, 4), va, w * PART_BYTES))
    for k, (rb, va) in enumerate(((R0, V_A0), (R1, V_A1))):
        base = 8 if k == 0 else 0
        for w in range(1, 8):
            e("s_waitcnt lgkmcnt(%d)" % min(15, base + 7 - w))
            for r in range(4):
                e("v_add_f32 v%d, v%d, v%d" % (rb + r, rb + r, rb + 4 * w + r))
        for r in range(4):
            e("v_bfi_b32 v%d, %s, v%d, v%d" % (rb + r, sr(S_MASK), rb + r, V_N))
        e("buffer_store_dwordx4 %s, v%d, %s, %s offen%s" % (vr(rb, 4), va, sr(SRD_WS, 4), sr(S_PART), xm))
    g.stamp(4)

    def gather():
        e("s_mov_b32 %s, %s" % (sr(S_T0), sr(S_HPART)))
        for c in range(8):
            e("buffer_load_dwordx4 %s, v%d, %s, %s offen%s" % (vr(G0 + 4 * c, 4), V_A0, sr(SRD_WS, 4), sr(S_T0), xm))
            e("buffer_load_dwordx4 %s, v%d, %s, %s offen%s" % (vr(G1 + 4 * c, 4), V_A1, sr(SRD_WS, 4), sr(S_T0), xm))
            if c < 7:
                e("s_add_u32 %s, %s, %d" % (sr(S_T0), sr(S_T0), SL))
    if prio and opts.get("qlow", 0):
        e("s_setprio 0")
    qsplit = max(qsplit, lq0)
    qloads(lq0, qsplit)
    if opts.get("ackwait"):
        e("s_waitcnt vmcnt(%d)" % (qsplit - lq0))
        g.stamp(13)
    gather()
    qloads(qsplit, 12)
    g.stamp(11)
    g.table_addr(V_T0, 208, V_TA0)
    g.table_addr(V_T1, 208, V_TA1)
    e("s_mov_b32 %s, 0x%x" % (sr(S_T2), SPIN))
    e("s_waitcnt vmcnt(%d)" % (12 - qsplit))
    e("s_branch L_chk")
    e("L_retry:")
    gather()
    e("s_waitcnt vmcnt(0)")
    e("L_chk:")
    for i in range(64):
        e("v_xor_b32 v%d, v%d, v%d" % (G0 + i, G0 + i, V_N))
    e("v_or3_b32 v%d, v%d, v%d, v%d" % (V_M, G0, G0 + 1, G0 + 2))
    i = 3
    while i < 64:
        if i + 1 < 64:
            e("v_or3_b32 v%d, v%d, v%d, v%d" % (V_M, V_M, G0 + i, G0 + i + 1)); i += 2
        else:
            e("v_or_b32 v%d, v%d, v%d" % (V_M, V_M, G0 + i)); i += 1
    e("v_and_b32 v%d, 0x%x, v%d" % (V_M, TAGMASK, V_M))
    e("v_cmp_ne_u32 %s, 0, v%d" % (sr(S_EXEC, 2), V_M))
    e("s_sub_u32 %s, %s, 1" % (sr(S_T2), sr(S_T2)))
    e("s_cmp_eq_u32 %s, 0" % sr(S_T2))
    e("s_cbranch_scc1 L_got")
    e("s_cmp_lg_u64 %s, 0" % sr(S_EXEC, 2))
    e("s_cbranch_scc1 L_retry")
    e("L_got:")
    g.stamp(6)
    if opts.get("prof"):
        e("s_sub_u32 %s, 0x%x, %s" % (sr(S_T3), SPIN, sr(S_T2)))
    for gb, ta, tmp in ((G0, V_TA0, V_ACC + 8), (G1, V_TA1, V_ACC + 16)):
        for r in range(4):
            e("v_add_f32 v%d, v%d, v%d" % (gb + r, gb + r, gb + 4 + r))
        for c in range(2, 8):
            for r in range(4):
                e("v_add_f32 v%d, v%d, v%d" % (gb + r, gb + r, gb + 4 * c + r))
        g.hilo_write(LDS_TAB, gb, tmp, ta)
    e("s_waitcnt lgkmcnt(0)")
    e("s_barrier")
    g.stamp(7)
    g.read_table(LDS_TAB)
    e("s_waitcnt vmcnt(0)")
    e("L_qproj:")
    g.stamp(5)
    if prio:
        e("s_setprio 0")
    for T in range(2):
        g.proj(V_Q, T, False)
        g.phi(T)
        g.pack_phi_q(T)
    e("s_cmp_ge_u32 %s, 4" % sr(S_WAVE))
    e("s_cbranch_scc1 L_out")
    if opts.get("prof"):
        e("s_mov_b32 %s, 0" % sr(S_T3))
    e("s_barrier")
    g.stamp(7)
    g.read_table(LDS_TAB)
    e("L_out:")
    e("s_waitcnt lgkmcnt(0)")
    g.out_tile(0, V_ACC, sm)
    g.out_tile(1, V_K - 4, sm)
    g.stamp(8)
    if opts.get("prof"):
        e("s_waitcnt vmcnt(0)")
        g.stamp(9)
        g.flush_stamps()
        e("v_mov_b32 v254, %s" % sr(S_T3))
        e("v_mov_b32 v255, 0")
        e("buffer_store_dwordx2 v[254:255], v253, %s, 0 offen offset:%d" % (sr(SRD_WS, 4), 15 * 8))
    e("L_end:")
    e("s_endpgm")
    txt = HEADER
    txt += "; @launch grid=(256,1,1) block=(512,1,1) lds=%d\n" % (LDS_N + 64)
    txt += '.amdgcn_target "amdgcn-amd-amdhsa--gfx950"\n'
    txt += kernel_text(NAME + "_kernel", g)
    txt += kd(NAME + "_kernel")
    return txt


def gen_fused5(opts):
    lm = MODS[opts.get("mod", 1)]
    qm = MODS[opts.get("qmod", opts.get("mod", 1))]
    sm = MODS[opts.get("smod", 4)]
    xm = MODS[opts.get("xmod", 2)]
    prio = opts.get("prio", 1)
    nw = opts.get("nwave", 2)
    lq0 = opts.get("lq0", 6)
    SPIN = opts.get("spin", 0x4000)
    SL = PART_BYTES
    V_CNT = V_SS + 3
    S_N = S_CNT
    S_MASK = 61
    S_LATE = S_T3
    g = Gen(opts)
    e = g

    def qloads(lo, hi):
        for i in range(lo, hi):
            T, t = divmod(i, 6)
            e("buffer_load_dwordx4 %s, v%d, %s, %s offen offset:%d%s" % (
                vr(V_Q + 24 * T + 4 * t, 4), V_OK, sr(SRD_Q, 4), sr(S_B0 + T), 64 * t, qm))

    def wait2(n_early, n_late, tag):
        if n_early == n_late:
            e("s_waitcnt vmcnt(%d)" % n_early)
            return
        e("s_cmp_ge_u32 %s, 4" % sr(S_WAVE))
        e("s_cbranch_scc1 L_w2l_%s" % tag)
        e("s_waitcnt vmcnt(%d)" % n_early)
        e("s_branch L_w2d_%s" % tag)
        e("L_w2l_%s:" % tag)
        e("s_waitcnt vmcnt(%d)" % n_late)
        e("L_w2d_%s:" % tag)

    g.zero_stamps()
    g.prologue("L_end")
    g.stamp(0)
    if prio:
        e("s_setprio 3")
    e("s_mov_b32 %s, 0x%x" % (sr(S_MASK), 0xFFFFFFFF ^ TAGMASK))
    e("s_or_b32 %s, %s, %s" % (sr(S_T0), sr(S_H), sr(S_C)))
    e("s_or_b32 %s, %s, %s" % (sr(S_T0), sr(S_T0), sr(S_WAVE)))
    e("s_cmp_lg_u32 %s, 0" % sr(S_T0))
    e("s_cbranch_scc1 L_nochoose")
    e("v_mul_u32_u24 v%d, %d, v%d" % (V_B0, 4 * SL, V_LANE))
    for i in range(4):
        e("s_mov_b32 %s, %d" % (sr(S_T1), i * SL))
        e("buffer_load_dword v%d, v%d, %s, %s offen%s" % (V_B1 + i, V_B0, sr(SRD_WS, 4), sr(S_T1), xm))
    g.load_w()
    g.load_rows(V_K, SRD_K, lm)
    g.load_v(lm)
    e("s_waitcnt vmcnt(34)")
    for i in range(4):
        e("v_and_b32 v%d, 0x%x, v%d" % (V_B1 + i, TAGMASK, V_B1 + i))
    e("v_readfirstlane_b32 %s, v%d" % (sr(S_N), V_B1))
    e("L_cand:")
    e("s_add_u32 %s, %s, 1" % (sr(S_N), sr(S_N)))
    e("s_and_b32 %s, %s, 0x%x" % (sr(S_N), sr(S_N), TAGMASK))
    e("v_cmp_eq_u32 vcc, %s, v%d" % (sr(S_N), V_B1))
    e("v_cmp_eq_u32 %s, %s, v%d" % (sr(S_EXEC, 2), sr(S_N), V_B1 + 1))
    e("s_or_b64 vcc, vcc, %s" % sr(S_EXEC, 2))
    e("v_cmp_eq_u32 %s, %s, v%d" % (sr(S_EXEC, 2), sr(S_N), V_B1 + 2))
    e("s_or_b64 vcc, vcc, %s" % sr(S_EXEC, 2))
    e("v_cmp_eq_u32 %s, %s, v%d" % (sr(S_EXEC, 2), sr(S_N), V_B1 + 3))
    e("s_or_b64 vcc, vcc, %s" % sr(S_EXEC, 2))
    e("s_cmp_lg_u64 vcc, 0")
    e("s_cbranch_scc1 L_cand")
    e("s_or_b32 %s, %s, 0x80000000" % (sr(S_T1), sr(S_N)))
    e("v_mov_b32 v%d, %s" % (V_B0 + 1, sr(S_T1)))
    e("v_mov_b32 v%d, 0" % V_B0)
    e("s_mov_b64 exec, 1")
    e("buffer_store_dword v%d, v%d, %s, 0 offen%s" % (V_B0 + 1, V_B0, sr(SRD_DBG, 4), xm))
    e("s_mov_b64 exec, -1")
    e("s_waitcnt vmcnt(17)")
    e("s_branch L_issued")
    e("L_nochoose:")
    g.load_w()
    g.load_rows(V_K, SRD_K, lm)
    g.load_v(lm)
    if lq0:
        e("s_cmp_lt_u32 %s, 4" % sr(S_WAVE))
        e("s_cbranch_scc1 L_issued")
        qloads(0, lq0)
    e("L_issued:")
    if prio:
        e("s_setprio 0")
    wait2(22, 22 + lq0, "k0")
    g.proj(V_K, 0, True)
    wait2(16, 16 + lq0, "k1")
    g.proj(V_K, 1, True)
    g.phi(0)
    g.phi(1)
    g.kv_mfma()
    g.stamp(1)
    wait2(0, lq0, "v")
    g.stamp(2)
    if prio:
        e("s_cmp_lt_u32 %s, 4" % sr(S_WAVE))
        e("s_cbranch_scc1 L_nop3")
        e("s_setprio 3")
        e("L_nop3:")
    g.kv_tiles()
    e("s_mul_i32 %s, %s, %d" % (sr(S_T0), sr(S_WAVE), PART_BYTES))
    e("v_lshlrev_b32 v%d, 4, v%d" % (V_B0, V_LANE))
    e("v_add_u32 v%d, %s, v%d" % (V_B0, sr(S_T0), V_B0))
    e("s_mov_b32 exec_lo, -1")
    e("s_mov_b32 exec_hi, 0")
    for tau in range(13):
        e("ds_write_b128 v%d, %s offset:%d" % (V_B0, vr(V_ACC + 4 * tau, 4), tau * 512))
    e("s_mov_b64 exec, -1")
    e("s_cmp_ge_u32 %s, 4" % sr(S_WAVE))
    e("s_cbranch_scc1 L_noq1")
    tagmode = opts.get("tagmode", 1)
    if tagmode == 0:
        e("s_cmp_lg_u32 %s, %d" % (sr(S_WAVE), nw))
        e("s_cbranch_scc1 L_notag")
        if prio:
            e("s_setprio 3")
        e("s_mov_b32 %s, 0x%x" % (sr(S_T2), SPIN))
        e("v_mov_b32 v%d, 0" % V_B0)
        e("L_tagspin:")
        e("buffer_load_dword v%d, v%d, %s, 0 offen sc1" % (V_B0 + 1, V_B0, sr(SRD_DBG, 4)))
        e("s_waitcnt vmcnt(0)")
        e("v_readfirstlane_b32 %s, v%d" % (sr(S_N), V_B0 + 1))
        e("s_sub_u32 %s, %s, 1" % (sr(S_T2), sr(S_T2)))
        e("s_cmp_eq_u32 %s, 0" % sr(S_T2))
        e("s_cbranch_scc1 L_tagput")
        e("s_cmp_ge_i32 %s, 0" % sr(S_N))
        e("s_cbranch_scc1 L_tagspin")
        e("L_tagput:")
        e("v_and_b32 v%d, 0x%x, v%d" % (V_B0 + 1, TAGMASK, V_B0 + 1))
        e("v_mov_b32 v%d, %d" % (V_B0, LDS_N))
        e("ds_write_b32 v%d, v%d" % (V_B0, V_B0 + 1))
        if prio:
            e("s_setprio 0")
        e("L_notag:")
        qloads(0, 12)
    else:
        e("s_cmp_lg_u32 %s, %d" % (sr(S_WAVE), nw))
        e("s_cbranch_scc1 L_notag")
        if tagmode == 1:
            e("s_load_dword %s, %s, 0 glc" % (sr(S_N), sr(S_DBG, 2)))
        qloads(0, 12)
        if tagmode == 1:
            e("s_waitcnt lgkmcnt(0)")
        else:
            e("s_mov_b32 %s, 0x80000123" % sr(S_N))
        e("s_cmp_lt_i32 %s, 0" % sr(S_N))
        e("s_cbranch_scc1 L_tagput")
        e("s_mov_b32 %s, 0x%x" % (sr(S_T2), SPIN))
        e("v_mov_b32 v%d, 0" % V_B0)
        e("L_tagspin:")
        e("buffer_load_dword v%d, v%d, %s, 0 offen sc1" % (V_B0 + 1, V_B0, sr(SRD_DBG, 4)))
        e("s_waitcnt vmcnt(0)")
        e("v_readfirstlane_b32 %s, v%d" % (sr(S_N), V_B0 + 1))
        e("s_sub_u32 %s, %s, 1" % (sr(S_T2), sr(S_T2)))
        e("s_cmp_eq_u32 %s, 0" % sr(S_T2))
        e("s_cbranch_scc1 L_tagput")
        e("s_cmp_ge_i32 %s, 0" % sr(S_N))
        e("s_cbranch_scc1 L_tagspin")
        e("L_tagput:")
        if opts.get("prof"):
            e("s_mov_b32 %s, %s" % (sr(S_ST0 + 28), sr(S_T2)))
        e("s_and_b32 %s, %s, 0x%x" % (sr(S_N), sr(S_N), TAGMASK))
        e("v_mov_b32 v%d, %s" % (V_B0 + 1, sr(S_N)))
        e("v_mov_b32 v%d, %d" % (V_B0, LDS_N))
        e("ds_write_b32 v%d, v%d" % (V_B0, V_B0 + 1))
        e("s_branch L_noq1")
        e("L_notag:")
        qloads(0, 12)
    e("L_noq1:")
    g.stamp(10)
    if prio:
        e("s_setprio 3")
    e("v_min_u32 v%d, 415, v0" % (V_B1 + 1))
    e("v_lshlrev_b32 v%d, 4, v%d" % (V_B1, V_B1 + 1))
    e("v_mov_b32 v%d, %d" % (V_B0, LDS_N))
    e("s_waitcnt lgkmcnt(0)")
    e("s_barrier")
    g.stamp(3)
    e("ds_read_b32 v%d, v%d" % (V_CNT, V_B0))
    for w in range(8):
        e("ds_read_b128 %s, v%d offset:%d" % (vr(V_ACC + 4 * w, 4), V_B1, w * PART_BYTES))
    for w in range(1, 8):
        e("s_waitcnt lgkmcnt(%d)" % (7 - w))
        for r in range(4):
            e("v_add_f32 v%d, v%d, v%d" % (V_ACC + r, V_ACC + r, V_ACC + 4 * w + r))
    for r in range(4):
        e("v_bfi_b32 v%d, %s, v%d, v%d" % (V_ACC + r, sr(S_MASK), V_ACC + r, V_CNT))
    e("buffer_store_dwordx4 %s, v%d, %s, %s offen%s" % (vr(V_ACC, 4), V_B1, sr(SRD_WS, 4), sr(S_PART), xm))
    g.stamp(4)
    V_N = V_B0 + 2
    e("v_mov_b32 v%d, v%d" % (V_N, V_CNT))
    if lq0 < 12:
        e("s_cmp_lt_u32 %s, 4" % sr(S_WAVE))
        e("s_cbranch_scc1 L_noq2")
        qloads(lq0, 12)
        e("L_noq2:")
    PL = V_ACC + 4

    def payload_loads():
        e("s_mov_b32 %s, %s" % (sr(S_T0), sr(S_HPART)))
        for c in range(8):
            e("buffer_load_dwordx4 %s, v%d, %s, %s offen%s" % (vr(PL + 4 * c, 4), V_B1, sr(SRD_WS, 4), sr(S_T0), xm))
            if c < 7:
                e("s_add_u32 %s, %s, %d" % (sr(S_T0), sr(S_T0), SL))
    g.table_addr(V_B1 + 1)
    if opts.get("eqfirst", 1):
        e("s_cmp_ge_u32 %s, 4" % sr(S_WAVE))
        e("s_cbranch_scc1 L_noeq")
        e("s_waitcnt vmcnt(1)")
        for T in range(2):
            g.proj(V_Q, T, False)
            g.phi(T)
            g.pack_phi_q(T)
        e("L_noeq:")
    if opts.get("pbar", 1):
        e("s_barrier")
    payload_loads()
    g.stamp(11)
    if opts.get("eqfirst", 1):
        e("s_cmp_lt_u32 %s, 4" % sr(S_WAVE))
        e("s_cbranch_scc1 L_nolq")
    e("s_waitcnt vmcnt(8)")
    g.stamp(5)
    for T in range(2):
        g.proj(V_Q, T, False)
        g.phi(T)
        g.pack_phi_q(T)
    if opts.get("eqfirst", 1):
        e("L_nolq:")
    e("s_mov_b32 %s, 0x%x" % (sr(S_T2), SPIN))
    e("s_waitcnt vmcnt(0)")
    e("s_branch L_chk")
    e("L_retry:")
    payload_loads()
    e("s_waitcnt vmcnt(0)")
    e("L_chk:")
    M = V_ACC + 36
    for i in range(32):
        e("v_xor_b32 v%d, v%d, v%d" % (PL + i, PL + i, V_N))
    e("v_or3_b32 v%d, v%d, v%d, v%d" % (M, PL, PL + 1, PL + 2))
    i = 3
    while i < 32:
        if i + 1 < 32:
            e("v_or3_b32 v%d, v%d, v%d, v%d" % (M, M, PL + i, PL + i + 1)); i += 2
        else:
            e("v_or_b32 v%d, v%d, v%d" % (M, M, PL + i)); i += 1
    e("v_and_b32 v%d, 0x%x, v%d" % (M, TAGMASK, M))
    e("v_cmp_ne_u32 %s, 0, v%d" % (sr(S_EXEC, 2), M))
    e("s_sub_u32 %s, %s, 1" % (sr(S_T2), sr(S_T2)))
    e("s_cmp_eq_u32 %s, 0" % sr(S_T2))
    e("s_cbranch_scc1 L_got")
    e("s_cmp_lg_u64 %s, 0" % sr(S_EXEC, 2))
    e("s_cbranch_scc1 L_retry")
    e("L_got:")
    g.stamp(6)
    if opts.get("prof"):
        e("s_sub_u32 %s, 0x%x, %s" % (sr(S_T3), SPIN, sr(S_T2)))
    a = V_ACC
    for r in range(4):
        e("v_add_f32 v%d, v%d, v%d" % (a + r, PL + r, PL + 4 + r))
    for c in range(2, 8):
        for r in range(4):
            e("v_add_f32 v%d, v%d, v%d" % (a + r, a + r, PL + 4 * c + r))
    g.hilo_write(LDS_TAB)
    e("s_waitcnt lgkmcnt(0)")
    e("s_barrier")
    g.stamp(7)
    g.read_table(LDS_TAB)
    e("s_waitcnt lgkmcnt(0)")
    g.out_tile(0, V_ACC, sm)
    g.out_tile(1, V_K - 4, sm)
    g.stamp(8)
    if opts.get("prof"):
        e("s_waitcnt vmcnt(0)")
        g.stamp(9)
        g.flush_stamps()
        e("v_mov_b32 v254, %s" % sr(S_T3))
        e("v_mov_b32 v255, 0")
        e("buffer_store_dwordx2 v[254:255], v253, %s, 0 offen offset:%d" % (sr(SRD_WS, 4), 15 * 8))
    e("L_end:")
    e("s_endpgm")
    txt = HEADER
    txt += "; @launch grid=(256,1,1) block=(512,1,1) lds=%d\n" % (LDS_N + 64)
    txt += '.amdgcn_target "amdgcn-amd-amdhsa--gfx950"\n'
    txt += kernel_text(NAME + "_kernel", g)
    txt += kd(NAME + "_kernel")
    return txt


X_TAB = 0
X_N = PART_BYTES
X_PART = PART_BYTES + 128
X_XBUF = X_PART + 8 * PART_BYTES
X_END = X_XBUF + 8 * 12288
V_RE, V_RO = 2, 5
V_SW = 128
V_T = 134
V_STG = 136
S_B04, S_B14, S_XB, S_PB = 63, 64, 65, 98


def gen_fused6(opts):
    lm = MODS[opts.get("mod", 1)]
    qm = MODS[opts.get("qmod", opts.get("mod", 1))]
    wm = MODS[opts.get("wmod", 0)]
    sm = MODS[opts.get("smod", 4)]
    xm = MODS[opts.get("xmod", 2)]
    prio = opts.get("prio", 1)
    lq0 = opts.get("lq0", 6)
    SPIN = opts.get("spin", 0x4000)
    SL = PART_BYTES
    V_CNT = V_SS + 3
    S_N = S_CNT
    S_MASK = 61
    S_B04, S_B14, S_XB, S_PB = 99, 100, 101, 19
    VQ = V_K
    g = Gen(opts)
    e = g

    def dma_rows(srd, lo, hi, mod):
        last = None
        for j in range(lo, hi):
            T, jj = divmod(j, 6)
            grp = (T, jj >> 2)
            if grp != last:
                e("s_add_u32 m0, %s, %d" % (sr(S_XB), T * 6144 + (jj >> 2) * 4096))
                last = grp
            so = ((S_B0, S_B04), (S_B1, S_B14))[T][jj >> 2]
            e("buffer_load_dwordx4 v%d, %s, %s offen offset:%d%s lds" % (V_SW + jj, sr(srd, 4), sr(so), (jj & 3) * 1024, mod))

    def dma_w():
        e("s_mov_b32 m0, %s" % sr(S_PB))
        for jj in range(3):
            e("buffer_load_dwordx4 v%d, %s, 0 offen offset:%d%s lds" % (V_SW + jj, sr(SRD_W, 4), jj * 1024, wm))

    def read_frag(vbase, T):
        for t in range(6):
            e("ds_read_b128 %s, v%d offset:%d" % (vr(vbase + 24 * T + 4 * t, 4), (V_RE, V_RO)[t & 1], T * 6144 + (t >> 1) * 128))

    def read_w():
        for t in range(6):
            e("ds_read_b128 %s, v%d offset:%d" % (vr(V_W + 4 * t, 4), V_T + (t & 1), (t >> 1) * 128))

    def wait2(n_early, n_late, tag):
        if n_early == n_late:
            e("s_waitcnt vmcnt(%d)" % n_early)
            return
        e("s_cmp_ge_u32 %s, 4" % sr(S_WAVE))
        e("s_cbranch_scc1 L_w2l_%s" % tag)
        e("s_waitcnt vmcnt(%d)" % n_early)
        e("s_branch L_w2d_%s" % tag)
        e("L_w2l_%s:" % tag)
        e("s_waitcnt vmcnt(%d)" % n_late)
        e("L_w2d_%s:" % tag)

    def qproj():
        read_frag(VQ, 0)
        read_frag(VQ, 1)
        e("s_waitcnt lgkmcnt(6)")
        g.proj(VQ, 0, False)
        g.phi(0)
        g.pack_phi_q(0)
        e("s_waitcnt lgkmcnt(0)")
        g.proj(VQ, 1, False)
        g.phi(1)
        g.pack_phi_q(1)

    g.zero_stamps()
    e("s_cmp_ge_u32 s2, 256")
    e("s_cbranch_scc1 L_end")
    if opts.get("cpf"):
        e("s_getpc_b64 s[92:93]")
        e("L_pc:")
    e("s_load_dwordx8 s[4:11], s[0:1], 0")
    e("s_load_dwordx4 s[12:15], s[0:1], 32")
    e("s_load_dwordx2 s[16:17], s[0:1], 48")
    e("v_and_b32 v%d, 63, v0" % V_LANE)
    e("v_lshrrev_b32 v8, 6, v0")
    e("v_and_b32 v9, 15, v0")
    e("v_bfe_u32 v10, v0, 4, 2")
    e("v_readfirstlane_b32 %s, v8" % sr(S_WAVE))
    if opts.get("cpf"):
        e("v_cmp_gt_u32 vcc, 64, v0")
        e("s_and_saveexec_b64 s[94:95], vcc")
        e("s_cbranch_execz L_nocpf")
        e("v_lshlrev_b32 v11, 7, v0")
        e("v_min_u32 v12, L_end-L_pc, v11")
        e("global_load_dword v254, v12, s[92:93]")
        if opts["cpf"] > 1:
            e("v_add_u32 v11, 8192, v11")
            e("v_min_u32 v12, L_end-L_pc, v11")
            e("global_load_dword v255, v12, s[92:93]")
        e("L_nocpf:")
        e("s_mov_b64 exec, s[94:95]")
    for jj in range(6):
        e("v_add_u32 v11, %d, v%d" % (64 * jj, V_LANE))
        e("v_mul_u32_u24 v11, 1366, v11")
        e("v_lshrrev_b32 v11, 16, v11")
        e("v_xor_b32 v11, v11, v%d" % V_LANE)
        e("v_lshlrev_b32 v%d, 4, v11" % (V_SW + jj))
    e("v_mul_u32_u24 v13, %d, v10" % (4 * RB))
    e("v_lshlrev_b32 v14, 4, v9")
    e("v_add_u32 v%d, v13, v14" % V_OVA)
    e("v_lshlrev_b32 v14, 3, v9")
    e("v_add_u32 v13, 256, v13")
    e("v_add_u32 v%d, v13, v14" % V_OVB)
    if opts.get("hrot"):
        e("s_add_u32 %s, s2, %d" % (sr(S_T0), opts["hrot"]))
        e("s_and_b32 %s, %s, 7" % (sr(S_T0), sr(S_T0)))
    else:
        e("s_and_b32 %s, s2, 7" % sr(S_T0))
    e("s_lshr_b32 %s, s2, 6" % sr(S_T1))
    e("s_lshl_b32 %s, %s, 3" % (sr(S_T1), sr(S_T1)))
    e("s_or_b32 %s, %s, %s" % (sr(S_H), sr(S_T0), sr(S_T1)))
    e("s_lshr_b32 %s, s2, 3" % sr(S_C))
    e("s_and_b32 %s, %s, 7" % (sr(S_C), sr(S_C)))
    e("s_mul_i32 %s, %s, %d" % (sr(S_T0), sr(S_H), 2048 * RB))
    e("s_mul_i32 %s, %s, %d" % (sr(S_T1), sr(S_C), 256 * RB))
    e("s_add_u32 %s, %s, %s" % (sr(S_T0), sr(S_T0), sr(S_T1)))
    e("s_mul_i32 %s, %s, %d" % (sr(S_XB), sr(S_WAVE), 32 * RB))
    e("s_add_u32 %s, %s, %s" % (sr(S_B0), sr(S_T0), sr(S_XB)))
    e("s_add_u32 %s, %s, %d" % (sr(S_XB), sr(S_XB), X_XBUF))
    e("s_add_u32 %s, %s, %d" % (sr(S_B1), sr(S_B0), 16 * RB))
    e("s_add_u32 %s, %s, 4096" % (sr(S_B04), sr(S_B0)))
    e("s_add_u32 %s, %s, 4096" % (sr(S_B14), sr(S_B1)))
    e("s_mul_i32 %s, %s, %d" % (sr(S_PB), sr(S_WAVE), PART_BYTES))
    e("s_add_u32 %s, %s, %d" % (sr(S_PB), sr(S_PB), X_PART))
    if opts.get("prof"):
        e("s_lshl_b32 %s, s2, 3" % sr(S_PROF))
        e("s_add_u32 %s, %s, %s" % (sr(S_PROF), sr(S_PROF), sr(S_WAVE)))
        e("s_lshl_b32 %s, %s, 7" % (sr(S_PROF), sr(S_PROF)))
        e("s_add_u32 %s, %s, 0x%x" % (sr(S_PROF), sr(S_PROF), 128 << 20))
    e("s_or_b32 %s, %s, %s" % (sr(S_T2), sr(S_H), sr(S_C)))
    e("s_or_b32 %s, %s, %s" % (sr(S_T2), sr(S_T2), sr(S_WAVE)))
    e("s_waitcnt lgkmcnt(0)")

    def srd(r, ptr, nbytes):
        e("s_mov_b32 %s, %s" % (sr(r), sr(ptr)))
        e("s_and_b32 %s, %s, 0xffff" % (sr(r + 1), sr(ptr + 1)))
        e("s_mov_b32 %s, 0x%x" % (sr(r + 2), nbytes))
        e("s_mov_b32 %s, 0x20000" % sr(r + 3))
    srd(SRD_K, S_K, TENSOR_BYTES)
    srd(SRD_W, S_W, 8 * RB)
    srd(SRD_V, S_V, TENSOR_BYTES)
    srd(SRD_WS, S_WS, WS_BYTES)
    srd(SRD_DBG, S_DBG, 256)
    g.stamp(0)
    if prio:
        e("s_setprio 3")
    e("s_cmp_lg_u32 %s, 0" % sr(S_T2))
    e("s_cbranch_scc1 L_nochoose")
    e("v_mul_u32_u24 v%d, %d, v%d" % (V_B0, 4 * SL, V_LANE))
    for i in range(4):
        e("s_mov_b32 %s, %d" % (sr(S_T1), i * SL))
        e("buffer_load_dword v%d, v%d, %s, %s offen%s" % (V_B1 + i, V_B0, sr(SRD_WS, 4), sr(S_T1), xm))
    dma_rows(SRD_K, 0, 6, lm)
    dma_w()
    dma_rows(SRD_K, 6, 12, lm)
    g.load_v(lm)
    e("s_waitcnt vmcnt(31)")
    for i in range(4):
        e("v_and_b32 v%d, 0x%x, v%d" % (V_B1 + i, TAGMASK, V_B1 + i))
    e("v_readfirstlane_b32 %s, v%d" % (sr(S_N), V_B1))
    e("L_cand:")
    e("s_add_u32 %s, %s, 1" % (sr(S_N), sr(S_N)))
    e("s_and_b32 %s, %s, 0x%x" % (sr(S_N), sr(S_N), TAGMASK))
    e("v_cmp_eq_u32 vcc, %s, v%d" % (sr(S_N), V_B1))
    e("v_cmp_eq_u32 %s, %s, v%d" % (sr(S_EXEC, 2), sr(S_N), V_B1 + 1))
    e("s_or_b64 vcc, vcc, %s" % sr(S_EXEC, 2))
    e("v_cmp_eq_u32 %s, %s, v%d" % (sr(S_EXEC, 2), sr(S_N), V_B1 + 2))
    e("s_or_b64 vcc, vcc, %s" % sr(S_EXEC, 2))
    e("v_cmp_eq_u32 %s, %s, v%d" % (sr(S_EXEC, 2), sr(S_N), V_B1 + 3))
    e("s_or_b64 vcc, vcc, %s" % sr(S_EXEC, 2))
    e("s_cmp_lg_u64 vcc, 0")
    e("s_cbranch_scc1 L_cand")
    e("s_or_b32 %s, %s, 0x80000000" % (sr(S_T1), sr(S_N)))
    e("v_mov_b32 v%d, %s" % (V_B0 + 1, sr(S_T1)))
    e("v_mov_b32 v%d, 0" % V_B0)
    e("s_mov_b64 exec, 1")
    e("buffer_store_dword v%d, v%d, %s, 0 offen%s" % (V_B0 + 1, V_B0, sr(SRD_DBG, 4), xm))
    e("s_mov_b64 exec, -1")
    if opts.get("elbar"):
        e("s_barrier")
    e("s_waitcnt vmcnt(17)")
    e("s_branch L_issued")
    e("L_nochoose:")
    thr = opts.get("thr", 0)
    if opts.get("elbar"):
        e("s_cmp_lt_u32 %s, 4" % sr(S_WAVE))
        e("s_cbranch_scc1 L_noelb")
        e("s_barrier")
        e("L_noelb:")
    mark = len(g.L)
    dma_rows(SRD_K, 0, 6, lm)
    dma_w()
    dma_rows(SRD_K, 6, 12, lm)
    g.load_v(lm)
    if thr:
        body = g.L[mark:]
        del g.L[mark:]
        n = 0
        for l in body:
            g.L.append(l)
            if "buffer_load" in l:
                n += 1
                if n >= thr:
                    g.L.append("    s_waitcnt vmcnt(%d)" % (thr - 1))
    if opts.get("elbar"):
        e("s_cmp_ge_u32 %s, 4" % sr(S_WAVE))
        e("s_cbranch_scc1 L_noelb2")
        e("s_barrier")
        e("L_noelb2:")
    e("s_cmp_lt_u32 %s, 4" % sr(S_WAVE))
    e("s_cbranch_scc1 L_issued")
    e("v_mov_b32 v%d, 0" % V_B0)
    e("buffer_load_dword v%d, v%d, %s, 0 offen sc1" % (V_B0 + 1, V_B0, sr(SRD_DBG, 4)))
    e("L_issued:")
    if prio:
        e("s_setprio 0")
    srd(SRD_Q, S_Q, TENSOR_BYTES)
    srd(SRD_O, S_O, TENSOR_BYTES)
    e("s_mul_i32 %s, %s, %d" % (sr(S_HPART), sr(S_H), 8 * SL))
    e("s_mul_i32 %s, %s, %d" % (sr(S_T1), sr(S_C), SL))
    e("s_add_u32 %s, %s, %s" % (sr(S_PART), sr(S_HPART), sr(S_T1)))
    e("s_mov_b32 %s, 0x05040100" % sr(S_SELLO))
    e("s_mov_b32 %s, 0x07060302" % sr(S_SELHI))
    e("s_mov_b32 %s, %s" % (sr(S_CEXP), hx(f32(C_EXP))))
    e("s_mov_b32 %s, 0x%x" % (sr(S_MASK), 0xFFFFFFFF ^ TAGMASK))
    e("v_mov_b32 v%d, %s" % (V_CSQ, hx(f32(C_SQ))))
    e("v_mov_b32 v%d, %s" % (V_M15, hx(f32(C_BIAS))))
    e("v_and_b32 v9, 15, v0")
    e("v_bfe_u32 v10, v0, 4, 2")
    e("v_lshrrev_b32 v11, 1, v9")
    e("v_mul_u32_u24 v12, %d, v9" % RB)
    e("v_add_u32 v12, %s, v12" % sr(S_XB))
    e("v_xor_b32 v13, v10, v11")
    e("v_lshl_add_u32 v%d, v13, 4, v12" % V_RE)
    e("v_xor_b32 v13, 4, v13")
    e("v_lshl_add_u32 v%d, v13, 4, v12" % V_RO)
    e("v_and_b32 v9, 7, v9")
    e("v_lshrrev_b32 v11, 1, v9")
    e("v_mul_u32_u24 v12, %d, v9" % RB)
    e("v_add_u32 v12, %s, v12" % sr(S_PB))
    e("v_xor_b32 v13, v10, v11")
    e("v_lshl_add_u32 v%d, v13, 4, v12" % V_T)
    e("v_xor_b32 v13, 4, v13")
    e("v_lshl_add_u32 v%d, v13, 4, v12" % (V_T + 1))
    wait2(22, 23, "k0")
    read_w()
    read_frag(V_K, 0)
    wait2(16, 17, "k1")
    e("s_waitcnt lgkmcnt(6)")
    read_frag(V_K, 1)
    e("s_waitcnt lgkmcnt(6)")
    g.proj(V_K, 0, True)
    e("s_waitcnt lgkmcnt(0)")
    g.proj(V_K, 1, True)
    g.phi(0)
    g.phi(1)
    g.kv_mfma()
    g.stamp(1)
    e("s_cmp_lt_u32 %s, 4" % sr(S_WAVE))
    e("s_cbranch_scc1 L_vearly")
    if lq0:
        dma_rows(SRD_Q, 0, lq0, qm)
    e("s_waitcnt vmcnt(%d)" % lq0)
    if prio:
        e("s_setprio 3")
    e("v_readfirstlane_b32 %s, v%d" % (sr(S_N), V_B0 + 1))
    e("s_cmp_lt_i32 %s, 0" % sr(S_N))
    e("s_cbranch_scc1 L_tagput")
    e("s_mov_b32 %s, 0x%x" % (sr(S_T2), SPIN))
    e("v_mov_b32 v%d, 0" % V_B0)
    e("L_tagspin:")
    e("buffer_load_dword v%d, v%d, %s, 0 offen sc1" % (V_B0 + 1, V_B0, sr(SRD_DBG, 4)))
    e("s_waitcnt vmcnt(0)")
    e("v_readfirstlane_b32 %s, v%d" % (sr(S_N), V_B0 + 1))
    e("s_sub_u32 %s, %s, 1" % (sr(S_T2), sr(S_T2)))
    e("s_cmp_eq_u32 %s, 0" % sr(S_T2))
    e("s_cbranch_scc1 L_tagput")
    e("s_cmp_ge_i32 %s, 0" % sr(S_N))
    e("s_cbranch_scc1 L_tagspin")
    e("L_tagput:")
    e("s_and_b32 %s, %s, 0x%x" % (sr(S_N), sr(S_N), TAGMASK))
    e("v_mov_b32 v%d, %s" % (V_B0 + 1, sr(S_N)))
    e("v_mov_b32 v%d, %d" % (V_B0, X_N))
    e("ds_write_b32 v%d, v%d" % (V_B0, V_B0 + 1))
    e("s_branch L_vready")
    e("L_vearly:")
    e("s_waitcnt vmcnt(0)")
    e("L_vready:")
    g.stamp(2)
    g.kv_tiles()
    e("v_lshlrev_b32 v%d, 4, v%d" % (V_B0, V_LANE))
    e("v_add_u32 v%d, %s, v%d" % (V_B0, sr(S_PB), V_B0))
    e("s_mov_b32 exec_lo, -1")
    e("s_mov_b32 exec_hi, 0")
    for tau in range(13):
        e("ds_write_b128 v%d, %s offset:%d" % (V_B0, vr(V_ACC + 4 * tau, 4), tau * 512))
    e("s_mov_b64 exec, -1")
    e("s_cmp_ge_u32 %s, 4" % sr(S_WAVE))
    e("s_cbranch_scc1 L_noq1")
    dma_rows(SRD_Q, 0, 12, qm)
    e("L_noq1:")
    g.stamp(10)
    if prio:
        e("s_setprio 3")
    e("v_min_u32 v%d, 415, v0" % (V_B1 + 1))
    e("v_lshlrev_b32 v%d, 4, v%d" % (V_B1, V_B1 + 1))
    e("v_add_u32 v%d, %d, v%d" % (V_B1 + 2, X_PART, V_B1))
    e("v_mov_b32 v%d, %d" % (V_B0, X_N))
    e("s_waitcnt lgkmcnt(0)")
    e("s_barrier")
    g.stamp(3)
    e("ds_read_b32 v%d, v%d" % (V_CNT, V_B0))
    for w in range(8):
        e("ds_read_b128 %s, v%d offset:%d" % (vr(V_ACC + 4 * w, 4), V_B1 + 2, w * PART_BYTES))
    for w in range(1, 8):
        e("s_waitcnt lgkmcnt(%d)" % (7 - w))
        for r in range(4):
            e("v_add_f32 v%d, v%d, v%d" % (V_ACC + r, V_ACC + r, V_ACC + 4 * w + r))
    for r in range(4):
        e("v_bfi_b32 v%d, %s, v%d, v%d" % (V_ACC + r, sr(S_MASK), V_ACC + r, V_CNT))
    e("buffer_store_dwordx4 %s, v%d, %s, %s offen%s" % (vr(V_ACC, 4), V_B1, sr(SRD_WS, 4), sr(S_PART), MODS[opts.get("pubmod", 2)]))
    g.stamp(4)
    V_N = V_B0 + 2
    e("v_mov_b32 v%d, v%d" % (V_N, V_CNT))
    e("s_cmp_lt_u32 %s, 4" % sr(S_WAVE))
    e("s_cbranch_scc1 L_noq2")
    if lq0 < 12:
        dma_rows(SRD_Q, lq0, 12, qm)
    g.table_addr(V_B1 + 1)
    if opts.get("ack", 1):
        e("s_waitcnt vmcnt(%d)" % (12 - lq0))
    e("s_branch L_q2done")
    e("L_noq2:")
    g.table_addr(V_B1 + 1)
    e("s_waitcnt vmcnt(1)")
    qproj()
    if opts.get("ack", 1):
        e("s_waitcnt vmcnt(0)")
    e("L_q2done:")
    PL = V_ACC + 4

    def payload_loads():
        e("s_mov_b32 %s, %s" % (sr(S_T0), sr(S_HPART)))
        for c in range(8):
            e("buffer_load_dwordx4 %s, v%d, %s, %s offen%s" % (vr(PL + 4 * c, 4), V_B1, sr(SRD_WS, 4), sr(S_T0), xm))
            if c < 7:
                e("s_add_u32 %s, %s, %d" % (sr(S_T0), sr(S_T0), SL))
    if opts.get("pbar", 1):
        e("s_barrier")
    e("s_mov_b32 %s, 0x%x" % (sr(S_T2), SPIN))
    e("L_retry:")
    payload_loads()
    g.stamp(11)
    M = V_ACC + 36
    a = V_ACC
    for c in range(8):
        e("s_waitcnt vmcnt(%d)" % (7 - c))
        for r in range(4):
            e("v_xor_b32 v%d, v%d, v%d" % (PL + 4 * c + r, PL + 4 * c + r, V_N))
        if c == 0:
            e("v_or3_b32 v%d, v%d, v%d, v%d" % (M, PL, PL + 1, PL + 2))
            e("v_or_b32 v%d, v%d, v%d" % (M, M, PL + 3))
        else:
            e("v_or3_b32 v%d, v%d, v%d, v%d" % (M, M, PL + 4 * c, PL + 4 * c + 1))
            e("v_or3_b32 v%d, v%d, v%d, v%d" % (M, M, PL + 4 * c + 2, PL + 4 * c + 3))
        if c == 1:
            for r in range(4):
                e("v_add_f32 v%d, v%d, v%d" % (a + r, PL + r, PL + 4 + r))
        elif c > 1:
            for r in range(4):
                e("v_add_f32 v%d, v%d, v%d" % (a + r, a + r, PL + 4 * c + r))
    e("v_and_b32 v%d, 0x%x, v%d" % (M, TAGMASK, M))
    e("v_cmp_ne_u32 %s, 0, v%d" % (sr(S_EXEC, 2), M))
    e("s_sub_u32 %s, %s, 1" % (sr(S_T2), sr(S_T2)))
    e("s_cmp_eq_u32 %s, 0" % sr(S_T2))
    e("s_cbranch_scc1 L_got")
    e("s_cmp_lg_u64 %s, 0" % sr(S_EXEC, 2))
    e("s_cbranch_scc1 L_retry")
    e("L_got:")
    g.stamp(6)
    if opts.get("prof"):
        e("s_sub_u32 %s, 0x%x, %s" % (sr(S_T3), SPIN, sr(S_T2)))
    g.hilo_write(X_TAB)
    e("s_waitcnt lgkmcnt(0)")
    e("s_barrier")
    g.stamp(7)
    g.read_table(X_TAB)
    e("s_cmp_lt_u32 %s, 4" % sr(S_WAVE))
    e("s_cbranch_scc1 L_out")
    e("s_waitcnt lgkmcnt(0)")
    qproj()
    e("L_out:")
    g.stamp(5)
    e("s_waitcnt lgkmcnt(0)")
    e("v_lshlrev_b32 v%d, 4, v%d" % (V_T, V_LANE))
    e("v_add_u32 v%d, %s, v%d" % (V_T, sr(S_XB), V_T))

    def out_compute(T, accbase):
        den = accbase + 48
        e("v_mfma_f32_16x16x16_bf16 %s, %s, %s, 0" % (vr(den, 4), vr(V_AT + 24, 2), vr(V_P + 2 * T, 2)))
        for t in range(12):
            e("v_mfma_f32_16x16x16_bf16 %s, %s, %s, 0" % (vr(accbase + 4 * t, 4), vr(V_AT + 2 * t, 2), vr(V_P + 2 * T, 2)))
        e("v_add_f32 v%d, %s, v%d" % (den, hx(f32(1e-6)), den))
        e("v_rcp_f32 v%d, v%d" % (den, den))
        for u in range(6):
            x = accbase + 8 * u
            for r in range(8):
                e("v_mul_f32 v%d, v%d, v%d" % (x + r, x + r, den))
            for r in range(4):
                e("v_cvt_pk_bf16_f32 v%d, v%d, v%d" % (x + r, x + 2 * r, x + 2 * r + 1))
            e("ds_write_b128 v%d, %s offset:%d" % ((V_RE, V_RO)[u & 1], vr(x, 4), T * 6144 + (u >> 1) * 128))

    def out_store(T, stg):
        for jj in range(6):
            e("ds_read_b128 %s, v%d offset:%d" % (vr(stg + 4 * jj, 4), V_T, T * 6144 + jj * 1024))
        for jj in range(6):
            e("s_waitcnt lgkmcnt(%d)" % (5 - jj))
            so = ((S_B0, S_B04), (S_B1, S_B14))[T][jj >> 2]
            e("buffer_store_dwordx4 %s, v%d, %s, %s offen offset:%d%s" % (
                vr(stg + 4 * jj, 4), V_SW + jj, sr(SRD_O, 4), sr(so), (jj & 3) * 1024, sm))
    out_compute(0, V_ACC)
    e("s_waitcnt lgkmcnt(0)")
    out_store(0, V_STG)
    out_compute(1, V_K - 4)
    e("s_waitcnt lgkmcnt(0)")
    out_store(1, V_ACC)
    g.stamp(8)
    if opts.get("prof"):
        e("s_waitcnt vmcnt(0)")
        g.stamp(9)
        e("s_getreg_b32 %s, hwreg(HW_REG_XCC_ID)" % sr(S_ST0 + 28))
        e("s_and_b32 %s, %s, 15" % (sr(S_ST0 + 28), sr(S_ST0 + 28)))
        e("s_add_u32 %s, %s, 1" % (sr(S_ST0 + 28), sr(S_ST0 + 28)))
        e("s_mov_b32 %s, 0" % sr(S_ST0 + 29))
        g.stamps.add(14)
        g.flush_stamps()
        e("v_mov_b32 v254, %s" % sr(S_T3))
        e("v_mov_b32 v255, 0")
        e("buffer_store_dwordx2 v[254:255], v253, %s, 0 offen offset:%d" % (sr(SRD_WS, 4), 15 * 8))
    e("L_end:")
    e("s_endpgm")
    txt = HEADER
    txt += "; @launch grid=(256,1,1) block=(512,1,1) lds=%d\n" % X_END
    txt += '.amdgcn_target "amdgcn-amd-amdhsa--gfx950"\n'
    txt += kernel_text(NAME + "_kernel", g)
    txt += kd(NAME + "_kernel")
    return txt


def gen_fused7(opts):
    lm = MODS[opts.get("mod", 1)]
    qm = MODS[opts.get("qmod", opts.get("mod", 1))]
    wm = MODS[opts.get("wmod", 0)]
    sm = MODS[opts.get("smod", 4)]
    xm = MODS[opts.get("xmod", 2)]
    prio = opts.get("prio", 1)
    lq0 = opts.get("lq0", 6)
    SPIN = opts.get("spin", 0x4000)
    SL = PART_BYTES
    V_CNT = V_SS + 3
    S_N = S_CNT
    S_MASK = 61
    S_B04, S_B14, S_XB, S_PB = 99, 100, 101, 19
    S_CHOOSE = 3
    VQ = V_K
    g = Gen(opts)
    e = g

    def dma_rows(srd, lo, hi, mod):
        last = None
        for j in range(lo, hi):
            T, jj = divmod(j, 6)
            grp = (T, jj >> 2)
            if grp != last:
                e("s_add_u32 m0, %s, %d" % (sr(S_XB), T * 6144 + (jj >> 2) * 4096))
                last = grp
            so = ((S_B0, S_B04), (S_B1, S_B14))[T][jj >> 2]
            e("buffer_load_dwordx4 v%d, %s, %s offen offset:%d%s lds" % (V_SW + jj, sr(srd, 4), sr(so), (jj & 3) * 1024, mod))

    def dma_w():
        e("s_mov_b32 m0, %s" % sr(S_PB))
        for jj in range(3):
            e("buffer_load_dwordx4 v%d, %s, 0 offen offset:%d%s lds" % (V_SW + jj, sr(SRD_W, 4), jj * 1024, wm))

    def read_frag(vbase, T):
        for t in range(6):
            e("ds_read_b128 %s, v%d offset:%d" % (vr(vbase + 24 * T + 4 * t, 4), (V_RE, V_RO)[t & 1], T * 6144 + (t >> 1) * 128))

    def read_w():
        for t in range(6):
            e("ds_read_b128 %s, v%d offset:%d" % (vr(V_W + 4 * t, 4), V_T + (t & 1), (t >> 1) * 128))

    def wait2(n_early, n_late, tag):
        if n_early == n_late:
            e("s_waitcnt vmcnt(%d)" % n_early)
            return
        e("s_cmp_eq_u32 %s, 4" % sr(S_WAVE))
        e("s_cbranch_scc1 L_w2l_%s" % tag)
        e("s_waitcnt vmcnt(%d)" % n_early)
        e("s_branch L_w2d_%s" % tag)
        e("L_w2l_%s:" % tag)
        e("s_waitcnt vmcnt(%d)" % n_late)
        e("L_w2d_%s:" % tag)

    def qproj():
        read_frag(VQ, 0)
        read_frag(VQ, 1)
        e("s_waitcnt lgkmcnt(6)")
        g.proj(VQ, 0, False)
        g.phi(0)
        g.pack_phi_q(0)
        e("s_waitcnt lgkmcnt(0)")
        g.proj(VQ, 1, False)
        g.phi(1)
        g.pack_phi_q(1)

    if opts.get("prof"):
        e("s_memrealtime s[96:97]")
    e("s_cmp_ge_u32 s2, 256")
    e("s_cbranch_scc1 L_end")
    if opts.get("cpf"):
        e("s_getpc_b64 s[92:93]")
        e("L_pc:")
    e("s_load_dwordx8 s[4:11], s[0:1], 0")
    e("s_load_dwordx4 s[12:15], s[0:1], 32")
    e("s_load_dwordx2 s[16:17], s[0:1], 48")
    e("v_and_b32 v%d, 63, v0" % V_LANE)
    e("v_lshrrev_b32 v8, 6, v0")
    e("v_and_b32 v9, 15, v0")
    e("v_bfe_u32 v10, v0, 4, 2")
    e("v_readfirstlane_b32 %s, v8" % sr(S_WAVE))
    if opts.get("cpf"):
        e("v_cmp_gt_u32 vcc, 64, v0")
        e("s_and_saveexec_b64 s[94:95], vcc")
        e("s_cbranch_execz L_nocpf")
        e("v_lshlrev_b32 v11, 7, v0")
        e("v_min_u32 v12, L_end-L_pc, v11")
        e("global_load_dword v254, v12, s[92:93]")
        if opts["cpf"] > 1:
            e("v_add_u32 v11, 8192, v11")
            e("v_min_u32 v12, L_end-L_pc, v11")
            e("global_load_dword v255, v12, s[92:93]")
        e("L_nocpf:")
        e("s_mov_b64 exec, s[94:95]")
    for jj in range(6):
        e("v_add_u32 v11, %d, v%d" % (64 * jj, V_LANE))
        e("v_mul_u32_u24 v11, 1366, v11")
        e("v_lshrrev_b32 v11, 16, v11")
        e("v_xor_b32 v11, v11, v%d" % V_LANE)
        e("v_lshlrev_b32 v%d, 4, v11" % (V_SW + jj))
    e("v_mul_u32_u24 v13, %d, v10" % (4 * RB))
    e("v_lshlrev_b32 v14, 4, v9")
    e("v_add_u32 v%d, v13, v14" % V_OVA)
    e("v_lshlrev_b32 v14, 3, v9")
    e("v_add_u32 v13, 256, v13")
    e("v_add_u32 v%d, v13, v14" % V_OVB)
    if opts.get("hrot"):
        e("s_add_u32 %s, s2, %d" % (sr(S_T0), opts["hrot"]))
        e("s_and_b32 %s, %s, 7" % (sr(S_T0), sr(S_T0)))
    else:
        e("s_and_b32 %s, s2, 7" % sr(S_T0))
    e("s_lshr_b32 %s, s2, 6" % sr(S_T1))
    e("s_lshl_b32 %s, %s, 3" % (sr(S_T1), sr(S_T1)))
    e("s_or_b32 %s, %s, %s" % (sr(S_H), sr(S_T0), sr(S_T1)))
    e("s_lshr_b32 %s, s2, 3" % sr(S_C))
    e("s_and_b32 %s, %s, 7" % (sr(S_C), sr(S_C)))
    e("s_mul_i32 %s, %s, %d" % (sr(S_T0), sr(S_H), 2048 * RB))
    e("s_mul_i32 %s, %s, %d" % (sr(S_T1), sr(S_C), 256 * RB))
    e("s_add_u32 %s, %s, %s" % (sr(S_T0), sr(S_T0), sr(S_T1)))
    e("s_mul_i32 %s, %s, %d" % (sr(S_XB), sr(S_WAVE), 32 * RB))
    e("s_add_u32 %s, %s, %s" % (sr(S_B0), sr(S_T0), sr(S_XB)))
    e("s_add_u32 %s, %s, %d" % (sr(S_XB), sr(S_XB), X_XBUF))
    e("s_add_u32 %s, %s, %d" % (sr(S_B1), sr(S_B0), 16 * RB))
    e("s_add_u32 %s, %s, 4096" % (sr(S_B04), sr(S_B0)))
    e("s_add_u32 %s, %s, 4096" % (sr(S_B14), sr(S_B1)))
    e("s_mul_i32 %s, %s, %d" % (sr(S_PB), sr(S_WAVE), PART_BYTES))
    e("s_add_u32 %s, %s, %d" % (sr(S_PB), sr(S_PB), X_PART))
    if opts.get("prof"):
        e("s_lshl_b32 %s, s2, 3" % sr(S_PROF))
        e("s_add_u32 %s, %s, %s" % (sr(S_PROF), sr(S_PROF), sr(S_WAVE)))
        e("s_lshl_b32 %s, %s, 7" % (sr(S_PROF), sr(S_PROF)))
        e("s_add_u32 %s, %s, 0x%x" % (sr(S_PROF), sr(S_PROF), 128 << 20))
    e("s_or_b32 %s, %s, %s" % (sr(S_T2), sr(S_H), sr(S_C)))
    e("s_or_b32 %s, %s, %s" % (sr(S_T2), sr(S_T2), sr(S_WAVE)))
    e("s_waitcnt lgkmcnt(0)")

    def srd(r, ptr, nbytes):
        e("s_mov_b32 %s, %s" % (sr(r), sr(ptr)))
        e("s_and_b32 %s, %s, 0xffff" % (sr(r + 1), sr(ptr + 1)))
        e("s_mov_b32 %s, 0x%x" % (sr(r + 2), nbytes))
        e("s_mov_b32 %s, 0x20000" % sr(r + 3))
    srd(SRD_K, S_K, TENSOR_BYTES)
    srd(SRD_W, S_W, 8 * RB)
    srd(SRD_V, S_V, TENSOR_BYTES)
    srd(SRD_WS, S_WS, WS_BYTES)
    srd(SRD_DBG, S_DBG, 256)
    if opts.get("prof"):
        for i_ in range(12):
            e("s_mov_b64 %s, 0" % sr(S_ST0 + 2 * i_, 2))
        e("s_mov_b64 %s, s[96:97]" % sr(S_ST0 + 24, 2))
        g.stamps = set([12])
    g.stamp(0)
    if prio:
        e("s_setprio 3")
    e("s_mov_b32 %s, %s" % (sr(S_CHOOSE), sr(S_T2)))
    e("s_cmp_lg_u32 %s, 0" % sr(S_T2))
    e("s_cbranch_scc1 L_nochoose")
    e("v_mov_b32 v%d, 0" % V_B0)
    e("buffer_load_dword v%d, v%d, %s, 0 offen%s" % (V_B1, V_B0, sr(SRD_WS, 4), xm))
    e("L_nochoose:")
    thr = opts.get("thr", 0)
    if opts.get("elbar"):
        e("s_cmp_lt_u32 %s, 4" % sr(S_WAVE))
        e("s_cbranch_scc1 L_noelb")
        e("s_barrier")
        e("L_noelb:")
    mark = len(g.L)
    dma_rows(SRD_K, 0, 6, lm)
    dma_w()
    dma_rows(SRD_K, 6, 12, lm)
    g.load_v(lm)
    if thr:
        body = g.L[mark:]
        del g.L[mark:]
        n = 0
        for l in body:
            g.L.append(l)
            if "buffer_load" in l:
                n += 1
                if n >= thr:
                    g.L.append("    s_waitcnt vmcnt(%d)" % (thr - 1))
    if opts.get("elbar"):
        e("s_cmp_ge_u32 %s, 4" % sr(S_WAVE))
        e("s_cbranch_scc1 L_noelb2")
        e("s_barrier")
        e("L_noelb2:")
    e("s_cmp_lg_u32 %s, 4" % sr(S_WAVE))
    e("s_cbranch_scc1 L_issued")
    e("v_mov_b32 v%d, 0" % V_B0)
    e("buffer_load_dword v%d, v%d, %s, 0 offen sc1" % (V_B0 + 1, V_B0, sr(SRD_DBG, 4)))
    e("L_issued:")
    if prio:
        e("s_setprio 0")
    srd(SRD_Q, S_Q, TENSOR_BYTES)
    srd(SRD_O, S_O, TENSOR_BYTES)
    e("s_mul_i32 %s, %s, %d" % (sr(S_HPART), sr(S_H), 8 * SL))
    e("s_mul_i32 %s, %s, %d" % (sr(S_T1), sr(S_C), SL))
    e("s_add_u32 %s, %s, %s" % (sr(S_PART), sr(S_HPART), sr(S_T1)))
    e("s_mov_b32 %s, 0x05040100" % sr(S_SELLO))
    e("s_mov_b32 %s, 0x07060302" % sr(S_SELHI))
    e("s_mov_b32 %s, %s" % (sr(S_CEXP), hx(f32(C_EXP))))
    e("s_mov_b32 %s, 0x%x" % (sr(S_MASK), 0xFFFFFFFF ^ TAGMASK))
    e("v_mov_b32 v%d, %s" % (V_CSQ, hx(f32(C_SQ))))
    e("v_mov_b32 v%d, %s" % (V_M15, hx(f32(C_BIAS))))
    e("v_and_b32 v9, 15, v0")
    e("v_bfe_u32 v10, v0, 4, 2")
    e("v_lshrrev_b32 v11, 1, v9")
    e("v_mul_u32_u24 v12, %d, v9" % RB)
    e("v_add_u32 v12, %s, v12" % sr(S_XB))
    e("v_xor_b32 v13, v10, v11")
    e("v_lshl_add_u32 v%d, v13, 4, v12" % V_RE)
    e("v_xor_b32 v13, 4, v13")
    e("v_lshl_add_u32 v%d, v13, 4, v12" % V_RO)
    e("v_and_b32 v9, 7, v9")
    e("v_lshrrev_b32 v11, 1, v9")
    e("v_mul_u32_u24 v12, %d, v9" % RB)
    e("v_add_u32 v12, %s, v12" % sr(S_PB))
    e("v_xor_b32 v13, v10, v11")
    e("v_lshl_add_u32 v%d, v13, 4, v12" % V_T)
    e("v_xor_b32 v13, 4, v13")
    e("v_lshl_add_u32 v%d, v13, 4, v12" % (V_T + 1))
    wait2(22, 23, "k0")
    e("s_cmp_lg_u32 %s, 0" % sr(S_CHOOSE))
    e("s_cbranch_scc1 L_notchooser")
    if prio:
        e("s_setprio 3")
    e("v_add_u32 v%d, 1, v%d" % (V_B1, V_B1))
    e("v_and_b32 v%d, 0x%x, v%d" % (V_B1, TAGMASK, V_B1))
    e("v_or_b32 v%d, 0x80000000, v%d" % (V_B1, V_B1))
    e("v_mov_b32 v%d, 0" % V_B0)
    e("s_mov_b64 exec, 1")
    e("buffer_store_dword v%d, v%d, %s, 0 offen%s" % (V_B1, V_B0, sr(SRD_DBG, 4), xm))
    e("s_mov_b64 exec, -1")
    if prio:
        e("s_setprio 0")
    e("L_notchooser:")
    read_w()
    read_frag(V_K, 0)
    wait2(16, 17, "k1")
    e("s_waitcnt lgkmcnt(6)")
    read_frag(V_K, 1)
    e("s_waitcnt lgkmcnt(6)")
    g.proj(V_K, 0, True)
    e("s_waitcnt lgkmcnt(0)")
    g.proj(V_K, 1, True)
    g.phi(0)
    g.phi(1)
    g.kv_mfma()
    g.stamp(1)
    e("s_cmp_lt_u32 %s, 4" % sr(S_WAVE))
    e("s_cbranch_scc1 L_vearly")
    if lq0:
        dma_rows(SRD_Q, 0, lq0, qm)
    e("s_waitcnt vmcnt(%d)" % lq0)
    if prio:
        e("s_setprio 3")
    e("s_cmp_lg_u32 %s, 4" % sr(S_WAVE))
    e("s_cbranch_scc1 L_vready")
    e("v_readfirstlane_b32 %s, v%d" % (sr(S_N), V_B0 + 1))
    e("s_cmp_lt_i32 %s, 0" % sr(S_N))
    e("s_cbranch_scc1 L_tagput")
    e("s_mov_b32 %s, 0x%x" % (sr(S_T2), SPIN))
    e("v_mov_b32 v%d, 0" % V_B0)
    e("L_tagspin:")
    e("buffer_load_dword v%d, v%d, %s, 0 offen sc1" % (V_B0 + 1, V_B0, sr(SRD_DBG, 4)))
    e("s_waitcnt vmcnt(0)")
    e("v_readfirstlane_b32 %s, v%d" % (sr(S_N), V_B0 + 1))
    e("s_sub_u32 %s, %s, 1" % (sr(S_T2), sr(S_T2)))
    e("s_cmp_eq_u32 %s, 0" % sr(S_T2))
    e("s_cbranch_scc1 L_tagput")
    e("s_cmp_ge_i32 %s, 0" % sr(S_N))
    e("s_cbranch_scc1 L_tagspin")
    e("L_tagput:")
    e("s_and_b32 %s, %s, 0x%x" % (sr(S_N), sr(S_N), TAGMASK))
    e("v_mov_b32 v%d, %s" % (V_B0 + 1, sr(S_N)))
    e("v_mov_b32 v%d, %d" % (V_B0, X_N))
    e("ds_write_b32 v%d, v%d" % (V_B0, V_B0 + 1))
    e("s_branch L_vready")
    e("L_vearly:")
    e("s_waitcnt vmcnt(0)")
    e("L_vready:")
    g.stamp(2)
    g.kv_tiles()
    e("v_lshlrev_b32 v%d, 4, v%d" % (V_B0, V_LANE))
    e("v_add_u32 v%d, %s, v%d" % (V_B0, sr(S_PB), V_B0))
    e("s_mov_b32 exec_lo, -1")
    e("s_mov_b32 exec_hi, 0")
    for tau in range(13):
        e("ds_write_b128 v%d, %s offset:%d" % (V_B0, vr(V_ACC + 4 * tau, 4), tau * 512))
    e("s_mov_b64 exec, -1")
    e("s_cmp_ge_u32 %s, 4" % sr(S_WAVE))
    e("s_cbranch_scc1 L_noq1")
    dma_rows(SRD_Q, 0, 12, qm)
    e("L_noq1:")
    g.stamp(10)
    if prio:
        e("s_setprio 3")
    e("v_min_u32 v%d, 415, v0" % (V_B1 + 1))
    e("v_lshlrev_b32 v%d, 4, v%d" % (V_B1, V_B1 + 1))
    e("v_add_u32 v%d, %d, v%d" % (V_B1 + 2, X_PART, V_B1))
    e("v_mov_b32 v%d, %d" % (V_B0, X_N))
    e("s_waitcnt lgkmcnt(0)")
    e("s_barrier")
    g.stamp(3)
    e("ds_read_b32 v%d, v%d" % (V_CNT, V_B0))
    for w in range(8):
        e("ds_read_b128 %s, v%d offset:%d" % (vr(V_ACC + 4 * w, 4), V_B1 + 2, w * PART_BYTES))
    for w in range(1, 8):
        e("s_waitcnt lgkmcnt(%d)" % (7 - w))
        for r in range(4):
            e("v_add_f32 v%d, v%d, v%d" % (V_ACC + r, V_ACC + r, V_ACC + 4 * w + r))
    for r in range(4):
        e("v_bfi_b32 v%d, %s, v%d, v%d" % (V_ACC + r, sr(S_MASK), V_ACC + r, V_CNT))
    e("buffer_store_dwordx4 %s, v%d, %s, %s offen%s" % (vr(V_ACC, 4), V_B1, sr(SRD_WS, 4), sr(S_PART), MODS[opts.get("pubmod", 2)]))
    g.stamp(4)
    V_N = V_B0 + 2
    e("v_mov_b32 v%d, v%d" % (V_N, V_CNT))
    e("s_cmp_lt_u32 %s, 4" % sr(S_WAVE))
    e("s_cbranch_scc1 L_noq2")
    if lq0 < 12:
        dma_rows(SRD_Q, lq0, 12, qm)
    g.table_addr(V_B1 + 1)
    if opts.get("ack", 1):
        e("s_waitcnt vmcnt(%d)" % (12 - lq0))
    e("s_branch L_q2done")
    e("L_noq2:")
    g.table_addr(V_B1 + 1)
    e("s_waitcnt vmcnt(1)")
    qproj()
    if opts.get("ack", 1):
        e("s_waitcnt vmcnt(0)")
    e("L_q2done:")
    PL = V_ACC + 4

    def payload_loads():
        e("s_mov_b32 %s, %s" % (sr(S_T0), sr(S_HPART)))
        for c in range(8):
            e("buffer_load_dwordx4 %s, v%d, %s, %s offen%s" % (vr(PL + 4 * c, 4), V_B1, sr(SRD_WS, 4), sr(S_T0), xm))
            if c < 7:
                e("s_add_u32 %s, %s, %d" % (sr(S_T0), sr(S_T0), SL))
    if opts.get("pbar", 1):
        e("s_barrier")
    e("s_mov_b32 %s, 0x%x" % (sr(S_T2), SPIN))
    if opts.get("skip7", 1):
        e("s_cmp_eq_u32 %s, 7" % sr(S_WAVE))
        e("s_cbranch_scc1 L_skip7")
    e("L_retry:")
    payload_loads()
    g.stamp(11)
    M = V_ACC + 36
    a = V_ACC
    for c in range(8):
        e("s_waitcnt vmcnt(%d)" % (7 - c))
        for r in range(4):
            e("v_xor_b32 v%d, v%d, v%d" % (PL + 4 * c + r, PL + 4 * c + r, V_N))
        if c == 0:
            e("v_or3_b32 v%d, v%d, v%d, v%d" % (M, PL, PL + 1, PL + 2))
            e("v_or_b32 v%d, v%d, v%d" % (M, M, PL + 3))
        else:
            e("v_or3_b32 v%d, v%d, v%d, v%d" % (M, M, PL + 4 * c, PL + 4 * c + 1))
            e("v_or3_b32 v%d, v%d, v%d, v%d" % (M, M, PL + 4 * c + 2, PL + 4 * c + 3))
        if c == 1:
            for r in range(4):
                e("v_add_f32 v%d, v%d, v%d" % (a + r, PL + r, PL + 4 + r))
        elif c > 1:
            for r in range(4):
                e("v_add_f32 v%d, v%d, v%d" % (a + r, a + r, PL + 4 * c + r))
    e("v_and_b32 v%d, 0x%x, v%d" % (M, TAGMASK, M))
    e("v_cmp_ne_u32 %s, 0, v%d" % (sr(S_EXEC, 2), M))
    e("s_sub_u32 %s, %s, 1" % (sr(S_T2), sr(S_T2)))
    e("s_cmp_eq_u32 %s, 0" % sr(S_T2))
    e("s_cbranch_scc1 L_got")
    e("s_cmp_lg_u64 %s, 0" % sr(S_EXEC, 2))
    e("s_cbranch_scc1 L_retry")
    e("L_got:")
    g.stamp(6)
    if opts.get("prof"):
        e("s_sub_u32 %s, 0x%x, %s" % (sr(S_T3), SPIN, sr(S_T2)))
    g.hilo_write(X_TAB)
    e("s_waitcnt lgkmcnt(0)")
    if opts.get("skip7", 1):
        e("s_branch L_C")
        e("L_skip7:")
        e("s_waitcnt vmcnt(0)")
        if opts.get("prof"):
            e("s_mov_b32 %s, 1" % sr(S_T3))
        e("L_C:")
    e("s_barrier")
    g.stamp(7)
    g.read_table(X_TAB)
    e("s_cmp_lt_u32 %s, 4" % sr(S_WAVE))
    e("s_cbranch_scc1 L_out")
    if prio and opts.get("lqlow", 1):
        e("s_setprio 0")
    e("s_waitcnt lgkmcnt(0)")
    qproj()
    e("L_out:")
    g.stamp(5)
    e("s_waitcnt lgkmcnt(0)")
    e("v_lshlrev_b32 v%d, 4, v%d" % (V_T, V_LANE))
    e("v_add_u32 v%d, %s, v%d" % (V_T, sr(S_XB), V_T))

    def out_compute(T, accbase):
        den = accbase + 48
        e("v_mfma_f32_16x16x16_bf16 %s, %s, %s, 0" % (vr(den, 4), vr(V_AT + 24, 2), vr(V_P + 2 * T, 2)))
        for t in range(12):
            e("v_mfma_f32_16x16x16_bf16 %s, %s, %s, 0" % (vr(accbase + 4 * t, 4), vr(V_AT + 2 * t, 2), vr(V_P + 2 * T, 2)))
        e("v_add_f32 v%d, %s, v%d" % (den, hx(f32(1e-6)), den))
        e("v_rcp_f32 v%d, v%d" % (den, den))
        for u in range(6):
            x = accbase + 8 * u
            for r in range(8):
                e("v_mul_f32 v%d, v%d, v%d" % (x + r, x + r, den))
            for r in range(4):
                e("v_cvt_pk_bf16_f32 v%d, v%d, v%d" % (x + r, x + 2 * r, x + 2 * r + 1))
            e("ds_write_b128 v%d, %s offset:%d" % ((V_RE, V_RO)[u & 1], vr(x, 4), T * 6144 + (u >> 1) * 128))

    def out_store(T, stg):
        for jj in range(6):
            e("ds_read_b128 %s, v%d offset:%d" % (vr(stg + 4 * jj, 4), V_T, T * 6144 + jj * 1024))
        for jj in range(6):
            e("s_waitcnt lgkmcnt(%d)" % (5 - jj))
            so = ((S_B0, S_B04), (S_B1, S_B14))[T][jj >> 2]
            e("buffer_store_dwordx4 %s, v%d, %s, %s offen offset:%d%s" % (
                vr(stg + 4 * jj, 4), V_SW + jj, sr(SRD_O, 4), sr(so), (jj & 3) * 1024, sm))
    out_compute(0, V_ACC)
    e("s_waitcnt lgkmcnt(0)")
    out_store(0, V_STG)
    out_compute(1, V_K - 4)
    e("s_waitcnt lgkmcnt(0)")
    out_store(1, V_ACC)
    g.stamp(8)
    if opts.get("prof"):
        e("s_waitcnt vmcnt(0)")
        g.stamp(9)
        e("s_getreg_b32 %s, hwreg(HW_REG_XCC_ID)" % sr(S_ST0 + 28))
        e("s_and_b32 %s, %s, 15" % (sr(S_ST0 + 28), sr(S_ST0 + 28)))
        e("s_add_u32 %s, %s, 1" % (sr(S_ST0 + 28), sr(S_ST0 + 28)))
        e("s_mov_b32 %s, 0" % sr(S_ST0 + 29))
        g.stamps.add(14)
        g.flush_stamps()
        e("v_mov_b32 v254, %s" % sr(S_T3))
        e("v_mov_b32 v255, 0")
        e("buffer_store_dwordx2 v[254:255], v253, %s, 0 offen offset:%d" % (sr(SRD_WS, 4), 15 * 8))
    e("L_end:")
    e("s_endpgm")
    txt = HEADER
    txt += "; @launch grid=(256,1,1) block=(512,1,1) lds=%d\n" % X_END
    txt += '.amdgcn_target "amdgcn-amd-amdhsa--gfx950"\n'
    txt += kernel_text(NAME + "_kernel", g)
    txt += kd(NAME + "_kernel")
    return txt


def gen_lat(opts):
    opts = dict(opts); opts["prof"] = 1
    g = Gen(opts)
    e = g
    mod = MODS[opts.get("mod", 1)]
    pm = MODS[opts.get("pmod", 2)]
    g.prologue("L_end")
    e("s_cmp_eq_u32 %s, 7" % sr(S_WAVE))
    e("s_cbranch_scc1 L_probe")
    g.stamp(0)
    if opts.get("stream", 1):
        g.load_rows(V_K, SRD_K, mod)
        g.load_rows(V_VA, SRD_V, mod)
        g.load_rows(V_Q, SRD_Q, mod)
    e("s_waitcnt vmcnt(0)")
    g.stamp(1)
    g.flush_stamps()
    e("s_endpgm")
    e("L_probe:")
    g.stamps = []
    for i in range(13):
        g.stamp(i)
        if opts.get("delay"):
            pass
        e("buffer_load_dwordx4 v[8:11], v%d, %s, 0 offen offset:%d%s" % (V_OW, sr(SRD_W, 4), 0, pm))
        e("s_waitcnt vmcnt(0)")
    g.stamp(13)
    g.flush_stamps()
    e("L_end:")
    e("s_endpgm")
    txt = HEADER
    txt += "; @launch grid=(256,1,1) block=(512,1,1) lds=0\n"
    txt += '.amdgcn_target "amdgcn-amd-amdhsa--gfx950"\n'
    txt += kernel_text(NAME + "_kernel", g)
    txt += kd(NAME + "_kernel")
    return txt


def gen_bench(opts):
    opts = dict(opts); opts["prof"] = 1
    g = Gen(opts)
    mod = {0: "", 1: " nt", 2: " sc1", 3: " sc0 sc1", 4: " sc0 sc1 nt", 5: " sc1 nt", 6: " sc0", 7: " sc0 nt"}[opts.get("mod", 0)]
    smod = {0: "", 1: " nt", 2: " sc1", 3: " sc0 sc1", 4: " sc0 sc1 nt", 5: " sc1 nt", 6: " sc0", 7: " sc0 nt"}[opts.get("smod", 0)]
    pat = opts.get("pat", 0)
    g.prologue("L_end")
    g.stamp(0)
    thr = opts.get("thr")
    if thr is not None:
        _call = Gen.__call__
        class TG(Gen):
            def __call__(self, t):
                _call(self, t)
                if t.startswith("buffer_load"):
                    _call(self, "s_waitcnt vmcnt(%d)" % (thr - 1))
        g.__class__ = TG
    g("v_lshlrev_b32 v8, 4, v%d" % V_LANE)
    g("s_add_u32 s98, %s, 4096" % sr(S_B0))
    g("s_add_u32 s99, %s, 8192" % sr(S_B0))
    def coal(vbase, srd):
        for i in range(12):
            so = (sr(S_B0), "s98", "s99")[i // 4]
            g("buffer_load_dwordx4 %s, v8, %s, %s offen offset:%d%s" % (vr(vbase + 4 * i, 4), sr(srd, 4), so, (i % 4) * 1024, mod))
    def coal_store(vbase, srd):
        for i in range(12):
            so = (sr(S_B0), "s98", "s99")[i // 4]
            g("buffer_store_dwordx4 %s, v8, %s, %s offen offset:%d%s" % (vr(vbase + 4 * i, 4), sr(srd, 4), so, (i % 4) * 1024, smod))
    def row_store(vbase, srd):
        for T in range(2):
            for t in range(6):
                g("buffer_store_dwordx4 %s, v%d, %s, %s offen offset:%d%s" % (
                    vr(vbase + 24 * T + 4 * t, 4), V_OK, sr(srd, 4), sr(S_B0 + T), 64 * t, smod))
    def dma(srd, ldsbase):
        g("s_mul_i32 s100, %s, 12288" % sr(S_WAVE))
        g("s_add_u32 s100, s100, %d" % ldsbase)
        for i in range(12):
            so = (sr(S_B0), "s98", "s99")[i // 4]
            g("s_add_u32 m0, s100, %d" % ((i // 4) * 4096))
            g("s_nop 0")
            g("buffer_load_dwordx4 v8, %s, %s offen offset:%d%s lds" % (sr(srd, 4), so, (i % 4) * 1024, mod))
    what = opts.get("what", 3)
    if pat == 3:
        if what & 1: dma(SRD_K, 0)
        what &= ~1
        pat = 0
    if opts.get("wload"):
        g.load_w()
    if what & 1:
        if pat in (0, 4): coal(V_K, SRD_K)
        else: g.load_rows(V_K, SRD_K, mod)
    if what & 2:
        if pat == 0: coal(V_VA, SRD_V)
        elif pat == 1: g.load_rows(V_VA, SRD_V, mod)
        else: g.load_v(mod)
    if what & 4:
        if pat in (0, 4): coal(V_Q, SRD_Q)
        else: g.load_rows(V_Q, SRD_Q, mod)
    g("s_waitcnt vmcnt(0)")
    g.stamp(1)
    if what & 8:
        if opts.get("spat", 0) == 0: coal_store(V_Q, SRD_O)
        else: row_store(V_Q, SRD_O)
        g.stamp(2)
        g("s_waitcnt vmcnt(0)")
        g.stamp(3)
    g.flush_stamps()
    g("L_end:")
    g("s_endpgm")
    txt = HEADER
    txt += "; @launch grid=(%d,1,1) block=(%d,1,1) lds=%d\n" % (opts.get("grid", 256), opts.get("block", 512), opts.get("lds", 0))
    txt += '.amdgcn_target "amdgcn-amd-amdhsa--gfx950"\n'
    txt += kernel_text(NAME + "_kernel", g)
    txt += kd(NAME + "_kernel", opts.get("vgpr", 256))
    return txt


if __name__ == "__main__":
    import argparse
    ap = argparse.ArgumentParser()
    ap.add_argument("variant")
    ap.add_argument("-o", default="cdna_kernels/%s.s" % NAME)
    ap.add_argument("--opt", action="append", default=[])
    a = ap.parse_args()
    opts = {}
    for kv in a.opt:
        k, _, v = kv.partition("=")
        opts[k] = (int(v, 0) if v else 1)
    txt = globals()["gen_" + a.variant](opts)
    open(a.o, "w").write(txt)
    print("wrote", a.o, len(txt))
```

```python
import os, sys
sys.path.insert(0, os.path.dirname(os.path.abspath(__file__)))
from gen import *
import gen as G

X_TAB = 0
X_N = PART_BYTES
X_PART = PART_BYTES + 128
X_XBUF = X_PART + 8 * PART_BYTES
X_END = X_XBUF + 8 * 12288

V_RE, V_RO = 2, 5
V_SW = 128
V_T = 134
V_STG = 136
S_B04, S_B14, S_XB, S_PB, S_CHOOSE = 99, 100, 101, 19, 3
S_MASK = 61
S_N = S_CNT
V_CNT = V_SS + 3
VQ = V_K
SL = PART_BYTES

HEADER8 = """; FAVOR+ random-feature linear attention (B=1, H=32, S=2048, D=192, M=8; bf16 in/out), one fused launch.
;
"""


def gen_final(opts):
    lm = MODS[opts.get("mod", 1)]
    wm = MODS[opts.get("wmod", 0)]
    sm = MODS[opts.get("smod", 2)]
    xm = MODS[2]
    prio = opts.get("prio", 1)
    SPIN = opts.get("spin", 0x4000)
    prof = opts.get("prof")
    qtail = opts.get("qtail", 0)
    S_TAIL = S_T1
    g = Gen(opts)
    e = g

    def dma_rows(srd, lo, hi, mod):
        last = None
        for j in range(lo, hi):
            T, jj = divmod(j, 6)
            grp = (T, jj >> 2)
            if grp != last:
                e("s_add_u32 m0, %s, %d" % (sr(S_XB), T * 6144 + (jj >> 2) * 4096))
                last = grp
            so = ((S_B0, S_B04), (S_B1, S_B14))[T][jj >> 2]
            e("buffer_load_dwordx4 v%d, %s, %s offen offset:%d%s lds" % (V_SW + jj, sr(srd, 4), sr(so), (jj & 3) * 1024, mod))

    def dma_w():
        e("s_mov_b32 m0, %s" % sr(S_PB))
        for jj in range(3):
            e("buffer_load_dwordx4 v%d, %s, 0 offen offset:%d%s lds" % (V_SW + jj, sr(SRD_W, 4), jj * 1024, wm))

    def read_frag(vbase, T):
        for t in range(6):
            e("ds_read_b128 %s, v%d offset:%d" % (vr(vbase + 24 * T + 4 * t, 4), (V_RE, V_RO)[t & 1], T * 6144 + (t >> 1) * 128))

    def read_w():
        for t in range(6):
            e("ds_read_b128 %s, v%d offset:%d" % (vr(V_W + 4 * t, 4), V_T + (t & 1), (t >> 1) * 128))

    def wait_tagwave(n_plain, tag):
        e("s_cmp_eq_u32 %s, 4" % sr(S_WAVE))
        e("s_cbranch_scc1 L_w4_%s" % tag)
        e("s_waitcnt vmcnt(%d)" % n_plain)
        e("s_branch L_wd_%s" % tag)
        e("L_w4_%s:" % tag)
        e("s_waitcnt vmcnt(%d)" % (n_plain + 1))
        e("L_wd_%s:" % tag)

    if prof:
        e("s_memrealtime s[96:97]")
    e("s_cmp_ge_u32 s2, 256")
    e("s_cbranch_scc1 L_end")
    for srd_, off in ((SRD_K, 8), (SRD_W, 24), (SRD_V, 16), (SRD_WS, 48), (SRD_DBG, 40), (SRD_Q, 0), (SRD_O, 32)):
        e("s_load_dwordx2 %s, s[0:1], %d" % (sr(srd_, 2), off))
    cpf = opts.get("cpf", 1)
    if cpf:
        e("s_getpc_b64 s[92:93]")
        e("L_pc:")
        e("v_lshlrev_b32 v11, 7, v0")
        e("v_min_u32 v12, L_end-L_pc, v11")
        e("v_cmp_gt_u32 vcc, 64, v0")
        e("s_and_saveexec_b64 s[94:95], vcc")
        e("s_cbranch_execz L_nocpf")
        e("global_load_dword v254, v12, s[92:93]")
        e("L_nocpf:")
        e("s_mov_b64 exec, s[94:95]")
    e("v_and_b32 v%d, 63, v0" % V_LANE)
    e("v_lshrrev_b32 v8, 6, v0")
    e("v_add_u32 v11, 0, v%d" % V_LANE)
    G_first = True
    e("v_readfirstlane_b32 %s, v8" % sr(S_WAVE))
    e.L.pop(-2)
    for jj in range(6):
        if jj:
            e("v_add_u32 v11, %d, v%d" % (64 * jj, V_LANE))
            e("v_mul_u32_u24 v11, 1366, v11")
        else:
            e("v_mul_u32_u24 v11, 1366, v%d" % V_LANE)
        e("v_lshrrev_b32 v11, 16, v11")
        e("v_xor_b32 v11, v11, v%d" % V_LANE)
        e("v_lshlrev_b32 v%d, 4, v11" % (V_SW + jj))
    e("s_and_b32 %s, s2, 7" % sr(S_T0))
    e("s_lshr_b32 %s, s2, 6" % sr(S_T1))
    e("s_lshl_b32 %s, %s, 3" % (sr(S_T1), sr(S_T1)))
    e("s_or_b32 %s, %s, %s" % (sr(S_H), sr(S_T0), sr(S_T1)))
    e("s_bfe_u32 %s, s2, 0x30003" % sr(S_C))
    e("s_mul_i32 %s, %s, %d" % (sr(S_T0), sr(S_H), 2048 * RB))
    e("s_mul_i32 %s, %s, %d" % (sr(S_T1), sr(S_C), 256 * RB))
    e("s_add_u32 %s, %s, %s" % (sr(S_T0), sr(S_T0), sr(S_T1)))
    e("s_mul_i32 %s, %s, %d" % (sr(S_XB), sr(S_WAVE), 32 * RB))
    e("s_add_u32 %s, %s, %s" % (sr(S_B0), sr(S_T0), sr(S_XB)))
    e("s_add_u32 %s, %s, %d" % (sr(S_XB), sr(S_XB), X_XBUF))
    e("s_add_u32 %s, %s, %d" % (sr(S_B1), sr(S_B0), 16 * RB))
    e("s_add_u32 %s, %s, 4096" % (sr(S_B04), sr(S_B0)))
    e("s_add_u32 %s, %s, 4096" % (sr(S_B14), sr(S_B1)))
    e("s_mul_i32 %s, %s, %d" % (sr(S_PB), sr(S_WAVE), PART_BYTES))
    e("s_add_u32 %s, %s, %d" % (sr(S_PB), sr(S_PB), X_PART))
    e("s_or_b32 %s, %s, %s" % (sr(S_CHOOSE), sr(S_H), sr(S_C)))
    e("s_or_b32 %s, %s, %s" % (sr(S_CHOOSE), sr(S_CHOOSE), sr(S_WAVE)))
    for srd_, nbytes in ((SRD_K, TENSOR_BYTES), (SRD_W, 8 * RB), (SRD_V, TENSOR_BYTES), (SRD_WS, WS_BYTES),
                         (SRD_DBG, 256), (SRD_Q, TENSOR_BYTES), (SRD_O, TENSOR_BYTES)):
        e("s_mov_b32 %s, 0x%x" % (sr(srd_ + 2), nbytes))
        e("s_mov_b32 %s, 0x20000" % sr(srd_ + 3))
    if prio:
        e("s_setprio 3")
    if prof:
        e("s_lshl_b32 %s, s2, 3" % sr(S_PROF))
        e("s_add_u32 %s, %s, %s" % (sr(S_PROF), sr(S_PROF), sr(S_WAVE)))
        e("s_lshl_b32 %s, %s, 7" % (sr(S_PROF), sr(S_PROF)))
        e("s_add_u32 %s, %s, 0x%x" % (sr(S_PROF), sr(S_PROF), 128 << 20))
        for i_ in range(12):
            e("s_mov_b64 %s, 0" % sr(S_ST0 + 2 * i_, 2))
    e("s_waitcnt lgkmcnt(0)")
    if prof:
        e("s_mov_b64 s[90:91], 0")
        g.stamps = set([12])
    g.stamp(0)
    if prof:
        e("s_mov_b64 %s, s[96:97]" % sr(S_ST0 + 24, 2))
    e("v_mov_b32 v%d, 0" % V_B0)
    e("v_and_b32 v9, 15, v0")
    e("v_bfe_u32 v10, v0, 4, 2")

    def kv_stream(sfx, thr):
        mark = len(g.L)
        dma_rows(SRD_K, 0, 6, lm)
        dma_w()
        e("s_cmp_lg_u32 %s, 0" % sr(S_CHOOSE))
        e("s_cbranch_scc1 L_nochoose%s" % sfx)
        e("buffer_load_dword v%d, v%d, %s, 0 offen%s" % (V_B1, V_B0, sr(SRD_WS, 4), xm))
        e("L_nochoose%s:" % sfx)
        dma_rows(SRD_K, 6, 12, lm)
        e("v_mul_u32_u24 v13, %d, v10" % (4 * RB))
        e("v_lshlrev_b32 v14, 4, v9")
        e("v_add_u32 v%d, v13, v14" % V_OVA)
        e("v_lshlrev_b32 v14, 3, v9")
        e("v_add_u32 v13, 256, v13")
        e("v_add_u32 v%d, v13, v14" % V_OVB)
        g.load_v(lm)
        if thr:
            body = g.L[mark:]
            del g.L[mark:]
            n = 0
            for l in body:
                g.L.append(l)
                if "buffer_load" in l and "sc1" not in l:
                    n += 1
                    if n >= thr:
                        g.L.append("    s_waitcnt vmcnt(%d)" % (thr - 1))
    evthr = opts.get("evthr", 0)
    tab = opts.get("thrtab")
    if tab is None:
        tab = [evthr if (x & 1) == opts.get("evpar", 0) else 0 for x in range(8)]
    levels = sorted(set(tab))
    if levels != [0]:
        e("s_getreg_b32 %s, hwreg(HW_REG_XCC_ID, 0, 3)" % sr(S_T0))
        e("s_lshl_b32 %s, 1, %s" % (sr(S_T0), sr(S_T0)))
        for lv in levels[1:]:
            mask = sum(1 << x for x in range(8) if tab[x] == lv)
            e("s_and_b32 %s, %s, 0x%x" % (sr(S_T1), sr(S_T0), mask))
            e("s_cbranch_scc1 L_thr%d" % lv)
        kv_stream("L%d" % levels[0], levels[0])
        e("s_branch L_kvdone")
        for n_, lv in enumerate(levels[1:]):
            e("L_thr%d:" % lv)
            kv_stream("L%d" % lv, lv)
            if n_ < len(levels) - 2:
                e("s_branch L_kvdone")
        e("L_kvdone:")
    else:
        kv_stream("", 0)
    e("s_cmp_lg_u32 %s, 4" % sr(S_WAVE))
    e("s_cbranch_scc1 L_issued")
    e("buffer_load_dword v%d, v%d, %s, 0 offen sc1" % (V_B0 + 1, V_B0, sr(SRD_DBG, 4)))
    e("L_issued:")
    tlbpf = opts.get("tlbpf", 0)
    if prio:
        e("s_setprio 0")
    e("s_mul_i32 %s, %s, %d" % (sr(S_HPART), sr(S_H), 8 * SL))
    e("s_mul_i32 %s, %s, %d" % (sr(S_T1), sr(S_C), SL))
    e("s_add_u32 %s, %s, %s" % (sr(S_PART), sr(S_HPART), sr(S_T1)))
    e("s_mov_b32 %s, 0x05040100" % sr(S_SELLO))
    e("s_mov_b32 %s, 0x07060302" % sr(S_SELHI))
    e("s_mov_b32 %s, %s" % (sr(S_CEXP), hx(f32(C_EXP))))
    e("s_mov_b32 %s, 0x%x" % (sr(S_MASK), 0xFFFFFFFF ^ TAGMASK))
    e("v_mov_b32 v%d, %s" % (V_CSQ, hx(f32(C_SQ))))
    e("v_mov_b32 v%d, %s" % (V_M15, hx(f32(C_BIAS))))
    e("v_lshrrev_b32 v11, 1, v9")
    e("v_mul_u32_u24 v12, %d, v9" % RB)
    e("v_add_u32 v12, %s, v12" % sr(S_XB))
    e("v_xor_b32 v13, v10, v11")
    e("v_lshl_add_u32 v%d, v13, 4, v12" % V_RE)
    e("v_xor_b32 v13, 4, v13")
    e("v_lshl_add_u32 v%d, v13, 4, v12" % V_RO)
    e("v_and_b32 v9, 7, v9")
    e("v_lshrrev_b32 v11, 1, v9")
    e("v_mul_u32_u24 v12, %d, v9" % RB)
    e("v_add_u32 v12, %s, v12" % sr(S_PB))
    e("v_xor_b32 v13, v10, v11")
    e("v_lshl_add_u32 v%d, v13, 4, v12" % V_T)
    e("v_xor_b32 v13, 4, v13")
    e("v_lshl_add_u32 v%d, v13, 4, v12" % (V_T + 1))
    wait_tagwave(22, "k0")
    read_w()
    read_frag(V_K, 0)
    wait_tagwave(16, "k1")
    e("s_cmp_lg_u32 %s, 0" % sr(S_CHOOSE))
    e("s_cbranch_scc1 L_notchooser")
    if prio:
        e("s_setprio 3")
    e("v_add_u32 v%d, 1, v%d" % (V_B1, V_B1))
    e("v_and_b32 v%d, 0x%x, v%d" % (V_B1, TAGMASK, V_B1))
    e("v_or_b32 v%d, 0x80000000, v%d" % (V_B1, V_B1))
    e("s_mov_b64 exec, 1")
    e("buffer_store_dword v%d, v%d, %s, 0 offen%s" % (V_B1, V_B0, sr(SRD_DBG, 4), xm))
    e("s_mov_b64 exec, -1")
    if prio:
        e("s_setprio 0")
    e("L_notchooser:")
    e("s_waitcnt lgkmcnt(6)")
    read_frag(V_K, 1)
    e("s_waitcnt lgkmcnt(6)")
    g.proj(V_K, 0, True)
    e("s_waitcnt lgkmcnt(0)")
    g.proj(V_K, 1, True)
    g.phi(0)
    g.phi(1)
    g.kv_mfma()
    g.stamp(1)
    e("s_waitcnt vmcnt(0)")
    e("s_cmp_lt_u32 %s, 4" % sr(S_WAVE))
    e("s_cbranch_scc1 L_vready")
    if prio:
        e("s_setprio 3")
    e("s_cmp_lg_u32 %s, 4" % sr(S_WAVE))
    e("s_cbranch_scc1 L_vready")
    e("v_readfirstlane_b32 %s, v%d" % (sr(S_N), V_B0 + 1))
    e("s_cmp_lt_i32 %s, 0" % sr(S_N))
    e("s_cbranch_scc1 L_tagput")
    e("s_mov_b32 %s, 0x%x" % (sr(S_T2), SPIN))
    e("L_tagspin:")
    e("buffer_load_dword v%d, v%d, %s, 0 offen sc1" % (V_B0 + 1, V_B0, sr(SRD_DBG, 4)))
    e("s_waitcnt vmcnt(0)")
    e("v_readfirstlane_b32 %s, v%d" % (sr(S_N), V_B0 + 1))
    e("s_sub_u32 %s, %s, 1" % (sr(S_T2), sr(S_T2)))
    e("s_cmp_eq_u32 %s, 0" % sr(S_T2))
    e("s_cbranch_scc1 L_tagput")
    e("s_cmp_ge_i32 %s, 0" % sr(S_N))
    e("s_cbranch_scc1 L_tagspin")
    e("L_tagput:")
    e("s_and_b32 %s, %s, 0x%x" % (sr(S_N), sr(S_N), TAGMASK))
    e("v_mov_b32 v%d, %s" % (V_B0 + 1, sr(S_N)))
    e("v_mov_b32 v%d, %d" % (V_B0, X_N))
    e("ds_write_b32 v%d, v%d" % (V_B0, V_B0 + 1))
    e("L_vready:")
    g.stamp(2)
    g.kv_tiles()
    e("v_lshlrev_b32 v%d, 4, v%d" % (V_B0, V_LANE))
    e("v_add_u32 v%d, %s, v%d" % (V_B0, sr(S_PB), V_B0))
    e("s_mov_b32 exec_lo, -1")
    e("s_mov_b32 exec_hi, 0")
    for tau in range(13):
        e("ds_write_b128 v%d, %s offset:%d" % (V_B0, vr(V_ACC + 4 * tau, 4), tau * 512))
    e("s_mov_b64 exec, -1")
    e("s_cmp_ge_u32 %s, 4" % sr(S_WAVE))
    e("s_cbranch_scc1 L_noq1")
    if tlbpf:
        e("s_cmp_lg_u32 %s, %d" % (sr(S_WAVE), opts.get("tlbw", 1)))
        e("s_cbranch_scc1 L_notlb")
        e("v_mov_b32 v%d, 0" % (V_STG + 2))
        if tlbpf & 1:
            e("buffer_load_dword v%d, v%d, %s, %s offen nt" % (V_STG, V_STG + 2, sr(SRD_O, 4), sr(S_B0)))
        if tlbpf & 2:
            e("buffer_load_dword v%d, v%d, %s, %s offen nt" % (V_STG + 1, V_STG + 2, sr(SRD_WS, 4), sr(S_PART)))
        e("L_notlb:")
    dma_rows(SRD_Q, 0, 12, lm)
    e("L_noq1:")
    g.stamp(10)
    if prio:
        e("s_setprio 3")
    e("v_min_u32 v%d, 415, v0" % (V_B1 + 1))
    e("v_lshlrev_b32 v%d, 4, v%d" % (V_B1, V_B1 + 1))
    e("v_add_u32 v%d, %d, v%d" % (V_B1 + 2, X_PART, V_B1))
    e("v_mov_b32 v%d, %d" % (V_B0, X_N))
    e("s_waitcnt lgkmcnt(0)")
    e("s_barrier")
    g.stamp(3)
    e("ds_read_b32 v%d, v%d" % (V_CNT, V_B0))
    for w in range(8):
        e("ds_read_b128 %s, v%d offset:%d" % (vr(V_ACC + 4 * w, 4), V_B1 + 2, w * PART_BYTES))
    for w in range(1, 8):
        e("s_waitcnt lgkmcnt(%d)" % (7 - w))
        for r in range(4):
            e("v_add_f32 v%d, v%d, v%d" % (V_ACC + r, V_ACC + r, V_ACC + 4 * w + r))
    for r in range(4):
        e("v_bfi_b32 v%d, %s, v%d, v%d" % (V_ACC + r, sr(S_MASK), V_ACC + r, V_CNT))
    e("buffer_store_dwordx4 %s, v%d, %s, %s offen%s" % (vr(V_ACC, 4), V_B1, sr(SRD_WS, 4), sr(S_PART), xm))
    g.stamp(4)
    V_N = V_B0 + 2
    e("v_mov_b32 v%d, v%d" % (V_N, V_CNT))
    e("s_cmp_lt_u32 %s, 4" % sr(S_WAVE))
    e("s_cbranch_scc1 L_early")
    dma_rows(SRD_Q, 0, 12 - qtail, lm)
    g.table_addr(V_B1 + 1)
    e("s_waitcnt vmcnt(%d)" % (12 - qtail))
    e("s_branch L_pbar")
    e("L_early:")
    g.table_addr(V_B1 + 1)
    e("s_waitcnt vmcnt(1)")
    e("L_qproj:")
    read_frag(VQ, 0)
    read_frag(VQ, 1)
    e("s_waitcnt lgkmcnt(6)")
    g.proj(VQ, 0, False)
    g.phi(0)
    g.pack_phi_q(0)
    e("s_waitcnt lgkmcnt(0)")
    g.proj(VQ, 1, False)
    g.phi(1)
    g.pack_phi_q(1)
    e("s_cmp_ge_u32 %s, 4" % sr(S_WAVE))
    e("s_cbranch_scc1 L_out")
    e("s_waitcnt vmcnt(0)")
    e("L_pbar:")
    e("s_barrier")
    PL = V_ACC + 4
    M = V_ACC + 36
    a = V_ACC
    e("s_mov_b32 %s, 0x%x" % (sr(S_T2), SPIN))
    e("s_mov_b32 %s, 0" % sr(S_TAIL))
    e("s_cmp_eq_u32 %s, 7" % sr(S_WAVE))
    e("s_cbranch_scc1 L_skip7")

    def gather_loads():
        e("s_mov_b32 %s, %s" % (sr(S_T0), sr(S_HPART)))
        for c in range(8):
            e("buffer_load_dwordx4 %s, v%d, %s, %s offen%s" % (vr(PL + 4 * c, 4), V_B1, sr(SRD_WS, 4), sr(S_T0), xm))
            if c < 7:
                e("s_add_u32 %s, %s, %d" % (sr(S_T0), sr(S_T0), SL))

    def slot(c):
        for r in range(4):
            e("v_xor_b32 v%d, v%d, v%d" % (PL + 4 * c + r, PL + 4 * c + r, V_N))
        if c == 0:
            e("v_or3_b32 v%d, v%d, v%d, v%d" % (M, PL, PL + 1, PL + 2))
            e("v_or_b32 v%d, v%d, v%d" % (M, M, PL + 3))
        else:
            e("v_or3_b32 v%d, v%d, v%d, v%d" % (M, M, PL + 4 * c, PL + 4 * c + 1))
            e("v_or3_b32 v%d, v%d, v%d, v%d" % (M, M, PL + 4 * c + 2, PL + 4 * c + 3))
        if c == 1:
            for r in range(4):
                e("v_add_f32 v%d, v%d, v%d" % (a + r, PL + r, PL + 4 + r))
        elif c > 1:
            for r in range(4):
                e("v_add_f32 v%d, v%d, v%d" % (a + r, a + r, PL + 4 * c + r))
    if qtail == 0:
        e("L_retry:")
        gather_loads()
        g.stamp(11)
        for c in range(8):
            e("s_waitcnt vmcnt(%d)" % (7 - c))
            slot(c)
    else:
        gather_loads()
        e("s_cmp_lt_u32 %s, 4" % sr(S_WAVE))
        e("s_cbranch_scc1 L_gwait")
        dma_rows(SRD_Q, 12 - qtail, 12, lm)
        e("s_mov_b32 %s, 1" % sr(S_TAIL))
        e("s_branch L_gwait")
        e("L_retry:")
        e("s_mov_b32 %s, 0" % sr(S_TAIL))
        gather_loads()
        e("L_gwait:")
        g.stamp(11)
        for half in range(2):
            n = 4 - 4 * half
            e("s_cmp_eq_u32 %s, 0" % sr(S_TAIL))
            e("s_cbranch_scc1 L_gw%d" % half)
            e("s_waitcnt vmcnt(%d)" % (n + qtail))
            e("s_branch L_gd%d" % half)
            e("L_gw%d:" % half)
            e("s_waitcnt vmcnt(%d)" % n)
            e("L_gd%d:" % half)
            for c in range(4 * half, 4 * half + 4):
                slot(c)
    e("v_and_b32 v%d, 0x%x, v%d" % (M, TAGMASK, M))
    e("v_cmp_ne_u32 %s, 0, v%d" % (sr(S_EXEC, 2), M))
    e("s_sub_u32 %s, %s, 1" % (sr(S_T2), sr(S_T2)))
    e("s_cmp_eq_u32 %s, 0" % sr(S_T2))
    e("s_cbranch_scc1 L_got")
    e("s_cmp_lg_u64 %s, 0" % sr(S_EXEC, 2))
    e("s_cbranch_scc1 L_retry")
    e("L_got:")
    g.stamp(6)
    if prof:
        e("s_sub_u32 %s, 0x%x, %s" % (sr(S_T3), SPIN, sr(S_T2)))
    g.hilo_write(X_TAB)
    e("s_waitcnt lgkmcnt(0)")
    e("s_branch L_C")
    e("L_skip7:")
    if qtail:
        dma_rows(SRD_Q, 12 - qtail, 12, lm)
    e("s_waitcnt vmcnt(0)")
    if prof:
        e("s_mov_b32 %s, 1" % sr(S_T3))
    e("L_C:")
    e("s_barrier")
    g.stamp(7)
    g.read_table(X_TAB)
    e("s_cmp_lt_u32 %s, 4" % sr(S_WAVE))
    e("s_cbranch_scc1 L_out")
    if prio:
        e("s_setprio 0")
    e("s_waitcnt vmcnt(0) lgkmcnt(0)")
    e("s_branch L_qproj")
    e("L_out:")
    g.stamp(5)
    e("s_waitcnt lgkmcnt(0)")
    e("v_lshlrev_b32 v%d, 4, v%d" % (V_T, V_LANE))
    e("v_add_u32 v%d, %s, v%d" % (V_T, sr(S_XB), V_T))

    def out_compute(T, accbase):
        den = accbase + 48
        e("v_mfma_f32_16x16x16_bf16 %s, %s, %s, 0" % (vr(den, 4), vr(V_AT + 24, 2), vr(V_P + 2 * T, 2)))
        for t in range(12):
            e("v_mfma_f32_16x16x16_bf16 %s, %s, %s, 0" % (vr(accbase + 4 * t, 4), vr(V_AT + 2 * t, 2), vr(V_P + 2 * T, 2)))
        e("v_add_f32 v%d, %s, v%d" % (den, hx(f32(1e-6)), den))
        e("v_rcp_f32 v%d, v%d" % (den, den))
        for u in range(6):
            x = accbase + 8 * u
            for r in range(8):
                e("v_mul_f32 v%d, v%d, v%d" % (x + r, x + r, den))
            for r in range(4):
                e("v_cvt_pk_bf16_f32 v%d, v%d, v%d" % (x + r, x + 2 * r, x + 2 * r + 1))
            e("ds_write_b128 v%d, %s offset:%d" % ((V_RE, V_RO)[u & 1], vr(x, 4), T * 6144 + (u >> 1) * 128))

    def out_store(T, stg):
        for jj in range(6):
            e("ds_read_b128 %s, v%d offset:%d" % (vr(stg + 4 * jj, 4), V_T, T * 6144 + jj * 1024))
        for jj in range(6):
            e("s_waitcnt lgkmcnt(%d)" % (5 - jj))
            so = ((S_B0, S_B04), (S_B1, S_B14))[T][jj >> 2]
            e("buffer_store_dwordx4 %s, v%d, %s, %s offen offset:%d%s" % (
                vr(stg + 4 * jj, 4), V_SW + jj, sr(SRD_O, 4), sr(so), (jj & 3) * 1024, sm))
    out_compute(0, V_ACC)
    e("s_waitcnt lgkmcnt(0)")
    out_store(0, V_STG)
    out_compute(1, V_K - 4)
    e("s_waitcnt lgkmcnt(0)")
    out_store(1, V_ACC)
    g.stamp(8)
    if prof:
        e("s_waitcnt vmcnt(0)")
        g.stamp(9)
        e("s_getreg_b32 %s, hwreg(HW_REG_XCC_ID)" % sr(S_ST0 + 28))
        e("s_and_b32 %s, %s, 15" % (sr(S_ST0 + 28), sr(S_ST0 + 28)))
        e("s_add_u32 %s, %s, 1" % (sr(S_ST0 + 28), sr(S_ST0 + 28)))
        e("s_mov_b32 %s, 0" % sr(S_ST0 + 29))
        g.stamps.add(14)
        g.flush_stamps()
        e("v_mov_b32 v254, %s" % sr(S_T3))
        e("v_mov_b32 v255, 0")
        e("buffer_store_dwordx2 v[254:255], v253, %s, 0 offen offset:%d" % (sr(SRD_WS, 4), 15 * 8))
    e("L_end:")
    e("s_endpgm")
    txt = HEADER8
    txt += "; @launch grid=(256,1,1) block=(512,1,1) lds=%d\n" % X_END
    txt += '.amdgcn_target "amdgcn-amd-amdhsa--gfx950"\n'
    txt += kernel_text(NAME + "_kernel", g)
    txt += kd(NAME + "_kernel")
    return txt


if __name__ == "__main__":
    import argparse
    ap = argparse.ArgumentParser()
    ap.add_argument("-o", default="cdna_kernels/%s.s" % NAME)
    ap.add_argument("--opt", action="append", default=[])
    a = ap.parse_args()
    opts = {}
    for kv in a.opt:
        k, _, v = kv.partition("=")
        opts[k] = ([int(x) for x in v.split(",")] if "," in v else (int(v, 0) if v else 1))
    txt = gen_final(opts)
    open(a.o, "w").write(txt)
    print("wrote", a.o, len(txt))
```

```python
import os, sys
sys.path.insert(0, os.path.dirname(os.path.abspath(__file__)))
from gen import *
import gen as G

X_TAB = 0
X_N = PART_BYTES
X_PART = PART_BYTES + 128
X_XBUF = X_PART + 8 * PART_BYTES
X_END = X_XBUF + 8 * 12288

V_RE, V_RO = 2, 5
V_SW = 128
V_T = 134
V_STG = 136
S_B04, S_B14, S_XB, S_PB, S_CHOOSE = 99, 100, 101, 19, 3
S_MASK = 61
S_N = S_CNT
V_CNT = V_SS + 3
VQ = V_K
SL = PART_BYTES

HEADER8 = """; FAVOR+ random-feature linear attention (B=1, H=32, S=2048, D=192, M=8; bf16 in/out), one fused launch.
;
"""


def gen_final(opts):
    lm = MODS[opts.get("mod", 1)]
    wm = MODS[opts.get("wmod", 0)]
    sm = MODS[opts.get("smod", 2)]
    xm = MODS[2]
    prio = opts.get("prio", 1)
    SPIN = opts.get("spin", 0x4000)
    prof = opts.get("prof")
    qtail = opts.get("qtail", 0)
    S_TAIL = S_T1
    g = Gen(opts)
    e = g

    def dma_rows(srd, lo, hi, mod):
        last = None
        for j in range(lo, hi):
            T, jj = divmod(j, 6)
            grp = (T, jj >> 2)
            if grp != last:
                e("s_add_u32 m0, %s, %d" % (sr(S_XB), T * 6144 + (jj >> 2) * 4096))
                last = grp
            so = ((S_B0, S_B04), (S_B1, S_B14))[T][jj >> 2]
            e("buffer_load_dwordx4 v%d, %s, %s offen offset:%d%s lds" % (V_SW + jj, sr(srd, 4), sr(so), (jj & 3) * 1024, mod))

    def dma_w():
        e("s_mov_b32 m0, %s" % sr(S_PB))
        for jj in range(3):
            e("buffer_load_dwordx4 v%d, %s, 0 offen offset:%d%s lds" % (V_SW + jj, sr(SRD_W, 4), jj * 1024, wm))

    def read_frag(vbase, T):
        for t in range(6):
            e("ds_read_b128 %s, v%d offset:%d" % (vr(vbase + 24 * T + 4 * t, 4), (V_RE, V_RO)[t & 1], T * 6144 + (t >> 1) * 128))

    def read_w():
        for t in range(6):
            e("ds_read_b128 %s, v%d offset:%d" % (vr(V_W + 4 * t, 4), V_T + (t & 1), (t >> 1) * 128))

    def wait_tagwave(n_plain, tag):
        e("s_cmp_eq_u32 %s, 4" % sr(S_WAVE))
        e("s_cbranch_scc1 L_w4_%s" % tag)
        e("s_waitcnt vmcnt(%d)" % n_plain)
        e("s_branch L_wd_%s" % tag)
        e("L_w4_%s:" % tag)
        e("s_waitcnt vmcnt(%d)" % (n_plain + 1))
        e("L_wd_%s:" % tag)

    if prof:
        e("s_memrealtime s[96:97]")
    e("s_cmp_ge_u32 s2, 256")
    e("s_cbranch_scc1 L_end")
    for srd_, off in ((SRD_K, 8), (SRD_W, 24), (SRD_V, 16), (SRD_WS, 48), (SRD_DBG, 40), (SRD_Q, 0), (SRD_O, 32)):
        e("s_load_dwordx2 %s, s[0:1], %d" % (sr(srd_, 2), off))
    cpf = opts.get("cpf", 1)
    if cpf:
        e("s_getpc_b64 s[92:93]")
        e("L_pc:")
        e("v_lshlrev_b32 v11, 7, v0")
        e("v_min_u32 v12, L_end-L_pc, v11")
        e("v_cmp_gt_u32 vcc, 64, v0")
        e("s_and_saveexec_b64 s[94:95], vcc")
        e("s_cbranch_execz L_nocpf")
        e("global_load_dword v254, v12, s[92:93]")
        e("L_nocpf:")
        e("s_mov_b64 exec, s[94:95]")
    e("v_and_b32 v%d, 63, v0" % V_LANE)
    e("v_lshrrev_b32 v8, 6, v0")
    e("v_mul_u32_u24 v11, 1366, v%d" % V_LANE)
    e("v_readfirstlane_b32 %s, v8" % sr(S_WAVE))
    for jj in range(6):
        if jj:
            e("v_add_u32 v11, %d, v%d" % (64 * jj, V_LANE))
            e("v_mul_u32_u24 v11, 1366, v11")
        e("v_lshrrev_b32 v11, 16, v11")
        e("v_xor_b32 v11, v11, v%d" % V_LANE)
        e("v_lshlrev_b32 v%d, 4, v11" % (V_SW + jj))
    e("s_and_b32 %s, s2, 7" % sr(S_T0))
    e("s_lshr_b32 %s, s2, 6" % sr(S_T1))
    e("s_lshl_b32 %s, %s, 3" % (sr(S_T1), sr(S_T1)))
    e("s_or_b32 %s, %s, %s" % (sr(S_H), sr(S_T0), sr(S_T1)))
    e("s_bfe_u32 %s, s2, 0x30003" % sr(S_C))
    e("s_mul_i32 %s, %s, %d" % (sr(S_T0), sr(S_H), 2048 * RB))
    e("s_mul_i32 %s, %s, %d" % (sr(S_T1), sr(S_C), 256 * RB))
    e("s_add_u32 %s, %s, %s" % (sr(S_T0), sr(S_T0), sr(S_T1)))
    e("s_mul_i32 %s, %s, %d" % (sr(S_XB), sr(S_WAVE), 32 * RB))
    e("s_add_u32 %s, %s, %s" % (sr(S_B0), sr(S_T0), sr(S_XB)))
    e("s_add_u32 %s, %s, %d" % (sr(S_XB), sr(S_XB), X_XBUF))
    e("s_add_u32 %s, %s, %d" % (sr(S_B1), sr(S_B0), 16 * RB))
    e("s_add_u32 %s, %s, 4096" % (sr(S_B04), sr(S_B0)))
    e("s_add_u32 %s, %s, 4096" % (sr(S_B14), sr(S_B1)))
    e("s_mul_i32 %s, %s, %d" % (sr(S_PB), sr(S_WAVE), PART_BYTES))
    e("s_add_u32 %s, %s, %d" % (sr(S_PB), sr(S_PB), X_PART))
    e("s_or_b32 %s, %s, %s" % (sr(S_CHOOSE), sr(S_H), sr(S_C)))
    e("s_or_b32 %s, %s, %s" % (sr(S_CHOOSE), sr(S_CHOOSE), sr(S_WAVE)))
    for srd_, nbytes in ((SRD_K, TENSOR_BYTES), (SRD_W, 8 * RB), (SRD_V, TENSOR_BYTES), (SRD_WS, WS_BYTES),
                         (SRD_DBG, 256), (SRD_Q, TENSOR_BYTES), (SRD_O, TENSOR_BYTES)):
        e("s_mov_b32 %s, 0x%x" % (sr(srd_ + 2), nbytes))
        e("s_mov_b32 %s, 0x20000" % sr(srd_ + 3))
    if prio:
        e("s_setprio 3")
    if prof:
        e("s_lshl_b32 %s, s2, 3" % sr(S_PROF))
        e("s_add_u32 %s, %s, %s" % (sr(S_PROF), sr(S_PROF), sr(S_WAVE)))
        e("s_lshl_b32 %s, %s, 7" % (sr(S_PROF), sr(S_PROF)))
        e("s_add_u32 %s, %s, 0x%x" % (sr(S_PROF), sr(S_PROF), 128 << 20))
        for i_ in range(12):
            e("s_mov_b64 %s, 0" % sr(S_ST0 + 2 * i_, 2))
    e("s_waitcnt lgkmcnt(0)")
    if prof:
        e("s_mov_b64 s[90:91], 0")
        g.stamps = set([12])
    g.stamp(0)
    if prof:
        e("s_mov_b64 %s, s[96:97]" % sr(S_ST0 + 24, 2))
    e("v_mov_b32 v%d, 0" % V_B0)
    e("v_and_b32 v9, 15, v0")
    e("v_bfe_u32 v10, v0, 4, 2")

    def kv_stream(sfx, thr):
        mark = len(g.L)
        dma_rows(SRD_K, 0, 6, lm)
        dma_w()
        e("s_cmp_lg_u32 %s, 0" % sr(S_CHOOSE))
        e("s_cbranch_scc1 L_nochoose%s" % sfx)
        e("buffer_load_dword v%d, v%d, %s, 0 offen%s" % (V_B1, V_B0, sr(SRD_WS, 4), xm))
        e("L_nochoose%s:" % sfx)
        dma_rows(SRD_K, 6, 12, lm)
        e("v_mul_u32_u24 v13, %d, v10" % (4 * RB))
        e("v_lshlrev_b32 v14, 4, v9")
        e("v_add_u32 v%d, v13, v14" % V_OVA)
        e("v_lshlrev_b32 v14, 3, v9")
        e("v_add_u32 v13, 256, v13")
        e("v_add_u32 v%d, v13, v14" % V_OVB)
        g.load_v(lm)
        if thr:
            body = g.L[mark:]
            del g.L[mark:]
            n = 0
            for l in body:
                g.L.append(l)
                if "buffer_load" in l and "sc1" not in l:
                    n += 1
                    if n >= thr:
                        g.L.append("    s_waitcnt vmcnt(%d)" % (thr - 1))
    evthr = opts.get("evthr", 12)
    tab = opts.get("thrtab")
    if tab is None:
        tab = [evthr if (x & 1) == opts.get("evpar", 0) else 0 for x in range(8)]
    levels = sorted(set(tab))
    if levels != [0]:
        e("s_getreg_b32 %s, hwreg(HW_REG_XCC_ID, 0, 3)" % sr(S_T0))
        e("s_lshl_b32 %s, 1, %s" % (sr(S_T0), sr(S_T0)))
        for lv in levels[1:]:
            mask = sum(1 << x for x in range(8) if tab[x] == lv)
            e("s_and_b32 %s, %s, 0x%x" % (sr(S_T1), sr(S_T0), mask))
            e("s_cbranch_scc1 L_thr%d" % lv)
        kv_stream("L%d" % levels[0], levels[0])
        e("s_branch L_kvdone")
        for n_, lv in enumerate(levels[1:]):
            e("L_thr%d:" % lv)
            kv_stream("L%d" % lv, lv)
            if n_ < len(levels) - 2:
                e("s_branch L_kvdone")
        e("L_kvdone:")
    else:
        kv_stream("", 0)
    e("s_cmp_lg_u32 %s, 4" % sr(S_WAVE))
    e("s_cbranch_scc1 L_issued")
    e("buffer_load_dword v%d, v%d, %s, 0 offen sc1" % (V_B0 + 1, V_B0, sr(SRD_DBG, 4)))
    e("L_issued:")
    tlbpf = opts.get("tlbpf", 0)
    if prio:
        e("s_setprio 0")
    e("s_mul_i32 %s, %s, %d" % (sr(S_HPART), sr(S_H), 8 * SL))
    e("s_mul_i32 %s, %s, %d" % (sr(S_T1), sr(S_C), SL))
    e("s_add_u32 %s, %s, %s" % (sr(S_PART), sr(S_HPART), sr(S_T1)))
    e("s_mov_b32 %s, 0x05040100" % sr(S_SELLO))
    e("s_mov_b32 %s, 0x07060302" % sr(S_SELHI))
    e("s_mov_b32 %s, %s" % (sr(S_CEXP), hx(f32(C_EXP))))
    e("s_mov_b32 %s, 0x%x" % (sr(S_MASK), 0xFFFFFFFF ^ TAGMASK))
    e("v_mov_b32 v%d, %s" % (V_CSQ, hx(f32(C_SQ))))
    e("v_mov_b32 v%d, %s" % (V_M15, hx(f32(C_BIAS))))
    e("v_lshrrev_b32 v11, 1, v9")
    e("v_mul_u32_u24 v12, %d, v9" % RB)
    e("v_add_u32 v12, %s, v12" % sr(S_XB))
    e("v_xor_b32 v13, v10, v11")
    e("v_lshl_add_u32 v%d, v13, 4, v12" % V_RE)
    e("v_xor_b32 v13, 4, v13")
    e("v_lshl_add_u32 v%d, v13, 4, v12" % V_RO)
    e("v_and_b32 v9, 7, v9")
    e("v_lshrrev_b32 v11, 1, v9")
    e("v_mul_u32_u24 v12, %d, v9" % RB)
    e("v_add_u32 v12, %s, v12" % sr(S_PB))
    e("v_xor_b32 v13, v10, v11")
    e("v_lshl_add_u32 v%d, v13, 4, v12" % V_T)
    e("v_xor_b32 v13, 4, v13")
    e("v_lshl_add_u32 v%d, v13, 4, v12" % (V_T + 1))
    wait_tagwave(22, "k0")
    read_w()
    read_frag(V_K, 0)
    wait_tagwave(16, "k1")
    e("s_cmp_lg_u32 %s, 0" % sr(S_CHOOSE))
    e("s_cbranch_scc1 L_notchooser")
    if prio:
        e("s_setprio 3")
    e("v_add_u32 v%d, 1, v%d" % (V_B1, V_B1))
    e("v_and_b32 v%d, 0x%x, v%d" % (V_B1, TAGMASK, V_B1))
    e("v_or_b32 v%d, 0x80000000, v%d" % (V_B1, V_B1))
    e("s_mov_b64 exec, 1")
    e("buffer_store_dword v%d, v%d, %s, 0 offen%s" % (V_B1, V_B0, sr(SRD_DBG, 4), xm))
    e("s_mov_b64 exec, -1")
    if prio:
        e("s_setprio 0")
    e("L_notchooser:")
    e("s_waitcnt lgkmcnt(6)")
    read_frag(V_K, 1)
    e("s_waitcnt lgkmcnt(6)")
    g.proj(V_K, 0, True)
    e("s_waitcnt lgkmcnt(0)")
    g.proj(V_K, 1, True)
    g.phi(0)
    g.phi(1)
    g.kv_mfma()
    g.stamp(1)
    e("s_waitcnt vmcnt(0)")
    e("s_cmp_lt_u32 %s, 4" % sr(S_WAVE))
    e("s_cbranch_scc1 L_vready")
    if prio:
        e("s_setprio 3")
    e("s_cmp_lg_u32 %s, 4" % sr(S_WAVE))
    e("s_cbranch_scc1 L_vready")
    e("v_readfirstlane_b32 %s, v%d" % (sr(S_N), V_B0 + 1))
    e("s_cmp_lt_i32 %s, 0" % sr(S_N))
    e("s_cbranch_scc1 L_tagput")
    e("s_mov_b32 %s, 0x%x" % (sr(S_T2), SPIN))
    e("L_tagspin:")
    e("buffer_load_dword v%d, v%d, %s, 0 offen sc1" % (V_B0 + 1, V_B0, sr(SRD_DBG, 4)))
    e("s_waitcnt vmcnt(0)")
    e("v_readfirstlane_b32 %s, v%d" % (sr(S_N), V_B0 + 1))
    e("s_sub_u32 %s, %s, 1" % (sr(S_T2), sr(S_T2)))
    e("s_cmp_eq_u32 %s, 0" % sr(S_T2))
    e("s_cbranch_scc1 L_tagput")
    e("s_cmp_ge_i32 %s, 0" % sr(S_N))
    e("s_cbranch_scc1 L_tagspin")
    e("L_tagput:")
    e("s_and_b32 %s, %s, 0x%x" % (sr(S_N), sr(S_N), TAGMASK))
    e("v_mov_b32 v%d, %s" % (V_B0 + 1, sr(S_N)))
    e("v_mov_b32 v%d, %d" % (V_B0, X_N))
    e("ds_write_b32 v%d, v%d" % (V_B0, V_B0 + 1))
    e("L_vready:")
    g.stamp(2)
    g.kv_tiles()
    e("v_lshlrev_b32 v%d, 4, v%d" % (V_B0, V_LANE))
    e("v_add_u32 v%d, %s, v%d" % (V_B0, sr(S_PB), V_B0))
    e("s_mov_b32 exec_lo, -1")
    e("s_mov_b32 exec_hi, 0")
    for tau in range(13):
        e("ds_write_b128 v%d, %s offset:%d" % (V_B0, vr(V_ACC + 4 * tau, 4), tau * 512))
    e("s_mov_b64 exec, -1")
    e("s_cmp_ge_u32 %s, 4" % sr(S_WAVE))
    e("s_cbranch_scc1 L_noq1")
    if tlbpf:
        e("s_cmp_lg_u32 %s, %d" % (sr(S_WAVE), opts.get("tlbw", 1)))
        e("s_cbranch_scc1 L_notlb")
        e("v_mov_b32 v%d, 0" % (V_STG + 2))
        if tlbpf & 1:
            e("buffer_load_dword v%d, v%d, %s, %s offen nt" % (V_STG, V_STG + 2, sr(SRD_O, 4), sr(S_B0)))
        if tlbpf & 2:
            e("buffer_load_dword v%d, v%d, %s, %s offen nt" % (V_STG + 1, V_STG + 2, sr(SRD_WS, 4), sr(S_PART)))
        e("L_notlb:")
    dma_rows(SRD_Q, 0, 12, lm)
    e("L_noq1:")
    g.stamp(10)
    if prio:
        e("s_setprio 3")
    e("v_min_u32 v%d, 415, v0" % (V_B1 + 1))
    e("v_lshlrev_b32 v%d, 4, v%d" % (V_B1, V_B1 + 1))
    e("v_add_u32 v%d, %d, v%d" % (V_B1 + 2, X_PART, V_B1))
    e("v_mov_b32 v%d, %d" % (V_B0, X_N))
    e("s_waitcnt lgkmcnt(0)")
    e("s_barrier")
    g.stamp(3)
    e("ds_read_b32 v%d, v%d" % (V_CNT, V_B0))
    for w in range(8):
        e("ds_read_b128 %s, v%d offset:%d" % (vr(V_ACC + 4 * w, 4), V_B1 + 2, w * PART_BYTES))
    for w in range(1, 8):
        e("s_waitcnt lgkmcnt(%d)" % (7 - w))
        for r in range(4):
            e("v_add_f32 v%d, v%d, v%d" % (V_ACC + r, V_ACC + r, V_ACC + 4 * w + r))
    for r in range(4):
        e("v_bfi_b32 v%d, %s, v%d, v%d" % (V_ACC + r, sr(S_MASK), V_ACC + r, V_CNT))
    e("buffer_store_dwordx4 %s, v%d, %s, %s offen%s" % (vr(V_ACC, 4), V_B1, sr(SRD_WS, 4), sr(S_PART), xm))
    g.stamp(4)
    V_N = V_B0 + 2
    e("v_mov_b32 v%d, v%d" % (V_N, V_CNT))
    e("s_cmp_lt_u32 %s, 4" % sr(S_WAVE))
    e("s_cbranch_scc1 L_early")
    dma_rows(SRD_Q, 0, 12 - qtail, lm)
    g.table_addr(V_B1 + 1)
    e("s_waitcnt vmcnt(%d)" % (12 - qtail))
    e("s_branch L_pbar")
    e("L_early:")
    g.table_addr(V_B1 + 1)
    e("s_waitcnt vmcnt(1)")
    e("L_qproj:")
    read_frag(VQ, 0)
    read_frag(VQ, 1)
    e("s_waitcnt lgkmcnt(6)")
    g.proj(VQ, 0, False)
    g.phi(0)
    g.pack_phi_q(0)
    e("s_waitcnt lgkmcnt(0)")
    g.proj(VQ, 1, False)
    g.phi(1)
    g.pack_phi_q(1)
    e("s_cmp_ge_u32 %s, 4" % sr(S_WAVE))
    e("s_cbranch_scc1 L_out")
    e("s_waitcnt vmcnt(0)")
    e("L_pbar:")
    e("s_barrier")
    PL = V_ACC + 4
    M = V_ACC + 36
    a = V_ACC
    e("s_mov_b32 %s, 0x%x" % (sr(S_T2), SPIN))
    e("s_mov_b32 %s, 0" % sr(S_TAIL))
    e("s_cmp_eq_u32 %s, 7" % sr(S_WAVE))
    e("s_cbranch_scc1 L_skip7")

    def gather_loads():
        e("s_mov_b32 %s, %s" % (sr(S_T0), sr(S_HPART)))
        for c in range(8):
            e("buffer_load_dwordx4 %s, v%d, %s, %s offen%s" % (vr(PL + 4 * c, 4), V_B1, sr(SRD_WS, 4), sr(S_T0), xm))
            if c < 7:
                e("s_add_u32 %s, %s, %d" % (sr(S_T0), sr(S_T0), SL))

    def slot(c):
        for r in range(4):
            e("v_xor_b32 v%d, v%d, v%d" % (PL + 4 * c + r, PL + 4 * c + r, V_N))
        if c == 0:
            e("v_or3_b32 v%d, v%d, v%d, v%d" % (M, PL, PL + 1, PL + 2))
            e("v_or_b32 v%d, v%d, v%d" % (M, M, PL + 3))
        else:
            e("v_or3_b32 v%d, v%d, v%d, v%d" % (M, M, PL + 4 * c, PL + 4 * c + 1))
            e("v_or3_b32 v%d, v%d, v%d, v%d" % (M, M, PL + 4 * c + 2, PL + 4 * c + 3))
        if c == 1:
            for r in range(4):
                e("v_add_f32 v%d, v%d, v%d" % (a + r, PL + r, PL + 4 + r))
        elif c > 1:
            for r in range(4):
                e("v_add_f32 v%d, v%d, v%d" % (a + r, a + r, PL + 4 * c + r))
    if qtail == 0:
        e("L_retry:")
        gather_loads()
        g.stamp(11)
        for c in range(8):
            e("s_waitcnt vmcnt(%d)" % (7 - c))
            slot(c)
    else:
        gather_loads()
        e("s_cmp_lt_u32 %s, 4" % sr(S_WAVE))
        e("s_cbranch_scc1 L_gwait")
        dma_rows(SRD_Q, 12 - qtail, 12, lm)
        e("s_mov_b32 %s, 1" % sr(S_TAIL))
        e("s_branch L_gwait")
        e("L_retry:")
        e("s_mov_b32 %s, 0" % sr(S_TAIL))
        gather_loads()
        e("L_gwait:")
        g.stamp(11)
        for half in range(2):
            n = 4 - 4 * half
            e("s_cmp_eq_u32 %s, 0" % sr(S_TAIL))
            e("s_cbranch_scc1 L_gw%d" % half)
            e("s_waitcnt vmcnt(%d)" % (n + qtail))
            e("s_branch L_gd%d" % half)
            e("L_gw%d:" % half)
            e("s_waitcnt vmcnt(%d)" % n)
            e("L_gd%d:" % half)
            for c in range(4 * half, 4 * half + 4):
                slot(c)
    e("v_and_b32 v%d, 0x%x, v%d" % (M, TAGMASK, M))
    e("v_cmp_ne_u32 %s, 0, v%d" % (sr(S_EXEC, 2), M))
    e("s_sub_u32 %s, %s, 1" % (sr(S_T2), sr(S_T2)))
    e("s_cmp_eq_u32 %s, 0" % sr(S_T2))
    e("s_cbranch_scc1 L_got")
    e("s_cmp_lg_u64 %s, 0" % sr(S_EXEC, 2))
    e("s_cbranch_scc1 L_retry")
    e("L_got:")
    g.stamp(6)
    if prof:
        e("s_sub_u32 %s, 0x%x, %s" % (sr(S_T3), SPIN, sr(S_T2)))
    g.hilo_write(X_TAB)
    e("s_waitcnt lgkmcnt(0)")
    e("s_branch L_C")
    e("L_skip7:")
    if qtail:
        dma_rows(SRD_Q, 12 - qtail, 12, lm)
    e("s_waitcnt vmcnt(0)")
    if prof:
        e("s_mov_b32 %s, 1" % sr(S_T3))
    e("L_C:")
    e("s_barrier")
    g.stamp(7)
    g.read_table(X_TAB)
    e("s_cmp_lt_u32 %s, 4" % sr(S_WAVE))
    e("s_cbranch_scc1 L_out")
    if prio:
        e("s_setprio 0")
    e("s_waitcnt vmcnt(0) lgkmcnt(0)")
    e("s_branch L_qproj")
    e("L_out:")
    g.stamp(5)
    e("s_waitcnt lgkmcnt(0)")
    e("v_lshlrev_b32 v%d, 4, v%d" % (V_T, V_LANE))
    e("v_add_u32 v%d, %s, v%d" % (V_T, sr(S_XB), V_T))

    def out_compute(T, accbase):
        den = accbase + 48
        e("v_mfma_f32_16x16x16_bf16 %s, %s, %s, 0" % (vr(den, 4), vr(V_AT + 24, 2), vr(V_P + 2 * T, 2)))
        for t in range(12):
            e("v_mfma_f32_16x16x16_bf16 %s, %s, %s, 0" % (vr(accbase + 4 * t, 4), vr(V_AT + 2 * t, 2), vr(V_P + 2 * T, 2)))
        e("v_add_f32 v%d, %s, v%d" % (den, hx(f32(1e-6)), den))
        e("v_rcp_f32 v%d, v%d" % (den, den))
        for u in range(6):
            x = accbase + 8 * u
            for r in range(8):
                e("v_mul_f32 v%d, v%d, v%d" % (x + r, x + r, den))
            for r in range(4):
                e("v_cvt_pk_bf16_f32 v%d, v%d, v%d" % (x + r, x + 2 * r, x + 2 * r + 1))
            e("ds_write_b128 v%d, %s offset:%d" % ((V_RE, V_RO)[u & 1], vr(x, 4), T * 6144 + (u >> 1) * 128))

    def out_store(T, stg):
        for jj in range(6):
            e("ds_read_b128 %s, v%d offset:%d" % (vr(stg + 4 * jj, 4), V_T, T * 6144 + jj * 1024))
        for jj in range(6):
            e("s_waitcnt lgkmcnt(%d)" % (5 - jj))
            so = ((S_B0, S_B04), (S_B1, S_B14))[T][jj >> 2]
            e("buffer_store_dwordx4 %s, v%d, %s, %s offen offset:%d%s" % (
                vr(stg + 4 * jj, 4), V_SW + jj, sr(SRD_O, 4), sr(so), (jj & 3) * 1024, sm))
    out_compute(0, V_ACC)
    e("s_waitcnt lgkmcnt(0)")
    out_store(0, V_STG)
    out_compute(1, V_K - 4)
    e("s_waitcnt lgkmcnt(0)")
    out_store(1, V_ACC)
    g.stamp(8)
    if prof:
        e("s_waitcnt vmcnt(0)")
        g.stamp(9)
        e("s_getreg_b32 %s, hwreg(HW_REG_XCC_ID)" % sr(S_ST0 + 28))
        e("s_and_b32 %s, %s, 15" % (sr(S_ST0 + 28), sr(S_ST0 + 28)))
        e("s_add_u32 %s, %s, 1" % (sr(S_ST0 + 28), sr(S_ST0 + 28)))
        e("s_mov_b32 %s, 0" % sr(S_ST0 + 29))
        g.stamps.add(14)
        g.flush_stamps()
        e("v_mov_b32 v254, %s" % sr(S_T3))
        e("v_mov_b32 v255, 0")
        e("buffer_store_dwordx2 v[254:255], v253, %s, 0 offen offset:%d" % (sr(SRD_WS, 4), 15 * 8))
    e("L_end:")
    e("s_endpgm")
    txt = HEADER8
    txt += "; @launch grid=(256,1,1) block=(512,1,1) lds=%d\n" % X_END
    txt += '.amdgcn_target "amdgcn-amd-amdhsa--gfx950"\n'
    txt += kernel_text(NAME + "_kernel", g)
    txt += kd(NAME + "_kernel")
    return txt


if __name__ == "__main__":
    import argparse
    ap = argparse.ArgumentParser()
    ap.add_argument("-o", default="cdna_kernels/%s.s" % NAME)
    ap.add_argument("--opt", action="append", default=[])
    a = ap.parse_args()
    opts = {}
    for kv in a.opt:
        k, _, v = kv.partition("=")
        opts[k] = ([int(x) for x in v.split(",")] if "," in v else (int(v, 0) if v else 1))
    txt = gen_final(opts)
    open(a.o, "w").write(txt)
    print("wrote", a.o, len(txt))
```

```python
import os, sys
sys.path.insert(0, os.path.dirname(os.path.abspath(__file__)))
from gen import *
import gen as G

X_TAB = 0
X_N = PART_BYTES
X_PART = PART_BYTES + 128
X_XBUF = X_PART + 8 * PART_BYTES
X_END = X_XBUF + 8 * 12288

V_RE, V_RO = 2, 5
V_SW = 128
V_T = 134
V_STG = 136
S_B04, S_B14, S_XB, S_PB, S_CHOOSE = 99, 100, 101, 19, 3
S_MASK = 61
S_N = S_CNT
V_CNT = V_SS + 3
VQ = V_K
SL = PART_BYTES

HEADER8 = """; FAVOR+ random-feature linear attention (B=1, H=32, S=2048, D=192, M=8; bf16 in/out), one fused launch.
;
"""


def gen_final(opts):
    lm = MODS[opts.get("mod", 1)]
    wm = MODS[opts.get("wmod", 0)]
    sm = MODS[opts.get("smod", 2)]
    xm = MODS[2]
    prio = opts.get("prio", 1)
    SPIN = opts.get("spin", 0x4000)
    prof = opts.get("prof")
    qtail = opts.get("qtail", 0)
    S_TAIL = S_T1
    g = Gen(opts)
    e = g

    def dma_rows(srd, lo, hi, mod):
        last = None
        for j in range(lo, hi):
            T, jj = divmod(j, 6)
            grp = (T, jj >> 2)
            if grp != last:
                e("s_add_u32 m0, %s, %d" % (sr(S_XB), T * 6144 + (jj >> 2) * 4096))
                last = grp
            so = ((S_B0, S_B04), (S_B1, S_B14))[T][jj >> 2]
            e("buffer_load_dwordx4 v%d, %s, %s offen offset:%d%s lds" % (V_SW + jj, sr(srd, 4), sr(so), (jj & 3) * 1024, mod))

    def dma_w():
        e("s_mov_b32 m0, %s" % sr(S_PB))
        for jj in range(3):
            e("buffer_load_dwordx4 v%d, %s, 0 offen offset:%d%s lds" % (V_SW + jj, sr(SRD_W, 4), jj * 1024, wm))

    def read_frag(vbase, T):
        for t in range(6):
            e("ds_read_b128 %s, v%d offset:%d" % (vr(vbase + 24 * T + 4 * t, 4), (V_RE, V_RO)[t & 1], T * 6144 + (t >> 1) * 128))

    def read_w():
        for t in range(6):
            e("ds_read_b128 %s, v%d offset:%d" % (vr(V_W + 4 * t, 4), V_T + (t & 1), (t >> 1) * 128))

    def wait_tagwave(n_plain, tag):
        e("s_cmp_eq_u32 %s, 4" % sr(S_WAVE))
        e("s_cbranch_scc1 L_w4_%s" % tag)
        e("s_waitcnt vmcnt(%d)" % n_plain)
        e("s_branch L_wd_%s" % tag)
        e("L_w4_%s:" % tag)
        e("s_waitcnt vmcnt(%d)" % (n_plain + 1))
        e("L_wd_%s:" % tag)

    if prof:
        e("s_memrealtime s[96:97]")
    e("s_cmp_ge_u32 s2, 256")
    e("s_cbranch_scc1 L_end")
    fast = opts.get("fastpro", 2)
    cpf = opts.get("cpf", 1)

    def code_prefetch():
        e("s_getpc_b64 s[92:93]")
        e("L_pc:")
        e("v_lshlrev_b32 v11, 7, v0")
        e("v_min_u32 v12, L_end-L_pc, v11")
        e("v_cmp_gt_u32 vcc, 64, v0")
        e("s_and_saveexec_b64 s[94:95], vcc")
        e("s_cbranch_execz L_nocpf")
        e("global_load_dword v254, v12, s[92:93]")
        e("L_nocpf:")
        e("s_mov_b64 exec, s[94:95]")

    def sw(jj):
        if jj:
            e("v_add_u32 v11, %d, v%d" % (64 * jj, V_LANE))
        e("v_mul_u32_u24 v11, 1366, %s" % ("v11" if jj else "v%d" % V_LANE))
        e("v_lshrrev_b32 v11, 16, v11")
        e("v_xor_b32 v11, v11, v%d" % V_LANE)
        e("v_lshlrev_b32 v%d, 4, v11" % (V_SW + jj))

    def bases():
        e("; ---- head h = (wg & 7) | (wg >> 6) << 3, chunk c = (wg >> 3) & 7, byte bases of the 32 rows of this wave ----")
        e("s_and_b32 %s, s2, 7" % sr(S_T0))
        e("s_lshr_b32 %s, s2, 6" % sr(S_T1))
        e("s_lshl_b32 %s, %s, 3" % (sr(S_T1), sr(S_T1)))
        e("s_or_b32 %s, %s, %s" % (sr(S_H), sr(S_T0), sr(S_T1)))
        e("s_bfe_u32 %s, s2, 0x30003" % sr(S_C))
        e("s_mul_i32 %s, %s, %d" % (sr(S_T0), sr(S_H), 2048 * RB))
        e("s_mul_i32 %s, %s, %d" % (sr(S_T1), sr(S_C), 256 * RB))
        e("s_add_u32 %s, %s, %s" % (sr(S_T0), sr(S_T0), sr(S_T1)))
        e("s_mul_i32 %s, %s, %d" % (sr(S_XB), sr(S_WAVE), 32 * RB))
        e("s_add_u32 %s, %s, %s" % (sr(S_B0), sr(S_T0), sr(S_XB)))
        e("s_add_u32 %s, %s, %d" % (sr(S_XB), sr(S_XB), X_XBUF))

    def bases2():
        e("s_add_u32 %s, %s, %d" % (sr(S_B1), sr(S_B0), 16 * RB))
        e("s_add_u32 %s, %s, 4096" % (sr(S_B04), sr(S_B0)))
        e("s_add_u32 %s, %s, 4096" % (sr(S_B14), sr(S_B1)))
        e("s_mul_i32 %s, %s, %d" % (sr(S_PB), sr(S_WAVE), PART_BYTES))
        e("s_add_u32 %s, %s, %d" % (sr(S_PB), sr(S_PB), X_PART))
        e("s_or_b32 %s, %s, %s" % (sr(S_CHOOSE), sr(S_H), sr(S_C)))
        e("s_or_b32 %s, %s, %s" % (sr(S_CHOOSE), sr(S_CHOOSE), sr(S_WAVE)))

    def words23(lst):
        for srd_, nbytes in lst:
            e("s_mov_b32 %s, 0x%x" % (sr(srd_ + 2), nbytes))
            e("s_mov_b32 %s, 0x20000" % sr(srd_ + 3))

    def prof_setup():
        if prof:
            e("s_lshl_b32 %s, s2, 3" % sr(S_PROF))
            e("s_add_u32 %s, %s, %s" % (sr(S_PROF), sr(S_PROF), sr(S_WAVE)))
            e("s_lshl_b32 %s, %s, 7" % (sr(S_PROF), sr(S_PROF)))
            e("s_add_u32 %s, %s, 0x%x" % (sr(S_PROF), sr(S_PROF), 128 << 20))
            for i_ in range(1, 12):
                e("s_mov_b64 %s, 0" % sr(S_ST0 + 2 * i_, 2))
            g.stamps = set(getattr(g, 'stamps', set()))
            g.stamps.add(12)
    ALL23 = ((SRD_K, TENSOR_BYTES), (SRD_W, 8 * RB), (SRD_V, TENSOR_BYTES), (SRD_WS, WS_BYTES),
             (SRD_DBG, 256), (SRD_Q, TENSOR_BYTES), (SRD_O, TENSOR_BYTES))
    if not fast:
        for srd_, off in ((SRD_K, 8), (SRD_W, 24), (SRD_V, 16), (SRD_WS, 48), (SRD_DBG, 40), (SRD_Q, 0), (SRD_O, 32)):
            e("s_load_dwordx2 %s, s[0:1], %d" % (sr(srd_, 2), off))
        if cpf:
            code_prefetch()
        e("v_and_b32 v%d, 63, v0" % V_LANE)
        e("v_lshrrev_b32 v8, 6, v0")
        e("v_mul_u32_u24 v11, 1366, v%d" % V_LANE)
        e("v_readfirstlane_b32 %s, v8" % sr(S_WAVE))
        e("v_lshrrev_b32 v11, 16, v11")
        e("v_xor_b32 v11, v11, v%d" % V_LANE)
        e("v_lshlrev_b32 v%d, 4, v11" % V_SW)
        for jj in range(1, 6):
            sw(jj)
        bases()
        bases2()
        words23(ALL23)
        if prio:
            e("s_setprio 3")
        prof_setup()
        e("s_waitcnt lgkmcnt(0)")
        g.stamp(0)
    elif fast == 2:
        e("s_load_dwordx2 %s, s[0:1], 8" % sr(SRD_K, 2))
        if cpf:
            code_prefetch()
        e("v_and_b32 v%d, 63, v0" % V_LANE)
        e("v_lshrrev_b32 v8, 6, v0")
        e("v_add_u32 v12, 16, v%d" % V_LANE)
        e("v_readfirstlane_b32 %s, v8" % sr(S_WAVE))
        e("v_lshlrev_b32 v11, 4, v%d" % V_LANE)
        e("v_lshrrev_b32 v12, 2, v12")
        e("v_and_b32 v12, 16, v12")
        e("v_xor_b32 v%d, v11, v12" % V_SW)
        bases()
        words23(ALL23[:1])
        e("s_mov_b32 m0, %s" % sr(S_XB))
        if prio:
            e("s_setprio 3")
        e("s_waitcnt lgkmcnt(0)")
        g.stamp(0)

        def kdma(jj, T):
            so = ((S_B0, S_B04), (S_B1, S_B14))[T][jj >> 2]
            e("buffer_load_dwordx4 v%d, %s, %s offen offset:%d%s lds" % (V_SW + jj, sr(SRD_K, 4), sr(so), (jj & 3) * 1024, lm))
        kdma(0, 0)
        e("v_lshrrev_b32 v13, 1, v%d" % V_LANE)
        e("v_and_b32 v13, 16, v13")
        e("v_add_u32 v14, 16, v13")
        e("v_xor_b32 v%d, v11, v14" % (V_SW + 1))
        kdma(1, 0)
        e("v_add_u32 v15, 48, v%d" % V_LANE)
        e("v_lshrrev_b32 v15, 2, v15")
        e("v_and_b32 v15, 16, v15")
        e("v_add_u32 v14, 32, v15")
        e("v_xor_b32 v%d, v11, v14" % (V_SW + 2))
        kdma(2, 0)
        e("v_add_u32 v14, 64, v12")
        e("v_xor_b32 v%d, v11, v14" % (V_SW + 3))
        kdma(3, 0)
        e("v_add_u32 v14, 80, v13")
        e("s_add_u32 %s, %s, 4096" % (sr(S_B04), sr(S_B0)))
        e("s_add_u32 m0, %s, 4096" % sr(S_XB))
        e("v_xor_b32 v%d, v11, v14" % (V_SW + 4))
        kdma(4, 0)
        e("v_add_u32 v14, 96, v15")
        e("s_add_u32 %s, %s, %d" % (sr(S_B1), sr(S_B0), 16 * RB))
        e("v_xor_b32 v%d, v11, v14" % (V_SW + 5))
        kdma(5, 0)
        e("s_add_u32 m0, %s, 6144" % sr(S_XB))
        e("s_add_u32 %s, %s, 4096" % (sr(S_B14), sr(S_B1)))
        for jj in range(4):
            kdma(jj, 1)
        e("s_add_u32 m0, %s, 10240" % sr(S_XB))
        for srd_, off in ((SRD_W, 24), (SRD_V, 16), (SRD_WS, 48), (SRD_DBG, 40), (SRD_Q, 0), (SRD_O, 32)):
            e("s_load_dwordx2 %s, s[0:1], %d" % (sr(srd_, 2), off))
        kdma(4, 1)
        kdma(5, 1)
        e("s_mul_i32 %s, %s, %d" % (sr(S_PB), sr(S_WAVE), PART_BYTES))
        e("s_add_u32 %s, %s, %d" % (sr(S_PB), sr(S_PB), X_PART))
        e("s_or_b32 %s, %s, %s" % (sr(S_CHOOSE), sr(S_H), sr(S_C)))
        e("s_or_b32 %s, %s, %s" % (sr(S_CHOOSE), sr(S_CHOOSE), sr(S_WAVE)))
        words23(ALL23[1:])
        prof_setup()
        e("s_waitcnt lgkmcnt(0)")
    else:
        e("s_load_dwordx2 %s, s[0:1], 8" % sr(SRD_K, 2))
        if cpf:
            code_prefetch()
        e("v_and_b32 v%d, 63, v0" % V_LANE)
        e("v_lshrrev_b32 v8, 6, v0")
        e("v_mul_u32_u24 v11, 1366, v%d" % V_LANE)
        e("v_readfirstlane_b32 %s, v8" % sr(S_WAVE))
        e("v_lshrrev_b32 v11, 16, v11")
        e("v_xor_b32 v11, v11, v%d" % V_LANE)
        e("v_lshlrev_b32 v%d, 4, v11" % V_SW)
        bases()
        words23(ALL23[:1])
        e("s_mov_b32 m0, %s" % sr(S_XB))
        if prio:
            e("s_setprio 3")
        e("s_waitcnt lgkmcnt(0)")
        g.stamp(0)
        e("buffer_load_dwordx4 v%d, %s, %s offen offset:0%s lds" % (V_SW, sr(SRD_K, 4), sr(S_B0), lm))
        for srd_, off in ((SRD_W, 24), (SRD_V, 16), (SRD_WS, 48), (SRD_DBG, 40), (SRD_Q, 0), (SRD_O, 32)):
            e("s_load_dwordx2 %s, s[0:1], %d" % (sr(srd_, 2), off))
        for jj in range(1, 4):
            sw(jj)
            e("buffer_load_dwordx4 v%d, %s, %s offen offset:%d%s lds" % (V_SW + jj, sr(SRD_K, 4), sr(S_B0), jj * 1024, lm))
        sw(4)
        sw(5)
        bases2()
        words23(ALL23[1:])
        prof_setup()
        e("s_waitcnt lgkmcnt(0)")
    if prof:
        e("s_mov_b64 %s, s[96:97]" % sr(S_ST0 + 24, 2))
    e("v_mov_b32 v%d, 0" % V_B0)
    e("v_and_b32 v9, 15, v0")
    e("v_bfe_u32 v10, v0, 4, 2")

    def kv_stream(sfx, thr):
        mark = len(g.L)
        if fast != 2:
            dma_rows(SRD_K, 4 if fast else 0, 6, lm)
        dma_w()
        e("s_cmp_lg_u32 %s, 0" % sr(S_CHOOSE))
        e("s_cbranch_scc1 L_nochoose%s" % sfx)
        e("buffer_load_dword v%d, v%d, %s, 0 offen%s" % (V_B1, V_B0, sr(SRD_WS, 4), xm))
        e("L_nochoose%s:" % sfx)
        if fast != 2:
            dma_rows(SRD_K, 6, 12, lm)
        e("v_mul_u32_u24 v13, %d, v10" % (4 * RB))
        e("v_lshlrev_b32 v14, 4, v9")
        e("v_add_u32 v%d, v13, v14" % V_OVA)
        e("v_lshlrev_b32 v14, 3, v9")
        e("v_add_u32 v13, 256, v13")
        e("v_add_u32 v%d, v13, v14" % V_OVB)
        g.load_v(lm)
        if thr:
            body = g.L[mark:]
            del g.L[mark:]
            n = (0, 4, 12)[fast]
            for l in body:
                g.L.append(l)
                if "buffer_load" in l and "sc1" not in l:
                    n += 1
                    if n >= thr:
                        g.L.append("    s_waitcnt vmcnt(%d)" % (thr - 1))
    evthr = opts.get("evthr", 12)
    tab = opts.get("thrtab")
    if tab is None:
        tab = [evthr if (x & 1) == opts.get("evpar", 0) else 0 for x in range(8)]
    levels = sorted(set(tab))
    if levels != [0]:
        e("s_getreg_b32 %s, hwreg(HW_REG_XCC_ID, 0, 3)" % sr(S_T0))
        e("s_lshl_b32 %s, 1, %s" % (sr(S_T0), sr(S_T0)))
        for lv in levels[1:]:
            mask = sum(1 << x for x in range(8) if tab[x] == lv)
            e("s_and_b32 %s, %s, 0x%x" % (sr(S_T1), sr(S_T0), mask))
            e("s_cbranch_scc1 L_thr%d" % lv)
        kv_stream("L%d" % levels[0], levels[0])
        e("s_branch L_kvdone")
        for n_, lv in enumerate(levels[1:]):
            e("L_thr%d:" % lv)
            kv_stream("L%d" % lv, lv)
            if n_ < len(levels) - 2:
                e("s_branch L_kvdone")
        e("L_kvdone:")
    else:
        kv_stream("", 0)
    e("s_cmp_lg_u32 %s, 4" % sr(S_WAVE))
    e("s_cbranch_scc1 L_issued")
    e("buffer_load_dword v%d, v%d, %s, 0 offen sc1" % (V_B0 + 1, V_B0, sr(SRD_DBG, 4)))
    e("L_issued:")
    tlbpf = opts.get("tlbpf", 0)
    if prio:
        e("s_setprio 0")
    e("s_mul_i32 %s, %s, %d" % (sr(S_HPART), sr(S_H), 8 * SL))
    e("s_mul_i32 %s, %s, %d" % (sr(S_T1), sr(S_C), SL))
    e("s_add_u32 %s, %s, %s" % (sr(S_PART), sr(S_HPART), sr(S_T1)))
    e("s_mov_b32 %s, 0x05040100" % sr(S_SELLO))
    e("s_mov_b32 %s, 0x07060302" % sr(S_SELHI))
    e("s_mov_b32 %s, %s" % (sr(S_CEXP), hx(f32(C_EXP))))
    e("s_mov_b32 %s, 0x%x" % (sr(S_MASK), 0xFFFFFFFF ^ TAGMASK))
    e("v_mov_b32 v%d, %s" % (V_CSQ, hx(f32(C_SQ))))
    e("v_mov_b32 v%d, %s" % (V_M15, hx(f32(C_BIAS))))
    e("v_lshrrev_b32 v11, 1, v9")
    e("v_mul_u32_u24 v12, %d, v9" % RB)
    e("v_add_u32 v12, %s, v12" % sr(S_XB))
    e("v_xor_b32 v13, v10, v11")
    e("v_lshl_add_u32 v%d, v13, 4, v12" % V_RE)
    e("v_xor_b32 v13, 4, v13")
    e("v_lshl_add_u32 v%d, v13, 4, v12" % V_RO)
    e("v_and_b32 v9, 7, v9")
    e("v_lshrrev_b32 v11, 1, v9")
    e("v_mul_u32_u24 v12, %d, v9" % RB)
    e("v_add_u32 v12, %s, v12" % sr(S_PB))
    e("v_xor_b32 v13, v10, v11")
    e("v_lshl_add_u32 v%d, v13, 4, v12" % V_T)
    e("v_xor_b32 v13, 4, v13")
    e("v_lshl_add_u32 v%d, v13, 4, v12" % (V_T + 1))
    def chooser_publish():
        e("s_cmp_lg_u32 %s, 0" % sr(S_CHOOSE))
        e("s_cbranch_scc1 L_notchooser")
        if prio:
            e("s_setprio 3")
        e("v_add_u32 v%d, 1, v%d" % (V_B1, V_B1))
        e("v_and_b32 v%d, 0x%x, v%d" % (V_B1, TAGMASK, V_B1))
        e("v_or_b32 v%d, 0x80000000, v%d" % (V_B1, V_B1))
        e("s_mov_b64 exec, 1")
        e("buffer_store_dword v%d, v%d, %s, 0 offen%s" % (V_B1, V_B0, sr(SRD_DBG, 4), xm))
        e("s_mov_b64 exec, -1")
        if prio:
            e("s_setprio 0")
        e("L_notchooser:")
    if fast == 2:
        wait_tagwave(16, "k")
        read_w()
        read_frag(V_K, 0)
        chooser_publish()
        e("s_waitcnt lgkmcnt(6)")
        read_frag(V_K, 1)
        e("s_waitcnt lgkmcnt(6)")
    else:
        wait_tagwave(22, "k0")
        read_w()
        read_frag(V_K, 0)
        wait_tagwave(16, "k1")
        chooser_publish()
        e("s_waitcnt lgkmcnt(6)")
        read_frag(V_K, 1)
        e("s_waitcnt lgkmcnt(6)")
    g.proj(V_K, 0, True)
    e("s_waitcnt lgkmcnt(0)")
    g.proj(V_K, 1, True)
    g.phi(0)
    g.phi(1)
    g.kv_mfma()
    g.stamp(1)
    e("s_waitcnt vmcnt(0)")
    e("s_cmp_lt_u32 %s, 4" % sr(S_WAVE))
    e("s_cbranch_scc1 L_vready")
    if prio:
        e("s_setprio 3")
    e("s_cmp_lg_u32 %s, 4" % sr(S_WAVE))
    e("s_cbranch_scc1 L_vready")
    e("v_readfirstlane_b32 %s, v%d" % (sr(S_N), V_B0 + 1))
    e("s_cmp_lt_i32 %s, 0" % sr(S_N))
    e("s_cbranch_scc1 L_tagput")
    e("s_mov_b32 %s, 0x%x" % (sr(S_T2), SPIN))
    e("L_tagspin:")
    e("buffer_load_dword v%d, v%d, %s, 0 offen sc1" % (V_B0 + 1, V_B0, sr(SRD_DBG, 4)))
    e("s_waitcnt vmcnt(0)")
    e("v_readfirstlane_b32 %s, v%d" % (sr(S_N), V_B0 + 1))
    e("s_sub_u32 %s, %s, 1" % (sr(S_T2), sr(S_T2)))
    e("s_cmp_eq_u32 %s, 0" % sr(S_T2))
    e("s_cbranch_scc1 L_tagput")
    e("s_cmp_ge_i32 %s, 0" % sr(S_N))
    e("s_cbranch_scc1 L_tagspin")
    e("L_tagput:")
    e("s_and_b32 %s, %s, 0x%x" % (sr(S_N), sr(S_N), TAGMASK))
    e("v_mov_b32 v%d, %s" % (V_B0 + 1, sr(S_N)))
    e("v_mov_b32 v%d, %d" % (V_B0, X_N))
    e("ds_write_b32 v%d, v%d" % (V_B0, V_B0 + 1))
    e("L_vready:")
    g.stamp(2)
    g.kv_tiles()
    e("v_lshlrev_b32 v%d, 4, v%d" % (V_B0, V_LANE))
    e("v_add_u32 v%d, %s, v%d" % (V_B0, sr(S_PB), V_B0))
    e("s_mov_b32 exec_lo, -1")
    e("s_mov_b32 exec_hi, 0")
    for tau in range(13):
        e("ds_write_b128 v%d, %s offset:%d" % (V_B0, vr(V_ACC + 4 * tau, 4), tau * 512))
    e("s_mov_b64 exec, -1")
    e("s_cmp_ge_u32 %s, 4" % sr(S_WAVE))
    e("s_cbranch_scc1 L_noq1")
    if tlbpf:
        e("s_cmp_lg_u32 %s, %d" % (sr(S_WAVE), opts.get("tlbw", 1)))
        e("s_cbranch_scc1 L_notlb")
        e("v_mov_b32 v%d, 0" % (V_STG + 2))
        if tlbpf & 1:
            e("buffer_load_dword v%d, v%d, %s, %s offen nt" % (V_STG, V_STG + 2, sr(SRD_O, 4), sr(S_B0)))
        if tlbpf & 2:
            e("buffer_load_dword v%d, v%d, %s, %s offen nt" % (V_STG + 1, V_STG + 2, sr(SRD_WS, 4), sr(S_PART)))
        e("L_notlb:")
    dma_rows(SRD_Q, 0, 12, lm)
    e("L_noq1:")
    g.stamp(10)
    if prio:
        e("s_setprio 3")
    e("v_min_u32 v%d, 415, v0" % (V_B1 + 1))
    e("v_lshlrev_b32 v%d, 4, v%d" % (V_B1, V_B1 + 1))
    e("v_add_u32 v%d, %d, v%d" % (V_B1 + 2, X_PART, V_B1))
    e("v_mov_b32 v%d, %d" % (V_B0, X_N))
    e("s_waitcnt lgkmcnt(0)")
    e("s_barrier")
    g.stamp(3)
    e("ds_read_b32 v%d, v%d" % (V_CNT, V_B0))
    for w in range(8):
        e("ds_read_b128 %s, v%d offset:%d" % (vr(V_ACC + 4 * w, 4), V_B1 + 2, w * PART_BYTES))
    for w in range(1, 8):
        e("s_waitcnt lgkmcnt(%d)" % (7 - w))
        for r in range(4):
            e("v_add_f32 v%d, v%d, v%d" % (V_ACC + r, V_ACC + r, V_ACC + 4 * w + r))
    for r in range(4):
        e("v_bfi_b32 v%d, %s, v%d, v%d" % (V_ACC + r, sr(S_MASK), V_ACC + r, V_CNT))
    e("buffer_store_dwordx4 %s, v%d, %s, %s offen%s" % (vr(V_ACC, 4), V_B1, sr(SRD_WS, 4), sr(S_PART), xm))
    g.stamp(4)
    V_N = V_B0 + 2
    e("v_mov_b32 v%d, v%d" % (V_N, V_CNT))
    e("s_cmp_lt_u32 %s, 4" % sr(S_WAVE))
    e("s_cbranch_scc1 L_early")
    dma_rows(SRD_Q, 0, 12 - qtail, lm)
    g.table_addr(V_B1 + 1)
    e("s_waitcnt vmcnt(%d)" % (12 - qtail))
    e("s_branch L_pbar")
    e("L_early:")
    g.table_addr(V_B1 + 1)
    e("s_waitcnt vmcnt(1)")
    e("L_qproj:")
    read_frag(VQ, 0)
    read_frag(VQ, 1)
    e("s_waitcnt lgkmcnt(6)")
    g.proj(VQ, 0, False)
    g.phi(0)
    g.pack_phi_q(0)
    e("s_waitcnt lgkmcnt(0)")
    g.proj(VQ, 1, False)
    g.phi(1)
    g.pack_phi_q(1)
    e("s_cmp_ge_u32 %s, 4" % sr(S_WAVE))
    e("s_cbranch_scc1 L_out")
    e("s_waitcnt vmcnt(0)")
    e("L_pbar:")
    e("s_barrier")
    PL = V_ACC + 4
    M = V_ACC + 36
    a = V_ACC
    e("s_mov_b32 %s, 0x%x" % (sr(S_T2), SPIN))
    e("s_mov_b32 %s, 0" % sr(S_TAIL))
    e("s_cmp_eq_u32 %s, 7" % sr(S_WAVE))
    e("s_cbranch_scc1 L_skip7")

    def gather_loads():
        e("s_mov_b32 %s, %s" % (sr(S_T0), sr(S_HPART)))
        for c in range(8):
            e("buffer_load_dwordx4 %s, v%d, %s, %s offen%s" % (vr(PL + 4 * c, 4), V_B1, sr(SRD_WS, 4), sr(S_T0), xm))
            if c < 7:
                e("s_add_u32 %s, %s, %d" % (sr(S_T0), sr(S_T0), SL))

    def slot(c):
        for r in range(4):
            e("v_xor_b32 v%d, v%d, v%d" % (PL + 4 * c + r, PL + 4 * c + r, V_N))
        if c == 0:
            e("v_or3_b32 v%d, v%d, v%d, v%d" % (M, PL, PL + 1, PL + 2))
            e("v_or_b32 v%d, v%d, v%d" % (M, M, PL + 3))
        else:
            e("v_or3_b32 v%d, v%d, v%d, v%d" % (M, M, PL + 4 * c, PL + 4 * c + 1))
            e("v_or3_b32 v%d, v%d, v%d, v%d" % (M, M, PL + 4 * c + 2, PL + 4 * c + 3))
        if c == 1:
            for r in range(4):
                e("v_add_f32 v%d, v%d, v%d" % (a + r, PL + r, PL + 4 + r))
        elif c > 1:
            for r in range(4):
                e("v_add_f32 v%d, v%d, v%d" % (a + r, a + r, PL + 4 * c + r))
    if qtail == 0:
        e("L_retry:")
        gather_loads()
        g.stamp(11)
        for c in range(8):
            e("s_waitcnt vmcnt(%d)" % (7 - c))
            slot(c)
    else:
        gather_loads()
        e("s_cmp_lt_u32 %s, 4" % sr(S_WAVE))
        e("s_cbranch_scc1 L_gwait")
        dma_rows(SRD_Q, 12 - qtail, 12, lm)
        e("s_mov_b32 %s, 1" % sr(S_TAIL))
        e("s_branch L_gwait")
        e("L_retry:")
        e("s_mov_b32 %s, 0" % sr(S_TAIL))
        gather_loads()
        e("L_gwait:")
        g.stamp(11)
        for half in range(2):
            n = 4 - 4 * half
            e("s_cmp_eq_u32 %s, 0" % sr(S_TAIL))
            e("s_cbranch_scc1 L_gw%d" % half)
            e("s_waitcnt vmcnt(%d)" % (n + qtail))
            e("s_branch L_gd%d" % half)
            e("L_gw%d:" % half)
            e("s_waitcnt vmcnt(%d)" % n)
            e("L_gd%d:" % half)
            for c in range(4 * half, 4 * half + 4):
                slot(c)
    e("v_and_b32 v%d, 0x%x, v%d" % (M, TAGMASK, M))
    e("v_cmp_ne_u32 %s, 0, v%d" % (sr(S_EXEC, 2), M))
    e("s_sub_u32 %s, %s, 1" % (sr(S_T2), sr(S_T2)))
    e("s_cmp_eq_u32 %s, 0" % sr(S_T2))
    e("s_cbranch_scc1 L_got")
    e("s_cmp_lg_u64 %s, 0" % sr(S_EXEC, 2))
    e("s_cbranch_scc1 L_retry")
    e("L_got:")
    g.stamp(6)
    if prof:
        e("s_sub_u32 %s, 0x%x, %s" % (sr(S_T3), SPIN, sr(S_T2)))
    g.hilo_write(X_TAB)
    e("s_waitcnt lgkmcnt(0)")
    e("s_branch L_C")
    e("L_skip7:")
    if qtail:
        dma_rows(SRD_Q, 12 - qtail, 12, lm)
    e("s_waitcnt vmcnt(0)")
    if prof:
        e("s_mov_b32 %s, 1" % sr(S_T3))
    e("L_C:")
    e("s_barrier")
    g.stamp(7)
    g.read_table(X_TAB)
    e("s_cmp_lt_u32 %s, 4" % sr(S_WAVE))
    e("s_cbranch_scc1 L_out")
    if prio:
        e("s_setprio 0")
    e("s_waitcnt vmcnt(0) lgkmcnt(0)")
    e("s_branch L_qproj")
    e("L_out:")
    g.stamp(5)
    e("s_waitcnt lgkmcnt(0)")
    e("v_lshlrev_b32 v%d, 4, v%d" % (V_T, V_LANE))
    e("v_add_u32 v%d, %s, v%d" % (V_T, sr(S_XB), V_T))

    def out_compute(T, accbase):
        den = accbase + 48
        e("v_mfma_f32_16x16x16_bf16 %s, %s, %s, 0" % (vr(den, 4), vr(V_AT + 24, 2), vr(V_P + 2 * T, 2)))
        for t in range(12):
            e("v_mfma_f32_16x16x16_bf16 %s, %s, %s, 0" % (vr(accbase + 4 * t, 4), vr(V_AT + 2 * t, 2), vr(V_P + 2 * T, 2)))
        e("v_add_f32 v%d, %s, v%d" % (den, hx(f32(1e-6)), den))
        e("v_rcp_f32 v%d, v%d" % (den, den))
        for u in range(6):
            x = accbase + 8 * u
            for r in range(8):
                e("v_mul_f32 v%d, v%d, v%d" % (x + r, x + r, den))
            for r in range(4):
                e("v_cvt_pk_bf16_f32 v%d, v%d, v%d" % (x + r, x + 2 * r, x + 2 * r + 1))
            e("ds_write_b128 v%d, %s offset:%d" % ((V_RE, V_RO)[u & 1], vr(x, 4), T * 6144 + (u >> 1) * 128))

    def out_store(T, stg):
        for jj in range(6):
            e("ds_read_b128 %s, v%d offset:%d" % (vr(stg + 4 * jj, 4), V_T, T * 6144 + jj * 1024))
        for jj in range(6):
            e("s_waitcnt lgkmcnt(%d)" % (5 - jj))
            so = ((S_B0, S_B04), (S_B1, S_B14))[T][jj >> 2]
            e("buffer_store_dwordx4 %s, v%d, %s, %s offen offset:%d%s" % (
                vr(stg + 4 * jj, 4), V_SW + jj, sr(SRD_O, 4), sr(so), (jj & 3) * 1024, sm))
    out_compute(0, V_ACC)
    e("s_waitcnt lgkmcnt(0)")
    out_store(0, V_STG)
    out_compute(1, V_K - 4)
    e("s_waitcnt lgkmcnt(0)")
    out_store(1, V_ACC)
    g.stamp(8)
    if prof:
        e("s_waitcnt vmcnt(0)")
        g.stamp(9)
        e("s_getreg_b32 %s, hwreg(HW_REG_XCC_ID)" % sr(S_ST0 + 28))
        e("s_and_b32 %s, %s, 15" % (sr(S_ST0 + 28), sr(S_ST0 + 28)))
        e("s_add_u32 %s, %s, 1" % (sr(S_ST0 + 28), sr(S_ST0 + 28)))
        e("s_mov_b32 %s, 0" % sr(S_ST0 + 29))
        g.stamps.add(14)
        g.flush_stamps()
        e("v_mov_b32 v254, %s" % sr(S_T3))
        e("v_mov_b32 v255, 0")
        e("buffer_store_dwordx2 v[254:255], v253, %s, 0 offen offset:%d" % (sr(SRD_WS, 4), 15 * 8))
    e("L_end:")
    e("s_endpgm")
    txt = HEADER8
    txt += "; @launch grid=(256,1,1) block=(512,1,1) lds=%d\n" % X_END
    txt += '.amdgcn_target "amdgcn-amd-amdhsa--gfx950"\n'
    txt += kernel_text(NAME + "_kernel", g)
    txt += kd(NAME + "_kernel")
    return txt


if __name__ == "__main__":
    import argparse
    ap = argparse.ArgumentParser()
    ap.add_argument("-o", default="cdna_kernels/%s.s" % NAME)
    ap.add_argument("--opt", action="append", default=[])
    a = ap.parse_args()
    opts = {}
    for kv in a.opt:
        k, _, v = kv.partition("=")
        opts[k] = ([int(x) for x in v.split(",")] if "," in v else (int(v, 0) if v else 1))
    txt = gen_final(opts)
    open(a.o, "w").write(txt)
    print("wrote", a.o, len(txt))
```

```python
import os, sys
sys.path.insert(0, os.path.dirname(os.path.abspath(__file__)))
from gen import *
import gen as G

X_TAB = 0
X_N = PART_BYTES
X_PART = PART_BYTES + 128
X_XBUF = X_PART + 8 * PART_BYTES
X_END = X_XBUF + 8 * 12288

V_RE, V_RO = 2, 5
V_SW = 128
V_T = 134
V_STG = 136
S_B04, S_B14, S_XB, S_PB, S_CHOOSE = 99, 100, 101, 19, 3
S_MASK = 61
S_N = S_CNT
V_CNT = V_SS + 3
VQ = V_K
SL = PART_BYTES

HEADER8 = """; FAVOR+ random-feature linear attention (B=1, H=32, S=2048, D=192, M=8; bf16 in/out), one fused launch.
;
;  2. The 8 workgroups of a head exchange their partial (kv, z) through d_ws (sc1 stores / loads).  Every dword
"""


def gen_final(opts):
    lm = MODS[opts.get("mod", 1)]
    wm = MODS[opts.get("wmod", 0)]
    sm = MODS[opts.get("smod", 2)]
    xm = MODS[2]
    prio = opts.get("prio", 1)
    SPIN = opts.get("spin", 0x4000)
    prof = opts.get("prof")
    qtail = opts.get("qtail", 0)
    S_TAIL = S_T1
    g = Gen(opts)
    e = g

    def dma_rows(srd, lo, hi, mod):
        last = None
        for j in range(lo, hi):
            T, jj = divmod(j, 6)
            grp = (T, jj >> 2)
            if grp != last:
                e("s_add_u32 m0, %s, %d" % (sr(S_XB), T * 6144 + (jj >> 2) * 4096))
                last = grp
            so = ((S_B0, S_B04), (S_B1, S_B14))[T][jj >> 2]
            e("buffer_load_dwordx4 v%d, %s, %s offen offset:%d%s lds" % (V_SW + jj, sr(srd, 4), sr(so), (jj & 3) * 1024, mod))

    def dma_w():
        e("s_mov_b32 m0, %s" % sr(S_PB))
        for jj in range(3):
            e("buffer_load_dwordx4 v%d, %s, 0 offen offset:%d%s lds" % (V_SW + jj, sr(SRD_W, 4), jj * 1024, wm))

    def read_frag(vbase, T):
        for t in range(6):
            e("ds_read_b128 %s, v%d offset:%d" % (vr(vbase + 24 * T + 4 * t, 4), (V_RE, V_RO)[t & 1], T * 6144 + (t >> 1) * 128))

    def read_w():
        for t in range(6):
            e("ds_read_b128 %s, v%d offset:%d" % (vr(V_W + 4 * t, 4), V_T + (t & 1), (t >> 1) * 128))

    def wait_tagwave(n_plain, tag):
        e("s_cmp_eq_u32 %s, 4" % sr(S_WAVE))
        e("s_cbranch_scc1 L_w4_%s" % tag)
        e("s_waitcnt vmcnt(%d)" % n_plain)
        e("s_branch L_wd_%s" % tag)
        e("L_w4_%s:" % tag)
        e("s_waitcnt vmcnt(%d)" % (n_plain + 1))
        e("L_wd_%s:" % tag)

    if prof:
        e("s_memrealtime s[96:97]")
    e("s_cmp_ge_u32 s2, 256")
    e("s_cbranch_scc1 L_end")
    fast = opts.get("fastpro", 3)
    cpf = opts.get("cpf", 1)

    def code_prefetch():
        e("; the first wave reads one dword per 128-B line of this kernel's code: warms the L2 for instruction fetch")
        e("s_getpc_b64 s[92:93]")
        e("L_pc:")
        e("v_lshlrev_b32 v11, 7, v0")
        e("v_min_u32 v12, L_end-L_pc, v11")
        e("v_cmp_gt_u32 vcc, 64, v0")
        e("s_and_saveexec_b64 s[94:95], vcc")
        e("s_cbranch_execz L_nocpf")
        e("global_load_dword v254, v12, s[92:93]")
        e("L_nocpf:")
        e("s_mov_b64 exec, s[94:95]")

    def sw(jj):
        if jj:
            e("v_add_u32 v11, %d, v%d" % (64 * jj, V_LANE))
        e("v_mul_u32_u24 v11, 1366, %s" % ("v11" if jj else "v%d" % V_LANE))
        e("v_lshrrev_b32 v11, 16, v11")
        e("v_xor_b32 v11, v11, v%d" % V_LANE)
        e("v_lshlrev_b32 v%d, 4, v11" % (V_SW + jj))

    def bases():
        e("; ---- head h = (wg & 7) | (wg >> 6) << 3, chunk c = (wg >> 3) & 7, byte bases of the 32 rows of this wave ----")
        if opts.get("xmap"):
            e("s_lshr_b32 %s, s2, 3" % sr(S_H))
            e("s_and_b32 %s, s2, 7" % sr(S_C))
        else:
            e("s_and_b32 %s, s2, 7" % sr(S_T0))
            e("s_lshr_b32 %s, s2, 6" % sr(S_T1))
            e("s_lshl_b32 %s, %s, 3" % (sr(S_T1), sr(S_T1)))
            e("s_or_b32 %s, %s, %s" % (sr(S_H), sr(S_T0), sr(S_T1)))
            e("s_bfe_u32 %s, s2, 0x30003" % sr(S_C))
        e("s_mul_i32 %s, %s, %d" % (sr(S_T0), sr(S_H), 2048 * RB))
        e("s_mul_i32 %s, %s, %d" % (sr(S_T1), sr(S_C), 256 * RB))
        e("s_add_u32 %s, %s, %s" % (sr(S_T0), sr(S_T0), sr(S_T1)))
        e("s_mul_i32 %s, %s, %d" % (sr(S_XB), sr(S_WAVE), 32 * RB))
        e("s_add_u32 %s, %s, %s" % (sr(S_B0), sr(S_T0), sr(S_XB)))
        e("s_add_u32 %s, %s, %d" % (sr(S_XB), sr(S_XB), X_XBUF))

    def bases2():
        e("s_add_u32 %s, %s, %d" % (sr(S_B1), sr(S_B0), 16 * RB))
        e("s_add_u32 %s, %s, 4096" % (sr(S_B04), sr(S_B0)))
        e("s_add_u32 %s, %s, 4096" % (sr(S_B14), sr(S_B1)))
        e("s_mul_i32 %s, %s, %d" % (sr(S_PB), sr(S_WAVE), PART_BYTES))
        e("s_add_u32 %s, %s, %d" % (sr(S_PB), sr(S_PB), X_PART))
        e("s_or_b32 %s, %s, %s" % (sr(S_CHOOSE), sr(S_H), sr(S_C)))
        e("s_or_b32 %s, %s, %s" % (sr(S_CHOOSE), sr(S_CHOOSE), sr(S_WAVE)))

    def words23(lst):
        for srd_, nbytes in lst:
            e("s_mov_b32 %s, 0x%x" % (sr(srd_ + 2), nbytes))
            e("s_mov_b32 %s, 0x20000" % sr(srd_ + 3))

    def prof_setup():
        if prof:
            e("s_lshl_b32 %s, s2, 3" % sr(S_PROF))
            e("s_add_u32 %s, %s, %s" % (sr(S_PROF), sr(S_PROF), sr(S_WAVE)))
            e("s_lshl_b32 %s, %s, 7" % (sr(S_PROF), sr(S_PROF)))
            e("s_add_u32 %s, %s, 0x%x" % (sr(S_PROF), sr(S_PROF), 128 << 20))
            for i_ in range(1, 12):
                e("s_mov_b64 %s, 0" % sr(S_ST0 + 2 * i_, 2))
            g.stamps = set(getattr(g, 'stamps', set()))
            g.stamps.add(12)
    ALL23 = ((SRD_K, TENSOR_BYTES), (SRD_W, 8 * RB), (SRD_V, TENSOR_BYTES), (SRD_WS, WS_BYTES),
             (SRD_DBG, 256), (SRD_Q, TENSOR_BYTES), (SRD_O, TENSOR_BYTES))
    if not fast:
        for srd_, off in ((SRD_K, 8), (SRD_W, 24), (SRD_V, 16), (SRD_WS, 48), (SRD_DBG, 40), (SRD_Q, 0), (SRD_O, 32)):
            e("s_load_dwordx2 %s, s[0:1], %d" % (sr(srd_, 2), off))
        if cpf:
            code_prefetch()
        e("v_and_b32 v%d, 63, v0" % V_LANE)
        e("v_lshrrev_b32 v8, 6, v0")
        e("v_mul_u32_u24 v11, 1366, v%d" % V_LANE)
        e("v_readfirstlane_b32 %s, v8" % sr(S_WAVE))
        e("v_lshrrev_b32 v11, 16, v11")
        e("v_xor_b32 v11, v11, v%d" % V_LANE)
        e("v_lshlrev_b32 v%d, 4, v11" % V_SW)
        for jj in range(1, 6):
            sw(jj)
        bases()
        bases2()
        words23(ALL23)
        if prio:
            e("s_setprio 3")
        prof_setup()
        e("s_waitcnt lgkmcnt(0)")
        g.stamp(0)
    elif fast in (2, 3):
        e("s_load_dwordx2 %s, s[0:1], 8" % sr(SRD_K, 2))
        if cpf:
            code_prefetch()
        e("v_and_b32 v%d, 63, v0" % V_LANE)
        e("v_lshrrev_b32 v8, 6, v0")
        e("v_add_u32 v12, 16, v%d" % V_LANE)
        e("v_readfirstlane_b32 %s, v8" % sr(S_WAVE))
        e("v_lshlrev_b32 v11, 4, v%d" % V_LANE)
        e("v_lshrrev_b32 v12, 2, v12")
        e("v_and_b32 v12, 16, v12")
        e("v_xor_b32 v%d, v11, v12" % V_SW)
        bases()
        words23(ALL23[:1])
        e("s_mov_b32 m0, %s" % sr(S_XB))
        if prio:
            e("s_setprio 3")
        e("s_waitcnt lgkmcnt(0)")
        g.stamp(0)

        def kdma(jj, T):
            so = ((S_B0, S_B04), (S_B1, S_B14))[T][jj >> 2]
            e("buffer_load_dwordx4 v%d, %s, %s offen offset:%d%s lds" % (V_SW + jj, sr(SRD_K, 4), sr(so), (jj & 3) * 1024, lm))
        kdma(0, 0)

        def other_pointers():
            for srd_, off in ((SRD_W, 24), (SRD_V, 16), (SRD_WS, 48), (SRD_DBG, 40), (SRD_Q, 0), (SRD_O, 32)):
                e("s_load_dwordx2 %s, s[0:1], %d" % (sr(srd_, 2), off))
        if fast == 3:
            other_pointers()
        e("v_lshrrev_b32 v13, 1, v%d" % V_LANE)
        e("v_and_b32 v13, 16, v13")
        e("v_add_u32 v14, 16, v13")
        e("v_xor_b32 v%d, v11, v14" % (V_SW + 1))
        kdma(1, 0)
        e("v_add_u32 v15, 48, v%d" % V_LANE)
        e("v_lshrrev_b32 v15, 2, v15")
        e("v_and_b32 v15, 16, v15")
        e("v_add_u32 v14, 32, v15")
        e("v_xor_b32 v%d, v11, v14" % (V_SW + 2))
        kdma(2, 0)
        e("v_add_u32 v14, 64, v12")
        e("v_xor_b32 v%d, v11, v14" % (V_SW + 3))
        kdma(3, 0)
        e("v_add_u32 v14, 80, v13")
        e("s_add_u32 %s, %s, 4096" % (sr(S_B04), sr(S_B0)))
        e("s_add_u32 m0, %s, 4096" % sr(S_XB))
        e("v_xor_b32 v%d, v11, v14" % (V_SW + 4))
        kdma(4, 0)
        e("v_add_u32 v14, 96, v15")
        e("s_add_u32 %s, %s, %d" % (sr(S_B1), sr(S_B0), 16 * RB))
        e("v_xor_b32 v%d, v11, v14" % (V_SW + 5))
        kdma(5, 0)
        e("s_add_u32 %s, %s, 4096" % (sr(S_B14), sr(S_B1)))
        if fast == 2:
            e("s_add_u32 m0, %s, 6144" % sr(S_XB))
            e("s_nop 0")
            for jj in range(4):
                kdma(jj, 1)
            e("s_add_u32 m0, %s, 10240" % sr(S_XB))
            other_pointers()
            kdma(4, 1)
            kdma(5, 1)
        e("s_mul_i32 %s, %s, %d" % (sr(S_PB), sr(S_WAVE), PART_BYTES))
        e("s_add_u32 %s, %s, %d" % (sr(S_PB), sr(S_PB), X_PART))
        e("s_or_b32 %s, %s, %s" % (sr(S_CHOOSE), sr(S_H), sr(S_C)))
        e("s_or_b32 %s, %s, %s" % (sr(S_CHOOSE), sr(S_CHOOSE), sr(S_WAVE)))
        words23(ALL23[1:])
        prof_setup()
        e("s_waitcnt lgkmcnt(0)")
    else:
        e("s_load_dwordx2 %s, s[0:1], 8" % sr(SRD_K, 2))
        if cpf:
            code_prefetch()
        e("v_and_b32 v%d, 63, v0" % V_LANE)
        e("v_lshrrev_b32 v8, 6, v0")
        e("v_mul_u32_u24 v11, 1366, v%d" % V_LANE)
        e("v_readfirstlane_b32 %s, v8" % sr(S_WAVE))
        e("v_lshrrev_b32 v11, 16, v11")
        e("v_xor_b32 v11, v11, v%d" % V_LANE)
        e("v_lshlrev_b32 v%d, 4, v11" % V_SW)
        bases()
        words23(ALL23[:1])
        e("s_mov_b32 m0, %s" % sr(S_XB))
        if prio:
            e("s_setprio 3")
        e("s_waitcnt lgkmcnt(0)")
        g.stamp(0)
        e("buffer_load_dwordx4 v%d, %s, %s offen offset:0%s lds" % (V_SW, sr(SRD_K, 4), sr(S_B0), lm))
        for srd_, off in ((SRD_W, 24), (SRD_V, 16), (SRD_WS, 48), (SRD_DBG, 40), (SRD_Q, 0), (SRD_O, 32)):
            e("s_load_dwordx2 %s, s[0:1], %d" % (sr(srd_, 2), off))
        for jj in range(1, 4):
            sw(jj)
            e("buffer_load_dwordx4 v%d, %s, %s offen offset:%d%s lds" % (V_SW + jj, sr(SRD_K, 4), sr(S_B0), jj * 1024, lm))
        sw(4)
        sw(5)
        bases2()
        words23(ALL23[1:])
        prof_setup()
        e("s_waitcnt lgkmcnt(0)")
    if prof:
        e("s_mov_b64 %s, s[96:97]" % sr(S_ST0 + 24, 2))
    e("v_mov_b32 v%d, 0" % V_B0)
    e("v_and_b32 v9, 15, v0")
    e("v_bfe_u32 v10, v0, 4, 2")

    def kv_stream(sfx, thr):
        mark = len(g.L)
        if fast < 2:
            dma_rows(SRD_K, 4 if fast else 0, 6, lm)
        dma_w()
        e("s_cmp_lg_u32 %s, 0" % sr(S_CHOOSE))
        e("s_cbranch_scc1 L_nochoose%s" % sfx)
        e("buffer_load_dword v%d, v%d, %s, 0 offen%s" % (V_B1, V_B0, sr(SRD_WS, 4), xm))
        e("L_nochoose%s:" % sfx)
        if fast != 2:
            dma_rows(SRD_K, 6, 12, lm)
        e("v_mul_u32_u24 v13, %d, v10" % (4 * RB))
        e("v_lshlrev_b32 v14, 4, v9")
        e("v_add_u32 v%d, v13, v14" % V_OVA)
        e("v_lshlrev_b32 v14, 3, v9")
        e("v_add_u32 v13, 256, v13")
        e("v_add_u32 v%d, v13, v14" % V_OVB)
        g.load_v(lm)
        if thr:
            body = g.L[mark:]
            del g.L[mark:]
            n = (0, 4, 12, 6)[fast]
            for l in body:
                g.L.append(l)
                if "buffer_load" in l and "sc1" not in l:
                    n += 1
                    if n >= thr:
                        g.L.append("    s_waitcnt vmcnt(%d)" % (thr - 1))
    evthr = opts.get("evthr", 12)
    tab = opts.get("thrtab")
    if tab is None:
        tab = [evthr if (x & 1) == opts.get("evpar", 0) else 0 for x in range(8)]
    levels = sorted(set(tab))
    if levels != [0]:
        e("; dies with an even id win the fabric arbitration: they keep at most 12 loads per wave in flight (speed only)")
        e("s_getreg_b32 %s, hwreg(HW_REG_XCC_ID, 0, 3)" % sr(S_T0))
        e("s_lshl_b32 %s, 1, %s" % (sr(S_T0), sr(S_T0)))
        for lv in levels[1:]:
            mask = sum(1 << x for x in range(8) if tab[x] == lv)
            e("s_and_b32 %s, %s, 0x%x" % (sr(S_T1), sr(S_T0), mask))
            e("s_cbranch_scc1 L_thr%d" % lv)
        kv_stream("L%d" % levels[0], levels[0])
        e("s_branch L_kvdone")
        for n_, lv in enumerate(levels[1:]):
            e("L_thr%d:" % lv)
            kv_stream("L%d" % lv, lv)
            if n_ < len(levels) - 2:
                e("s_branch L_kvdone")
        e("L_kvdone:")
    else:
        kv_stream("", 0)
    e("s_cmp_lg_u32 %s, 4" % sr(S_WAVE))
    e("s_cbranch_scc1 L_issued")
    e("buffer_load_dword v%d, v%d, %s, 0 offen sc1" % (V_B0 + 1, V_B0, sr(SRD_DBG, 4)))
    e("L_issued:")
    tlbpf = opts.get("tlbpf", 0)
    if prio:
        e("s_setprio 0")
    e("s_mul_i32 %s, %s, %d" % (sr(S_HPART), sr(S_H), 8 * SL))
    e("s_mul_i32 %s, %s, %d" % (sr(S_T1), sr(S_C), SL))
    e("s_add_u32 %s, %s, %s" % (sr(S_PART), sr(S_HPART), sr(S_T1)))
    e("s_mov_b32 %s, 0x05040100" % sr(S_SELLO))
    e("s_mov_b32 %s, 0x07060302" % sr(S_SELHI))
    e("s_mov_b32 %s, %s" % (sr(S_CEXP), hx(f32(C_EXP))))
    e("s_mov_b32 %s, 0x%x" % (sr(S_MASK), 0xFFFFFFFF ^ TAGMASK))
    e("v_mov_b32 v%d, %s" % (V_CSQ, hx(f32(C_SQ))))
    e("v_mov_b32 v%d, %s" % (V_M15, hx(f32(C_BIAS))))
    e("v_lshrrev_b32 v11, 1, v9")
    e("v_mul_u32_u24 v12, %d, v9" % RB)
    e("v_add_u32 v12, %s, v12" % sr(S_XB))
    e("v_xor_b32 v13, v10, v11")
    e("v_lshl_add_u32 v%d, v13, 4, v12" % V_RE)
    e("v_xor_b32 v13, 4, v13")
    e("v_lshl_add_u32 v%d, v13, 4, v12" % V_RO)
    e("v_and_b32 v9, 7, v9")
    e("v_lshrrev_b32 v11, 1, v9")
    e("v_mul_u32_u24 v12, %d, v9" % RB)
    e("v_add_u32 v12, %s, v12" % sr(S_PB))
    e("v_xor_b32 v13, v10, v11")
    e("v_lshl_add_u32 v%d, v13, 4, v12" % V_T)
    e("v_xor_b32 v13, 4, v13")
    e("v_lshl_add_u32 v%d, v13, 4, v12" % (V_T + 1))
    def chooser_publish():
        e("s_cmp_lg_u32 %s, 0" % sr(S_CHOOSE))
        e("s_cbranch_scc1 L_notchooser")
        if prio:
            e("s_setprio 3")
        e("v_add_u32 v%d, 1, v%d" % (V_B1, V_B1))
        e("v_and_b32 v%d, 0x%x, v%d" % (V_B1, TAGMASK, V_B1))
        e("v_or_b32 v%d, 0x80000000, v%d" % (V_B1, V_B1))
        e("s_mov_b64 exec, 1")
        e("buffer_store_dword v%d, v%d, %s, 0 offen%s" % (V_B1, V_B0, sr(SRD_DBG, 4), xm))
        e("s_mov_b64 exec, -1")
        if prio:
            e("s_setprio 0")
        e("L_notchooser:")
    if fast == 2:
        wait_tagwave(16, "k")
        read_w()
        read_frag(V_K, 0)
        chooser_publish()
        e("s_waitcnt lgkmcnt(6)")
        read_frag(V_K, 1)
        e("s_waitcnt lgkmcnt(6)")
    else:
        wait_tagwave(22, "k0")
        read_w()
        read_frag(V_K, 0)
        wait_tagwave(16, "k1")
        chooser_publish()
        e("s_waitcnt lgkmcnt(6)")
        read_frag(V_K, 1)
        e("s_waitcnt lgkmcnt(6)")
    g.proj(V_K, 0, True)
    e("s_waitcnt lgkmcnt(0)")
    g.proj(V_K, 1, True)
    g.phi(0)
    g.phi(1)
    g.kv_mfma()
    g.stamp(1)
    e("s_waitcnt vmcnt(0)")
    e("s_cmp_lt_u32 %s, 4" % sr(S_WAVE))
    e("s_cbranch_scc1 L_vready")
    if prio:
        e("s_setprio 3")
    e("s_cmp_lg_u32 %s, 4" % sr(S_WAVE))
    e("s_cbranch_scc1 L_vready")
    e("v_readfirstlane_b32 %s, v%d" % (sr(S_N), V_B0 + 1))
    e("s_cmp_lt_i32 %s, 0" % sr(S_N))
    e("s_cbranch_scc1 L_tagput")
    e("s_mov_b32 %s, 0x%x" % (sr(S_T2), SPIN))
    e("L_tagspin:")
    e("buffer_load_dword v%d, v%d, %s, 0 offen sc1" % (V_B0 + 1, V_B0, sr(SRD_DBG, 4)))
    e("s_waitcnt vmcnt(0)")
    e("v_readfirstlane_b32 %s, v%d" % (sr(S_N), V_B0 + 1))
    e("s_sub_u32 %s, %s, 1" % (sr(S_T2), sr(S_T2)))
    e("s_cmp_eq_u32 %s, 0" % sr(S_T2))
    e("s_cbranch_scc1 L_tagput")
    e("s_cmp_ge_i32 %s, 0" % sr(S_N))
    e("s_cbranch_scc1 L_tagspin")
    e("L_tagput:")
    e("s_and_b32 %s, %s, 0x%x" % (sr(S_N), sr(S_N), TAGMASK))
    e("v_mov_b32 v%d, %s" % (V_B0 + 1, sr(S_N)))
    e("v_mov_b32 v%d, %d" % (V_B0, X_N))
    e("ds_write_b32 v%d, v%d" % (V_B0, V_B0 + 1))
    e("L_vready:")
    g.stamp(2)
    g.kv_tiles()
    e("v_lshlrev_b32 v%d, 4, v%d" % (V_B0, V_LANE))
    e("v_add_u32 v%d, %s, v%d" % (V_B0, sr(S_PB), V_B0))
    e("s_mov_b32 exec_lo, -1")
    e("s_mov_b32 exec_hi, 0")
    for tau in range(13):
        e("ds_write_b128 v%d, %s offset:%d" % (V_B0, vr(V_ACC + 4 * tau, 4), tau * 512))
    e("s_mov_b64 exec, -1")
    e("s_cmp_ge_u32 %s, 4" % sr(S_WAVE))
    e("s_cbranch_scc1 L_noq1")
    if tlbpf:
        e("s_cmp_lg_u32 %s, %d" % (sr(S_WAVE), opts.get("tlbw", 1)))
        e("s_cbranch_scc1 L_notlb")
        e("v_mov_b32 v%d, 0" % (V_STG + 2))
        if tlbpf & 1:
            e("buffer_load_dword v%d, v%d, %s, %s offen nt" % (V_STG, V_STG + 2, sr(SRD_O, 4), sr(S_B0)))
        if tlbpf & 2:
            e("buffer_load_dword v%d, v%d, %s, %s offen nt" % (V_STG + 1, V_STG + 2, sr(SRD_WS, 4), sr(S_PART)))
        e("L_notlb:")
    dma_rows(SRD_Q, 0, 12, lm)
    e("L_noq1:")
    g.stamp(10)
    if prio:
        e("s_setprio 3")
    e("v_min_u32 v%d, 415, v0" % (V_B1 + 1))
    e("v_lshlrev_b32 v%d, 4, v%d" % (V_B1, V_B1 + 1))
    e("v_add_u32 v%d, %d, v%d" % (V_B1 + 2, X_PART, V_B1))
    e("v_mov_b32 v%d, %d" % (V_B0, X_N))
    e("s_waitcnt lgkmcnt(0)")
    e("s_barrier")
    g.stamp(3)
    e("ds_read_b32 v%d, v%d" % (V_CNT, V_B0))
    for w in range(8):
        e("ds_read_b128 %s, v%d offset:%d" % (vr(V_ACC + 4 * w, 4), V_B1 + 2, w * PART_BYTES))
    for w in range(1, 8):
        e("s_waitcnt lgkmcnt(%d)" % (7 - w))
        for r in range(4):
            e("v_add_f32 v%d, v%d, v%d" % (V_ACC + r, V_ACC + r, V_ACC + 4 * w + r))
    for r in range(4):
        e("v_bfi_b32 v%d, %s, v%d, v%d" % (V_ACC + r, sr(S_MASK), V_ACC + r, V_CNT))
    e("buffer_store_dwordx4 %s, v%d, %s, %s offen%s" % (vr(V_ACC, 4), V_B1, sr(SRD_WS, 4), sr(S_PART), xm))
    g.stamp(4)
    V_N = V_B0 + 2
    e("v_mov_b32 v%d, v%d" % (V_N, V_CNT))
    e("s_cmp_lt_u32 %s, 4" % sr(S_WAVE))
    e("s_cbranch_scc1 L_early")
    dma_rows(SRD_Q, 0, 12 - qtail, lm)
    g.table_addr(V_B1 + 1)
    e("s_waitcnt vmcnt(%d)" % (12 - qtail))
    e("s_branch L_pbar")
    e("L_early:")
    g.table_addr(V_B1 + 1)
    e("s_waitcnt vmcnt(1)")
    e("L_qproj:")
    read_frag(VQ, 0)
    read_frag(VQ, 1)
    e("s_waitcnt lgkmcnt(6)")
    g.proj(VQ, 0, False)
    g.phi(0)
    g.pack_phi_q(0)
    e("s_waitcnt lgkmcnt(0)")
    g.proj(VQ, 1, False)
    g.phi(1)
    g.pack_phi_q(1)
    e("s_cmp_ge_u32 %s, 4" % sr(S_WAVE))
    e("s_cbranch_scc1 L_out")
    e("s_waitcnt vmcnt(0)")
    e("L_pbar:")
    e("s_barrier")
    PL = V_ACC + 4
    M = V_ACC + 36
    a = V_ACC
    e("s_mov_b32 %s, 0x%x" % (sr(S_T2), SPIN))
    e("s_mov_b32 %s, 0" % sr(S_TAIL))
    e("s_cmp_eq_u32 %s, 7" % sr(S_WAVE))
    e("s_cbranch_scc1 L_skip7")

    def gather_loads():
        e("s_mov_b32 %s, %s" % (sr(S_T0), sr(S_HPART)))
        for c in range(8):
            e("buffer_load_dwordx4 %s, v%d, %s, %s offen%s" % (vr(PL + 4 * c, 4), V_B1, sr(SRD_WS, 4), sr(S_T0), xm))
            if c < 7:
                e("s_add_u32 %s, %s, %d" % (sr(S_T0), sr(S_T0), SL))

    def slot(c):
        for r in range(4):
            e("v_xor_b32 v%d, v%d, v%d" % (PL + 4 * c + r, PL + 4 * c + r, V_N))
        if c == 0:
            e("v_or3_b32 v%d, v%d, v%d, v%d" % (M, PL, PL + 1, PL + 2))
            e("v_or_b32 v%d, v%d, v%d" % (M, M, PL + 3))
        else:
            e("v_or3_b32 v%d, v%d, v%d, v%d" % (M, M, PL + 4 * c, PL + 4 * c + 1))
            e("v_or3_b32 v%d, v%d, v%d, v%d" % (M, M, PL + 4 * c + 2, PL + 4 * c + 3))
        if c == 1:
            for r in range(4):
                e("v_add_f32 v%d, v%d, v%d" % (a + r, PL + r, PL + 4 + r))
        elif c > 1:
            for r in range(4):
                e("v_add_f32 v%d, v%d, v%d" % (a + r, a + r, PL + 4 * c + r))
    if qtail == 0:
        e("L_retry:")
        gather_loads()
        g.stamp(11)
        for c in range(8):
            e("s_waitcnt vmcnt(%d)" % (7 - c))
            slot(c)
    else:
        gather_loads()
        e("s_cmp_lt_u32 %s, 4" % sr(S_WAVE))
        e("s_cbranch_scc1 L_gwait")
        dma_rows(SRD_Q, 12 - qtail, 12, lm)
        e("s_mov_b32 %s, 1" % sr(S_TAIL))
        e("s_branch L_gwait")
        e("L_retry:")
        e("s_mov_b32 %s, 0" % sr(S_TAIL))
        gather_loads()
        e("L_gwait:")
        g.stamp(11)
        for half in range(2):
            n = 4 - 4 * half
            e("s_cmp_eq_u32 %s, 0" % sr(S_TAIL))
            e("s_cbranch_scc1 L_gw%d" % half)
            e("s_waitcnt vmcnt(%d)" % (n + qtail))
            e("s_branch L_gd%d" % half)
            e("L_gw%d:" % half)
            e("s_waitcnt vmcnt(%d)" % n)
            e("L_gd%d:" % half)
            for c in range(4 * half, 4 * half + 4):
                slot(c)
    e("v_and_b32 v%d, 0x%x, v%d" % (M, TAGMASK, M))
    e("v_cmp_ne_u32 %s, 0, v%d" % (sr(S_EXEC, 2), M))
    e("s_sub_u32 %s, %s, 1" % (sr(S_T2), sr(S_T2)))
    e("s_cmp_eq_u32 %s, 0" % sr(S_T2))
    e("s_cbranch_scc1 L_got")
    e("s_cmp_lg_u64 %s, 0" % sr(S_EXEC, 2))
    e("s_cbranch_scc1 L_retry")
    e("L_got:")
    g.stamp(6)
    if prof:
        e("s_sub_u32 %s, 0x%x, %s" % (sr(S_T3), SPIN, sr(S_T2)))
    g.hilo_write(X_TAB)
    e("s_waitcnt lgkmcnt(0)")
    e("s_branch L_C")
    e("L_skip7:")
    if qtail:
        dma_rows(SRD_Q, 12 - qtail, 12, lm)
    e("s_waitcnt vmcnt(0)")
    if prof:
        e("s_mov_b32 %s, 1" % sr(S_T3))
    e("L_C:")
    e("s_barrier")
    g.stamp(7)
    g.read_table(X_TAB)
    e("s_cmp_lt_u32 %s, 4" % sr(S_WAVE))
    e("s_cbranch_scc1 L_out")
    if prio:
        e("s_setprio 0")
    e("s_waitcnt vmcnt(0) lgkmcnt(0)")
    e("s_branch L_qproj")
    e("L_out:")
    g.stamp(5)
    e("s_waitcnt lgkmcnt(0)")
    e("v_lshlrev_b32 v%d, 4, v%d" % (V_T, V_LANE))
    e("v_add_u32 v%d, %s, v%d" % (V_T, sr(S_XB), V_T))

    def out_compute(T, accbase):
        den = accbase + 48
        e("v_mfma_f32_16x16x16_bf16 %s, %s, %s, 0" % (vr(den, 4), vr(V_AT + 24, 2), vr(V_P + 2 * T, 2)))
        for t in range(12):
            e("v_mfma_f32_16x16x16_bf16 %s, %s, %s, 0" % (vr(accbase + 4 * t, 4), vr(V_AT + 2 * t, 2), vr(V_P + 2 * T, 2)))
        e("v_add_f32 v%d, %s, v%d" % (den, hx(f32(1e-6)), den))
        e("v_rcp_f32 v%d, v%d" % (den, den))
        for u in range(6):
            x = accbase + 8 * u
            for r in range(8):
                e("v_mul_f32 v%d, v%d, v%d" % (x + r, x + r, den))
            for r in range(4):
                e("v_cvt_pk_bf16_f32 v%d, v%d, v%d" % (x + r, x + 2 * r, x + 2 * r + 1))
            e("ds_write_b128 v%d, %s offset:%d" % ((V_RE, V_RO)[u & 1], vr(x, 4), T * 6144 + (u >> 1) * 128))

    def out_store(T, stg):
        for jj in range(6):
            e("ds_read_b128 %s, v%d offset:%d" % (vr(stg + 4 * jj, 4), V_T, T * 6144 + jj * 1024))
        for jj in range(6):
            e("s_waitcnt lgkmcnt(%d)" % (5 - jj))
            so = ((S_B0, S_B04), (S_B1, S_B14))[T][jj >> 2]
            e("buffer_store_dwordx4 %s, v%d, %s, %s offen offset:%d%s" % (
                vr(stg + 4 * jj, 4), V_SW + jj, sr(SRD_O, 4), sr(so), (jj & 3) * 1024, sm))
    out_compute(0, V_ACC)
    e("s_waitcnt lgkmcnt(0)")
    out_store(0, V_STG)
    out_compute(1, V_K - 4)
    e("s_waitcnt lgkmcnt(0)")
    out_store(1, V_ACC)
    g.stamp(8)
    if prof:
        e("s_waitcnt vmcnt(0)")
        g.stamp(9)
        e("s_getreg_b32 %s, hwreg(HW_REG_XCC_ID)" % sr(S_ST0 + 28))
        e("s_and_b32 %s, %s, 15" % (sr(S_ST0 + 28), sr(S_ST0 + 28)))
        e("s_add_u32 %s, %s, 1" % (sr(S_ST0 + 28), sr(S_ST0 + 28)))
        e("s_mov_b32 %s, 0" % sr(S_ST0 + 29))
        g.stamps.add(14)
        g.flush_stamps()
        e("v_mov_b32 v254, %s" % sr(S_T3))
        e("v_mov_b32 v255, 0")
        e("buffer_store_dwordx2 v[254:255], v253, %s, 0 offen offset:%d" % (sr(SRD_WS, 4), 15 * 8))
    e("L_end:")
    e("s_endpgm")
    txt = HEADER8
    txt += "; @launch grid=(256,1,1) block=(512,1,1) lds=%d\n" % X_END
    txt += '.amdgcn_target "amdgcn-amd-amdhsa--gfx950"\n'
    txt += kernel_text(NAME + "_kernel", g)
    txt += kd(NAME + "_kernel")
    return txt


if __name__ == "__main__":
    import argparse
    ap = argparse.ArgumentParser()
    ap.add_argument("-o", default="cdna_kernels/%s.s" % NAME)
    ap.add_argument("--opt", action="append", default=[])
    a = ap.parse_args()
    opts = {}
    for kv in a.opt:
        k, _, v = kv.partition("=")
        opts[k] = ([int(x) for x in v.split(",")] if "," in v else (int(v, 0) if v else 1))
    txt = gen_final(opts)
    open(a.o, "w").write(txt)
    print("wrote", a.o, len(txt))
```

```python
import os, sys
sys.path.insert(0, os.path.dirname(os.path.abspath(__file__)))
from gen import *
import gen as G

X_TAB = 0
X_N = PART_BYTES
X_PART = PART_BYTES + 128
X_XBUF = X_PART + 8 * PART_BYTES
X_END = X_XBUF + 8 * 12288

V_RE, V_RO = 2, 5
V_SW = 128
V_T = 134
V_STG = 136
S_B04, S_B14, S_XB, S_PB, S_CHOOSE = 99, 100, 101, 19, 3
S_MASK = 61
S_N = S_CNT
V_CNT = V_SS + 3
VQ = V_K
SL = PART_BYTES

HEADER8 = """; FAVOR+ random-feature linear attention (B=1, H=32, S=2048, D=192, M=8; bf16 in/out), one fused launch.
;
;  2. The 8 workgroups of a head exchange their partial (kv, z) through d_ws (sc1 stores / loads).  Every dword
"""


def gen_final(opts):
    lm = MODS[opts.get("mod", 1)]
    wm = MODS[opts.get("wmod", 0)]
    sm = MODS[opts.get("smod", 2)]
    xm = MODS[2]
    prio = opts.get("prio", 1)
    SPIN = opts.get("spin", 0x4000)
    prof = opts.get("prof")
    tailopt = opts.get("tailopt", 1)
    qtail = opts.get("qtail", 0)
    S_TAIL = S_T1
    g = Gen(opts)
    e = g

    def dma_rows(srd, lo, hi, mod):
        last = None
        for j in range(lo, hi):
            T, jj = divmod(j, 6)
            grp = (T, jj >> 2)
            if grp != last:
                e("s_add_u32 m0, %s, %d" % (sr(S_XB), T * 6144 + (jj >> 2) * 4096))
                last = grp
            so = ((S_B0, S_B04), (S_B1, S_B14))[T][jj >> 2]
            e("buffer_load_dwordx4 v%d, %s, %s offen offset:%d%s lds" % (V_SW + jj, sr(srd, 4), sr(so), (jj & 3) * 1024, mod))

    def dma_w():
        e("s_mov_b32 m0, %s" % sr(S_PB))
        for jj in range(3):
            e("buffer_load_dwordx4 v%d, %s, 0 offen offset:%d%s lds" % (V_SW + jj, sr(SRD_W, 4), jj * 1024, wm))

    def read_frag(vbase, T):
        for t in range(6):
            e("ds_read_b128 %s, v%d offset:%d" % (vr(vbase + 24 * T + 4 * t, 4), (V_RE, V_RO)[t & 1], T * 6144 + (t >> 1) * 128))

    def read_w():
        for t in range(6):
            e("ds_read_b128 %s, v%d offset:%d" % (vr(V_W + 4 * t, 4), V_T + (t & 1), (t >> 1) * 128))

    def wait_tagwave(n_plain, tag):
        e("s_cmp_eq_u32 %s, 4" % sr(S_WAVE))
        e("s_cbranch_scc1 L_w4_%s" % tag)
        e("s_waitcnt vmcnt(%d)" % n_plain)
        e("s_branch L_wd_%s" % tag)
        e("L_w4_%s:" % tag)
        e("s_waitcnt vmcnt(%d)" % (n_plain + 1))
        e("L_wd_%s:" % tag)

    if prof:
        e("s_memrealtime s[96:97]")
    e("s_cmp_ge_u32 s2, 256")
    e("s_cbranch_scc1 L_end")
    fast = opts.get("fastpro", 3)
    cpf = opts.get("cpf", 1)

    def code_prefetch():
        e("; the first wave reads one dword per 128-B line of this kernel's code: warms the L2 for instruction fetch")
        e("s_getpc_b64 s[92:93]")
        e("L_pc:")
        e("v_lshlrev_b32 v11, 7, v0")
        e("v_min_u32 v12, L_end-L_pc, v11")
        e("v_cmp_gt_u32 vcc, 64, v0")
        e("s_and_saveexec_b64 s[94:95], vcc")
        e("s_cbranch_execz L_nocpf")
        e("global_load_dword v254, v12, s[92:93]")
        e("L_nocpf:")
        e("s_mov_b64 exec, s[94:95]")

    def sw(jj):
        if jj:
            e("v_add_u32 v11, %d, v%d" % (64 * jj, V_LANE))
        e("v_mul_u32_u24 v11, 1366, %s" % ("v11" if jj else "v%d" % V_LANE))
        e("v_lshrrev_b32 v11, 16, v11")
        e("v_xor_b32 v11, v11, v%d" % V_LANE)
        e("v_lshlrev_b32 v%d, 4, v11" % (V_SW + jj))

    def bases():
        e("; ---- head h = (wg & 7) | (wg >> 6) << 3, chunk c = (wg >> 3) & 7, byte bases of the 32 rows of this wave ----")
        if opts.get("xmap"):
            e("s_lshr_b32 %s, s2, 3" % sr(S_H))
            e("s_and_b32 %s, s2, 7" % sr(S_C))
        else:
            e("s_and_b32 %s, s2, 7" % sr(S_T0))
            e("s_lshr_b32 %s, s2, 6" % sr(S_T1))
            e("s_lshl_b32 %s, %s, 3" % (sr(S_T1), sr(S_T1)))
            e("s_or_b32 %s, %s, %s" % (sr(S_H), sr(S_T0), sr(S_T1)))
            e("s_bfe_u32 %s, s2, 0x30003" % sr(S_C))
        e("s_mul_i32 %s, %s, %d" % (sr(S_T0), sr(S_H), 2048 * RB))
        e("s_mul_i32 %s, %s, %d" % (sr(S_T1), sr(S_C), 256 * RB))
        e("s_add_u32 %s, %s, %s" % (sr(S_T0), sr(S_T0), sr(S_T1)))
        e("s_mul_i32 %s, %s, %d" % (sr(S_XB), sr(S_WAVE), 32 * RB))
        e("s_add_u32 %s, %s, %s" % (sr(S_B0), sr(S_T0), sr(S_XB)))
        e("s_add_u32 %s, %s, %d" % (sr(S_XB), sr(S_XB), X_XBUF))

    def bases2():
        e("s_add_u32 %s, %s, %d" % (sr(S_B1), sr(S_B0), 16 * RB))
        e("s_add_u32 %s, %s, 4096" % (sr(S_B04), sr(S_B0)))
        e("s_add_u32 %s, %s, 4096" % (sr(S_B14), sr(S_B1)))
        e("s_mul_i32 %s, %s, %d" % (sr(S_PB), sr(S_WAVE), PART_BYTES))
        e("s_add_u32 %s, %s, %d" % (sr(S_PB), sr(S_PB), X_PART))
        e("s_or_b32 %s, %s, %s" % (sr(S_CHOOSE), sr(S_H), sr(S_C)))
        e("s_or_b32 %s, %s, %s" % (sr(S_CHOOSE), sr(S_CHOOSE), sr(S_WAVE)))

    def words23(lst):
        for srd_, nbytes in lst:
            e("s_mov_b32 %s, 0x%x" % (sr(srd_ + 2), nbytes))
            e("s_mov_b32 %s, 0x20000" % sr(srd_ + 3))

    def prof_setup():
        if prof:
            e("s_lshl_b32 %s, s2, 3" % sr(S_PROF))
            e("s_add_u32 %s, %s, %s" % (sr(S_PROF), sr(S_PROF), sr(S_WAVE)))
            e("s_lshl_b32 %s, %s, 7" % (sr(S_PROF), sr(S_PROF)))
            e("s_add_u32 %s, %s, 0x%x" % (sr(S_PROF), sr(S_PROF), 128 << 20))
            for i_ in range(1, 12):
                e("s_mov_b64 %s, 0" % sr(S_ST0 + 2 * i_, 2))
            e("s_mov_b64 s[94:95], 0")
            g.stamps = set(getattr(g, 'stamps', set()))
            g.stamps.add(12)
    ALL23 = ((SRD_K, TENSOR_BYTES), (SRD_W, 8 * RB), (SRD_V, TENSOR_BYTES), (SRD_WS, WS_BYTES),
             (SRD_DBG, 256), (SRD_Q, TENSOR_BYTES), (SRD_O, TENSOR_BYTES))
    if not fast:
        for srd_, off in ((SRD_K, 8), (SRD_W, 24), (SRD_V, 16), (SRD_WS, 48), (SRD_DBG, 40), (SRD_Q, 0), (SRD_O, 32)):
            e("s_load_dwordx2 %s, s[0:1], %d" % (sr(srd_, 2), off))
        if cpf:
            code_prefetch()
        e("v_and_b32 v%d, 63, v0" % V_LANE)
        e("v_lshrrev_b32 v8, 6, v0")
        e("v_mul_u32_u24 v11, 1366, v%d" % V_LANE)
        e("v_readfirstlane_b32 %s, v8" % sr(S_WAVE))
        e("v_lshrrev_b32 v11, 16, v11")
        e("v_xor_b32 v11, v11, v%d" % V_LANE)
        e("v_lshlrev_b32 v%d, 4, v11" % V_SW)
        for jj in range(1, 6):
            sw(jj)
        bases()
        bases2()
        words23(ALL23)
        if prio:
            e("s_setprio 3")
        prof_setup()
        e("s_waitcnt lgkmcnt(0)")
        g.stamp(0)
    elif fast in (2, 3):
        e("s_load_dwordx2 %s, s[0:1], 8" % sr(SRD_K, 2))
        if cpf:
            code_prefetch()
        e("v_and_b32 v%d, 63, v0" % V_LANE)
        e("v_lshrrev_b32 v8, 6, v0")
        e("v_add_u32 v12, 16, v%d" % V_LANE)
        e("v_readfirstlane_b32 %s, v8" % sr(S_WAVE))
        e("v_lshlrev_b32 v11, 4, v%d" % V_LANE)
        e("v_lshrrev_b32 v12, 2, v12")
        e("v_and_b32 v12, 16, v12")
        e("v_xor_b32 v%d, v11, v12" % V_SW)
        bases()
        words23(ALL23[:1])
        e("s_mov_b32 m0, %s" % sr(S_XB))
        if prio:
            e("s_setprio 3")
        e("s_waitcnt lgkmcnt(0)")
        g.stamp(0)

        def kdma(jj, T):
            so = ((S_B0, S_B04), (S_B1, S_B14))[T][jj >> 2]
            e("buffer_load_dwordx4 v%d, %s, %s offen offset:%d%s lds" % (V_SW + jj, sr(SRD_K, 4), sr(so), (jj & 3) * 1024, lm))
        kdma(0, 0)

        def other_pointers():
            for srd_, off in ((SRD_W, 24), (SRD_V, 16), (SRD_WS, 48), (SRD_DBG, 40), (SRD_Q, 0), (SRD_O, 32)):
                e("s_load_dwordx2 %s, s[0:1], %d" % (sr(srd_, 2), off))
        if fast == 3:
            other_pointers()
        e("v_lshrrev_b32 v13, 1, v%d" % V_LANE)
        e("v_and_b32 v13, 16, v13")
        e("v_add_u32 v14, 16, v13")
        e("v_xor_b32 v%d, v11, v14" % (V_SW + 1))
        kdma(1, 0)
        e("v_add_u32 v15, 48, v%d" % V_LANE)
        e("v_lshrrev_b32 v15, 2, v15")
        e("v_and_b32 v15, 16, v15")
        e("v_add_u32 v14, 32, v15")
        e("v_xor_b32 v%d, v11, v14" % (V_SW + 2))
        kdma(2, 0)
        e("v_add_u32 v14, 64, v12")
        e("v_xor_b32 v%d, v11, v14" % (V_SW + 3))
        kdma(3, 0)
        e("v_add_u32 v14, 80, v13")
        e("s_add_u32 %s, %s, 4096" % (sr(S_B04), sr(S_B0)))
        e("s_add_u32 m0, %s, 4096" % sr(S_XB))
        e("v_xor_b32 v%d, v11, v14" % (V_SW + 4))
        kdma(4, 0)
        e("v_add_u32 v14, 96, v15")
        e("s_add_u32 %s, %s, %d" % (sr(S_B1), sr(S_B0), 16 * RB))
        e("v_xor_b32 v%d, v11, v14" % (V_SW + 5))
        kdma(5, 0)
        e("s_add_u32 %s, %s, 4096" % (sr(S_B14), sr(S_B1)))
        if fast == 2:
            e("s_add_u32 m0, %s, 6144" % sr(S_XB))
            e("s_nop 0")
            for jj in range(4):
                kdma(jj, 1)
            e("s_add_u32 m0, %s, 10240" % sr(S_XB))
            other_pointers()
            kdma(4, 1)
            kdma(5, 1)
        e("s_mul_i32 %s, %s, %d" % (sr(S_PB), sr(S_WAVE), PART_BYTES))
        e("s_add_u32 %s, %s, %d" % (sr(S_PB), sr(S_PB), X_PART))
        e("s_or_b32 %s, %s, %s" % (sr(S_CHOOSE), sr(S_H), sr(S_C)))
        e("s_or_b32 %s, %s, %s" % (sr(S_CHOOSE), sr(S_CHOOSE), sr(S_WAVE)))
        words23(ALL23[1:])
        prof_setup()
        e("s_waitcnt lgkmcnt(0)")
    else:
        e("s_load_dwordx2 %s, s[0:1], 8" % sr(SRD_K, 2))
        if cpf:
            code_prefetch()
        e("v_and_b32 v%d, 63, v0" % V_LANE)
        e("v_lshrrev_b32 v8, 6, v0")
        e("v_mul_u32_u24 v11, 1366, v%d" % V_LANE)
        e("v_readfirstlane_b32 %s, v8" % sr(S_WAVE))
        e("v_lshrrev_b32 v11, 16, v11")
        e("v_xor_b32 v11, v11, v%d" % V_LANE)
        e("v_lshlrev_b32 v%d, 4, v11" % V_SW)
        bases()
        words23(ALL23[:1])
        e("s_mov_b32 m0, %s" % sr(S_XB))
        if prio:
            e("s_setprio 3")
        e("s_waitcnt lgkmcnt(0)")
        g.stamp(0)
        e("buffer_load_dwordx4 v%d, %s, %s offen offset:0%s lds" % (V_SW, sr(SRD_K, 4), sr(S_B0), lm))
        for srd_, off in ((SRD_W, 24), (SRD_V, 16), (SRD_WS, 48), (SRD_DBG, 40), (SRD_Q, 0), (SRD_O, 32)):
            e("s_load_dwordx2 %s, s[0:1], %d" % (sr(srd_, 2), off))
        for jj in range(1, 4):
            sw(jj)
            e("buffer_load_dwordx4 v%d, %s, %s offen offset:%d%s lds" % (V_SW + jj, sr(SRD_K, 4), sr(S_B0), jj * 1024, lm))
        sw(4)
        sw(5)
        bases2()
        words23(ALL23[1:])
        prof_setup()
        e("s_waitcnt lgkmcnt(0)")
    if prof:
        e("s_mov_b64 %s, s[96:97]" % sr(S_ST0 + 24, 2))
    e("v_mov_b32 v%d, 0" % V_B0)
    e("v_and_b32 v9, 15, v0")
    e("v_bfe_u32 v10, v0, 4, 2")

    def kv_stream(sfx, thr):
        mark = len(g.L)
        if fast < 2:
            dma_rows(SRD_K, 4 if fast else 0, 6, lm)
        dma_w()
        e("s_cmp_lg_u32 %s, 0" % sr(S_CHOOSE))
        e("s_cbranch_scc1 L_nochoose%s" % sfx)
        e("buffer_load_dword v%d, v%d, %s, 0 offen%s" % (V_B1, V_B0, sr(SRD_WS, 4), xm))
        e("L_nochoose%s:" % sfx)
        if fast != 2:
            dma_rows(SRD_K, 6, 12, lm)
        e("v_mul_u32_u24 v13, %d, v10" % (4 * RB))
        e("v_lshlrev_b32 v14, 4, v9")
        e("v_add_u32 v%d, v13, v14" % V_OVA)
        e("v_lshlrev_b32 v14, 3, v9")
        e("v_add_u32 v13, 256, v13")
        e("v_add_u32 v%d, v13, v14" % V_OVB)
        g.load_v(lm)
        if thr:
            body = g.L[mark:]
            del g.L[mark:]
            n = (0, 4, 12, 6)[fast]
            for l in body:
                g.L.append(l)
                if "buffer_load" in l and "sc1" not in l:
                    n += 1
                    if n >= thr:
                        g.L.append("    s_waitcnt vmcnt(%d)" % (thr - 1))
    evthr = opts.get("evthr", 12)
    tab = opts.get("thrtab")
    if tab is None:
        tab = [evthr if (x & 1) == opts.get("evpar", 0) else 0 for x in range(8)]
    levels = sorted(set(tab))
    if levels != [0]:
        e("; dies with an even id win the fabric arbitration: they keep at most 12 loads per wave in flight (speed only)")
        e("s_getreg_b32 %s, hwreg(HW_REG_XCC_ID, 0, 3)" % sr(S_T0))
        e("s_lshl_b32 %s, 1, %s" % (sr(S_T0), sr(S_T0)))
        for lv in levels[1:]:
            mask = sum(1 << x for x in range(8) if tab[x] == lv)
            e("s_and_b32 %s, %s, 0x%x" % (sr(S_T1), sr(S_T0), mask))
            e("s_cbranch_scc1 L_thr%d" % lv)
        kv_stream("L%d" % levels[0], levels[0])
        e("s_branch L_kvdone")
        for n_, lv in enumerate(levels[1:]):
            e("L_thr%d:" % lv)
            kv_stream("L%d" % lv, lv)
            if n_ < len(levels) - 2:
                e("s_branch L_kvdone")
        e("L_kvdone:")
    else:
        kv_stream("", 0)
    e("s_cmp_lg_u32 %s, 4" % sr(S_WAVE))
    e("s_cbranch_scc1 L_issued")
    e("buffer_load_dword v%d, v%d, %s, 0 offen sc1" % (V_B0 + 1, V_B0, sr(SRD_DBG, 4)))
    e("L_issued:")
    tlbpf = opts.get("tlbpf", 0)
    if prio:
        e("s_setprio 0")
    e("s_mul_i32 %s, %s, %d" % (sr(S_HPART), sr(S_H), 8 * SL))
    e("s_mul_i32 %s, %s, %d" % (sr(S_T1), sr(S_C), SL))
    e("s_add_u32 %s, %s, %s" % (sr(S_PART), sr(S_HPART), sr(S_T1)))
    e("s_mov_b32 %s, 0x05040100" % sr(S_SELLO))
    e("s_mov_b32 %s, 0x07060302" % sr(S_SELHI))
    e("s_mov_b32 %s, %s" % (sr(S_CEXP), hx(f32(C_EXP))))
    e("s_mov_b32 %s, 0x%x" % (sr(S_MASK), 0xFFFFFFFF ^ TAGMASK))
    e("v_mov_b32 v%d, %s" % (V_CSQ, hx(f32(C_SQ))))
    e("v_mov_b32 v%d, %s" % (V_M15, hx(f32(C_BIAS))))
    e("v_lshrrev_b32 v11, 1, v9")
    e("v_mul_u32_u24 v12, %d, v9" % RB)
    e("v_add_u32 v12, %s, v12" % sr(S_XB))
    e("v_xor_b32 v13, v10, v11")
    e("v_lshl_add_u32 v%d, v13, 4, v12" % V_RE)
    e("v_xor_b32 v13, 4, v13")
    e("v_lshl_add_u32 v%d, v13, 4, v12" % V_RO)
    e("v_and_b32 v9, 7, v9")
    e("v_lshrrev_b32 v11, 1, v9")
    e("v_mul_u32_u24 v12, %d, v9" % RB)
    e("v_add_u32 v12, %s, v12" % sr(S_PB))
    e("v_xor_b32 v13, v10, v11")
    e("v_lshl_add_u32 v%d, v13, 4, v12" % V_T)
    e("v_xor_b32 v13, 4, v13")
    e("v_lshl_add_u32 v%d, v13, 4, v12" % (V_T + 1))
    def chooser_publish():
        e("s_cmp_lg_u32 %s, 0" % sr(S_CHOOSE))
        e("s_cbranch_scc1 L_notchooser")
        if prio:
            e("s_setprio 3")
        e("v_add_u32 v%d, 1, v%d" % (V_B1, V_B1))
        e("v_and_b32 v%d, 0x%x, v%d" % (V_B1, TAGMASK, V_B1))
        e("v_or_b32 v%d, 0x80000000, v%d" % (V_B1, V_B1))
        e("s_mov_b64 exec, 1")
        e("buffer_store_dword v%d, v%d, %s, 0 offen%s" % (V_B1, V_B0, sr(SRD_DBG, 4), xm))
        e("s_mov_b64 exec, -1")
        if prio:
            e("s_setprio 0")
        e("L_notchooser:")
    if fast == 2:
        wait_tagwave(16, "k")
        read_w()
        read_frag(V_K, 0)
        chooser_publish()
        e("s_waitcnt lgkmcnt(6)")
        read_frag(V_K, 1)
        e("s_waitcnt lgkmcnt(6)")
    else:
        wait_tagwave(22, "k0")
        read_w()
        read_frag(V_K, 0)
        wait_tagwave(16, "k1")
        chooser_publish()
        e("s_waitcnt lgkmcnt(6)")
        read_frag(V_K, 1)
        e("s_waitcnt lgkmcnt(6)")
    g.proj(V_K, 0, True)
    e("s_waitcnt lgkmcnt(0)")
    g.proj(V_K, 1, True)
    g.phi(0)
    g.phi(1)
    g.kv_mfma()
    g.stamp(1)
    e("s_waitcnt vmcnt(0)")
    e("s_cmp_lt_u32 %s, 4" % sr(S_WAVE))
    e("s_cbranch_scc1 L_vready")
    if prio:
        e("s_setprio 3")
    e("s_cmp_lg_u32 %s, 4" % sr(S_WAVE))
    e("s_cbranch_scc1 L_vready")
    e("v_readfirstlane_b32 %s, v%d" % (sr(S_N), V_B0 + 1))
    e("s_cmp_lt_i32 %s, 0" % sr(S_N))
    e("s_cbranch_scc1 L_tagput")
    e("s_mov_b32 %s, 0x%x" % (sr(S_T2), SPIN))
    e("L_tagspin:")
    e("buffer_load_dword v%d, v%d, %s, 0 offen sc1" % (V_B0 + 1, V_B0, sr(SRD_DBG, 4)))
    e("s_waitcnt vmcnt(0)")
    e("v_readfirstlane_b32 %s, v%d" % (sr(S_N), V_B0 + 1))
    e("s_sub_u32 %s, %s, 1" % (sr(S_T2), sr(S_T2)))
    e("s_cmp_eq_u32 %s, 0" % sr(S_T2))
    e("s_cbranch_scc1 L_tagput")
    e("s_cmp_ge_i32 %s, 0" % sr(S_N))
    e("s_cbranch_scc1 L_tagspin")
    e("L_tagput:")
    e("s_and_b32 %s, %s, 0x%x" % (sr(S_N), sr(S_N), TAGMASK))
    e("v_mov_b32 v%d, %s" % (V_B0 + 1, sr(S_N)))
    e("v_mov_b32 v%d, %d" % (V_B0, X_N))
    e("ds_write_b32 v%d, v%d" % (V_B0, V_B0 + 1))
    e("L_vready:")
    g.stamp(2)
    g.kv_tiles()
    e("v_lshlrev_b32 v%d, 4, v%d" % (V_B0, V_LANE))
    e("v_add_u32 v%d, %s, v%d" % (V_B0, sr(S_PB), V_B0))
    e("s_mov_b32 exec_lo, -1")
    e("s_mov_b32 exec_hi, 0")
    for tau in range(13):
        e("ds_write_b128 v%d, %s offset:%d" % (V_B0, vr(V_ACC + 4 * tau, 4), tau * 512))
    e("s_mov_b64 exec, -1")
    e("s_cmp_ge_u32 %s, 4" % sr(S_WAVE))
    e("s_cbranch_scc1 L_noq1")
    if tlbpf:
        e("s_cmp_lg_u32 %s, %d" % (sr(S_WAVE), opts.get("tlbw", 1)))
        e("s_cbranch_scc1 L_notlb")
        e("v_mov_b32 v%d, 0" % (V_STG + 2))
        if tlbpf & 1:
            e("buffer_load_dword v%d, v%d, %s, %s offen nt" % (V_STG, V_STG + 2, sr(SRD_O, 4), sr(S_B0)))
        if tlbpf & 2:
            e("buffer_load_dword v%d, v%d, %s, %s offen nt" % (V_STG + 1, V_STG + 2, sr(SRD_WS, 4), sr(S_PART)))
        e("L_notlb:")
    dma_rows(SRD_Q, 0, 12, lm)
    e("L_noq1:")
    g.stamp(10)
    if prio:
        e("s_setprio 3")
    e("v_min_u32 v%d, 415, v0" % (V_B1 + 1))
    e("v_lshlrev_b32 v%d, 4, v%d" % (V_B1, V_B1 + 1))
    e("v_add_u32 v%d, %d, v%d" % (V_B1 + 2, X_PART, V_B1))
    e("v_mov_b32 v%d, %d" % (V_B0, X_N))
    e("s_waitcnt lgkmcnt(0)")
    e("s_barrier")
    g.stamp(3)
    e("ds_read_b32 v%d, v%d" % (V_CNT, V_B0))
    for w in range(8):
        e("ds_read_b128 %s, v%d offset:%d" % (vr(V_ACC + 4 * w, 4), V_B1 + 2, w * PART_BYTES))
    for w in range(1, 8):
        e("s_waitcnt lgkmcnt(%d)" % (7 - w))
        for r in range(4):
            e("v_add_f32 v%d, v%d, v%d" % (V_ACC + r, V_ACC + r, V_ACC + 4 * w + r))
    for r in range(4):
        e("v_bfi_b32 v%d, %s, v%d, v%d" % (V_ACC + r, sr(S_MASK), V_ACC + r, V_CNT))
    e("buffer_store_dwordx4 %s, v%d, %s, %s offen%s" % (vr(V_ACC, 4), V_B1, sr(SRD_WS, 4), sr(S_PART), xm))
    g.stamp(4)
    V_N = V_B0 + 2
    e("v_mov_b32 v%d, v%d" % (V_N, V_CNT))
    e("s_cmp_lt_u32 %s, 4" % sr(S_WAVE))
    e("s_cbranch_scc1 L_early")
    dma_rows(SRD_Q, 0, 12 - qtail, lm)
    g.table_addr(V_B1 + 1)
    e("s_waitcnt vmcnt(%d)" % (12 - qtail))
    e("s_branch L_pbar")
    e("L_early:")
    g.table_addr(V_B1 + 1)
    e("s_waitcnt vmcnt(1)")
    e("L_qproj:")
    read_frag(VQ, 0)
    read_frag(VQ, 1)
    e("s_waitcnt lgkmcnt(6)")
    g.proj(VQ, 0, False)
    g.phi(0)
    g.pack_phi_q(0)
    e("s_waitcnt lgkmcnt(0)")
    g.proj(VQ, 1, False)
    g.phi(1)
    g.pack_phi_q(1)
    e("s_cmp_ge_u32 %s, 4" % sr(S_WAVE))
    e("s_cbranch_scc1 L_out")
    e("s_waitcnt vmcnt(0)")
    e("L_pbar:")
    e("s_barrier")
    PL = V_ACC + 4
    M = V_ACC + 36
    a = V_ACC
    e("s_mov_b32 %s, 0x%x" % (sr(S_T2), SPIN))
    e("s_mov_b32 %s, 0" % sr(S_TAIL))
    e("s_cmp_eq_u32 %s, 7" % sr(S_WAVE))
    e("s_cbranch_scc1 L_skip7")

    def gather_loads():
        e("s_mov_b32 %s, %s" % (sr(S_T0), sr(S_HPART)))
        for c in range(8):
            e("buffer_load_dwordx4 %s, v%d, %s, %s offen%s" % (vr(PL + 4 * c, 4), V_B1, sr(SRD_WS, 4), sr(S_T0), xm))
            if c < 7:
                e("s_add_u32 %s, %s, %d" % (sr(S_T0), sr(S_T0), SL))

    def slot(c):
        for r in range(4):
            e("v_xor_b32 v%d, v%d, v%d" % (PL + 4 * c + r, PL + 4 * c + r, V_N))
        if c == 0:
            e("v_or3_b32 v%d, v%d, v%d, v%d" % (M, PL, PL + 1, PL + 2))
            e("v_or_b32 v%d, v%d, v%d" % (M, M, PL + 3))
        else:
            e("v_or3_b32 v%d, v%d, v%d, v%d" % (M, M, PL + 4 * c, PL + 4 * c + 1))
            e("v_or3_b32 v%d, v%d, v%d, v%d" % (M, M, PL + 4 * c + 2, PL + 4 * c + 3))
        if c == 1:
            for r in range(4):
                e("v_add_f32 v%d, v%d, v%d" % (a + r, PL + r, PL + 4 + r))
        elif c > 1:
            for r in range(4):
                e("v_add_f32 v%d, v%d, v%d" % (a + r, a + r, PL + 4 * c + r))
    if qtail == 0:
        e("L_retry:")
        gather_loads()
        g.stamp(11)
        for c in range(8):
            e("s_waitcnt vmcnt(%d)" % (7 - c))
            slot(c)
    else:
        gather_loads()
        e("s_cmp_lt_u32 %s, 4" % sr(S_WAVE))
        e("s_cbranch_scc1 L_gwait")
        dma_rows(SRD_Q, 12 - qtail, 12, lm)
        e("s_mov_b32 %s, 1" % sr(S_TAIL))
        e("s_branch L_gwait")
        e("L_retry:")
        e("s_mov_b32 %s, 0" % sr(S_TAIL))
        gather_loads()
        e("L_gwait:")
        g.stamp(11)
        for half in range(2):
            n = 4 - 4 * half
            e("s_cmp_eq_u32 %s, 0" % sr(S_TAIL))
            e("s_cbranch_scc1 L_gw%d" % half)
            e("s_waitcnt vmcnt(%d)" % (n + qtail))
            e("s_branch L_gd%d" % half)
            e("L_gw%d:" % half)
            e("s_waitcnt vmcnt(%d)" % n)
            e("L_gd%d:" % half)
            for c in range(4 * half, 4 * half + 4):
                slot(c)
    e("v_and_b32 v%d, 0x%x, v%d" % (M, TAGMASK, M))
    e("v_cmp_ne_u32 %s, 0, v%d" % (sr(S_EXEC, 2), M))
    e("s_sub_u32 %s, %s, 1" % (sr(S_T2), sr(S_T2)))
    e("s_cmp_eq_u32 %s, 0" % sr(S_T2))
    e("s_cbranch_scc1 L_got")
    e("s_cmp_lg_u64 %s, 0" % sr(S_EXEC, 2))
    e("s_cbranch_scc1 L_retry")
    e("L_got:")
    g.stamp(6)
    if prof:
        e("s_sub_u32 %s, 0x%x, %s" % (sr(S_T3), SPIN, sr(S_T2)))
    g.hilo_write(X_TAB)
    e("s_waitcnt lgkmcnt(0)")
    e("s_branch L_C")
    e("L_skip7:")
    if qtail:
        dma_rows(SRD_Q, 12 - qtail, 12, lm)
    e("s_waitcnt vmcnt(0)")
    if prof:
        e("s_mov_b32 %s, 1" % sr(S_T3))
    e("L_C:")
    e("s_barrier")
    g.stamp(7)
    if tailopt:
        e("v_lshlrev_b32 v%d, 3, v%d" % (V_B0, V_LANE))
        for t_ in [12] + list(range(12)):
            e("ds_read_b64 %s, v%d offset:%d" % (vr(V_AT + 2 * t_, 2), V_B0, X_TAB + t_ * 512))
    else:
        g.read_table(X_TAB)
    e("s_cmp_lt_u32 %s, 4" % sr(S_WAVE))
    e("s_cbranch_scc1 L_out")
    if prio:
        e("s_setprio 0")
    e("s_waitcnt vmcnt(0) lgkmcnt(0)")
    e("s_branch L_qproj")
    e("L_out:")
    g.stamp(5)
    if not tailopt:
        e("s_waitcnt lgkmcnt(0)")
    e("v_lshlrev_b32 v%d, 4, v%d" % (V_T, V_LANE))
    e("v_add_u32 v%d, %s, v%d" % (V_T, sr(S_XB), V_T))

    def out_compute(T, accbase):
        den = accbase + 48

        def mf(t):
            if tailopt and T == 0 and (t == 12 or t < 6 or not tailopt & 4):
                e("s_waitcnt lgkmcnt(%d)" % (12 if t == 12 else 11 - t))
            dst = den if t == 12 else accbase + 4 * t
            e("v_mfma_f32_16x16x16_bf16 %s, %s, %s, 0" % (vr(dst, 4), vr(V_AT + 2 * t, 2), vr(V_P + 2 * T, 2)))

        def finish(u):
            x = accbase + 8 * u
            if tailopt & 2:
                for r in range(0, 8, 2):
                    e("v_pk_mul_f32 %s, %s, %s op_sel_hi:[1,0]" % (vr(x + r, 2), vr(x + r, 2), vr(den, 2)))
            else:
                for r in range(8):
                    e("v_mul_f32 v%d, v%d, v%d" % (x + r, x + r, den))
            for r in range(4):
                e("v_cvt_pk_bf16_f32 v%d, v%d, v%d" % (x + r, x + 2 * r, x + 2 * r + 1))
            if tailopt & 4 and T == 0 and u == 0:
                e("s_waitcnt lgkmcnt(0)")
            e("ds_write_b128 v%d, %s offset:%d" % ((V_RE, V_RO)[u & 1], vr(x, 4), T * 6144 + (u >> 1) * 128))
        mf(12)
        if tailopt & 4:
            for t in range(4):
                mf(t)
            e("v_add_f32 v%d, %s, v%d" % (den, hx(f32(1e-6)), den))
            e("v_rcp_f32 v%d, v%d" % (den, den))
            for u in range(6):
                if 2 * u + 4 < 12:
                    mf(2 * u + 4)
                    mf(2 * u + 5)
                finish(u)
        else:
            for t in range(12):
                mf(t)
            e("v_add_f32 v%d, %s, v%d" % (den, hx(f32(1e-6)), den))
            e("v_rcp_f32 v%d, v%d" % (den, den))
            for u in range(6):
                finish(u)

    def out_store(T, stg):
        for jj in range(6):
            e("ds_read_b128 %s, v%d offset:%d" % (vr(stg + 4 * jj, 4), V_T, T * 6144 + jj * 1024))
        for jj in range(6):
            e("s_waitcnt lgkmcnt(%d)" % (5 - jj))
            so = ((S_B0, S_B04), (S_B1, S_B14))[T][jj >> 2]
            if T == 0 and jj == 0:
                g.stamp(13)
            e("buffer_store_dwordx4 %s, v%d, %s, %s offen offset:%d%s" % (
                vr(stg + 4 * jj, 4), V_SW + jj, sr(SRD_O, 4), sr(so), (jj & 3) * 1024, sm))
    out_compute(0, V_ACC)
    e("s_waitcnt lgkmcnt(0)")
    out_store(0, V_STG)
    out_compute(1, V_K - 4)
    e("s_waitcnt lgkmcnt(0)")
    out_store(1, V_ACC)
    g.stamp(8)
    if prof:
        e("s_waitcnt vmcnt(0)")
        g.stamp(9)
        e("s_getreg_b32 %s, hwreg(HW_REG_XCC_ID)" % sr(S_ST0 + 28))
        e("s_and_b32 %s, %s, 15" % (sr(S_ST0 + 28), sr(S_ST0 + 28)))
        e("s_add_u32 %s, %s, 1" % (sr(S_ST0 + 28), sr(S_ST0 + 28)))
        e("s_mov_b32 %s, 0" % sr(S_ST0 + 29))
        g.stamps.add(14)
        g.flush_stamps()
        e("v_mov_b32 v254, %s" % sr(S_T3))
        e("v_mov_b32 v255, 0")
        e("buffer_store_dwordx2 v[254:255], v253, %s, 0 offen offset:%d" % (sr(SRD_WS, 4), 15 * 8))
    e("L_end:")
    e("s_endpgm")
    txt = HEADER8
    txt += "; @launch grid=(256,1,1) block=(512,1,1) lds=%d\n" % X_END
    txt += '.amdgcn_target "amdgcn-amd-amdhsa--gfx950"\n'
    txt += kernel_text(NAME + "_kernel", g)
    txt += kd(NAME + "_kernel")
    return txt


if __name__ == "__main__":
    import argparse
    ap = argparse.ArgumentParser()
    ap.add_argument("-o", default="cdna_kernels/%s.s" % NAME)
    ap.add_argument("--opt", action="append", default=[])
    a = ap.parse_args()
    opts = {}
    for kv in a.opt:
        k, _, v = kv.partition("=")
        opts[k] = ([int(x) for x in v.split(",")] if "," in v else (int(v, 0) if v else 1))
    txt = gen_final(opts)
    open(a.o, "w").write(txt)
    print("wrote", a.o, len(txt))
```

```python
import os, sys
sys.path.insert(0, os.path.dirname(os.path.abspath(__file__)))
from gen import *
import gen as G

X_TAB = 0
X_N = PART_BYTES
X_PART = PART_BYTES + 128
X_XBUF = X_PART + 8 * PART_BYTES
X_END = X_XBUF + 8 * 12288

V_RE, V_RO = 2, 5
V_SW = 128
V_T = 134
V_STG = 136
S_B04, S_B14, S_XB, S_PB, S_CHOOSE = 99, 100, 101, 19, 3
S_MASK = 61
S_N = S_CNT
V_CNT = V_SS + 3
VQ = V_K
SL = PART_BYTES

HEADER8 = """; FAVOR+ random-feature linear attention (B=1, H=32, S=2048, D=192, M=8; bf16 in/out), one fused launch.
;
;  2. The 8 workgroups of a head exchange their partial (kv, z) through d_ws (sc1 stores / loads).  Every dword
"""


def gen_final(opts):
    lm = MODS[opts.get("mod", 1)]
    wm = MODS[opts.get("wmod", 0)]
    sm = MODS[opts.get("smod", 2)]
    xm = MODS[2]
    prio = opts.get("prio", 1)
    SPIN = opts.get("spin", 0x4000)
    prof = opts.get("prof")
    tailopt = opts.get("tailopt", 1)
    qtail = opts.get("qtail", 0)
    S_TAIL = S_T1
    g = Gen(opts)
    e = g

    def dma_rows(srd, lo, hi, mod):
        last = None
        for j in range(lo, hi):
            T, jj = divmod(j, 6)
            grp = (T, jj >> 2)
            if grp != last:
                e("s_add_u32 m0, %s, %d" % (sr(S_XB), T * 6144 + (jj >> 2) * 4096))
                last = grp
            so = ((S_B0, S_B04), (S_B1, S_B14))[T][jj >> 2]
            e("buffer_load_dwordx4 v%d, %s, %s offen offset:%d%s lds" % (V_SW + jj, sr(srd, 4), sr(so), (jj & 3) * 1024, mod))

    def dma_w():
        e("s_mov_b32 m0, %s" % sr(S_PB))
        for jj in range(3):
            e("buffer_load_dwordx4 v%d, %s, 0 offen offset:%d%s lds" % (V_SW + jj, sr(SRD_W, 4), jj * 1024, wm))

    def read_frag(vbase, T):
        for t in range(6):
            e("ds_read_b128 %s, v%d offset:%d" % (vr(vbase + 24 * T + 4 * t, 4), (V_RE, V_RO)[t & 1], T * 6144 + (t >> 1) * 128))

    def read_w():
        for t in range(6):
            e("ds_read_b128 %s, v%d offset:%d" % (vr(V_W + 4 * t, 4), V_T + (t & 1), (t >> 1) * 128))

    def wait_tagwave(n_plain, tag):
        e("s_cmp_eq_u32 %s, 4" % sr(S_WAVE))
        e("s_cbranch_scc1 L_w4_%s" % tag)
        e("s_waitcnt vmcnt(%d)" % n_plain)
        e("s_branch L_wd_%s" % tag)
        e("L_w4_%s:" % tag)
        e("s_waitcnt vmcnt(%d)" % (n_plain + 1))
        e("L_wd_%s:" % tag)

    if prof:
        e("s_memrealtime s[96:97]")
    e("s_cmp_ge_u32 s2, 256")
    e("s_cbranch_scc1 L_end")
    fast = opts.get("fastpro", 3)
    cpf = opts.get("cpf", 1)

    def code_prefetch():
        e("; the first wave reads one dword per 128-B line of this kernel's code: warms the L2 for instruction fetch")
        e("s_getpc_b64 s[92:93]")
        e("L_pc:")
        e("v_lshlrev_b32 v16, 7, v0")
        e("v_min_u32 v16, L_end-L_pc, v16")
        e("v_mov_b32 v17, s93")
        e("v_add_co_u32 v16, vcc, s92, v16")
        e("v_addc_co_u32 v17, vcc, 0, v17, vcc")
        e("v_cmp_gt_u32 vcc, 64, v0")
        e("s_and_saveexec_b64 s[94:95], vcc")
        e("s_cbranch_execz L_nocpf")
        e("global_load_dword v254, v[16:17], off")
        e("L_nocpf:")
        e("s_mov_b64 exec, s[94:95]")

    def sw(jj):
        if jj:
            e("v_add_u32 v11, %d, v%d" % (64 * jj, V_LANE))
        e("v_mul_u32_u24 v11, 1366, %s" % ("v11" if jj else "v%d" % V_LANE))
        e("v_lshrrev_b32 v11, 16, v11")
        e("v_xor_b32 v11, v11, v%d" % V_LANE)
        e("v_lshlrev_b32 v%d, 4, v11" % (V_SW + jj))

    def bases():
        e("; ---- head h = (wg & 7) | (wg >> 6) << 3, chunk c = (wg >> 3) & 7, byte bases of the 32 rows of this wave ----")
        if opts.get("xmap"):
            e("s_lshr_b32 %s, s2, 3" % sr(S_H))
            e("s_and_b32 %s, s2, 7" % sr(S_C))
        else:
            e("s_and_b32 %s, s2, 7" % sr(S_T0))
            e("s_lshr_b32 %s, s2, 6" % sr(S_T1))
            e("s_lshl_b32 %s, %s, 3" % (sr(S_T1), sr(S_T1)))
            e("s_or_b32 %s, %s, %s" % (sr(S_H), sr(S_T0), sr(S_T1)))
            e("s_bfe_u32 %s, s2, 0x30003" % sr(S_C))
        e("s_mul_i32 %s, %s, %d" % (sr(S_T0), sr(S_H), 2048 * RB))
        e("s_mul_i32 %s, %s, %d" % (sr(S_T1), sr(S_C), 256 * RB))
        e("s_add_u32 %s, %s, %s" % (sr(S_T0), sr(S_T0), sr(S_T1)))
        e("s_mul_i32 %s, %s, %d" % (sr(S_XB), sr(S_WAVE), 32 * RB))
        e("s_add_u32 %s, %s, %s" % (sr(S_B0), sr(S_T0), sr(S_XB)))
        e("s_add_u32 %s, %s, %d" % (sr(S_XB), sr(S_XB), X_XBUF))

    def bases2():
        e("s_add_u32 %s, %s, %d" % (sr(S_B1), sr(S_B0), 16 * RB))
        e("s_add_u32 %s, %s, 4096" % (sr(S_B04), sr(S_B0)))
        e("s_add_u32 %s, %s, 4096" % (sr(S_B14), sr(S_B1)))
        e("s_mul_i32 %s, %s, %d" % (sr(S_PB), sr(S_WAVE), PART_BYTES))
        e("s_add_u32 %s, %s, %d" % (sr(S_PB), sr(S_PB), X_PART))
        e("s_or_b32 %s, %s, %s" % (sr(S_CHOOSE), sr(S_H), sr(S_C)))
        e("s_or_b32 %s, %s, %s" % (sr(S_CHOOSE), sr(S_CHOOSE), sr(S_WAVE)))

    def words23(lst):
        for srd_, nbytes in lst:
            e("s_mov_b32 %s, 0x%x" % (sr(srd_ + 2), nbytes))
            e("s_mov_b32 %s, 0x20000" % sr(srd_ + 3))

    def prof_setup():
        if prof:
            e("s_lshl_b32 %s, s2, 3" % sr(S_PROF))
            e("s_add_u32 %s, %s, %s" % (sr(S_PROF), sr(S_PROF), sr(S_WAVE)))
            e("s_lshl_b32 %s, %s, 7" % (sr(S_PROF), sr(S_PROF)))
            e("s_add_u32 %s, %s, 0x%x" % (sr(S_PROF), sr(S_PROF), 128 << 20))
            for i_ in range(1, 12):
                e("s_mov_b64 %s, 0" % sr(S_ST0 + 2 * i_, 2))
            e("s_mov_b64 s[94:95], 0")
            g.stamps = set(getattr(g, 'stamps', set()))
            g.stamps.add(12)
    ALL23 = ((SRD_K, TENSOR_BYTES), (SRD_W, 8 * RB), (SRD_V, TENSOR_BYTES), (SRD_WS, WS_BYTES),
             (SRD_DBG, 256), (SRD_Q, TENSOR_BYTES), (SRD_O, TENSOR_BYTES))
    if not fast:
        for srd_, off in ((SRD_K, 8), (SRD_W, 24), (SRD_V, 16), (SRD_WS, 48), (SRD_DBG, 40), (SRD_Q, 0), (SRD_O, 32)):
            e("s_load_dwordx2 %s, s[0:1], %d" % (sr(srd_, 2), off))
        if cpf:
            code_prefetch()
        e("v_and_b32 v%d, 63, v0" % V_LANE)
        e("v_lshrrev_b32 v8, 6, v0")
        e("v_mul_u32_u24 v11, 1366, v%d" % V_LANE)
        e("v_readfirstlane_b32 %s, v8" % sr(S_WAVE))
        e("v_lshrrev_b32 v11, 16, v11")
        e("v_xor_b32 v11, v11, v%d" % V_LANE)
        e("v_lshlrev_b32 v%d, 4, v11" % V_SW)
        for jj in range(1, 6):
            sw(jj)
        bases()
        bases2()
        words23(ALL23)
        if prio:
            e("s_setprio 3")
        prof_setup()
        e("s_waitcnt lgkmcnt(0)")
        g.stamp(0)
    elif fast in (2, 3):
        e("s_load_dwordx2 %s, s[0:1], 8" % sr(SRD_K, 2))
        if cpf:
            code_prefetch()
        e("v_and_b32 v%d, 63, v0" % V_LANE)
        e("v_lshrrev_b32 v8, 6, v0")
        e("v_add_u32 v12, 16, v%d" % V_LANE)
        e("v_readfirstlane_b32 %s, v8" % sr(S_WAVE))
        e("v_lshlrev_b32 v11, 4, v%d" % V_LANE)
        e("v_lshrrev_b32 v12, 2, v12")
        e("v_and_b32 v12, 16, v12")
        e("v_xor_b32 v%d, v11, v12" % V_SW)
        bases()
        words23(ALL23[:1])
        e("s_mov_b32 m0, %s" % sr(S_XB))
        if prio:
            e("s_setprio 3")
        e("s_waitcnt lgkmcnt(0)")
        g.stamp(0)

        def kdma(jj, T):
            so = ((S_B0, S_B04), (S_B1, S_B14))[T][jj >> 2]
            e("buffer_load_dwordx4 v%d, %s, %s offen offset:%d%s lds" % (V_SW + jj, sr(SRD_K, 4), sr(so), (jj & 3) * 1024, lm))
        kdma(0, 0)

        def other_pointers():
            for srd_, off in ((SRD_W, 24), (SRD_V, 16), (SRD_WS, 48), (SRD_DBG, 40), (SRD_Q, 0), (SRD_O, 32)):
                e("s_load_dwordx2 %s, s[0:1], %d" % (sr(srd_, 2), off))
        if fast == 3:
            other_pointers()
        e("v_lshrrev_b32 v13, 1, v%d" % V_LANE)
        e("v_and_b32 v13, 16, v13")
        e("v_add_u32 v14, 16, v13")
        e("v_xor_b32 v%d, v11, v14" % (V_SW + 1))
        kdma(1, 0)
        e("v_add_u32 v15, 48, v%d" % V_LANE)
        e("v_lshrrev_b32 v15, 2, v15")
        e("v_and_b32 v15, 16, v15")
        e("v_add_u32 v14, 32, v15")
        e("v_xor_b32 v%d, v11, v14" % (V_SW + 2))
        kdma(2, 0)
        e("v_add_u32 v14, 64, v12")
        e("v_xor_b32 v%d, v11, v14" % (V_SW + 3))
        kdma(3, 0)
        e("v_add_u32 v14, 80, v13")
        e("s_add_u32 %s, %s, 4096" % (sr(S_B04), sr(S_B0)))
        e("s_add_u32 m0, %s, 4096" % sr(S_XB))
        e("v_xor_b32 v%d, v11, v14" % (V_SW + 4))
        kdma(4, 0)
        e("v_add_u32 v14, 96, v15")
        e("s_add_u32 %s, %s, %d" % (sr(S_B1), sr(S_B0), 16 * RB))
        e("v_xor_b32 v%d, v11, v14" % (V_SW + 5))
        kdma(5, 0)
        e("s_add_u32 %s, %s, 4096" % (sr(S_B14), sr(S_B1)))
        if fast == 2:
            e("s_add_u32 m0, %s, 6144" % sr(S_XB))
            e("s_nop 0")
            for jj in range(4):
                kdma(jj, 1)
            e("s_add_u32 m0, %s, 10240" % sr(S_XB))
            other_pointers()
            kdma(4, 1)
            kdma(5, 1)
        e("s_mul_i32 %s, %s, %d" % (sr(S_PB), sr(S_WAVE), PART_BYTES))
        e("s_add_u32 %s, %s, %d" % (sr(S_PB), sr(S_PB), X_PART))
        e("s_or_b32 %s, %s, %s" % (sr(S_CHOOSE), sr(S_H), sr(S_C)))
        e("s_or_b32 %s, %s, %s" % (sr(S_CHOOSE), sr(S_CHOOSE), sr(S_WAVE)))
        words23(ALL23[1:])
        prof_setup()
        e("s_waitcnt lgkmcnt(0)")
    else:
        e("s_load_dwordx2 %s, s[0:1], 8" % sr(SRD_K, 2))
        if cpf:
            code_prefetch()
        e("v_and_b32 v%d, 63, v0" % V_LANE)
        e("v_lshrrev_b32 v8, 6, v0")
        e("v_mul_u32_u24 v11, 1366, v%d" % V_LANE)
        e("v_readfirstlane_b32 %s, v8" % sr(S_WAVE))
        e("v_lshrrev_b32 v11, 16, v11")
        e("v_xor_b32 v11, v11, v%d" % V_LANE)
        e("v_lshlrev_b32 v%d, 4, v11" % V_SW)
        bases()
        words23(ALL23[:1])
        e("s_mov_b32 m0, %s" % sr(S_XB))
        if prio:
            e("s_setprio 3")
        e("s_waitcnt lgkmcnt(0)")
        g.stamp(0)
        e("buffer_load_dwordx4 v%d, %s, %s offen offset:0%s lds" % (V_SW, sr(SRD_K, 4), sr(S_B0), lm))
        for srd_, off in ((SRD_W, 24), (SRD_V, 16), (SRD_WS, 48), (SRD_DBG, 40), (SRD_Q, 0), (SRD_O, 32)):
            e("s_load_dwordx2 %s, s[0:1], %d" % (sr(srd_, 2), off))
        for jj in range(1, 4):
            sw(jj)
            e("buffer_load_dwordx4 v%d, %s, %s offen offset:%d%s lds" % (V_SW + jj, sr(SRD_K, 4), sr(S_B0), jj * 1024, lm))
        sw(4)
        sw(5)
        bases2()
        words23(ALL23[1:])
        prof_setup()
        e("s_waitcnt lgkmcnt(0)")
    if prof:
        e("s_mov_b64 %s, s[96:97]" % sr(S_ST0 + 24, 2))
    e("v_mov_b32 v%d, 0" % V_B0)
    e("v_and_b32 v9, 15, v0")
    e("v_bfe_u32 v10, v0, 4, 2")

    def kv_stream(sfx, thr):
        mark = len(g.L)
        if fast < 2:
            dma_rows(SRD_K, 4 if fast else 0, 6, lm)
        dma_w()
        e("s_cmp_lg_u32 %s, 0" % sr(S_CHOOSE))
        e("s_cbranch_scc1 L_nochoose%s" % sfx)
        e("buffer_load_dword v%d, v%d, %s, 0 offen%s" % (V_B1, V_B0, sr(SRD_WS, 4), xm))
        e("L_nochoose%s:" % sfx)
        if fast != 2:
            dma_rows(SRD_K, 6, 12, lm)
        e("v_mul_u32_u24 v13, %d, v10" % (4 * RB))
        e("v_lshlrev_b32 v14, 4, v9")
        e("v_add_u32 v%d, v13, v14" % V_OVA)
        e("v_lshlrev_b32 v14, 3, v9")
        e("v_add_u32 v13, 256, v13")
        e("v_add_u32 v%d, v13, v14" % V_OVB)
        g.load_v(lm)
        if thr:
            body = g.L[mark:]
            del g.L[mark:]
            n = (0, 4, 12, 6)[fast]
            for l in body:
                g.L.append(l)
                if "buffer_load" in l and "sc1" not in l:
                    n += 1
                    if n >= thr:
                        g.L.append("    s_waitcnt vmcnt(%d)" % (thr - 1))
    evthr = opts.get("evthr", 12)
    tab = opts.get("thrtab")
    if tab is None:
        tab = [evthr if (x & 1) == opts.get("evpar", 0) else 0 for x in range(8)]
    levels = sorted(set(tab))
    if levels != [0]:
        e("; dies with an even id win the fabric arbitration: they keep at most 12 loads per wave in flight (speed only)")
        e("s_getreg_b32 %s, hwreg(HW_REG_XCC_ID, 0, 3)" % sr(S_T0))
        e("s_lshl_b32 %s, 1, %s" % (sr(S_T0), sr(S_T0)))
        for lv in levels[1:]:
            mask = sum(1 << x for x in range(8) if tab[x] == lv)
            e("s_and_b32 %s, %s, 0x%x" % (sr(S_T1), sr(S_T0), mask))
            e("s_cbranch_scc1 L_thr%d" % lv)
        kv_stream("L%d" % levels[0], levels[0])
        e("s_branch L_kvdone")
        for n_, lv in enumerate(levels[1:]):
            e("L_thr%d:" % lv)
            kv_stream("L%d" % lv, lv)
            if n_ < len(levels) - 2:
                e("s_branch L_kvdone")
        e("L_kvdone:")
    else:
        kv_stream("", 0)
    e("s_cmp_lg_u32 %s, 4" % sr(S_WAVE))
    e("s_cbranch_scc1 L_issued")
    e("buffer_load_dword v%d, v%d, %s, 0 offen sc1" % (V_B0 + 1, V_B0, sr(SRD_DBG, 4)))
    e("L_issued:")
    tlbpf = opts.get("tlbpf", 0)
    if prio:
        e("s_setprio 0")
    e("s_mul_i32 %s, %s, %d" % (sr(S_HPART), sr(S_H), 8 * SL))
    e("s_mul_i32 %s, %s, %d" % (sr(S_T1), sr(S_C), SL))
    e("s_add_u32 %s, %s, %s" % (sr(S_PART), sr(S_HPART), sr(S_T1)))
    e("s_mov_b32 %s, 0x05040100" % sr(S_SELLO))
    e("s_mov_b32 %s, 0x07060302" % sr(S_SELHI))
    e("s_mov_b32 %s, %s" % (sr(S_CEXP), hx(f32(C_EXP))))
    e("s_mov_b32 %s, 0x%x" % (sr(S_MASK), 0xFFFFFFFF ^ TAGMASK))
    e("v_mov_b32 v%d, %s" % (V_CSQ, hx(f32(C_SQ))))
    e("v_mov_b32 v%d, %s" % (V_M15, hx(f32(C_BIAS))))
    e("v_lshrrev_b32 v11, 1, v9")
    e("v_mul_u32_u24 v12, %d, v9" % RB)
    e("v_add_u32 v12, %s, v12" % sr(S_XB))
    e("v_xor_b32 v13, v10, v11")
    e("v_lshl_add_u32 v%d, v13, 4, v12" % V_RE)
    e("v_xor_b32 v13, 4, v13")
    e("v_lshl_add_u32 v%d, v13, 4, v12" % V_RO)
    e("v_and_b32 v9, 7, v9")
    e("v_lshrrev_b32 v11, 1, v9")
    e("v_mul_u32_u24 v12, %d, v9" % RB)
    e("v_add_u32 v12, %s, v12" % sr(S_PB))
    e("v_xor_b32 v13, v10, v11")
    e("v_lshl_add_u32 v%d, v13, 4, v12" % V_T)
    e("v_xor_b32 v13, 4, v13")
    e("v_lshl_add_u32 v%d, v13, 4, v12" % (V_T + 1))
    def chooser_publish():
        e("s_cmp_lg_u32 %s, 0" % sr(S_CHOOSE))
        e("s_cbranch_scc1 L_notchooser")
        if prio:
            e("s_setprio 3")
        e("v_add_u32 v%d, 1, v%d" % (V_B1, V_B1))
        e("v_and_b32 v%d, 0x%x, v%d" % (V_B1, TAGMASK, V_B1))
        e("v_or_b32 v%d, 0x80000000, v%d" % (V_B1, V_B1))
        e("s_mov_b64 exec, 1")
        e("buffer_store_dword v%d, v%d, %s, 0 offen%s" % (V_B1, V_B0, sr(SRD_DBG, 4), xm))
        e("s_mov_b64 exec, -1")
        if prio:
            e("s_setprio 0")
        e("L_notchooser:")
    if fast == 2:
        wait_tagwave(16, "k")
        read_w()
        read_frag(V_K, 0)
        chooser_publish()
        e("s_waitcnt lgkmcnt(6)")
        read_frag(V_K, 1)
        e("s_waitcnt lgkmcnt(6)")
    else:
        wait_tagwave(22, "k0")
        read_w()
        read_frag(V_K, 0)
        wait_tagwave(16, "k1")
        chooser_publish()
        e("s_waitcnt lgkmcnt(6)")
        read_frag(V_K, 1)
        e("s_waitcnt lgkmcnt(6)")
    g.proj(V_K, 0, True)
    e("s_waitcnt lgkmcnt(0)")
    g.proj(V_K, 1, True)
    g.phi(0)
    g.phi(1)
    g.kv_mfma()
    g.stamp(1)
    e("s_waitcnt vmcnt(0)")
    e("s_cmp_lt_u32 %s, 4" % sr(S_WAVE))
    e("s_cbranch_scc1 L_vready")
    if prio:
        e("s_setprio 3")
    e("s_cmp_lg_u32 %s, 4" % sr(S_WAVE))
    e("s_cbranch_scc1 L_vready")
    e("v_readfirstlane_b32 %s, v%d" % (sr(S_N), V_B0 + 1))
    e("s_cmp_lt_i32 %s, 0" % sr(S_N))
    e("s_cbranch_scc1 L_tagput")
    e("s_mov_b32 %s, 0x%x" % (sr(S_T2), SPIN))
    e("L_tagspin:")
    e("buffer_load_dword v%d, v%d, %s, 0 offen sc1" % (V_B0 + 1, V_B0, sr(SRD_DBG, 4)))
    e("s_waitcnt vmcnt(0)")
    e("v_readfirstlane_b32 %s, v%d" % (sr(S_N), V_B0 + 1))
    e("s_sub_u32 %s, %s, 1" % (sr(S_T2), sr(S_T2)))
    e("s_cmp_eq_u32 %s, 0" % sr(S_T2))
    e("s_cbranch_scc1 L_tagput")
    e("s_cmp_ge_i32 %s, 0" % sr(S_N))
    e("s_cbranch_scc1 L_tagspin")
    e("L_tagput:")
    e("s_and_b32 %s, %s, 0x%x" % (sr(S_N), sr(S_N), TAGMASK))
    e("v_mov_b32 v%d, %s" % (V_B0 + 1, sr(S_N)))
    e("v_mov_b32 v%d, %d" % (V_B0, X_N))
    e("ds_write_b32 v%d, v%d" % (V_B0, V_B0 + 1))
    e("L_vready:")
    g.stamp(2)
    g.kv_tiles()
    e("v_lshlrev_b32 v%d, 4, v%d" % (V_B0, V_LANE))
    e("v_add_u32 v%d, %s, v%d" % (V_B0, sr(S_PB), V_B0))
    e("s_mov_b32 exec_lo, -1")
    e("s_mov_b32 exec_hi, 0")
    for tau in range(13):
        e("ds_write_b128 v%d, %s offset:%d" % (V_B0, vr(V_ACC + 4 * tau, 4), tau * 512))
    e("s_mov_b64 exec, -1")
    e("s_cmp_ge_u32 %s, 4" % sr(S_WAVE))
    e("s_cbranch_scc1 L_noq1")
    if tlbpf:
        e("s_cmp_lg_u32 %s, %d" % (sr(S_WAVE), opts.get("tlbw", 1)))
        e("s_cbranch_scc1 L_notlb")
        e("v_mov_b32 v%d, 0" % (V_STG + 2))
        if tlbpf & 1:
            e("buffer_load_dword v%d, v%d, %s, %s offen nt" % (V_STG, V_STG + 2, sr(SRD_O, 4), sr(S_B0)))
        if tlbpf & 2:
            e("buffer_load_dword v%d, v%d, %s, %s offen nt" % (V_STG + 1, V_STG + 2, sr(SRD_WS, 4), sr(S_PART)))
        e("L_notlb:")
    dma_rows(SRD_Q, 0, 12, lm)
    e("L_noq1:")
    g.stamp(10)
    if prio:
        e("s_setprio 3")
    e("v_min_u32 v%d, 415, v0" % (V_B1 + 1))
    e("v_lshlrev_b32 v%d, 4, v%d" % (V_B1, V_B1 + 1))
    e("v_add_u32 v%d, %d, v%d" % (V_B1 + 2, X_PART, V_B1))
    e("v_mov_b32 v%d, %d" % (V_B0, X_N))
    e("s_waitcnt lgkmcnt(0)")
    e("s_barrier")
    g.stamp(3)
    e("ds_read_b32 v%d, v%d" % (V_CNT, V_B0))
    for w in range(8):
        e("ds_read_b128 %s, v%d offset:%d" % (vr(V_ACC + 4 * w, 4), V_B1 + 2, w * PART_BYTES))
    for w in range(1, 8):
        e("s_waitcnt lgkmcnt(%d)" % (7 - w))
        for r in range(4):
            e("v_add_f32 v%d, v%d, v%d" % (V_ACC + r, V_ACC + r, V_ACC + 4 * w + r))
    for r in range(4):
        e("v_bfi_b32 v%d, %s, v%d, v%d" % (V_ACC + r, sr(S_MASK), V_ACC + r, V_CNT))
    e("buffer_store_dwordx4 %s, v%d, %s, %s offen%s" % (vr(V_ACC, 4), V_B1, sr(SRD_WS, 4), sr(S_PART), xm))
    g.stamp(4)
    V_N = V_B0 + 2
    e("v_mov_b32 v%d, v%d" % (V_N, V_CNT))
    e("s_cmp_lt_u32 %s, 4" % sr(S_WAVE))
    e("s_cbranch_scc1 L_early")
    dma_rows(SRD_Q, 0, 12 - qtail, lm)
    g.table_addr(V_B1 + 1)
    e("s_waitcnt vmcnt(%d)" % (12 - qtail))
    e("s_branch L_pbar")
    e("L_early:")
    g.table_addr(V_B1 + 1)
    e("s_waitcnt vmcnt(1)")
    e("L_qproj:")
    read_frag(VQ, 0)
    read_frag(VQ, 1)
    e("s_waitcnt lgkmcnt(6)")
    g.proj(VQ, 0, False)
    g.phi(0)
    g.pack_phi_q(0)
    e("s_waitcnt lgkmcnt(0)")
    g.proj(VQ, 1, False)
    g.phi(1)
    g.pack_phi_q(1)
    e("s_cmp_ge_u32 %s, 4" % sr(S_WAVE))
    e("s_cbranch_scc1 L_out")
    e("s_waitcnt vmcnt(0)")
    e("L_pbar:")
    e("s_barrier")
    PL = V_ACC + 4
    M = V_ACC + 36
    a = V_ACC
    e("s_mov_b32 %s, 0x%x" % (sr(S_T2), SPIN))
    e("s_mov_b32 %s, 0" % sr(S_TAIL))
    e("s_cmp_eq_u32 %s, 7" % sr(S_WAVE))
    e("s_cbranch_scc1 L_skip7")

    def gather_loads():
        e("s_mov_b32 %s, %s" % (sr(S_T0), sr(S_HPART)))
        for c in range(8):
            e("buffer_load_dwordx4 %s, v%d, %s, %s offen%s" % (vr(PL + 4 * c, 4), V_B1, sr(SRD_WS, 4), sr(S_T0), xm))
            if c < 7:
                e("s_add_u32 %s, %s, %d" % (sr(S_T0), sr(S_T0), SL))

    def slot(c):
        for r in range(4):
            e("v_xor_b32 v%d, v%d, v%d" % (PL + 4 * c + r, PL + 4 * c + r, V_N))
        if c == 0:
            e("v_or3_b32 v%d, v%d, v%d, v%d" % (M, PL, PL + 1, PL + 2))
            e("v_or_b32 v%d, v%d, v%d" % (M, M, PL + 3))
        else:
            e("v_or3_b32 v%d, v%d, v%d, v%d" % (M, M, PL + 4 * c, PL + 4 * c + 1))
            e("v_or3_b32 v%d, v%d, v%d, v%d" % (M, M, PL + 4 * c + 2, PL + 4 * c + 3))
        if c == 1:
            for r in range(4):
                e("v_add_f32 v%d, v%d, v%d" % (a + r, PL + r, PL + 4 + r))
        elif c > 1:
            for r in range(4):
                e("v_add_f32 v%d, v%d, v%d" % (a + r, a + r, PL + 4 * c + r))
    if qtail == 0:
        e("L_retry:")
        gather_loads()
        g.stamp(11)
        for c in range(8):
            e("s_waitcnt vmcnt(%d)" % (7 - c))
            slot(c)
    else:
        gather_loads()
        e("s_cmp_lt_u32 %s, 4" % sr(S_WAVE))
        e("s_cbranch_scc1 L_gwait")
        dma_rows(SRD_Q, 12 - qtail, 12, lm)
        e("s_mov_b32 %s, 1" % sr(S_TAIL))
        e("s_branch L_gwait")
        e("L_retry:")
        e("s_mov_b32 %s, 0" % sr(S_TAIL))
        gather_loads()
        e("L_gwait:")
        g.stamp(11)
        for half in range(2):
            n = 4 - 4 * half
            e("s_cmp_eq_u32 %s, 0" % sr(S_TAIL))
            e("s_cbranch_scc1 L_gw%d" % half)
            e("s_waitcnt vmcnt(%d)" % (n + qtail))
            e("s_branch L_gd%d" % half)
            e("L_gw%d:" % half)
            e("s_waitcnt vmcnt(%d)" % n)
            e("L_gd%d:" % half)
            for c in range(4 * half, 4 * half + 4):
                slot(c)
    e("v_and_b32 v%d, 0x%x, v%d" % (M, TAGMASK, M))
    e("v_cmp_ne_u32 %s, 0, v%d" % (sr(S_EXEC, 2), M))
    e("s_sub_u32 %s, %s, 1" % (sr(S_T2), sr(S_T2)))
    e("s_cmp_eq_u32 %s, 0" % sr(S_T2))
    e("s_cbranch_scc1 L_got")
    e("s_cmp_lg_u64 %s, 0" % sr(S_EXEC, 2))
    e("s_cbranch_scc1 L_retry")
    e("L_got:")
    g.stamp(6)
    if prof:
        e("s_sub_u32 %s, 0x%x, %s" % (sr(S_T3), SPIN, sr(S_T2)))
    g.hilo_write(X_TAB)
    e("s_waitcnt lgkmcnt(0)")
    e("s_branch L_C")
    e("L_skip7:")
    if qtail:
        dma_rows(SRD_Q, 12 - qtail, 12, lm)
    e("s_waitcnt vmcnt(0)")
    if prof:
        e("s_mov_b32 %s, 1" % sr(S_T3))
    e("L_C:")
    e("s_barrier")
    g.stamp(7)
    if tailopt:
        e("v_lshlrev_b32 v%d, 3, v%d" % (V_B0, V_LANE))
        for t_ in [12] + list(range(12)):
            e("ds_read_b64 %s, v%d offset:%d" % (vr(V_AT + 2 * t_, 2), V_B0, X_TAB + t_ * 512))
    else:
        g.read_table(X_TAB)
    e("s_cmp_lt_u32 %s, 4" % sr(S_WAVE))
    e("s_cbranch_scc1 L_out")
    if prio:
        e("s_setprio 0")
    e("s_waitcnt vmcnt(0) lgkmcnt(0)")
    e("s_branch L_qproj")
    e("L_out:")
    g.stamp(5)
    if not tailopt:
        e("s_waitcnt lgkmcnt(0)")
    e("v_lshlrev_b32 v%d, 4, v%d" % (V_T, V_LANE))
    e("v_add_u32 v%d, %s, v%d" % (V_T, sr(S_XB), V_T))

    def out_compute(T, accbase):
        den = accbase + 48

        def mf(t):
            if tailopt and T == 0 and (t == 12 or t < 6 or not tailopt & 4):
                e("s_waitcnt lgkmcnt(%d)" % (12 if t == 12 else 11 - t))
            dst = den if t == 12 else accbase + 4 * t
            e("v_mfma_f32_16x16x16_bf16 %s, %s, %s, 0" % (vr(dst, 4), vr(V_AT + 2 * t, 2), vr(V_P + 2 * T, 2)))

        def finish(u):
            x = accbase + 8 * u
            if tailopt & 2:
                for r in range(0, 8, 2):
                    e("v_pk_mul_f32 %s, %s, %s op_sel_hi:[1,0]" % (vr(x + r, 2), vr(x + r, 2), vr(den, 2)))
            else:
                for r in range(8):
                    e("v_mul_f32 v%d, v%d, v%d" % (x + r, x + r, den))
            for r in range(4):
                e("v_cvt_pk_bf16_f32 v%d, v%d, v%d" % (x + r, x + 2 * r, x + 2 * r + 1))
            if tailopt & 4 and T == 0 and u == 0:
                e("s_waitcnt lgkmcnt(0)")
            e("ds_write_b128 v%d, %s offset:%d" % ((V_RE, V_RO)[u & 1], vr(x, 4), T * 6144 + (u >> 1) * 128))
        mf(12)
        if tailopt & 4:
            for t in range(4):
                mf(t)
            e("v_add_f32 v%d, %s, v%d" % (den, hx(f32(1e-6)), den))
            e("v_rcp_f32 v%d, v%d" % (den, den))
            for u in range(6):
                if 2 * u + 4 < 12:
                    mf(2 * u + 4)
                    mf(2 * u + 5)
                finish(u)
        else:
            for t in range(12):
                mf(t)
            e("v_add_f32 v%d, %s, v%d" % (den, hx(f32(1e-6)), den))
            e("v_rcp_f32 v%d, v%d" % (den, den))
            for u in range(6):
                finish(u)

    def out_store(T, stg):
        for jj in range(6):
            e("ds_read_b128 %s, v%d offset:%d" % (vr(stg + 4 * jj, 4), V_T, T * 6144 + jj * 1024))
        for jj in range(6):
            e("s_waitcnt lgkmcnt(%d)" % (5 - jj))
            so = ((S_B0, S_B04), (S_B1, S_B14))[T][jj >> 2]
            if T == 0 and jj == 0:
                g.stamp(13)
            e("buffer_store_dwordx4 %s, v%d, %s, %s offen offset:%d%s" % (
                vr(stg + 4 * jj, 4), V_SW + jj, sr(SRD_O, 4), sr(so), (jj & 3) * 1024, sm))
    out_compute(0, V_ACC)
    e("s_waitcnt lgkmcnt(0)")
    out_store(0, V_STG)
    out_compute(1, V_K - 4)
    e("s_waitcnt lgkmcnt(0)")
    out_store(1, V_ACC)
    g.stamp(8)
    if prof:
        e("s_waitcnt vmcnt(0)")
        g.stamp(9)
        e("s_getreg_b32 %s, hwreg(HW_REG_XCC_ID)" % sr(S_ST0 + 28))
        e("s_and_b32 %s, %s, 15" % (sr(S_ST0 + 28), sr(S_ST0 + 28)))
        e("s_add_u32 %s, %s, 1" % (sr(S_ST0 + 28), sr(S_ST0 + 28)))
        e("s_mov_b32 %s, 0" % sr(S_ST0 + 29))
        g.stamps.add(14)
        g.flush_stamps()
        e("v_mov_b32 v254, %s" % sr(S_T3))
        e("v_mov_b32 v255, 0")
        e("buffer_store_dwordx2 v[254:255], v253, %s, 0 offen offset:%d" % (sr(SRD_WS, 4), 15 * 8))
    e("L_end:")
    e("s_endpgm")
    txt = HEADER8
    txt += "; @launch grid=(256,1,1) block=(512,1,1) lds=%d\n" % X_END
    txt += '.amdgcn_target "amdgcn-amd-amdhsa--gfx950"\n'
    txt += kernel_text(NAME + "_kernel", g)
    txt += kd(NAME + "_kernel")
    return txt


if __name__ == "__main__":
    import argparse
    ap = argparse.ArgumentParser()
    ap.add_argument("-o", default="cdna_kernels/%s.s" % NAME)
    ap.add_argument("--opt", action="append", default=[])
    a = ap.parse_args()
    opts = {}
    for kv in a.opt:
        k, _, v = kv.partition("=")
        opts[k] = ([int(x) for x in v.split(",")] if "," in v else (int(v, 0) if v else 1))
    txt = gen_final(opts)
    open(a.o, "w").write(txt)
    print("wrote", a.o, len(txt))
```
